```python
import torch

def _softmax(x, axis=-1):
    return torch.softmax(x, dim=axis)
def _gelu(x):
    return torch.nn.functional.gelu(x, approximate="tanh")
def _silu(x):
    return torch.nn.functional.silu(x)
def _sigmoid(x):
    return torch.sigmoid(x)
def _layernorm(x, axis=-1, eps=1e-5):
    m = x.mean(dim=axis, keepdim=True)
    v = x.var(dim=axis, keepdim=True, unbiased=False)
    return (x - m) / torch.sqrt(v + eps)
def _scatter_add(tgt, idx, src, axis=0):
    return tgt.clone().index_add_(axis, idx, src)
def _segment_sum(src, seg, n):
    out = torch.zeros((n,) + src.shape[1:], dtype=src.dtype)
    return out.index_add_(0, seg, src)
def _pad(x, pw):
    flat = tuple(v for pair in reversed(pw) for v in pair)
    return torch.nn.functional.pad(x, flat)

kernel_name = 'gated_mix__ssm_conv_h3__grouped_kv_mqa__prompt'

def setup_inputs():

    _w = (lambda a: (lambda t: t.to(torch.bfloat16) if t.is_floating_point() else t)(torch.as_tensor(a)))
    def _A_setup():
        B, S, D = 1, 2048, 512
        ks = 4
        return {
            "q": _w((lambda *s: torch.randn(*s, dtype=torch.bfloat16) * 0.05)(B, S, D)),
            "k": _w((lambda *s: torch.randn(*s, dtype=torch.bfloat16) * 0.2)(B, S, D)),
            "v": _w((lambda *s: torch.randn(*s, dtype=torch.bfloat16) * 0.2)(B, S, D)),
            "shift_k": _w((lambda *s: torch.randn(*s, dtype=torch.bfloat16) * 0.2)(D, ks) * 0.5),
            "ssm_k": _w((lambda *s: torch.randn(*s, dtype=torch.bfloat16) * 0.8)(D, S) * (1.0 / S ** 0.5)),
            "ssm_D": _w((lambda *s: torch.randn(*s, dtype=torch.bfloat16) * 0.2)(D)),
        }
    _A_in = _A_setup()

    def _B_setup():
        B, S, D, H = 1, 2048, 512, 32
        Dh = D // H
        return {
            "x": _w((lambda *s: torch.randn(*s, dtype=torch.bfloat16) * 0.05)(B, S, D)),
            "wq": _w((lambda *s: torch.randn(*s, dtype=torch.bfloat16) * 0.8)(D, H * Dh)),
            "wk": _w((lambda *s: torch.randn(*s, dtype=torch.bfloat16) * 0.8)(D, Dh)),
            "wv": _w((lambda *s: torch.randn(*s, dtype=torch.bfloat16) * 0.05)(D, Dh)),
            "wo": _w((lambda *s: torch.randn(*s, dtype=torch.bfloat16) * 0.05)(H * Dh, D)),
        }
    _B_in = _B_setup()

    return {
        "A_q": _A_in["q"],
        "A_k": _A_in["k"],
        "A_v": _A_in["v"],
        "A_shift_k": _A_in["shift_k"],
        "A_ssm_k": _A_in["ssm_k"],
        "A_ssm_D": _A_in["ssm_D"],
        "B_x": _B_in["x"],
        "B_wq": _B_in["wq"],
        "B_wk": _B_in["wk"],
        "B_wv": _B_in["wv"],
        "B_wo": _B_in["wo"],
        "gate_w": _w((lambda *s: torch.randn(*s, dtype=torch.bfloat16) * 0.05)(512) * 16.0),
    }

def reference(A_q, A_k, A_v, A_shift_k, A_ssm_k, A_ssm_D, B_x, B_wq, B_wk, B_wv, B_wo, gate_w):
    def _A_ref(q, k, v, shift_k, ssm_k, ssm_D):
        B, S, D = q.shape
        ks = shift_k.shape[-1]
        k_pad = _pad(k, ((0, 0), (ks - 1, 0), (0, 0)))
        k_shift = torch.zeros_like(k)
        for t in range(ks):
            k_shift = k_shift + k_pad[:, t:t + S, :] * shift_k[:, ks - 1 - t][None, None, :]
        kv = k_shift * v
        L = 2 * S
        kv_pad = _pad(kv, ((0, 0), (0, S), (0, 0)))
        kf_pad = _pad(ssm_k, ((0, 0), (0, S)))
        kv_f = (lambda x, axes=(-2,-1): torch.fft.rfft2(x.float(), dim=axes))(kv_pad[:, None, :, :], axes=(1, 2))
        kf_f = (lambda x, axes=(-2,-1): torch.fft.rfft2(x.float(), dim=axes))(kf_pad[:, None, :], axes=(1, 2))
        kf_f = (lambda x, *d: x.permute(*d))(kf_f, 1, 2, 0)
        y_f = kv_f * kf_f[None, :, :, :]
        y = (lambda x, s, axes=(-2,-1): torch.fft.irfft2(x, s=s, dim=axes).to(torch.bfloat16))(y_f, (1, L), axes=(1, 2))[:, 0, :S, :]
        y = y + kv * ssm_D[None, None, :]
        return q * y

    def _B_ref(x, wq, wk, wv, wo):
        B, S, D = x.shape
        H = 32
        Dh = D // H
        q = (lambda x, *d: x.permute(*d))((x @ wq).reshape(B, S, H, Dh), 0, 2, 1, 3)
        k = x @ wk
        v = x @ wv
        scores = torch.einsum("bhqd,bkd->bhqk", q, k) * (Dh ** -0.5)
        p = _softmax(scores, axis=-1)
        o = torch.einsum("bhqk,bkd->bhqd", p, v)
        return (lambda x, *d: x.permute(*d))(o, 0, 2, 1, 3).reshape(B, S, H * Dh) @ wo

    x = A_q
    g = _sigmoid((x * gate_w).sum(-1, keepdims=True))
    a = _A_ref(x, A_k, A_v, A_shift_k, A_ssm_k, A_ssm_D)
    b = _B_ref(x, B_wq, B_wk, B_wv, B_wo)
    return g * a + (1 - g) * b
```

```python
import re

TRANS = ("v_exp_f32", "v_log_f32", "v_rcp_f32", "v_rsq_f32", "v_sqrt_f32", "v_sin_f32", "v_cos_f32",
         "v_exp_f16", "v_rcp_iflag_f32")
RMW = ("v_fmac_f32", "v_dot2c_f32_bf16", "v_pk_fmac_f16", "v_mov_b32_sdwa", "v_writelane_b32")

def regs_of(tok):
    tok = tok.strip()
    tok = tok.lstrip("-")
    m = re.match(r"^(?:abs\()?\|?([vsa])\[(\d+):(\d+)\]\|?\)?$", tok)
    if m:
        return [(m.group(1), i) for i in range(int(m.group(2)), int(m.group(3)) + 1)]
    m = re.match(r"^(?:abs\()?\|?([vsa])(\d+)\|?\)?$", tok)
    if m:
        return [(m.group(1), int(m.group(2)))]
    if tok == "vcc": return [("s", "vcc_lo"), ("s", "vcc_hi")]
    if tok in ("vcc_lo", "vcc_hi"): return [("s", tok)]
    if tok == "exec": return [("s", "exec_lo"), ("s", "exec_hi")]
    if tok in ("exec_lo", "exec_hi"): return [("s", tok)]
    if tok == "m0": return [("s", "m0")]
    return []

class Ins:
    def __init__(self, text):
        self.text = text
        t = text.split(";")[0].strip()
        self.label = None
        self.op = None
        self.dst = []; self.src = []
        self.kind = None
        if not t or t.startswith("."):
            self.kind = "dir"; return
        if t.endswith(":"):
            self.label = t[:-1]; self.kind = "label"; return
        parts = t.split(None, 1)
        op = parts[0]; self.op = op
        rest = parts[1] if len(parts) > 1 else ""
        ops = []; depth = 0; cur = ""
        for ch in rest:
            if ch in "[(": depth += 1
            if ch in "])": depth -= 1
            if ch == "," and depth == 0:
                ops.append(cur.strip()); cur = ""
            else:
                cur += ch
        if cur.strip(): ops.append(cur.strip())
        mods = ""
        if ops:
            sp = ops[-1].split(None, 1)
            if len(sp) > 1:
                ops[-1] = sp[0]; mods = sp[1]
        self.ops = ops; self.mods = mods
        R = regs_of
        base = re.sub(r"_(e32|e64|dpp|sdwa)$", "", op)
        self.base = base
        self.dpp = op.endswith("_dpp") or "row_" in mods or "quad_perm" in mods
        if op.startswith("v_mfma") or op.startswith("v_smfmac"):
            self.kind = "mfma"
            self.passes = 8 if "32x32" in op else 4
            self.dst = R(ops[0]); self.srcA = R(ops[1]); self.srcB = R(ops[2]); self.srcC = R(ops[3])
            self.src = self.srcA + self.srcB + self.srcC
        elif op.startswith("v_"):
            self.kind = "valu"
            if base.startswith("v_cmp"):
                self.dst = R(ops[0]); self.src = sum((R(o) for o in ops[1:]), [])
                if base.startswith("v_cmpx"): self.dst += R("exec")
            elif base.startswith("v_permlane") and "swap" in base:
                self.dst = R(ops[0]) + R(ops[1]); self.src = list(self.dst)
            elif base in ("v_add_co_u32", "v_sub_co_u32", "v_addc_co_u32", "v_subb_co_u32"):
                self.dst = R(ops[0]) + R(ops[1]); self.src = sum((R(o) for o in ops[2:]), [])
            else:
                self.dst = R(ops[0]); self.src = sum((R(o) for o in ops[1:]), [])
                if base in RMW or op in RMW or self.dpp: self.src += self.dst
        elif op.startswith("ds_"):
            self.kind = "ds"
            if op.startswith("ds_read") or "_rtn" in op or op.startswith("ds_bpermute") or op.startswith("ds_swizzle") or op.startswith("ds_permute"):
                self.dst = R(ops[0]); self.src = sum((R(o) for o in ops[1:]), [])
            else:
                self.src = sum((R(o) for o in ops), [])
        elif op.startswith("buffer_") or op.startswith("global_"):
            self.kind = "vmem"
            if not ops or op in ("buffer_inv", "buffer_wbl2"):
                self.lds = False; self.wide_store = False; return
            self.lds = (" lds" in " " + mods) or "load_lds" in op
            if "load" in op and not self.lds:
                self.dst = R(ops[0]); self.src = sum((R(o) for o in ops[1:]), [])
                if "d16" in op: self.src += self.dst
            elif "atomic" in op and "sc0" in mods:
                self.dst = R(ops[0]); self.src = sum((R(o) for o in ops), [])
            else:
                self.src = sum((R(o) for o in ops), [])
            if self.lds: self.src += R("m0")
            self.wide_store = ("store" in op and ("x4" in op or "x3" in op))
            if self.wide_store:
                self.store_data = R(ops[0]) if op.startswith("buffer_") else R(ops[1])
        elif op.startswith("s_"):
            self.kind = "salu"
            if op in ("s_nop",):
                self.kind = "nop"; self.n = int(ops[0], 0) + 1
            elif op.startswith("s_cbranch") or op == "s_branch":
                self.kind = "branch"; self.target = ops[0]
            elif op in ("s_waitcnt", "s_barrier", "s_endpgm", "s_setprio", "s_sleep"):
                pass
            elif op.startswith("s_cmp"):
                self.src = sum((R(o) for o in ops), [])
            else:
                self.dst = R(ops[0]); self.src = sum((R(o) for o in ops[1:]), [])
                if "saveexec" in op: self.dst += R("exec")
        else:
            raise ValueError("unknown instruction: " + text)

    def states(self):
        if self.kind in ("dir", "label"): return 0
        if self.kind == "nop": return self.n
        return 1

def need(p, c):
    n = 0
    pd = set(p.dst)
    if p.kind == "valu":
        vd = {r for r in pd if r[0] in "va"}
        sd = {r for r in pd if r[0] == "s"}
        if c.kind == "mfma" and vd & set(c.src): n = max(n, 2)
        if c.kind == "mfma" and ("s", "exec_lo") in sd: n = max(n, 4)
        if c.kind == "valu":
            cs = set(c.src)
            if p.base in TRANS and c.base not in TRANS and vd & cs: n = max(n, 1)
            if p.base in TRANS and c.base in TRANS and vd & cs: n = max(n, 1)
            if c.base.startswith("v_permlane") and vd & cs: n = max(n, 2)
            if c.dpp and vd & cs: n = max(n, 2)
            if c.dpp and ("s", "exec_lo") in sd: n = max(n, 5)
            if c.base in ("v_readlane_b32", "v_readfirstlane_b32") and vd & cs: n = max(n, 1)
            if sd & cs:
                n = max(n, 4 if c.base in ("v_readlane_b32", "v_writelane_b32") else 2)
            if ("sdwa" in p.op or "op_sel" in p.mods) and vd & (cs | set(c.dst)): n = max(n, 1)
        if p.base.startswith("v_dot") and c.kind in ("valu", "mfma", "vmem", "ds") and vd & (set(c.src) | set(c.dst)): n = max(n, 3)
        if c.kind == "vmem" and sd & set(c.src): n = max(n, 5)
        if c.kind in ("salu",) and sd & set(c.src): n = max(n, 1)
    if p.kind == "mfma":
        P = p.passes
        if c.kind == "mfma":
            if pd & set(c.srcC):
                if list(c.srcC) == list(p.dst) and c.passes == P: pass
                else: n = max(n, {4: 6, 8: 10}[P])
            if pd & set(c.srcA + c.srcB): n = max(n, {4: 8, 8: 12}[P])
            if pd & set(c.dst) and not (pd & set(c.srcC)): n = max(n, {4: 8, 8: 12}[P])
        elif c.kind in ("valu", "vmem", "ds"):
            if pd & (set(c.src) | set(c.dst)): n = max(n, {4: 8, 8: 12}[P])
        if c.kind == "valu" and set(p.srcC) & set(c.dst): n = max(n, {4: 3, 8: 7}[P])
    if p.kind == "salu" and ("s", "m0") in pd and c.kind == "vmem" and getattr(c, "lds", False): n = max(n, 1)
    if p.kind == "vmem" and getattr(p, "wide_store", False):
        if c.kind in ("valu", "mfma") and set(p.store_data) & set(c.dst): n = max(n, 2)
        elif c.kind in ("ds", "vmem") and set(p.store_data) & set(c.dst): n = max(n, 1)
    return n

WINDOW = 14

class Asm:
    def __init__(self):
        self.lines = []
    def __call__(self, s):
        for l in s.split("\n"):
            if l.strip(): self.lines.append(l.strip())
    def label(self, n): self.lines.append(n + ":")

    def finish(self, verbose=True):
        ins = [Ins(l) for l in self.lines]
        out = []
        def dist_back(seq, c):
            req = 0; d = 0
            for p in reversed(seq):
                if d >= WINDOW: break
                if p.kind in ("dir", "label"): continue
                if p.kind == "branch" and p.op == "s_branch": break
                if p.op == "s_endpgm": break
                r = need(p, c)
                if r - d > req: req = r - d
                d += p.states()
            return req
        nins = 0
        for c in ins:
            if c.kind not in ("dir", "label"):
                r = dist_back(out, c)
                if r > 0:
                    out.append(Ins(f"s_nop {r-1}")); nins += 1
            out.append(c)
        lab = {c.label: i for i, c in enumerate(out) if c.kind == "label"}
        errs = []
        for i, b in enumerate(out):
            if b.kind == "branch" and b.target in lab:
                pre = [x for x in out[max(0, i - 40): i]] + [Ins("s_nop 0")]
                j = lab[b.target]; seq = list(pre); cnt = 0
                while j < len(out) and cnt < WINDOW:
                    c = out[j]
                    if c.kind not in ("dir", "label"):
                        r = dist_back(seq, c)
                        if r > 0: errs.append(f"branch edge hazard: {b.text} -> {c.text} needs {r} more")
                        cnt += c.states()
                        if c.kind == "branch" and c.op == "s_branch": break
                        if c.op == "s_endpgm": break
                    seq.append(c); j += 1
        if errs:
            raise RuntimeError("\n".join(errs))
        txt = []
        for c in out:
            txt.append(c.text if c.kind in ("label", "dir") else "    " + c.text)
        return "\n".join(txt) + "\n"
```

```python
import sys, math
from asmlib import Asm

NAME = "gated_mix__ssm_conv_h3__grouped_kv_mqa__prompt"
WS_Q, WS_KV, WS_KMAX, WS_G, WS_XREV, WS_O, WS_Y = 0x000000, 0x200000, 0x220000, 0x221000, 0x300000, 0x500000, 0x700000
WS_SIZE = 0x900000
CSCALE = 0.25 * math.log2(math.e)
import struct
def f32(x): return "0x%08x" % struct.unpack("<I", struct.pack("<f", x))[0]

def srd(a, d, lo, hi, size):
    a(f"s_mov_b32 s{d}, s{lo}\ns_mov_b32 s{d+1}, s{hi}\ns_mov_b32 s{d+2}, {size}\ns_mov_b32 s{d+3}, 0x20000")

def srd_off(a, d, lo, hi, off, size):
    a(f"s_add_u32 s{d}, s{lo}, {off}\ns_addc_u32 s{d+1}, s{hi}, 0\ns_mov_b32 s{d+2}, {size}\ns_mov_b32 s{d+3}, 0x20000")

def dma(a, voff, srdn, soff, m0):
    a(f"s_mov_b32 m0, {m0}")
    a(f"buffer_load_dwordx4 v{voff}, s[{srdn}:{srdn+3}], {soff} offen lds")

def wg_decode(a, sS0, sN0):
    a(f"""s_and_b32 s60, s2, 7
    s_lshl_b32 s60, s60, 2
    s_lshr_b32 s61, s2, 3
    s_and_b32 s62, s61, 3
    s_add_u32 s60, s60, s62
    s_lshr_b32 s61, s61, 2
    s_lshl_b32 s{sS0}, s60, 6
    s_lshl_b32 s{sN0}, s61, 6""")

XT, WT = 0, 65536

def gemm_dma_addr(a, vX0, vX1, vW, vl, sW, sN0, tmp):
    t0, t1 = tmp, tmp + 1
    a(f"""s_lshl_b32 s63, s{sW}, 3
    v_lshrrev_b32 v{t0}, 4, v{vl}
    v_add_u32 v{t0}, s63, v{t0}
    v_and_b32 v{t1}, 15, v{vl}
    v_xor_b32 v{vX0}, v{t0}, v{t1}
    v_and_b32 v{vX0}, 15, v{vX0}
    v_lshlrev_b32 v{vX0}, 4, v{vX0}
    v_lshl_add_u32 v{vX0}, v{t0}, 10, v{vX0}
    v_add_u32 v{t0}, 4, v{t0}
    v_xor_b32 v{vX1}, v{t0}, v{t1}
    v_and_b32 v{vX1}, 15, v{vX1}
    v_lshlrev_b32 v{vX1}, 4, v{vX1}
    v_lshl_add_u32 v{vX1}, v{t0}, 10, v{vX1}""")
    a(f"""v_lshrrev_b32 v{t0}, 3, v{vl}
    v_lshlrev_b32 v{t1}, 1, v{t0}
    v_and_b32 v{t1}, 4, v{t1}
    v_and_b32 v{vW}, 7, v{vl}
    v_xor_b32 v{vW}, v{vW}, v{t1}
    v_lshlrev_b32 v{vW}, 4, v{vW}
    v_lshl_add_u32 v{vW}, v{t0}, 10, v{vW}
    s_lshl_b32 s63, s{sN0}, 1
    v_add_u32 v{vW}, s63, v{vW}""")

def gemm_dma_chunk(a, kc, vX0, vX1, vW, srdX, srdW, sW, sXbase):
    a(f"s_add_u32 s64, s{sXbase}, {kc*256}")
    a(f"s_lshl_b32 s65, s{sW}, 11")
    a(f"s_add_u32 s66, s65, {XT + kc*16384}")
    dma(a, vX0, srdX, "s64", "s66")
    a(f"s_add_u32 s66, s66, 1024")
    dma(a, vX1, srdX, "s64", "s66")
    a(f"s_lshl_b32 s67, s{sW}, 14")
    a(f"s_add_u32 s67, s67, {kc*128*1024}")
    a(f"s_add_u32 s66, s65, {WT + kc*16384}")
    dma(a, vW, srdW, "s67", "s66")
    a(f"s_add_u32 s67, s67, 8192")
    a(f"s_add_u32 s66, s66, 1024")
    dma(a, vW, srdW, "s67", "s66")

def gemm_read_addr(a, vB, vA, vl, sW, tmp, phi):
    t0, t1, t2 = tmp, tmp + 1, tmp + 2
    a(f"""s_lshr_b32 s63, s{sW}, 1
    s_lshl_b32 s63, s63, 13
    v_and_b32 v{t0}, 31, v{vl}
    v_lshrrev_b32 v{t1}, 5, v{vl}
    v_and_b32 v{t2}, 15, v{vl}
    v_xor_b32 v{t2}, v{t2}, v{t1}
    v_lshlrev_b32 v{t2}, 4, v{t2}
    v_lshl_add_u32 v{t2}, v{t0}, 8, v{t2}
    v_add_u32 v{vB}, s63, v{t2}""")
    for e in range(1, 8):
        a(f"v_xor_b32 v{vB+e}, {e*32}, v{vB}")
    a(f"""s_and_b32 s63, s{sW}, 1
    v_bfe_u32 v{t0}, v{vl}, 2, 2
    v_lshrrev_b32 v{t2}, 1, v{t0}
    v_xor_b32 v{t2}, s63, v{t2}
    v_lshlrev_b32 v{t2}, 6, v{t2}
    v_lshl_add_u32 v{t0}, v{t1}, {2 if phi else 3}, v{t0}
    v_lshl_add_u32 v{t2}, v{t0}, 7, v{t2}
    v_bfe_u32 v{t0}, v{vl}, 4, 1
    v_lshl_add_u32 v{t2}, v{t0}, 5, v{t2}
    v_and_b32 v{t0}, 3, v{vl}
    v_lshl_add_u32 v{t2}, v{t0}, 3, v{t2}
    v_add_u32 v{vA}, {WT}, v{t2}""")

def gemm_chunk(a, kc, vB, vA, FA, FB, ACC, phi, first):
    tstep = 1024 if phi else 512
    def reads(e):
        a(f"ds_read_b128 v[{FB+4*e}:{FB+4*e+3}], v{vB+e} offset:{kc*16384}")
        a(f"ds_read_b64_tr_b16 v[{FA+4*e}:{FA+4*e+1}], v{vA} offset:{kc*16384 + e*2048}")
        a(f"ds_read_b64_tr_b16 v[{FA+4*e+2}:{FA+4*e+3}], v{vA} offset:{kc*16384 + e*2048 + tstep}")
    for e in range(4): reads(e)
    for e in range(8):
        left = min(7, e + 3) - e
        a(f"s_waitcnt lgkmcnt({3*left})")
        c = "0" if (first and e == 0) else f"v[{ACC}:{ACC+15}]"
        a(f"v_mfma_f32_32x32x16_bf16 v[{ACC}:{ACC+15}], v[{FA+4*e}:{FA+4*e+3}], v[{FB+4*e}:{FB+4*e+3}], {c}")
        if e + 4 < 8: reads(e + 4)

def k1():
    a = Asm()
    WKV, KT, VT = 131072, 147456, 155648
    a.label("k1_kernel")
    a("""s_cmp_ge_u32 s2, 256
    s_cbranch_scc1 k1_end
    s_load_dwordx4 s[4:7], s[0:1], 0
    s_load_dwordx4 s[8:11], s[0:1], 16
    s_load_dwordx4 s[12:15], s[0:1], 56
    s_load_dwordx2 s[16:17], s[0:1], 72
    s_load_dwordx2 s[18:19], s[0:1], 88
    s_load_dwordx2 s[20:21], s[0:1], 112
    v_lshrrev_b32 v2, 6, v0
    v_and_b32 v1, 63, v0
    v_readfirstlane_b32 s3, v2""")
    wg_decode(a, 56, 57)
    a("s_lshl_b32 s58, s56, 10")
    gemm_dma_addr(a, 4, 5, 6, 1, 3, 57, 8)
    a("""v_lshrrev_b32 v8, 3, v1
    v_and_b32 v7, 7, v1
    v_lshlrev_b32 v7, 4, v7
    v_lshl_add_u32 v7, v8, 10, v7
    s_lshl_b32 s63, s57, 1
    v_add_u32 v7, s63, v7
    s_waitcnt lgkmcnt(0)""")
    srd(a, 24, 4, 5, 0x200000)
    srd(a, 28, 12, 13, 0x80000)
    srd(a, 32, 6, 7, 0x200000)
    srd(a, 36, 8, 9, 0x200000)
    srd(a, 44, 20, 21, WS_SIZE)
    a("""s_cmp_ge_u32 s3, 4
    s_cbranch_scc1 k1_kv""")
    def kv_tile_dma():
        a("""s_lshl_b32 s64, s3, 13
        s_add_u32 s64, s64, s58
        s_lshl_b32 s65, s3, 10""")
        a(f"s_add_u32 s66, s65, {KT}")
        dma(a, 7, 32, "s64", "s66")
        a(f"s_add_u32 s66, s65, {VT}")
        dma(a, 7, 36, "s64", "s66")
    kv_tile_dma()
    for kc in range(4): gemm_dma_chunk(a, kc, 4, 5, 6, 24, 28, 3, 58)
    gemm_read_addr(a, 16, 24, 1, 3, 8, False)
    ACC, FA, FB = 32, 48, 80
    for kc in range(4):
        a(f"s_waitcnt vmcnt({12 - 4*kc})\ns_barrier")
        gemm_chunk(a, kc, 16, 24, FA, FB, ACC, False, kc == 0)
    a("""s_lshr_b32 s63, s3, 1
    s_lshl_b32 s63, s63, 15
    s_add_u32 s63, s63, s58
    s_and_b32 s64, s3, 1
    s_lshl_b32 s64, s64, 6
    s_add_u32 s63, s63, s64
    s_lshl_b32 s64, s57, 1
    s_add_u32 s63, s63, s64
    v_and_b32 v8, 31, v1
    v_lshrrev_b32 v9, 5, v1
    v_lshlrev_b32 v9, 4, v9
    v_lshl_add_u32 v8, v8, 10, v9""")
    for i in range(8):
        a(f"v_cvt_pk_bf16_f32 v{FA+i}, v{ACC+2*i}, v{ACC+2*i+1}")
    a(f"buffer_store_dwordx4 v[{FA}:{FA+3}], v8, s[44:47], s63 offen offset:{WS_Q}")
    a(f"buffer_store_dwordx4 v[{FA+4}:{FA+7}], v8, s[44:47], s63 offen offset:{WS_Q+32}")
    a("s_endpgm")
    a.label("k1_kv")
    a("""s_and_b32 s59, s61, 1
    s_lshr_b32 s68, s61, 1
    s_sub_u32 s69, s3, 4
    s_cmp_eq_u32 s59, 0
    s_cselect_b32 s40, s14, s16
    s_cselect_b32 s41, s15, s17
    s_mov_b32 s42, 0x4000
    s_mov_b32 s43, 0x20000""")
    srd(a, 48, 10, 11, 4096)
    srd(a, 52, 18, 19, 1024)
    GW = 128
    a("""s_cmp_lg_u32 s3, 7
    s_cbranch_scc1 k1_nogw
    s_cmp_lg_u32 s59, 0
    s_cbranch_scc1 k1_nogw
    v_lshrrev_b32 v8, 4, v1
    v_lshlrev_b32 v8, 4, v8""")
    for i in range(16):
        a(f"buffer_load_dwordx4 v[{GW+4*i}:{GW+4*i+3}], v8, s[52:55], 0 offen offset:{64*i}")
    a.label("k1_nogw")
    a("""v_add_u32 v8, s57, v1
    v_lshlrev_b32 v9, 3, v8
    buffer_load_dwordx2 v[10:11], v9, s[48:51], 0 offen
    s_lshl_b32 s64, s69, 14
    s_add_u32 s64, s64, s58
    s_sub_u32 s64, s64, 3072
    v_lshlrev_b32 v9, 1, v8
    v_add_u32 v9, s64, v9
    buffer_load_ushort v12, v9, s[32:35], 0 offen
    buffer_load_ushort v13, v9, s[32:35], 0 offen offset:1024
    buffer_load_ushort v14, v9, s[32:35], 0 offen offset:2048""")
    kv_tile_dma()
    a("v_lshlrev_b32 v15, 4, v1")
    for kc in range(4):
        gemm_dma_chunk(a, kc, 4, 5, 6, 24, 28, 3, 58)
        a(f"s_lshl_b32 s64, s69, 10\ns_add_u32 s64, s64, {kc*4096}\ns_add_u32 s66, s64, {WKV}")
        dma(a, 15, 40, "s64", "s66")
    a(f"""v_bfe_u32 v16, v1, 2, 2
    v_lshlrev_b32 v16, 7, v16
    v_lshrrev_b32 v17, 4, v1
    v_lshl_add_u32 v16, v17, 5, v16
    v_and_b32 v17, 3, v1
    v_lshl_add_u32 v16, v17, 3, v16
    s_lshl_b32 s64, s69, 11
    s_add_u32 s64, s64, {KT}
    v_add_u32 v16, s64, v16""")
    a(f"""v_and_b32 v17, 15, v1
    v_lshrrev_b32 v18, 4, v1
    v_xor_b32 v19, v17, v18
    v_lshlrev_b32 v19, 4, v19
    v_lshl_add_u32 v19, v17, 8, v19
    s_lshl_b32 s64, s68, 12
    v_add_u32 v20, s64, v19
    v_xor_b32 v21, 64, v20
    v_xor_b32 v22, 128, v20
    v_xor_b32 v23, 192, v20
    v_bfe_u32 v19, v1, 2, 2
    v_lshl_add_u32 v19, v18, 3, v19
    v_lshlrev_b32 v19, 5, v19
    v_and_b32 v24, 3, v1
    v_lshl_add_u32 v24, v24, 3, v19
    v_add_u32 v24, {WKV}, v24""")
    JD, JG, JX, JW = 28, 32, 96, 112
    def job_chunk(kc):
        lbl = f"k1_nojob{kc}"
        a(f"s_cmp_lg_u32 s3, 7\ns_cbranch_scc1 {lbl}")
        for e in range(4):
            a(f"ds_read_b128 v[{JX+4*e}:{JX+4*e+3}], v{20+e} offset:{kc*16384}")
            a(f"ds_read_b64_tr_b16 v[{JW+4*e}:{JW+4*e+1}], v24 offset:{kc*4096 + e*1024}")
            a(f"ds_read_b64_tr_b16 v[{JW+4*e+2}:{JW+4*e+3}], v24 offset:{kc*4096 + e*1024 + 128}")
        a(f"s_waitcnt lgkmcnt(0)\ns_cmp_lg_u32 s59, 0\ns_cbranch_scc1 {lbl}_v")
        for e in range(4):
            c = "0" if (kc == 0 and e == 0) else f"v[{JD}:{JD+3}]"
            a(f"v_mfma_f32_16x16x32_bf16 v[{JD}:{JD+3}], v[{JW+4*e}:{JW+4*e+3}], v[{JX+4*e}:{JX+4*e+3}], {c}")
            c = "0" if (kc == 0 and e == 0) else f"v[{JG}:{JG+3}]"
            g = GW + 16*kc + 4*e
            a(f"v_mfma_f32_16x16x32_bf16 v[{JG}:{JG+3}], v[{g}:{g+3}], v[{JX+4*e}:{JX+4*e+3}], {c}")
        a(f"s_branch {lbl}")
        a.label(f"{lbl}_v")
        for e in range(4):
            c = "0" if (kc == 0 and e == 0) else f"v[{JD}:{JD+3}]"
            a(f"v_mfma_f32_16x16x32_bf16 v[{JD}:{JD+3}], v[{JX+4*e}:{JX+4*e+3}], v[{JW+4*e}:{JW+4*e+3}], {c}")
        a.label(lbl)
    KR, VR, KF, VF = 36, 44, 52, 72
    a("s_waitcnt vmcnt(15)\ns_barrier")
    for i in range(4):
        a(f"ds_read_b64_tr_b16 v[{KR+2*i}:{KR+2*i+1}], v16 offset:{i*512}")
    for i in range(4):
        a(f"ds_read_b64_tr_b16 v[{VR+2*i}:{VR+2*i+1}], v16 offset:{8192 + i*512}")
    job_chunk(0)
    a("""v_lshlrev_b32 v88, 16, v10
    v_and_b32 v89, 0xffff0000, v10
    v_lshlrev_b32 v90, 16, v11
    v_and_b32 v91, 0xffff0000, v11""")
    for i in range(3): a(f"v_lshlrev_b32 v{KF+i}, 16, v{12+i}")
    a("s_waitcnt lgkmcnt(0)")
    for i in range(8):
        a(f"v_lshlrev_b32 v{KF+3+2*i}, 16, v{KR+i}\nv_and_b32 v{KF+4+2*i}, 0xffff0000, v{KR+i}")
    for i in range(8):
        a(f"v_lshlrev_b32 v{VF+2*i}, 16, v{VR+i}\nv_and_b32 v{VF+1+2*i}, 0xffff0000, v{VR+i}")
    a("s_waitcnt vmcnt(10)\ns_barrier")
    job_chunk(1)
    for s in range(16):
        t = 36 + (s % 8)
        a(f"v_mul_f32 v{t}, v{KF+s}, v91")
        a(f"v_fmac_f32 v{t}, v{KF+s+1}, v90")
        a(f"v_fmac_f32 v{t}, v{KF+s+2}, v89")
        a(f"v_fmac_f32 v{t}, v{KF+s+3}, v88")
        a(f"v_mul_f32 v{VF+s}, v{t}, v{VF+s}")
    a("s_waitcnt vmcnt(5)\ns_barrier")
    job_chunk(2)
    for q in range(8):
        a(f"v_cvt_pk_bf16_f32 v{44+q}, v{VF+15-2*q}, v{VF+14-2*q}")
    a(f"""s_lshl_b32 s64, s69, 4
    s_add_u32 s64, s64, s56
    s_lshl_b32 s64, s64, 1
    s_sub_u32 s64, {WS_XREV + 4064}, s64
    v_lshlrev_b32 v9, 12, v8
    buffer_store_dwordx4 v[44:47], v9, s[44:47], s64 offen
    buffer_store_dwordx4 v[48:51], v9, s[44:47], s64 offen offset:16
    s_waitcnt vmcnt(2)
    s_barrier""")
    job_chunk(3)
    a("s_cmp_lg_u32 s3, 7\ns_cbranch_scc1 k1_end")
    a(f"""s_lshr_b32 s64, s68, 1
    s_lshl_b32 s65, s60, 1
    s_add_u32 s64, s64, s65
    s_lshl_b32 s64, s64, 11
    s_add_u32 s64, s64, {WS_KV}
    s_and_b32 s65, s68, 1
    v_and_b32 v17, 15, v1
    v_lshlrev_b32 v17, 4, v17
    v_lshrrev_b32 v18, 5, v1
    v_lshl_add_u32 v17, v18, 3, v17
    v_bfe_u32 v18, v1, 4, 1
    s_cmp_lg_u32 s59, 0
    s_cbranch_scc1 k1_vepi""")
    a(f"""s_lshl_b32 s65, s65, 8
    s_add_u32 s64, s64, s65
    v_lshl_add_u32 v17, v18, 9, v17
    s_mov_b32 s66, {f32(CSCALE)}""")
    for e in range(4): a(f"v_mul_f32 v{JD+e}, s66, v{JD+e}")
    a(f"""v_cvt_pk_bf16_f32 v36, v{JD}, v{JD+1}
    v_cvt_pk_bf16_f32 v37, v{JD+2}, v{JD+3}
    buffer_store_dwordx2 v[36:37], v17, s[44:47], s64 offen
    v_mul_f32 v38, v{JD}, v{JD}
    v_fmac_f32 v38, v{JD+1}, v{JD+1}
    v_fmac_f32 v38, v{JD+2}, v{JD+2}
    v_fmac_f32 v38, v{JD+3}, v{JD+3}
    v_mov_b32 v39, v38
    v_permlane32_swap_b32 v38, v39
    v_add_f32 v38, v38, v39
    v_mov_b32 v39, v38
    v_permlane16_swap_b32 v38, v39
    v_add_f32 v38, v38, v39
    v_max_f32_dpp v38, v38, v38 row_ror:8 row_mask:0xf bank_mask:0xf
    v_max_f32_dpp v38, v38, v38 row_ror:4 row_mask:0xf bank_mask:0xf
    v_max_f32_dpp v38, v38, v38 row_ror:2 row_mask:0xf bank_mask:0xf
    v_max_f32_dpp v38, v38, v38 row_ror:1 row_mask:0xf bank_mask:0xf
    s_mov_b32 s66, {f32(-math.log2(math.e))}
    v_mul_f32 v40, s66, v{JG}
    v_exp_f32 v40, v40
    v_add_f32 v40, 1.0, v40
    v_rcp_f32 v40, v40
    s_lshl_b32 s65, s60, 2
    s_add_u32 s65, s65, s68
    s_lshl_b32 s66, s65, 6
    s_add_u32 s66, s66, {WS_G}
    s_lshl_b32 s65, s65, 2
    s_add_u32 s65, s65, {WS_KMAX}
    v_lshlrev_b32 v41, 2, v1
    s_mov_b64 exec, 0xffff
    buffer_store_dword v40, v41, s[44:47], s66 offen
    s_mov_b64 exec, 1
    buffer_store_dword v38, v41, s[44:47], s65 offen
    s_endpgm""")
    a.label("k1_vepi")
    a(f"""s_lshl_b32 s65, s65, 9
    s_add_u32 s64, s64, s65
    v_lshl_add_u32 v17, v18, 8, v17
    v_cvt_pk_bf16_f32 v36, v{JD}, v{JD+1}
    v_cvt_pk_bf16_f32 v37, v{JD+2}, v{JD+3}
    buffer_store_dwordx2 v[36:37], v17, s[44:47], s64 offen offset:1024""")
    a.label("k1_end")
    a("s_endpgm")
    return a.finish(), 192

def k2():
    a = Asm()
    CONV0, CSZ, XEOFF, XOOFF = 131072, 13440, 5120, 4160
    a.label("k2_kernel")
    a("""s_cmp_ge_u32 s2, 256
    s_cbranch_scc1 k2_end
    s_load_dwordx4 s[4:7], s[0:1], 32
    s_load_dwordx2 s[20:21], s[0:1], 112
    v_lshrrev_b32 v2, 6, v0
    v_and_b32 v1, 63, v0
    v_readfirstlane_b32 s3, v2""")
    wg_decode(a, 56, 57)
    a("""s_cmp_ge_u32 s3, 8
    s_cbranch_scc1 k2_conv
    s_waitcnt lgkmcnt(0)""")
    srd(a, 44, 20, 21, WS_SIZE)
    srd_off(a, 40, 20, 21, WS_KV, 131072)
    Q, NM, S0, S1, P, O, KB, VB = 4, 8, 24, 40, 56, 64, 80, 88
    vK, vV, vRow = 104, 105, 106
    a(f"""s_and_b32 s62, s3, 1
    s_lshl_b32 s62, s62, 5
    s_add_u32 s62, s62, s56
    s_lshl_b32 s62, s62, 10
    s_lshr_b32 s63, s3, 1
    s_lshl_b32 s64, s61, 2
    s_add_u32 s63, s63, s64
    s_lshl_b32 s63, s63, 5
    s_add_u32 s62, s62, s63
    v_and_b32 v2, 31, v1
    v_lshrrev_b32 v3, 5, v1
    v_lshlrev_b32 v{vRow}, 4, v3
    v_lshl_add_u32 v{vRow}, v2, 10, v{vRow}
    v_lshlrev_b32 v{vK}, 4, v1
    v_lshlrev_b32 v107, 3, v1
    buffer_load_dwordx4 v[{Q}:{Q+3}], v{vRow}, s[44:47], s62 offen offset:{WS_Q}
    s_mov_b32 s63, {WS_KMAX}
    buffer_load_dwordx2 v[108:109], v107, s[44:47], s63 offen
    s_lshl_b32 s64, s3, 10""")
    for i in range(16):
        dma(a, vK, 40, "s64", "s64")
        if i < 15: a("s_add_u32 s64, s64, 8192")
    a(f"""v_and_b32 v{vV}, 15, v1
    v_lshlrev_b32 v{vV}, 4, v{vV}
    v_lshl_add_u32 v{vV}, v3, 8, v{vV}
    v_add_u32 v{vV}, 1024, v{vV}
    s_mov_b32 s70, 0xffff
    s_mov_b32 s71, 0xffff""")
    a(f"""v_and_b32 v110, 27, v2
    v_cmp_eq_u32 vcc, 16, v110
    v_mov_b32 v111, 0x3f803f80
    v_cndmask_b32 v{VB}, 0, v111, vcc""")
    for i in range(1, 16): a(f"v_mov_b32 v{VB+i}, v{VB}")
    for i in range(8): a(f"v_mov_b32 v{P+i}, 0")
    for i in range(16): a(f"v_mov_b32 v{O+i}, 0")
    a(f"""s_waitcnt vmcnt(16)
    v_max_f32 v108, v108, v109
    v_dot2_f32_bf16 v110, v{Q}, v{Q}, 0
    v_dot2_f32_bf16 v111, v{Q+1}, v{Q+1}, 0
    v_max_f32_dpp v108, v108, v108 row_ror:8 row_mask:0xf bank_mask:0xf
    v_dot2_f32_bf16 v112, v{Q+2}, v{Q+2}, 0
    v_dot2_f32_bf16 v113, v{Q+3}, v{Q+3}, 0
    v_max_f32_dpp v108, v108, v108 row_ror:4 row_mask:0xf bank_mask:0xf
    s_nop 1
    v_add_f32 v110, v110, v111
    v_max_f32_dpp v108, v108, v108 row_ror:2 row_mask:0xf bank_mask:0xf
    v_add_f32 v112, v112, v113
    v_add_f32 v110, v110, v112
    v_max_f32_dpp v108, v108, v108 row_ror:1 row_mask:0xf bank_mask:0xf
    v_mov_b32 v111, v110
    v_mov_b32 v109, v108
    v_permlane32_swap_b32 v110, v111
    v_permlane32_swap_b32 v108, v109
    v_add_f32 v110, v110, v111
    v_max_f32 v108, v108, v109
    v_mov_b32 v109, v108
    v_permlane16_swap_b32 v108, v109
    v_max_f32 v108, v108, v109
    v_mul_f32 v110, v110, v108
    s_mov_b32 s72, {f32(1600.0)}
    v_cmp_nle_f32 vcc, v110, s72
    v_sqrt_f32 v110, v110
    s_mov_b32 s73, 0
    s_waitcnt vmcnt(13)
    s_barrier
    s_cbranch_vccz k2_fast""")
    a(f"""s_waitcnt vmcnt(0)
    s_barrier
    s_mov_b32 s73, 1
    v_mov_b32 v110, 0xff800000
    v_mov_b32 v107, v{vK}
    s_mov_b32 s74, 64""")
    a.label("k2_maxloop")
    a(f"""ds_read_b128 v[{KB}:{KB+3}], v107
    v_add_u32 v107, 2048, v107
    s_waitcnt lgkmcnt(0)
    v_mfma_f32_32x32x16_bf16 v[{S0}:{S0+15}], v[{KB}:{KB+3}], v[{Q}:{Q+3}], 0""")
    for i in range(8):
        a(f"v_max3_f32 v110, v110, v{S0+2*i}, v{S0+2*i+1}")
    a(f"""s_sub_u32 s74, s74, 1
    s_cmp_lg_u32 s74, 0
    s_cbranch_scc1 k2_maxloop
    v_mov_b32 v111, v110
    v_permlane32_swap_b32 v110, v111
    v_max_f32 v110, v110, v111""")
    a.label("k2_fast")
    a(f"v_sub_f32 v{NM}, 0, v110")
    for i in range(1, 16): a(f"v_mov_b32 v{NM+i}, v{NM}")
    a(f"""ds_read_b128 v[{KB}:{KB+3}], v{vK}
    ds_read_b128 v[{KB+4}:{KB+7}], v{vK} offset:2048
    s_mov_b64 exec, s[70:71]
    ds_read_b128 v[{VB}:{VB+3}], v{vV}
    ds_read_b128 v[{VB+4}:{VB+7}], v{vV} offset:512
    s_mov_b64 exec, -1
    s_waitcnt lgkmcnt(3)
    v_mfma_f32_32x32x16_bf16 v[{S0}:{S0+15}], v[{KB}:{KB+3}], v[{Q}:{Q+3}], v[{NM}:{NM+15}]
    s_mov_b32 s74, 0
    s_nop 7""")
    a(".p2align 6")
    a.label("k2_loop")
    for tt in range(8):
        cur = tt & 1; nxt = cur ^ 1
        S = (S0, S1)[cur]; SN = (S0, S1)[nxt]
        Kn = KB + 4*nxt; Kc = KB + 4*cur
        Vc = VB + 8*cur; Vn = VB + 8*nxt
        ex = lambda i: a(f"v_exp_f32 v{S+i}, v{S+i}")
        cv = lambda j: a(f"v_cvt_pk_bf16_f32 v{P+j}, v{S+2*j}, v{S+2*j+1}")
        a("s_waitcnt lgkmcnt(2)")
        a(f"v_mfma_f32_32x32x16_bf16 v[{SN}:{SN+15}], v[{Kn}:{Kn+3}], v[{Q}:{Q+3}], v[{NM}:{NM+15}]")
        a(f"ds_read_b128 v[{Kc}:{Kc+3}], v{vK} offset:{(tt+2)*2048}")
        ex(0); ex(1)
        a(f"v_mfma_f32_32x32x16_bf16 v[{O}:{O+15}], v[{Vn+4}:{Vn+7}], v[{P+4}:{P+7}], v[{O}:{O+15}]")
        ex(2); ex(3); cv(0); ex(4); ex(5); cv(1); ex(6); ex(7); cv(2); ex(8); cv(3); ex(9)
        a("s_waitcnt lgkmcnt(1)")
        ex(10)
        a(f"v_mfma_f32_32x32x16_bf16 v[{O}:{O+15}], v[{Vc}:{Vc+3}], v[{P}:{P+3}], v[{O}:{O+15}]")
        a("s_mov_b64 exec, s[70:71]")
        a(f"ds_read_b128 v[{Vn}:{Vn+3}], v{vV} offset:{(tt+1)*2048}")
        a(f"ds_read_b128 v[{Vn+4}:{Vn+7}], v{vV} offset:{(tt+1)*2048+512}")
        a("s_mov_b64 exec, -1")
        ex(11); cv(4); ex(12); ex(13); cv(5); ex(14); ex(15); cv(6)
        if tt == 7:
            a(f"v_add_u32 v{vK}, 16384, v{vK}\nv_add_u32 v{vV}, 16384, v{vV}")
        else:
            a("s_nop 0")
        cv(7)
    a(f"""s_cmp_lg_u32 s73, 0
    s_cbranch_scc1 k2_nobar
    s_waitcnt vmcnt(0)
    s_barrier
    s_mov_b32 s73, 1""")
    a.label("k2_nobar")
    a(f"""s_add_u32 s74, s74, 1
    s_cmp_lt_u32 s74, 8
    s_cbranch_scc1 k2_loop
    v_mfma_f32_32x32x16_bf16 v[{O}:{O+15}], v[{VB+12}:{VB+15}], v[{P+4}:{P+7}], v[{O}:{O+15}]
    s_add_u32 s62, s62, {WS_O}
    s_nop 11
    v_rcp_f32 v110, v{O+8}""")
    for i in range(8): a(f"v_mul_f32 v{O+i}, v{O+i}, v110")
    for i in range(4): a(f"v_cvt_pk_bf16_f32 v{P+i}, v{O+2*i}, v{O+2*i+1}")
    a(f"buffer_store_dwordx4 v[{P}:{P+3}], v{vRow}, s[44:47], s62 offen")
    a("s_endpgm")
    a.label("k2_conv")
    a(f"""s_setprio 3
    s_sub_u32 s66, s3, 8
    s_lshr_b32 s67, s66, 1
    s_and_b32 s68, s66, 1
    s_lshl_b32 s69, s2, 1
    s_add_u32 s69, s69, s67
    s_lshl_b32 s70, s69, 12
    s_waitcnt lgkmcnt(0)""")
    srd_off(a, 24, 4, 5, "s70", 4096)
    a(f"s_add_u32 s71, s70, {WS_XREV}")
    srd_off(a, 28, 20, 21, "s71", 4096)
    a(f"s_add_u32 s71, s70, {WS_Y}")
    srd_off(a, 32, 20, 21, "s71", 4096)
    srd(a, 36, 6, 7, 1024)
    a(f"""s_lshl_b32 s72, s68, 11
    v_lshlrev_b32 v2, 4, v1
    buffer_load_dwordx4 v[4:7], v2, s[24:27], s72 offen
    buffer_load_dwordx4 v[8:11], v2, s[24:27], s72 offen offset:1024
    buffer_load_dwordx4 v[12:15], v2, s[28:31], s72 offen
    buffer_load_dword v16, v2, s[28:31], s72 offen offset:16
    buffer_load_dwordx4 v[20:23], v2, s[28:31], s72 offen offset:1024
    buffer_load_dword v24, v2, s[28:31], s72 offen offset:1040
    s_lshl_b32 s73, s69, 1
    v_mov_b32 v3, s73
    buffer_load_ushort v25, v3, s[36:39], 0 offen
    s_barrier
    s_mul_i32 s74, s67, {CSZ}
    s_add_u32 s74, s74, {CONV0}
    v_lshrrev_b32 v26, 2, v1
    v_mul_u32_u24 v26, 80, v26
    v_and_b32 v27, 3, v1
    v_lshl_add_u32 v26, v27, 4, v26
    s_mul_i32 s75, s68, 2560
    s_add_u32 s75, s75, s74
    v_add_u32 v26, s75, v26
    s_add_u32 s75, s74, s72
    s_add_u32 s75, s75, {XEOFF}
    v_add_u32 v27, s75, v2
    v_mov_b32 v28, 0
    v_mov_b32 v29, 0
    v_mov_b32 v30, 0
    v_mov_b32 v31, 0
    v_lshrrev_b32 v32, 2, v1
    v_mul_u32_u24 v32, {XOOFF}, v32
    v_and_b32 v33, 3, v1
    v_lshl_add_u32 v32, v33, 4, v32
    s_add_u32 s75, s74, {XEOFF + 4096}
    v_add_u32 v32, s75, v32
    s_mov_b64 exec, 0xff
    ds_write_b128 v32, v[28:31]
    s_mov_b64 exec, -1
    s_waitcnt vmcnt(5)
    ds_write_b128 v26, v[4:7]
    ds_write_b128 v26, v[8:11] offset:1280
    s_waitcnt vmcnt(1)
    ds_write_b128 v27, v[12:15]
    ds_write_b128 v27, v[20:23] offset:1024
    v_alignbit_b32 v36, v13, v12, 16
    v_alignbit_b32 v37, v14, v13, 16
    v_alignbit_b32 v38, v15, v14, 16
    v_alignbit_b32 v39, v16, v15, 16
    v_alignbit_b32 v40, v21, v20, 16
    v_alignbit_b32 v41, v22, v21, 16
    v_alignbit_b32 v42, v23, v22, 16
    v_alignbit_b32 v43, v24, v23, 16
    ds_write_b128 v27, v[36:39] offset:{XOOFF}
    ds_write_b128 v27, v[40:43] offset:{XOOFF+1024}""")
    vA, vBa = 2, 3
    AF, BF, ACC = 48, 80, 112
    a(f"""v_and_b32 v4, 31, v1
    v_lshrrev_b32 v5, 5, v1
    v_or_b32 v6, 1, v4
    v_lshlrev_b32 v7, 3, v5
    v_sub_u32 v6, v7, v6
    s_cmp_eq_u32 s68, 0
    s_cselect_b32 s75, 1055, 31
    v_add_u32 v6, s75, v6
    v_lshlrev_b32 v6, 1, v6
    v_and_b32 v7, 1, v4
    v_xor_b32 v7, 1, v7
    v_mul_u32_u24 v7, {XOOFF}, v7
    s_add_u32 s75, s74, {XEOFF}
    v_add3_u32 v{vA}, v6, v7, s75
    v_mul_u32_u24 v6, 80, v4
    v_lshl_add_u32 v6, v5, 4, v6
    s_sub_u32 s75, s74, {80*31}
    v_add_u32 v{vBa}, s75, v6""")
    for i in range(32): a(f"v_mov_b32 v{BF+i}, 0")
    for i in range(16): a(f"v_mov_b32 v{ACC+i}, 0")
    a("s_waitcnt lgkmcnt(0)\ns_barrier")
    NB = 4
    def creads(mu):
        b = mu % NB
        if mu % 8 == 0 and mu > 0: a(f"v_add_u32 v{vA}, 512, v{vA}")
        for u in range(2):
            o = ((2*mu + u) % 16) * 8
            r = AF + 8*b + 4*u
            a(f"ds_read2_b32 v[{r}:{r+1}], v{vA} offset0:{o} offset1:{o+1}")
            a(f"ds_read2_b32 v[{r+2}:{r+3}], v{vA} offset0:{o+2} offset1:{o+3}")
        if mu < 31:
            m = (0xffffffff << (31 - mu)) & 0xffffffff
            a(f"s_mov_b32 exec_lo, {m:#x}\ns_mov_b32 exec_hi, {m:#x}")
        for u in range(2):
            r = BF + 8*b + 4*u
            a(f"ds_read_b128 v[{r}:{r+3}], v{vBa} offset:{80*mu + 32*u}")
        if mu < 31: a("s_mov_b64 exec, -1")
    creads(0); creads(1)
    for mu in range(64):
        b = mu % NB
        last = (mu in (30, 31))
        if mu == 30:
            pass
        if mu + 2 < 64:
            a("s_waitcnt lgkmcnt(6)")
        elif mu + 1 < 64:
            a("s_waitcnt lgkmcnt(6)")
        else:
            a("s_waitcnt lgkmcnt(0)")
        for u in range(2):
            a(f"v_mfma_f32_32x32x16_bf16 v[{ACC}:{ACC+15}], v[{AF+8*b+4*u}:{AF+8*b+4*u+3}], v[{BF+8*b+4*u}:{BF+8*b+4*u+3}], v[{ACC}:{ACC+15}]")
        if mu + 2 < 64: creads(mu + 2)
        if mu == 31:
            a("s_cmp_eq_u32 s68, 0\ns_cbranch_scc1 k2_cepi")
    a.label("k2_cepi")
    a(f"""s_waitcnt lgkmcnt(0)
    s_lshl_b32 s75, s68, 11
    v_lshlrev_b32 v6, 6, v4
    v_lshl_add_u32 v6, v5, 3, v6
    v_add_u32 v6, s75, v6
    s_add_u32 s75, s74, {XEOFF + 4088 - 48}
    v_sub_u32 v7, s75, v6""")
    for aa in range(4):
        a(f"ds_read_b64 v[{8+2*aa}:{9+2*aa}], v7 offset:{48 - 16*aa}")
    a("s_waitcnt vmcnt(0)\nv_lshlrev_b32 v25, 16, v25\ns_waitcnt lgkmcnt(0)")
    for aa in range(4):
        d0, d1 = 8 + 2*aa, 9 + 2*aa
        a(f"""v_and_b32 v16, 0xffff0000, v{d1}
        v_lshlrev_b32 v17, 16, v{d1}
        v_and_b32 v18, 0xffff0000, v{d0}
        v_lshlrev_b32 v19, 16, v{d0}
        v_fmac_f32 v{ACC+4*aa}, v16, v25
        v_fmac_f32 v{ACC+4*aa+1}, v17, v25
        v_fmac_f32 v{ACC+4*aa+2}, v18, v25
        v_fmac_f32 v{ACC+4*aa+3}, v19, v25
        v_cvt_pk_bf16_f32 v{32+2*aa}, v{ACC+4*aa}, v{ACC+4*aa+1}
        v_cvt_pk_bf16_f32 v{33+2*aa}, v{ACC+4*aa+2}, v{ACC+4*aa+3}
        buffer_store_dwordx2 v[{32+2*aa}:{33+2*aa}], v6, s[32:35], 0 offen offset:{16*aa}""")
    a.label("k2_end")
    a("s_endpgm")
    return a.finish(), 128

def k3():
    a = Asm()
    YT = 131072
    a.label("k3_kernel")
    a("""s_cmp_ge_u32 s2, 256
    s_cbranch_scc1 k3_end
    s_load_dwordx2 s[4:5], s[0:1], 0
    s_load_dwordx2 s[6:7], s[0:1], 80
    s_load_dwordx2 s[8:9], s[0:1], 96
    s_load_dwordx2 s[20:21], s[0:1], 112
    v_lshrrev_b32 v2, 6, v0
    v_and_b32 v1, 63, v0
    v_readfirstlane_b32 s3, v2""")
    wg_decode(a, 56, 57)
    a("s_lshl_b32 s58, s56, 10")
    gemm_dma_addr(a, 4, 5, 6, 1, 3, 57, 8)
    a("""v_lshrrev_b32 v8, 3, v1
    v_and_b32 v7, 7, v1
    v_lshlrev_b32 v7, 4, v7
    v_lshl_add_u32 v7, v8, 12, v7
    s_waitcnt lgkmcnt(0)""")
    srd_off(a, 24, 20, 21, WS_O, 0x200000)
    srd(a, 28, 6, 7, 0x80000)
    srd(a, 32, 4, 5, 0x200000)
    srd(a, 36, 8, 9, 0x200000)
    srd(a, 44, 20, 21, WS_SIZE)
    a("s_cmp_ge_u32 s3, 4\ns_cbranch_scc1 k3_help")
    XR, GR = 112, 120
    a(f"""s_lshr_b32 s63, s3, 1
    s_lshl_b32 s63, s63, 5
    s_add_u32 s63, s63, s56
    v_and_b32 v8, 31, v1
    v_add_u32 v8, s63, v8
    v_lshlrev_b32 v9, 2, v8
    s_mov_b32 s64, {WS_G}
    buffer_load_dword v{GR}, v9, s[44:47], s64 offen
    v_lshrrev_b32 v9, 5, v1
    v_lshlrev_b32 v9, 3, v9
    v_lshl_add_u32 v12, v8, 10, v9
    s_and_b32 s64, s3, 1
    s_lshl_b32 s64, s64, 6
    s_lshl_b32 s65, s57, 1
    s_add_u32 s59, s64, s65""")
    for aa in range(4):
        a(f"buffer_load_dwordx2 v[{XR+2*aa}:{XR+2*aa+1}], v12, s[32:35], s59 offen offset:{16*aa}")
    def ydma():
        a(f"""s_lshl_b32 s64, s3, 3
        s_add_u32 s64, s64, s57
        s_lshl_b32 s64, s64, 12
        s_lshl_b32 s65, s56, 1
        s_add_u32 s64, s64, s65
        s_add_u32 s64, s64, {WS_Y}
        s_lshl_b32 s65, s3, 10
        s_add_u32 s66, s65, {YT}""")
        dma(a, 7, 44, "s64", "s66")
    for kc in range(4): gemm_dma_chunk(a, kc, 4, 5, 6, 24, 28, 3, 58)
    ydma()
    gemm_read_addr(a, 16, 24, 1, 3, 8, True)
    a(f"""v_bfe_u32 v8, v1, 2, 2
    v_lshrrev_b32 v9, 5, v1
    v_lshl_add_u32 v8, v9, 2, v8
    v_lshlrev_b32 v8, 7, v8
    v_bfe_u32 v9, v1, 4, 1
    v_lshl_add_u32 v8, v9, 5, v8
    v_and_b32 v9, 3, v1
    v_lshl_add_u32 v8, v9, 3, v8
    s_and_b32 s64, s3, 1
    s_lshl_b32 s64, s64, 12
    s_lshr_b32 s65, s3, 1
    s_lshl_b32 s65, s65, 6
    s_add_u32 s64, s64, s65
    s_add_u32 s64, s64, {YT}
    v_add_u32 v25, s64, v8""")
    ACC, FA, FB = 32, 48, 80
    for kc in range(4):
        a(f"s_waitcnt vmcnt({13 - 4*kc if kc < 3 else 0})\ns_barrier")
        gemm_chunk(a, kc, 16, 24, FA, FB, ACC, True, kc == 0)
    for aa in range(4):
        a(f"ds_read_b64_tr_b16 v[{FA+2*aa}:{FA+2*aa+1}], v25 offset:{1024*aa}")
    a(f"v_sub_f32 v{GR+1}, 1.0, v{GR}\ns_waitcnt lgkmcnt(0)")
    for aa in range(4):
        x0, x1, y0, y1 = XR + 2*aa, XR + 2*aa + 1, FA + 2*aa, FA + 2*aa + 1
        t = FB
        a(f"""v_lshlrev_b32 v{t}, 16, v{x0}
        v_and_b32 v{t+1}, 0xffff0000, v{x0}
        v_lshlrev_b32 v{t+2}, 16, v{x1}
        v_and_b32 v{t+3}, 0xffff0000, v{x1}
        v_lshlrev_b32 v{t+4}, 16, v{y0}
        v_and_b32 v{t+5}, 0xffff0000, v{y0}
        v_lshlrev_b32 v{t+6}, 16, v{y1}
        v_and_b32 v{t+7}, 0xffff0000, v{y1}""")
        for e in range(4):
            a(f"v_mul_f32 v{t+e}, v{t+e}, v{t+4+e}")
        for e in range(4):
            a(f"v_mul_f32 v{t+e}, v{t+e}, v{GR}")
        for e in range(4):
            a(f"v_fmac_f32 v{t+e}, v{ACC+4*aa+e}, v{GR+1}")
        a(f"""v_cvt_pk_bf16_f32 v{t+8+2*aa}, v{t}, v{t+1}
        v_cvt_pk_bf16_f32 v{t+9+2*aa}, v{t+2}, v{t+3}
        buffer_store_dwordx2 v[{t+8+2*aa}:{t+9+2*aa}], v12, s[36:39], s59 offen offset:{16*aa}""")
    a("s_endpgm")
    a.label("k3_help")
    for kc in range(4): gemm_dma_chunk(a, kc, 4, 5, 6, 24, 28, 3, 58)
    ydma()
    for kc in range(4):
        a(f"s_waitcnt vmcnt({13 - 4*kc if kc < 3 else 0})\ns_barrier")
    a.label("k3_end")
    a("s_endpgm")
    return a.finish(), 128

def build(extra_launch=""):
    hdr = open("cdna_kernels/" + NAME + ".s.ref").read().split("; Override launch")[0]
    ks = [("k1_kernel", k1(), 512, 163840), ("k2_kernel", k2(), 768, 157952), ("k3_kernel", k3(), 512, 139264)]
    out = hdr
    for n, _, blk, lds in ks:
        out += f"; @launch kernel={n} grid=(256,1,1) block=({blk},1,1) lds={lds}\n"
    out += extra_launch
    out += '.amdgcn_target "amdgcn-amd-amdhsa--gfx950"\n.text\n'
    for n, (body, nv), _, _ in ks:
        out += f".globl {n}\n.p2align 8\n.type {n},@function\n" + body
    out += '.section .rodata,"a"\n'
    for n, (body, nv), _, _ in ks:
        out += f""".p2align 6
.amdhsa_kernel {n}
  .amdhsa_next_free_vgpr {nv}
  .amdhsa_next_free_sgpr 80
  .amdhsa_accum_offset {nv}
  .amdhsa_group_segment_fixed_size 0
  .amdhsa_kernarg_size 120
  .amdhsa_user_sgpr_count 2
  .amdhsa_user_sgpr_kernarg_segment_ptr 1
  .amdhsa_system_sgpr_workgroup_id_x 1
.end_amdhsa_kernel
"""
    return out

if __name__ == "__main__":
    dst = sys.argv[1] if len(sys.argv) > 1 else "cdna_kernels/" + NAME + ".s"
    open(dst, "w").write(build())
    print("wrote", dst)
```

```python
import gen, sys
base = gen.build()
def with_empty(n, where="end"):
    lines = base.split("\n")
    idx = max(i for i, l in enumerate(lines) if l.startswith("; @launch"))
    first = min(i for i, l in enumerate(lines) if l.startswith("; @launch"))
    ins = ["; @launch kernel=e_kernel grid=(256,1,1) block=(256,1,1) lds=0"] * n
    if where == "end": lines[idx+1:idx+1] = ins
    else: lines[first:first] = ins
    s = "\n".join(lines)
    s = s.replace('.section .rodata,"a"\n', '.globl e_kernel\n.p2align 8\n.type e_kernel,@function\ne_kernel:\n    s_endpgm\n.section .rodata,"a"\n.p2align 6\n.amdhsa_kernel e_kernel\n  .amdhsa_next_free_vgpr 8\n  .amdhsa_next_free_sgpr 16\n  .amdhsa_accum_offset 8\n  .amdhsa_group_segment_fixed_size 0\n  .amdhsa_kernarg_size 120\n  .amdhsa_user_sgpr_count 2\n  .amdhsa_user_sgpr_kernarg_segment_ptr 1\n  .amdhsa_system_sgpr_workgroup_id_x 1\n.end_amdhsa_kernel\n', 1)
    return s
open("v0.s", "w").write(base)
open("v1.s", "w").write(with_empty(1))
open("v2.s", "w").write(with_empty(4))
open("v3.s", "w").write(with_empty(4, "start"))
```

```python
import sys, math
from asmlib import Asm

NAME = "gated_mix__ssm_conv_h3__grouped_kv_mqa__prompt"
WS_Q, WS_KV, WS_KMAX, WS_G, WS_XREV, WS_O, WS_Y = 0x000000, 0x200000, 0x220000, 0x221000, 0x300000, 0x500000, 0x700000
WS_SIZE = 0x900000
CSCALE = 0.25 * math.log2(math.e)
import struct
def f32(x): return "0x%08x" % struct.unpack("<I", struct.pack("<f", x))[0]

DIAG = False
WS_DIAG = 0x1000000
def stamp(a, idx, real=False):
    if not DIAG: return
    a(f"{'s_memrealtime' if real else 's_memtime'} s[{80+2*idx}:{81+2*idx}]\ns_waitcnt lgkmcnt(0)")
def dump(a, kid, n=10):
    if not DIAG: return
    stamp(a, 9, True)
    a(f"""s_add_u32 s76, s20, {WS_DIAG + kid*256*16*64}
    s_addc_u32 s77, s21, 0
    s_mov_b32 s78, 0x40000
    s_mov_b32 s79, 0x20000
    s_lshl_b32 s75, s2, 4
    s_add_u32 s75, s75, s3
    s_lshl_b32 s75, s75, 6
    s_mov_b64 exec, 1
    v_mov_b32 v0, 0""")
    for i in range(n):
        a(f"v_mov_b32 v1, s{80+2*i}\nbuffer_store_dword v1, v0, s[76:79], s75 offen offset:{4*i}")

def fin(a, kid):
    if DIAG:
        a("s_waitcnt vmcnt(0)")
        stamp(a, 7); dump(a, kid)
    a("s_endpgm")

def srd(a, d, lo, hi, size):
    a(f"s_mov_b32 s{d}, s{lo}\ns_mov_b32 s{d+1}, s{hi}\ns_mov_b32 s{d+2}, {size}\ns_mov_b32 s{d+3}, 0x20000")

def srd_off(a, d, lo, hi, off, size):
    a(f"s_add_u32 s{d}, s{lo}, {off}\ns_addc_u32 s{d+1}, s{hi}, 0\ns_mov_b32 s{d+2}, {size}\ns_mov_b32 s{d+3}, 0x20000")

def dma(a, voff, srdn, soff, m0):
    a(f"s_mov_b32 m0, {m0}")
    a(f"buffer_load_dwordx4 v{voff}, s[{srdn}:{srdn+3}], {soff} offen lds")

def wg_decode(a, sS0, sN0):
    a(f"""s_and_b32 s60, s2, 7
    s_lshl_b32 s60, s60, 2
    s_lshr_b32 s61, s2, 3
    s_and_b32 s62, s61, 3
    s_add_u32 s60, s60, s62
    s_lshr_b32 s61, s61, 2
    s_lshl_b32 s{sS0}, s60, 6
    s_lshl_b32 s{sN0}, s61, 6""")

XT, WT = 0, 65536

def gemm_dma_addr(a, vX0, vX1, vW, vl, sW, sN0, tmp):
    t0, t1 = tmp, tmp + 1
    a(f"""s_lshl_b32 s63, s{sW}, 3
    v_lshrrev_b32 v{t0}, 4, v{vl}
    v_add_u32 v{t0}, s63, v{t0}
    v_and_b32 v{t1}, 15, v{vl}
    v_xor_b32 v{vX0}, v{t0}, v{t1}
    v_and_b32 v{vX0}, 15, v{vX0}
    v_lshlrev_b32 v{vX0}, 4, v{vX0}
    v_lshl_add_u32 v{vX0}, v{t0}, 10, v{vX0}
    v_add_u32 v{t0}, 4, v{t0}
    v_xor_b32 v{vX1}, v{t0}, v{t1}
    v_and_b32 v{vX1}, 15, v{vX1}
    v_lshlrev_b32 v{vX1}, 4, v{vX1}
    v_lshl_add_u32 v{vX1}, v{t0}, 10, v{vX1}""")
    a(f"""v_lshrrev_b32 v{t0}, 3, v{vl}
    v_lshlrev_b32 v{t1}, 1, v{t0}
    v_and_b32 v{t1}, 4, v{t1}
    v_and_b32 v{vW}, 7, v{vl}
    v_xor_b32 v{vW}, v{vW}, v{t1}
    v_lshlrev_b32 v{vW}, 4, v{vW}
    v_lshl_add_u32 v{vW}, v{t0}, 10, v{vW}
    s_lshl_b32 s63, s{sN0}, 1
    v_add_u32 v{vW}, s63, v{vW}""")

def gemm_dma_chunk(a, kc, vX0, vX1, vW, srdX, srdW, sW, sXbase):
    a(f"s_add_u32 s64, s{sXbase}, {kc*256}")
    a(f"s_lshl_b32 s65, s{sW}, 11")
    a(f"s_add_u32 s66, s65, {XT + kc*16384}")
    dma(a, vX0, srdX, "s64", "s66")
    a(f"s_add_u32 s66, s66, 1024")
    dma(a, vX1, srdX, "s64", "s66")
    a(f"s_lshl_b32 s67, s{sW}, 14")
    a(f"s_add_u32 s67, s67, {kc*128*1024}")
    a(f"s_add_u32 s66, s65, {WT + kc*16384}")
    dma(a, vW, srdW, "s67", "s66")
    a(f"s_add_u32 s67, s67, 8192")
    a(f"s_add_u32 s66, s66, 1024")
    dma(a, vW, srdW, "s67", "s66")

def gemm_read_addr(a, vB, vA, vl, sW, tmp, phi):
    t0, t1, t2 = tmp, tmp + 1, tmp + 2
    a(f"""s_lshr_b32 s63, s{sW}, 1
    s_lshl_b32 s63, s63, 13
    v_and_b32 v{t0}, 31, v{vl}
    v_lshrrev_b32 v{t1}, 5, v{vl}
    v_and_b32 v{t2}, 15, v{vl}
    v_xor_b32 v{t2}, v{t2}, v{t1}
    v_lshlrev_b32 v{t2}, 4, v{t2}
    v_lshl_add_u32 v{t2}, v{t0}, 8, v{t2}
    v_add_u32 v{vB}, s63, v{t2}""")
    for e in range(1, 8):
        a(f"v_xor_b32 v{vB+e}, {e*32}, v{vB}")
    a(f"""s_and_b32 s63, s{sW}, 1
    v_bfe_u32 v{t0}, v{vl}, 2, 2
    v_lshrrev_b32 v{t2}, 1, v{t0}
    v_xor_b32 v{t2}, s63, v{t2}
    v_lshlrev_b32 v{t2}, 6, v{t2}
    v_lshl_add_u32 v{t0}, v{t1}, {2 if phi else 3}, v{t0}
    v_lshl_add_u32 v{t2}, v{t0}, 7, v{t2}
    v_bfe_u32 v{t0}, v{vl}, 4, 1
    v_lshl_add_u32 v{t2}, v{t0}, 5, v{t2}
    v_and_b32 v{t0}, 3, v{vl}
    v_lshl_add_u32 v{t2}, v{t0}, 3, v{t2}
    v_add_u32 v{vA}, {WT}, v{t2}""")

def gemm_chunk(a, kc, vB, vA, FA, FB, ACC, phi, first):
    tstep = 1024 if phi else 512
    def reads(e):
        a(f"ds_read_b128 v[{FB+4*e}:{FB+4*e+3}], v{vB+e} offset:{kc*16384}")
        a(f"ds_read_b64_tr_b16 v[{FA+4*e}:{FA+4*e+1}], v{vA} offset:{kc*16384 + e*2048}")
        a(f"ds_read_b64_tr_b16 v[{FA+4*e+2}:{FA+4*e+3}], v{vA} offset:{kc*16384 + e*2048 + tstep}")
    for e in range(4): reads(e)
    for e in range(8):
        left = min(7, e + 3) - e
        a(f"s_waitcnt lgkmcnt({3*left})")
        c = "0" if (first and e == 0) else f"v[{ACC}:{ACC+15}]"
        a(f"v_mfma_f32_32x32x16_bf16 v[{ACC}:{ACC+15}], v[{FA+4*e}:{FA+4*e+3}], v[{FB+4*e}:{FB+4*e+3}], {c}")
        if e + 4 < 8: reads(e + 4)

def k1():
    a = Asm()
    WKV, KT, VT = 131072, 147456, 155648
    a.label("k1_kernel")
    a("""s_cmp_ge_u32 s2, 256
    s_cbranch_scc1 k1_end""")
    stamp(a, 8, True); stamp(a, 0)
    a("""s_load_dwordx4 s[4:7], s[0:1], 0
    s_load_dwordx4 s[8:11], s[0:1], 16
    s_load_dwordx4 s[12:15], s[0:1], 56
    s_load_dwordx2 s[16:17], s[0:1], 72
    s_load_dwordx2 s[18:19], s[0:1], 88
    s_load_dwordx2 s[20:21], s[0:1], 112
    v_lshrrev_b32 v2, 6, v0
    v_and_b32 v1, 63, v0
    v_readfirstlane_b32 s3, v2""")
    wg_decode(a, 56, 57)
    a("s_lshl_b32 s58, s56, 10")
    gemm_dma_addr(a, 4, 5, 6, 1, 3, 57, 8)
    a("""v_lshrrev_b32 v8, 3, v1
    v_and_b32 v7, 7, v1
    v_lshlrev_b32 v7, 4, v7
    v_lshl_add_u32 v7, v8, 10, v7
    s_lshl_b32 s63, s57, 1
    v_add_u32 v7, s63, v7
    s_waitcnt lgkmcnt(0)""")
    srd(a, 24, 4, 5, 0x200000)
    srd(a, 28, 12, 13, 0x80000)
    srd(a, 32, 6, 7, 0x200000)
    srd(a, 36, 8, 9, 0x200000)
    srd(a, 44, 20, 21, WS_SIZE)
    a("""s_cmp_ge_u32 s3, 4
    s_cbranch_scc1 k1_kv""")
    def kv_tile_dma():
        a("""s_lshl_b32 s64, s3, 13
        s_add_u32 s64, s64, s58
        s_lshl_b32 s65, s3, 10""")
        a(f"s_add_u32 s66, s65, {KT}")
        dma(a, 7, 32, "s64", "s66")
        a(f"s_add_u32 s66, s65, {VT}")
        dma(a, 7, 36, "s64", "s66")
    kv_tile_dma()
    for kc in range(4): gemm_dma_chunk(a, kc, 4, 5, 6, 24, 28, 3, 58)
    stamp(a, 1)
    gemm_read_addr(a, 16, 24, 1, 3, 8, False)
    ACC, FA, FB = 32, 48, 80
    for kc in range(4):
        a(f"s_waitcnt vmcnt({12 - 4*kc})\ns_barrier")
        stamp(a, 2 + kc)
        gemm_chunk(a, kc, 16, 24, FA, FB, ACC, False, kc == 0)
    stamp(a, 6)
    a("""s_lshr_b32 s63, s3, 1
    s_lshl_b32 s63, s63, 15
    s_add_u32 s63, s63, s58
    s_and_b32 s64, s3, 1
    s_lshl_b32 s64, s64, 6
    s_add_u32 s63, s63, s64
    s_lshl_b32 s64, s57, 1
    s_add_u32 s63, s63, s64
    v_and_b32 v8, 31, v1
    v_lshrrev_b32 v9, 5, v1
    v_lshlrev_b32 v9, 4, v9
    v_lshl_add_u32 v8, v8, 10, v9""")
    for i in range(8):
        a(f"v_cvt_pk_bf16_f32 v{FA+i}, v{ACC+2*i}, v{ACC+2*i+1}")
    a(f"buffer_store_dwordx4 v[{FA}:{FA+3}], v8, s[44:47], s63 offen offset:{WS_Q}")
    a(f"buffer_store_dwordx4 v[{FA+4}:{FA+7}], v8, s[44:47], s63 offen offset:{WS_Q+32}")
    fin(a, 0)
    a.label("k1_kv")
    a("""s_and_b32 s59, s61, 1
    s_lshr_b32 s68, s61, 1
    s_sub_u32 s69, s3, 4
    s_cmp_eq_u32 s59, 0
    s_cselect_b32 s40, s14, s16
    s_cselect_b32 s41, s15, s17
    s_mov_b32 s42, 0x4000
    s_mov_b32 s43, 0x20000""")
    srd(a, 48, 10, 11, 4096)
    srd(a, 52, 18, 19, 1024)
    GW = 128
    a("""s_cmp_lg_u32 s3, 7
    s_cbranch_scc1 k1_nogw
    s_cmp_lg_u32 s59, 0
    s_cbranch_scc1 k1_nogw
    v_lshrrev_b32 v8, 4, v1
    v_lshlrev_b32 v8, 4, v8""")
    for i in range(16):
        a(f"buffer_load_dwordx4 v[{GW+4*i}:{GW+4*i+3}], v8, s[52:55], 0 offen offset:{64*i}")
    a.label("k1_nogw")
    a("""v_add_u32 v8, s57, v1
    v_lshlrev_b32 v9, 3, v8
    buffer_load_dwordx2 v[10:11], v9, s[48:51], 0 offen
    s_lshl_b32 s64, s69, 14
    s_add_u32 s64, s64, s58
    s_sub_u32 s64, s64, 3072
    v_lshlrev_b32 v9, 1, v8
    v_add_u32 v9, s64, v9
    buffer_load_ushort v12, v9, s[32:35], 0 offen
    buffer_load_ushort v13, v9, s[32:35], 0 offen offset:1024
    buffer_load_ushort v14, v9, s[32:35], 0 offen offset:2048""")
    kv_tile_dma()
    a("v_lshlrev_b32 v15, 4, v1")
    for kc in range(4):
        gemm_dma_chunk(a, kc, 4, 5, 6, 24, 28, 3, 58)
        a(f"s_lshl_b32 s64, s69, 10\ns_add_u32 s64, s64, {kc*4096}\ns_add_u32 s66, s64, {WKV}")
        dma(a, 15, 40, "s64", "s66")
    a(f"""v_bfe_u32 v16, v1, 2, 2
    v_lshlrev_b32 v16, 7, v16
    v_lshrrev_b32 v17, 4, v1
    v_lshl_add_u32 v16, v17, 5, v16
    v_and_b32 v17, 3, v1
    v_lshl_add_u32 v16, v17, 3, v16
    s_lshl_b32 s64, s69, 11
    s_add_u32 s64, s64, {KT}
    v_add_u32 v16, s64, v16""")
    a(f"""v_and_b32 v17, 15, v1
    v_lshrrev_b32 v18, 4, v1
    v_xor_b32 v19, v17, v18
    v_lshlrev_b32 v19, 4, v19
    v_lshl_add_u32 v19, v17, 8, v19
    s_lshl_b32 s64, s68, 12
    v_add_u32 v20, s64, v19
    v_xor_b32 v21, 64, v20
    v_xor_b32 v22, 128, v20
    v_xor_b32 v23, 192, v20
    v_bfe_u32 v19, v1, 2, 2
    v_lshl_add_u32 v19, v18, 3, v19
    v_lshlrev_b32 v19, 5, v19
    v_and_b32 v24, 3, v1
    v_lshl_add_u32 v24, v24, 3, v19
    v_add_u32 v24, {WKV}, v24""")
    JD, JG, JX, JW = 28, 32, 96, 112
    def job_chunk(kc):
        lbl = f"k1_nojob{kc}"
        a(f"s_cmp_lg_u32 s3, 7\ns_cbranch_scc1 {lbl}")
        for e in range(4):
            a(f"ds_read_b128 v[{JX+4*e}:{JX+4*e+3}], v{20+e} offset:{kc*16384}")
            a(f"ds_read_b64_tr_b16 v[{JW+4*e}:{JW+4*e+1}], v24 offset:{kc*4096 + e*1024}")
            a(f"ds_read_b64_tr_b16 v[{JW+4*e+2}:{JW+4*e+3}], v24 offset:{kc*4096 + e*1024 + 128}")
        a(f"s_waitcnt lgkmcnt(0)\ns_cmp_lg_u32 s59, 0\ns_cbranch_scc1 {lbl}_v")
        for e in range(4):
            c = "0" if (kc == 0 and e == 0) else f"v[{JD}:{JD+3}]"
            a(f"v_mfma_f32_16x16x32_bf16 v[{JD}:{JD+3}], v[{JW+4*e}:{JW+4*e+3}], v[{JX+4*e}:{JX+4*e+3}], {c}")
            c = "0" if (kc == 0 and e == 0) else f"v[{JG}:{JG+3}]"
            g = GW + 16*kc + 4*e
            a(f"v_mfma_f32_16x16x32_bf16 v[{JG}:{JG+3}], v[{g}:{g+3}], v[{JX+4*e}:{JX+4*e+3}], {c}")
        a(f"s_branch {lbl}")
        a.label(f"{lbl}_v")
        for e in range(4):
            c = "0" if (kc == 0 and e == 0) else f"v[{JD}:{JD+3}]"
            a(f"v_mfma_f32_16x16x32_bf16 v[{JD}:{JD+3}], v[{JX+4*e}:{JX+4*e+3}], v[{JW+4*e}:{JW+4*e+3}], {c}")
        a.label(lbl)
    KR, VR, KF, VF = 36, 44, 52, 72
    stamp(a, 1)
    a("s_waitcnt vmcnt(15)\ns_barrier")
    stamp(a, 2)
    for i in range(4):
        a(f"ds_read_b64_tr_b16 v[{KR+2*i}:{KR+2*i+1}], v16 offset:{i*512}")
    for i in range(4):
        a(f"ds_read_b64_tr_b16 v[{VR+2*i}:{VR+2*i+1}], v16 offset:{8192 + i*512}")
    job_chunk(0)
    a("""v_lshlrev_b32 v88, 16, v10
    v_and_b32 v89, 0xffff0000, v10
    v_lshlrev_b32 v90, 16, v11
    v_and_b32 v91, 0xffff0000, v11""")
    for i in range(3): a(f"v_lshlrev_b32 v{KF+i}, 16, v{12+i}")
    a("s_waitcnt lgkmcnt(0)")
    for i in range(8):
        a(f"v_lshlrev_b32 v{KF+3+2*i}, 16, v{KR+i}\nv_and_b32 v{KF+4+2*i}, 0xffff0000, v{KR+i}")
    for i in range(8):
        a(f"v_lshlrev_b32 v{VF+2*i}, 16, v{VR+i}\nv_and_b32 v{VF+1+2*i}, 0xffff0000, v{VR+i}")
    stamp(a, 3)
    a("s_waitcnt vmcnt(10)\ns_barrier")
    job_chunk(1)
    for s in range(16):
        t = 36 + (s % 8)
        a(f"v_mul_f32 v{t}, v{KF+s}, v91")
        a(f"v_fmac_f32 v{t}, v{KF+s+1}, v90")
        a(f"v_fmac_f32 v{t}, v{KF+s+2}, v89")
        a(f"v_fmac_f32 v{t}, v{KF+s+3}, v88")
        a(f"v_mul_f32 v{VF+s}, v{t}, v{VF+s}")
    stamp(a, 4)
    a("s_waitcnt vmcnt(5)\ns_barrier")
    job_chunk(2)
    for q in range(8):
        a(f"v_cvt_pk_bf16_f32 v{44+q}, v{VF+15-2*q}, v{VF+14-2*q}")
    a(f"""s_lshl_b32 s64, s69, 4
    s_add_u32 s64, s64, s56
    s_lshl_b32 s64, s64, 1
    s_sub_u32 s64, {WS_XREV + 4064}, s64
    v_lshlrev_b32 v9, 12, v8
    buffer_store_dwordx4 v[44:47], v9, s[44:47], s64 offen
    buffer_store_dwordx4 v[48:51], v9, s[44:47], s64 offen offset:16
    s_waitcnt vmcnt(2)
    s_barrier""")
    stamp(a, 5)
    job_chunk(3)
    stamp(a, 6)
    a("s_cmp_lg_u32 s3, 7\ns_cbranch_scc1 k1_fin")
    a(f"""s_lshr_b32 s64, s68, 1
    s_lshl_b32 s65, s60, 1
    s_add_u32 s64, s64, s65
    s_lshl_b32 s64, s64, 11
    s_add_u32 s64, s64, {WS_KV}
    s_and_b32 s65, s68, 1
    v_and_b32 v17, 15, v1
    v_lshlrev_b32 v17, 4, v17
    v_lshrrev_b32 v18, 5, v1
    v_lshl_add_u32 v17, v18, 3, v17
    v_bfe_u32 v18, v1, 4, 1
    s_cmp_lg_u32 s59, 0
    s_cbranch_scc1 k1_vepi""")
    a(f"""s_lshl_b32 s65, s65, 8
    s_add_u32 s64, s64, s65
    v_lshl_add_u32 v17, v18, 9, v17
    s_mov_b32 s66, {f32(CSCALE)}""")
    for e in range(4): a(f"v_mul_f32 v{JD+e}, s66, v{JD+e}")
    a(f"""v_cvt_pk_bf16_f32 v36, v{JD}, v{JD+1}
    v_cvt_pk_bf16_f32 v37, v{JD+2}, v{JD+3}
    buffer_store_dwordx2 v[36:37], v17, s[44:47], s64 offen
    v_mul_f32 v38, v{JD}, v{JD}
    v_fmac_f32 v38, v{JD+1}, v{JD+1}
    v_fmac_f32 v38, v{JD+2}, v{JD+2}
    v_fmac_f32 v38, v{JD+3}, v{JD+3}
    v_mov_b32 v39, v38
    v_permlane32_swap_b32 v38, v39
    v_add_f32 v38, v38, v39
    v_mov_b32 v39, v38
    v_permlane16_swap_b32 v38, v39
    v_add_f32 v38, v38, v39
    v_max_f32_dpp v38, v38, v38 row_ror:8 row_mask:0xf bank_mask:0xf
    v_max_f32_dpp v38, v38, v38 row_ror:4 row_mask:0xf bank_mask:0xf
    v_max_f32_dpp v38, v38, v38 row_ror:2 row_mask:0xf bank_mask:0xf
    v_max_f32_dpp v38, v38, v38 row_ror:1 row_mask:0xf bank_mask:0xf
    s_mov_b32 s66, {f32(-math.log2(math.e))}
    v_mul_f32 v40, s66, v{JG}
    v_exp_f32 v40, v40
    v_add_f32 v40, 1.0, v40
    v_rcp_f32 v40, v40
    s_lshl_b32 s65, s60, 2
    s_add_u32 s65, s65, s68
    s_lshl_b32 s66, s65, 6
    s_add_u32 s66, s66, {WS_G}
    s_lshl_b32 s65, s65, 2
    s_add_u32 s65, s65, {WS_KMAX}
    v_lshlrev_b32 v41, 2, v1
    s_mov_b64 exec, 0xffff
    buffer_store_dword v40, v41, s[44:47], s66 offen
    s_mov_b64 exec, 1
    buffer_store_dword v38, v41, s[44:47], s65 offen""")
    fin(a, 0)
    a.label("k1_vepi")
    a(f"""s_lshl_b32 s65, s65, 9
    s_add_u32 s64, s64, s65
    v_lshl_add_u32 v17, v18, 8, v17
    v_cvt_pk_bf16_f32 v36, v{JD}, v{JD+1}
    v_cvt_pk_bf16_f32 v37, v{JD+2}, v{JD+3}
    buffer_store_dwordx2 v[36:37], v17, s[44:47], s64 offen offset:1024""")
    a.label("k1_fin")
    fin(a, 0)
    a.label("k1_end")
    a("s_endpgm")
    return a.finish(), 192

def k2():
    a = Asm()
    CONV0, CSZ, XEOFF, XOOFF = 131072, 13440, 5120, 4160
    a.label("k2_kernel")
    a("""s_cmp_ge_u32 s2, 256
    s_cbranch_scc1 k2_end""")
    stamp(a, 8, True); stamp(a, 0)
    a("""s_load_dwordx4 s[4:7], s[0:1], 32
    s_load_dwordx2 s[20:21], s[0:1], 112
    v_lshrrev_b32 v2, 6, v0
    v_and_b32 v1, 63, v0
    v_readfirstlane_b32 s3, v2""")
    wg_decode(a, 56, 57)
    a("""s_cmp_ge_u32 s3, 8
    s_cbranch_scc1 k2_conv
    s_waitcnt lgkmcnt(0)""")
    srd(a, 44, 20, 21, WS_SIZE)
    srd_off(a, 40, 20, 21, WS_KV, 131072)
    Q, NM, S0, S1, P, O, KB, VB = 4, 8, 24, 40, 56, 64, 80, 88
    vK, vV, vRow = 104, 105, 106
    a(f"""s_and_b32 s62, s3, 1
    s_lshl_b32 s62, s62, 5
    s_add_u32 s62, s62, s56
    s_lshl_b32 s62, s62, 10
    s_lshr_b32 s63, s3, 1
    s_lshl_b32 s64, s61, 2
    s_add_u32 s63, s63, s64
    s_lshl_b32 s63, s63, 5
    s_add_u32 s62, s62, s63
    v_and_b32 v2, 31, v1
    v_lshrrev_b32 v3, 5, v1
    v_lshlrev_b32 v{vRow}, 4, v3
    v_lshl_add_u32 v{vRow}, v2, 10, v{vRow}
    v_lshlrev_b32 v{vK}, 4, v1
    v_lshlrev_b32 v107, 3, v1
    buffer_load_dwordx4 v[{Q}:{Q+3}], v{vRow}, s[44:47], s62 offen offset:{WS_Q}
    s_mov_b32 s63, {WS_KMAX}
    buffer_load_dwordx2 v[108:109], v107, s[44:47], s63 offen
    s_lshl_b32 s64, s3, 10""")
    for i in range(16):
        dma(a, vK, 40, "s64", "s64")
        if i < 15: a("s_add_u32 s64, s64, 8192")
    stamp(a, 1)
    a(f"""v_and_b32 v{vV}, 15, v1
    v_lshlrev_b32 v{vV}, 4, v{vV}
    v_lshl_add_u32 v{vV}, v3, 8, v{vV}
    v_add_u32 v{vV}, 1024, v{vV}
    s_mov_b32 s70, 0xffff
    s_mov_b32 s71, 0xffff""")
    a(f"""v_and_b32 v110, 27, v2
    v_cmp_eq_u32 vcc, 16, v110
    v_mov_b32 v111, 0x3f803f80
    v_cndmask_b32 v{VB}, 0, v111, vcc""")
    for i in range(1, 16): a(f"v_mov_b32 v{VB+i}, v{VB}")
    for i in range(8): a(f"v_mov_b32 v{P+i}, 0")
    for i in range(16): a(f"v_mov_b32 v{O+i}, 0")
    a(f"""s_waitcnt vmcnt(16)
    v_max_f32 v108, v108, v109
    v_dot2_f32_bf16 v110, v{Q}, v{Q}, 0
    v_dot2_f32_bf16 v111, v{Q+1}, v{Q+1}, 0
    v_max_f32_dpp v108, v108, v108 row_ror:8 row_mask:0xf bank_mask:0xf
    v_dot2_f32_bf16 v112, v{Q+2}, v{Q+2}, 0
    v_dot2_f32_bf16 v113, v{Q+3}, v{Q+3}, 0
    v_max_f32_dpp v108, v108, v108 row_ror:4 row_mask:0xf bank_mask:0xf
    s_nop 1
    v_add_f32 v110, v110, v111
    v_max_f32_dpp v108, v108, v108 row_ror:2 row_mask:0xf bank_mask:0xf
    v_add_f32 v112, v112, v113
    v_add_f32 v110, v110, v112
    v_max_f32_dpp v108, v108, v108 row_ror:1 row_mask:0xf bank_mask:0xf
    v_mov_b32 v111, v110
    v_mov_b32 v109, v108
    v_permlane32_swap_b32 v110, v111
    v_permlane32_swap_b32 v108, v109
    v_add_f32 v110, v110, v111
    v_max_f32 v108, v108, v109
    v_mov_b32 v109, v108
    v_permlane16_swap_b32 v108, v109
    v_max_f32 v108, v108, v109
    v_mul_f32 v110, v110, v108
    s_mov_b32 s72, {f32(1600.0)}
    v_cmp_nle_f32 vcc, v110, s72
    v_sqrt_f32 v110, v110
    s_mov_b32 s73, 0
    s_waitcnt vmcnt(13)
    s_barrier
    s_cbranch_vccz k2_fast""")
    a(f"""s_waitcnt vmcnt(0)
    s_barrier
    s_mov_b32 s73, 1
    v_mov_b32 v110, 0xff800000
    v_mov_b32 v107, v{vK}
    s_mov_b32 s74, 64""")
    a.label("k2_maxloop")
    a(f"""ds_read_b128 v[{KB}:{KB+3}], v107
    v_add_u32 v107, 2048, v107
    s_waitcnt lgkmcnt(0)
    v_mfma_f32_32x32x16_bf16 v[{S0}:{S0+15}], v[{KB}:{KB+3}], v[{Q}:{Q+3}], 0""")
    for i in range(8):
        a(f"v_max3_f32 v110, v110, v{S0+2*i}, v{S0+2*i+1}")
    a(f"""s_sub_u32 s74, s74, 1
    s_cmp_lg_u32 s74, 0
    s_cbranch_scc1 k2_maxloop
    v_mov_b32 v111, v110
    v_permlane32_swap_b32 v110, v111
    v_max_f32 v110, v110, v111""")
    a.label("k2_fast")
    stamp(a, 2)
    a(f"v_sub_f32 v{NM}, 0, v110")
    for i in range(1, 16): a(f"v_mov_b32 v{NM+i}, v{NM}")
    a(f"""ds_read_b128 v[{KB}:{KB+3}], v{vK}
    ds_read_b128 v[{KB+4}:{KB+7}], v{vK} offset:2048
    s_mov_b64 exec, s[70:71]
    ds_read_b128 v[{VB}:{VB+3}], v{vV}
    ds_read_b128 v[{VB+4}:{VB+7}], v{vV} offset:512
    s_mov_b64 exec, -1
    s_waitcnt lgkmcnt(3)
    v_mfma_f32_32x32x16_bf16 v[{S0}:{S0+15}], v[{KB}:{KB+3}], v[{Q}:{Q+3}], v[{NM}:{NM+15}]
    s_mov_b32 s74, 0
    s_nop 7""")
    a(".p2align 6")
    a.label("k2_loop")
    for tt in range(8):
        cur = tt & 1; nxt = cur ^ 1
        S = (S0, S1)[cur]; SN = (S0, S1)[nxt]
        Kn = KB + 4*nxt; Kc = KB + 4*cur
        Vc = VB + 8*cur; Vn = VB + 8*nxt
        ex = lambda i: a(f"v_exp_f32 v{S+i}, v{S+i}")
        cv = lambda j: a(f"v_cvt_pk_bf16_f32 v{P+j}, v{S+2*j}, v{S+2*j+1}")
        a("s_waitcnt lgkmcnt(2)")
        a(f"v_mfma_f32_32x32x16_bf16 v[{SN}:{SN+15}], v[{Kn}:{Kn+3}], v[{Q}:{Q+3}], v[{NM}:{NM+15}]")
        a(f"ds_read_b128 v[{Kc}:{Kc+3}], v{vK} offset:{(tt+2)*2048}")
        ex(0); ex(1)
        a(f"v_mfma_f32_32x32x16_bf16 v[{O}:{O+15}], v[{Vn+4}:{Vn+7}], v[{P+4}:{P+7}], v[{O}:{O+15}]")
        ex(2); ex(3); cv(0); ex(4); ex(5); cv(1); ex(6); ex(7); cv(2); ex(8); cv(3); ex(9)
        a("s_waitcnt lgkmcnt(1)")
        ex(10)
        a(f"v_mfma_f32_32x32x16_bf16 v[{O}:{O+15}], v[{Vc}:{Vc+3}], v[{P}:{P+3}], v[{O}:{O+15}]")
        a("s_mov_b64 exec, s[70:71]")
        a(f"ds_read_b128 v[{Vn}:{Vn+3}], v{vV} offset:{(tt+1)*2048}")
        a(f"ds_read_b128 v[{Vn+4}:{Vn+7}], v{vV} offset:{(tt+1)*2048+512}")
        a("s_mov_b64 exec, -1")
        ex(11); cv(4); ex(12); ex(13); cv(5); ex(14); ex(15); cv(6)
        if tt == 7:
            a(f"v_add_u32 v{vK}, 16384, v{vK}\nv_add_u32 v{vV}, 16384, v{vV}")
        else:
            a("s_nop 0")
        cv(7)
    a(f"""s_cmp_lg_u32 s73, 0
    s_cbranch_scc1 k2_nobar
    s_waitcnt vmcnt(0)
    s_barrier
    s_mov_b32 s73, 1""")
    stamp(a, 3)
    a.label("k2_nobar")
    if DIAG:
        a("s_cmp_lg_u32 s74, 1\ns_cbranch_scc1 k2_nost")
        stamp(a, 4)
        a.label("k2_nost")
    a(f"""s_add_u32 s74, s74, 1
    s_cmp_lt_u32 s74, 8
    s_cbranch_scc1 k2_loop""")
    stamp(a, 5)
    a(f"""v_mfma_f32_32x32x16_bf16 v[{O}:{O+15}], v[{VB+12}:{VB+15}], v[{P+4}:{P+7}], v[{O}:{O+15}]
    s_add_u32 s62, s62, {WS_O}
    s_nop 11
    v_rcp_f32 v110, v{O+8}""")
    for i in range(8): a(f"v_mul_f32 v{O+i}, v{O+i}, v110")
    for i in range(4): a(f"v_cvt_pk_bf16_f32 v{P+i}, v{O+2*i}, v{O+2*i+1}")
    a(f"buffer_store_dwordx4 v[{P}:{P+3}], v{vRow}, s[44:47], s62 offen")
    fin(a, 1)
    a.label("k2_conv")
    a(f"""s_setprio 3
    s_sub_u32 s66, s3, 8
    s_lshr_b32 s67, s66, 1
    s_and_b32 s68, s66, 1
    s_lshl_b32 s69, s2, 1
    s_add_u32 s69, s69, s67
    s_lshl_b32 s70, s69, 12
    s_waitcnt lgkmcnt(0)""")
    srd_off(a, 24, 4, 5, "s70", 4096)
    a(f"s_add_u32 s71, s70, {WS_XREV}")
    srd_off(a, 28, 20, 21, "s71", 4096)
    a(f"s_add_u32 s71, s70, {WS_Y}")
    srd_off(a, 32, 20, 21, "s71", 4096)
    srd(a, 36, 6, 7, 1024)
    a(f"""s_lshl_b32 s72, s68, 11
    v_lshlrev_b32 v2, 4, v1
    buffer_load_dwordx4 v[4:7], v2, s[24:27], s72 offen
    buffer_load_dwordx4 v[8:11], v2, s[24:27], s72 offen offset:1024
    buffer_load_dwordx4 v[12:15], v2, s[28:31], s72 offen
    buffer_load_dword v16, v2, s[28:31], s72 offen offset:16
    buffer_load_dwordx4 v[20:23], v2, s[28:31], s72 offen offset:1024
    buffer_load_dword v24, v2, s[28:31], s72 offen offset:1040
    s_lshl_b32 s73, s69, 1
    v_mov_b32 v3, s73
    buffer_load_ushort v25, v3, s[36:39], 0 offen""")
    stamp(a, 1)
    a(f"""s_barrier
    s_mul_i32 s74, s67, {CSZ}
    s_add_u32 s74, s74, {CONV0}
    v_lshrrev_b32 v26, 2, v1
    v_mul_u32_u24 v26, 80, v26
    v_and_b32 v27, 3, v1
    v_lshl_add_u32 v26, v27, 4, v26
    s_mul_i32 s75, s68, 2560
    s_add_u32 s75, s75, s74
    v_add_u32 v26, s75, v26
    s_add_u32 s75, s74, s72
    s_add_u32 s75, s75, {XEOFF}
    v_add_u32 v27, s75, v2
    v_mov_b32 v28, 0
    v_mov_b32 v29, 0
    v_mov_b32 v30, 0
    v_mov_b32 v31, 0
    v_lshrrev_b32 v32, 2, v1
    v_mul_u32_u24 v32, {XOOFF}, v32
    v_and_b32 v33, 3, v1
    v_lshl_add_u32 v32, v33, 4, v32
    s_add_u32 s75, s74, {XEOFF + 4096}
    v_add_u32 v32, s75, v32
    s_mov_b64 exec, 0xff
    ds_write_b128 v32, v[28:31]
    s_mov_b64 exec, -1
    s_waitcnt vmcnt(5)
    ds_write_b128 v26, v[4:7]
    ds_write_b128 v26, v[8:11] offset:1280
    s_waitcnt vmcnt(1)
    ds_write_b128 v27, v[12:15]
    ds_write_b128 v27, v[20:23] offset:1024
    v_alignbit_b32 v36, v13, v12, 16
    v_alignbit_b32 v37, v14, v13, 16
    v_alignbit_b32 v38, v15, v14, 16
    v_alignbit_b32 v39, v16, v15, 16
    v_alignbit_b32 v40, v21, v20, 16
    v_alignbit_b32 v41, v22, v21, 16
    v_alignbit_b32 v42, v23, v22, 16
    v_alignbit_b32 v43, v24, v23, 16
    ds_write_b128 v27, v[36:39] offset:{XOOFF}
    ds_write_b128 v27, v[40:43] offset:{XOOFF+1024}""")
    vA, vBa = 2, 3
    AF, BF, ACC = 48, 80, 112
    a(f"""v_and_b32 v4, 31, v1
    v_lshrrev_b32 v5, 5, v1
    v_or_b32 v6, 1, v4
    v_lshlrev_b32 v7, 3, v5
    v_sub_u32 v6, v7, v6
    s_cmp_eq_u32 s68, 0
    s_cselect_b32 s75, 1055, 31
    v_add_u32 v6, s75, v6
    v_lshlrev_b32 v6, 1, v6
    v_and_b32 v7, 1, v4
    v_xor_b32 v7, 1, v7
    v_mul_u32_u24 v7, {XOOFF}, v7
    s_add_u32 s75, s74, {XEOFF}
    v_add3_u32 v{vA}, v6, v7, s75
    v_mul_u32_u24 v6, 80, v4
    v_lshl_add_u32 v6, v5, 4, v6
    s_sub_u32 s75, s74, {80*31}
    v_add_u32 v{vBa}, s75, v6""")
    for i in range(32): a(f"v_mov_b32 v{BF+i}, 0")
    for i in range(16): a(f"v_mov_b32 v{ACC+i}, 0")
    a("s_waitcnt lgkmcnt(0)")
    stamp(a, 2)
    a("s_barrier")
    stamp(a, 3)
    NB = 4
    def creads(mu):
        b = mu % NB
        if mu % 8 == 0 and mu > 0: a(f"v_add_u32 v{vA}, 512, v{vA}")
        for u in range(2):
            o = ((2*mu + u) % 16) * 8
            r = AF + 8*b + 4*u
            a(f"ds_read2_b32 v[{r}:{r+1}], v{vA} offset0:{o} offset1:{o+1}")
            a(f"ds_read2_b32 v[{r+2}:{r+3}], v{vA} offset0:{o+2} offset1:{o+3}")
        if mu < 31:
            m = (0xffffffff << (31 - mu)) & 0xffffffff
            a(f"s_mov_b32 exec_lo, {m:#x}\ns_mov_b32 exec_hi, {m:#x}")
        for u in range(2):
            r = BF + 8*b + 4*u
            a(f"ds_read_b128 v[{r}:{r+3}], v{vBa} offset:{80*mu + 32*u}")
        if mu < 31: a("s_mov_b64 exec, -1")
    creads(0); creads(1)
    for mu in range(64):
        b = mu % NB
        last = (mu in (30, 31))
        if mu == 30:
            pass
        if mu + 2 < 64:
            a("s_waitcnt lgkmcnt(6)")
        elif mu + 1 < 64:
            a("s_waitcnt lgkmcnt(6)")
        else:
            a("s_waitcnt lgkmcnt(0)")
        for u in range(2):
            a(f"v_mfma_f32_32x32x16_bf16 v[{ACC}:{ACC+15}], v[{AF+8*b+4*u}:{AF+8*b+4*u+3}], v[{BF+8*b+4*u}:{BF+8*b+4*u+3}], v[{ACC}:{ACC+15}]")
        if mu + 2 < 64: creads(mu + 2)
        if mu == 31:
            a("s_cmp_eq_u32 s68, 0\ns_cbranch_scc1 k2_cepi")
    a.label("k2_cepi")
    stamp(a, 4)
    a(f"""s_waitcnt lgkmcnt(0)
    s_lshl_b32 s75, s68, 11
    v_lshlrev_b32 v6, 6, v4
    v_lshl_add_u32 v6, v5, 3, v6
    v_add_u32 v6, s75, v6
    s_add_u32 s75, s74, {XEOFF + 4088 - 48}
    v_sub_u32 v7, s75, v6""")
    for aa in range(4):
        a(f"ds_read_b64 v[{8+2*aa}:{9+2*aa}], v7 offset:{48 - 16*aa}")
    a("s_waitcnt vmcnt(0)\nv_lshlrev_b32 v25, 16, v25\ns_waitcnt lgkmcnt(0)")
    for aa in range(4):
        d0, d1 = 8 + 2*aa, 9 + 2*aa
        a(f"""v_and_b32 v16, 0xffff0000, v{d1}
        v_lshlrev_b32 v17, 16, v{d1}
        v_and_b32 v18, 0xffff0000, v{d0}
        v_lshlrev_b32 v19, 16, v{d0}
        v_fmac_f32 v{ACC+4*aa}, v16, v25
        v_fmac_f32 v{ACC+4*aa+1}, v17, v25
        v_fmac_f32 v{ACC+4*aa+2}, v18, v25
        v_fmac_f32 v{ACC+4*aa+3}, v19, v25
        v_cvt_pk_bf16_f32 v{32+2*aa}, v{ACC+4*aa}, v{ACC+4*aa+1}
        v_cvt_pk_bf16_f32 v{33+2*aa}, v{ACC+4*aa+2}, v{ACC+4*aa+3}
        buffer_store_dwordx2 v[{32+2*aa}:{33+2*aa}], v6, s[32:35], 0 offen offset:{16*aa}""")
    fin(a, 1)
    a.label("k2_end")
    a("s_endpgm")
    return a.finish(), 128

def k3():
    a = Asm()
    YT = 131072
    a.label("k3_kernel")
    a("""s_cmp_ge_u32 s2, 256
    s_cbranch_scc1 k3_end""")
    stamp(a, 8, True); stamp(a, 0)
    a("""s_load_dwordx2 s[4:5], s[0:1], 0
    s_load_dwordx2 s[6:7], s[0:1], 80
    s_load_dwordx2 s[8:9], s[0:1], 96
    s_load_dwordx2 s[20:21], s[0:1], 112
    v_lshrrev_b32 v2, 6, v0
    v_and_b32 v1, 63, v0
    v_readfirstlane_b32 s3, v2""")
    wg_decode(a, 56, 57)
    a("s_lshl_b32 s58, s56, 10")
    gemm_dma_addr(a, 4, 5, 6, 1, 3, 57, 8)
    a("""v_lshrrev_b32 v8, 3, v1
    v_and_b32 v7, 7, v1
    v_lshlrev_b32 v7, 4, v7
    v_lshl_add_u32 v7, v8, 12, v7
    s_waitcnt lgkmcnt(0)""")
    srd_off(a, 24, 20, 21, WS_O, 0x200000)
    srd(a, 28, 6, 7, 0x80000)
    srd(a, 32, 4, 5, 0x200000)
    srd(a, 36, 8, 9, 0x200000)
    srd(a, 44, 20, 21, WS_SIZE)
    a("s_cmp_ge_u32 s3, 4\ns_cbranch_scc1 k3_help")
    XR, GR = 112, 120
    a(f"""s_lshr_b32 s63, s3, 1
    s_lshl_b32 s63, s63, 5
    s_add_u32 s63, s63, s56
    v_and_b32 v8, 31, v1
    v_add_u32 v8, s63, v8
    v_lshlrev_b32 v9, 2, v8
    s_mov_b32 s64, {WS_G}
    buffer_load_dword v{GR}, v9, s[44:47], s64 offen
    v_lshrrev_b32 v9, 5, v1
    v_lshlrev_b32 v9, 3, v9
    v_lshl_add_u32 v12, v8, 10, v9
    s_and_b32 s64, s3, 1
    s_lshl_b32 s64, s64, 6
    s_lshl_b32 s65, s57, 1
    s_add_u32 s59, s64, s65""")
    for aa in range(4):
        a(f"buffer_load_dwordx2 v[{XR+2*aa}:{XR+2*aa+1}], v12, s[32:35], s59 offen offset:{16*aa}")
    def ydma():
        a(f"""s_lshl_b32 s64, s3, 3
        s_add_u32 s64, s64, s57
        s_lshl_b32 s64, s64, 12
        s_lshl_b32 s65, s56, 1
        s_add_u32 s64, s64, s65
        s_add_u32 s64, s64, {WS_Y}
        s_lshl_b32 s65, s3, 10
        s_add_u32 s66, s65, {YT}""")
        dma(a, 7, 44, "s64", "s66")
    for kc in range(4): gemm_dma_chunk(a, kc, 4, 5, 6, 24, 28, 3, 58)
    ydma()
    stamp(a, 1)
    gemm_read_addr(a, 16, 24, 1, 3, 8, True)
    a(f"""v_bfe_u32 v8, v1, 2, 2
    v_lshrrev_b32 v9, 5, v1
    v_lshl_add_u32 v8, v9, 2, v8
    v_lshlrev_b32 v8, 7, v8
    v_bfe_u32 v9, v1, 4, 1
    v_lshl_add_u32 v8, v9, 5, v8
    v_and_b32 v9, 3, v1
    v_lshl_add_u32 v8, v9, 3, v8
    s_and_b32 s64, s3, 1
    s_lshl_b32 s64, s64, 12
    s_lshr_b32 s65, s3, 1
    s_lshl_b32 s65, s65, 6
    s_add_u32 s64, s64, s65
    s_add_u32 s64, s64, {YT}
    v_add_u32 v25, s64, v8""")
    ACC, FA, FB = 32, 48, 80
    for kc in range(4):
        a(f"s_waitcnt vmcnt({13 - 4*kc if kc < 3 else 0})\ns_barrier")
        stamp(a, 2 + kc)
        gemm_chunk(a, kc, 16, 24, FA, FB, ACC, True, kc == 0)
    stamp(a, 6)
    for aa in range(4):
        a(f"ds_read_b64_tr_b16 v[{FA+2*aa}:{FA+2*aa+1}], v25 offset:{1024*aa}")
    a(f"v_sub_f32 v{GR+1}, 1.0, v{GR}\ns_waitcnt lgkmcnt(0)")
    for aa in range(4):
        x0, x1, y0, y1 = XR + 2*aa, XR + 2*aa + 1, FA + 2*aa, FA + 2*aa + 1
        t = FB
        a(f"""v_lshlrev_b32 v{t}, 16, v{x0}
        v_and_b32 v{t+1}, 0xffff0000, v{x0}
        v_lshlrev_b32 v{t+2}, 16, v{x1}
        v_and_b32 v{t+3}, 0xffff0000, v{x1}
        v_lshlrev_b32 v{t+4}, 16, v{y0}
        v_and_b32 v{t+5}, 0xffff0000, v{y0}
        v_lshlrev_b32 v{t+6}, 16, v{y1}
        v_and_b32 v{t+7}, 0xffff0000, v{y1}""")
        for e in range(4):
            a(f"v_mul_f32 v{t+e}, v{t+e}, v{t+4+e}")
        for e in range(4):
            a(f"v_mul_f32 v{t+e}, v{t+e}, v{GR}")
        for e in range(4):
            a(f"v_fmac_f32 v{t+e}, v{ACC+4*aa+e}, v{GR+1}")
        a(f"""v_cvt_pk_bf16_f32 v{t+8+2*aa}, v{t}, v{t+1}
        v_cvt_pk_bf16_f32 v{t+9+2*aa}, v{t+2}, v{t+3}
        buffer_store_dwordx2 v[{t+8+2*aa}:{t+9+2*aa}], v12, s[36:39], s59 offen offset:{16*aa}""")
    fin(a, 2)
    a.label("k3_help")
    for kc in range(4): gemm_dma_chunk(a, kc, 4, 5, 6, 24, 28, 3, 58)
    ydma()
    for kc in range(4):
        a(f"s_waitcnt vmcnt({13 - 4*kc if kc < 3 else 0})\ns_barrier")
    fin(a, 2)
    a.label("k3_end")
    a("s_endpgm")
    return a.finish(), 128

def build(extra_launch=""):
    hdr = open("cdna_kernels/" + NAME + ".s.ref").read().split("; Override launch")[0]
    ks = [("k1_kernel", k1(), 512, 163840), ("k2_kernel", k2(), 768, 157952), ("k3_kernel", k3(), 512, 139264)]
    out = hdr
    for n, _, blk, lds in ks:
        out += f"; @launch kernel={n} grid=(256,1,1) block=({blk},1,1) lds={lds}\n"
    out += extra_launch
    out += '.amdgcn_target "amdgcn-amd-amdhsa--gfx950"\n.text\n'
    for n, (body, nv), _, _ in ks:
        out += f".globl {n}\n.p2align 8\n.type {n},@function\n" + body
    out += '.section .rodata,"a"\n'
    for n, (body, nv), _, _ in ks:
        out += f""".p2align 6
.amdhsa_kernel {n}
  .amdhsa_next_free_vgpr {nv}
  .amdhsa_next_free_sgpr {100 if DIAG else 80}
  .amdhsa_accum_offset {nv}
  .amdhsa_group_segment_fixed_size 0
  .amdhsa_kernarg_size 120
  .amdhsa_user_sgpr_count 2
  .amdhsa_user_sgpr_kernarg_segment_ptr 1
  .amdhsa_system_sgpr_workgroup_id_x 1
.end_amdhsa_kernel
"""
    return out

if __name__ == "__main__":
    if "-d" in sys.argv:
        DIAG = True; sys.argv.remove("-d")
    dst = sys.argv[1] if len(sys.argv) > 1 else "cdna_kernels/" + NAME + ".s"
    open(dst, "w").write(build())
    print("wrote", dst)
```

```python
import gen, sys
base = gen.build()
def order(seq):
    lines = base.split("\n")
    L = [l for l in lines if l.startswith("; @launch")]
    first = min(i for i, l in enumerate(lines) if l.startswith("; @launch"))
    lines = [l for l in lines if not l.startswith("; @launch")]
    lines[first:first] = [L[i] for i in seq]
    return "\n".join(lines)
for i, seq in enumerate([[0,1,2],[0,0,1,2],[0,1,1,2],[0,1,2,2],[0,1,2,0,1,2]]):
    open(f"v{i}.s", "w").write(order(seq))
```

```python
import sys, math
from asmlib import Asm

NAME = "gated_mix__ssm_conv_h3__grouped_kv_mqa__prompt"
WS_Q, WS_KV, WS_KMAX, WS_G, WS_XREV, WS_O, WS_Y = 0x000000, 0x200000, 0x220000, 0x221000, 0x300000, 0x500000, 0x700000
WS_SIZE = 0x900000
CSCALE = 0.25 * math.log2(math.e)
import struct
def f32(x): return "0x%08x" % struct.unpack("<I", struct.pack("<f", x))[0]

DIAG = False
WS_DIAG = 0x1000000
def stamp(a, idx, real=False):
    if not DIAG and not (DBG and idx == 8): return
    a(f"{'s_memrealtime' if real else 's_memtime'} s[{80+2*idx}:{81+2*idx}]\ns_waitcnt lgkmcnt(0)")
def dump(a, kid, n=10):
    if not DIAG: return
    stamp(a, 9, True)
    a(f"""s_add_u32 s76, s20, {WS_DIAG + kid*256*16*64}
    s_addc_u32 s77, s21, 0
    s_mov_b32 s78, 0x40000
    s_mov_b32 s79, 0x20000
    s_lshl_b32 s75, s2, 4
    s_add_u32 s75, s75, s3
    s_lshl_b32 s75, s75, 6
    s_mov_b64 exec, 1
    v_mov_b32 v0, 0""")
    for i in range(n):
        a(f"v_mov_b32 v1, s{80+2*i}\nbuffer_store_dword v1, v0, s[76:79], s75 offen offset:{4*i}")

DBG = False
def fin(a, kid):
    if DBG:
        a(f"""s_waitcnt vmcnt(0)
        s_load_dwordx2 s[76:77], s[0:1], 104
        s_memrealtime s[98:99]
        s_waitcnt lgkmcnt(0)
        s_sub_u32 s76, s76, {512*kid}
        s_subb_u32 s77, s77, 0
        s_mov_b32 s78, 256
        s_mov_b32 s79, 0x20000
        s_not_b32 s96, s96
        s_mov_b64 exec, 1
        v_mov_b32 v0, 0
        v_mov_b32 v1, s96
        v_mov_b32 v2, s98
        buffer_atomic_umax v1, v0, s[76:79], 0 offen offset:{8*kid}
        buffer_atomic_umax v2, v0, s[76:79], 0 offen offset:{8*kid+4}""")
    if DIAG:
        a("s_waitcnt vmcnt(0)")
        stamp(a, 7); dump(a, kid)
    a("s_endpgm")

def srd(a, d, lo, hi, size):
    a(f"s_mov_b32 s{d}, s{lo}\ns_mov_b32 s{d+1}, s{hi}\ns_mov_b32 s{d+2}, {size}\ns_mov_b32 s{d+3}, 0x20000")

def srd_off(a, d, lo, hi, off, size):
    a(f"s_add_u32 s{d}, s{lo}, {off}\ns_addc_u32 s{d+1}, s{hi}, 0\ns_mov_b32 s{d+2}, {size}\ns_mov_b32 s{d+3}, 0x20000")

def dma(a, voff, srdn, soff, m0):
    a(f"s_mov_b32 m0, {m0}")
    a(f"buffer_load_dwordx4 v{voff}, s[{srdn}:{srdn+3}], {soff} offen lds")

def wg_decode(a, sS0, sN0):
    a(f"""s_and_b32 s60, s2, 7
    s_lshl_b32 s60, s60, 2
    s_lshr_b32 s61, s2, 3
    s_and_b32 s62, s61, 3
    s_add_u32 s60, s60, s62
    s_lshr_b32 s61, s61, 2
    s_lshl_b32 s{sS0}, s60, 6
    s_lshl_b32 s{sN0}, s61, 6""")

XT, WT = 0, 65536

def gemm_dma_addr(a, vX0, vX1, vW, vl, sW, sN0, tmp):
    t0, t1 = tmp, tmp + 1
    a(f"""s_lshl_b32 s63, s{sW}, 3
    v_lshrrev_b32 v{t0}, 4, v{vl}
    v_add_u32 v{t0}, s63, v{t0}
    v_and_b32 v{t1}, 15, v{vl}
    v_xor_b32 v{vX0}, v{t0}, v{t1}
    v_and_b32 v{vX0}, 15, v{vX0}
    v_lshlrev_b32 v{vX0}, 4, v{vX0}
    v_lshl_add_u32 v{vX0}, v{t0}, 10, v{vX0}
    v_add_u32 v{t0}, 4, v{t0}
    v_xor_b32 v{vX1}, v{t0}, v{t1}
    v_and_b32 v{vX1}, 15, v{vX1}
    v_lshlrev_b32 v{vX1}, 4, v{vX1}
    v_lshl_add_u32 v{vX1}, v{t0}, 10, v{vX1}""")
    a(f"""v_lshrrev_b32 v{t0}, 3, v{vl}
    v_lshlrev_b32 v{t1}, 1, v{t0}
    v_and_b32 v{t1}, 4, v{t1}
    v_and_b32 v{vW}, 7, v{vl}
    v_xor_b32 v{vW}, v{vW}, v{t1}
    v_lshlrev_b32 v{vW}, 4, v{vW}
    v_lshl_add_u32 v{vW}, v{t0}, 10, v{vW}
    s_lshl_b32 s63, s{sN0}, 1
    v_add_u32 v{vW}, s63, v{vW}""")

def gemm_dma_chunk(a, kc, vX0, vX1, vW, srdX, srdW, sW, sXbase):
    a(f"s_add_u32 s64, s{sXbase}, {kc*256}")
    a(f"s_lshl_b32 s65, s{sW}, 11")
    a(f"s_add_u32 s66, s65, {XT + kc*16384}")
    dma(a, vX0, srdX, "s64", "s66")
    a(f"s_add_u32 s66, s66, 1024")
    dma(a, vX1, srdX, "s64", "s66")
    a(f"s_lshl_b32 s67, s{sW}, 14")
    a(f"s_add_u32 s67, s67, {kc*128*1024}")
    a(f"s_add_u32 s66, s65, {WT + kc*16384}")
    dma(a, vW, srdW, "s67", "s66")
    a(f"s_add_u32 s67, s67, 8192")
    a(f"s_add_u32 s66, s66, 1024")
    dma(a, vW, srdW, "s67", "s66")

def gemm_read_addr(a, vB, vA, vl, sW, tmp, phi):
    t0, t1, t2 = tmp, tmp + 1, tmp + 2
    a(f"""s_lshr_b32 s63, s{sW}, 1
    s_lshl_b32 s63, s63, 13
    v_and_b32 v{t0}, 31, v{vl}
    v_lshrrev_b32 v{t1}, 5, v{vl}
    v_and_b32 v{t2}, 15, v{vl}
    v_xor_b32 v{t2}, v{t2}, v{t1}
    v_lshlrev_b32 v{t2}, 4, v{t2}
    v_lshl_add_u32 v{t2}, v{t0}, 8, v{t2}
    v_add_u32 v{vB}, s63, v{t2}""")
    for e in range(1, 8):
        a(f"v_xor_b32 v{vB+e}, {e*32}, v{vB}")
    a(f"""s_and_b32 s63, s{sW}, 1
    v_bfe_u32 v{t0}, v{vl}, 2, 2
    v_lshrrev_b32 v{t2}, 1, v{t0}
    v_xor_b32 v{t2}, s63, v{t2}
    v_lshlrev_b32 v{t2}, 6, v{t2}
    v_lshl_add_u32 v{t0}, v{t1}, {2 if phi else 3}, v{t0}
    v_lshl_add_u32 v{t2}, v{t0}, 7, v{t2}
    v_bfe_u32 v{t0}, v{vl}, 4, 1
    v_lshl_add_u32 v{t2}, v{t0}, 5, v{t2}
    v_and_b32 v{t0}, 3, v{vl}
    v_lshl_add_u32 v{t2}, v{t0}, 3, v{t2}
    v_add_u32 v{vA}, {WT}, v{t2}""")

def gemm_chunk(a, kc, vB, vA, FA, FB, ACC, phi, first):
    tstep = 1024 if phi else 512
    def reads(e):
        a(f"ds_read_b128 v[{FB+4*e}:{FB+4*e+3}], v{vB+e} offset:{kc*16384}")
        a(f"ds_read_b64_tr_b16 v[{FA+4*e}:{FA+4*e+1}], v{vA} offset:{kc*16384 + e*2048}")
        a(f"ds_read_b64_tr_b16 v[{FA+4*e+2}:{FA+4*e+3}], v{vA} offset:{kc*16384 + e*2048 + tstep}")
    for e in range(4): reads(e)
    for e in range(8):
        left = min(7, e + 3) - e
        a(f"s_waitcnt lgkmcnt({3*left})")
        c = "0" if (first and e == 0) else f"v[{ACC}:{ACC+15}]"
        a(f"v_mfma_f32_32x32x16_bf16 v[{ACC}:{ACC+15}], v[{FA+4*e}:{FA+4*e+3}], v[{FB+4*e}:{FB+4*e+3}], {c}")
        if e + 4 < 8: reads(e + 4)

def k1():
    a = Asm()
    WKV, KT, VT = 131072, 147456, 155648
    a.label("k1_kernel")
    a("""s_cmp_ge_u32 s2, 256
    s_cbranch_scc1 k1_end""")
    stamp(a, 8, True); stamp(a, 0)
    a("""s_load_dwordx4 s[4:7], s[0:1], 0
    s_load_dwordx4 s[8:11], s[0:1], 16
    s_load_dwordx4 s[12:15], s[0:1], 56
    s_load_dwordx2 s[16:17], s[0:1], 72
    s_load_dwordx2 s[18:19], s[0:1], 88
    s_load_dwordx2 s[20:21], s[0:1], 112
    v_lshrrev_b32 v2, 6, v0
    v_and_b32 v1, 63, v0
    v_readfirstlane_b32 s3, v2""")
    wg_decode(a, 56, 57)
    a("s_lshl_b32 s58, s56, 10")
    gemm_dma_addr(a, 4, 5, 6, 1, 3, 57, 8)
    a("""v_lshrrev_b32 v8, 3, v1
    v_and_b32 v7, 7, v1
    v_lshlrev_b32 v7, 4, v7
    v_lshl_add_u32 v7, v8, 10, v7
    s_lshl_b32 s63, s57, 1
    v_add_u32 v7, s63, v7
    s_waitcnt lgkmcnt(0)""")
    srd(a, 24, 4, 5, 0x200000)
    srd(a, 28, 12, 13, 0x80000)
    srd(a, 32, 6, 7, 0x200000)
    srd(a, 36, 8, 9, 0x200000)
    srd(a, 44, 20, 21, WS_SIZE)
    a("""s_cmp_ge_u32 s3, 4
    s_cbranch_scc1 k1_kv""")
    def kv_tile_dma():
        a("""s_lshl_b32 s64, s3, 13
        s_add_u32 s64, s64, s58
        s_lshl_b32 s65, s3, 10""")
        a(f"s_add_u32 s66, s65, {KT}")
        dma(a, 7, 32, "s64", "s66")
        a(f"s_add_u32 s66, s65, {VT}")
        dma(a, 7, 36, "s64", "s66")
    kv_tile_dma()
    for kc in range(4): gemm_dma_chunk(a, kc, 4, 5, 6, 24, 28, 3, 58)
    stamp(a, 1)
    gemm_read_addr(a, 16, 24, 1, 3, 8, False)
    ACC, FA, FB = 32, 48, 80
    for kc in range(4):
        a(f"s_waitcnt vmcnt({12 - 4*kc})\ns_barrier")
        stamp(a, 2 + kc)
        gemm_chunk(a, kc, 16, 24, FA, FB, ACC, False, kc == 0)
    stamp(a, 6)
    a("""s_lshr_b32 s63, s3, 1
    s_lshl_b32 s63, s63, 15
    s_add_u32 s63, s63, s58
    s_and_b32 s64, s3, 1
    s_lshl_b32 s64, s64, 6
    s_add_u32 s63, s63, s64
    s_lshl_b32 s64, s57, 1
    s_add_u32 s63, s63, s64
    v_and_b32 v8, 31, v1
    v_lshrrev_b32 v9, 5, v1
    v_lshlrev_b32 v9, 4, v9
    v_lshl_add_u32 v8, v8, 10, v9""")
    for i in range(8):
        a(f"v_cvt_pk_bf16_f32 v{FA+i}, v{ACC+2*i}, v{ACC+2*i+1}")
    a(f"buffer_store_dwordx4 v[{FA}:{FA+3}], v8, s[44:47], s63 offen offset:{WS_Q}")
    a(f"buffer_store_dwordx4 v[{FA+4}:{FA+7}], v8, s[44:47], s63 offen offset:{WS_Q+32}")
    fin(a, 0)
    a.label("k1_kv")
    a("""s_and_b32 s59, s61, 1
    s_lshr_b32 s68, s61, 1
    s_sub_u32 s69, s3, 4
    s_cmp_eq_u32 s59, 0
    s_cselect_b32 s40, s14, s16
    s_cselect_b32 s41, s15, s17
    s_mov_b32 s42, 0x4000
    s_mov_b32 s43, 0x20000""")
    srd(a, 48, 10, 11, 4096)
    srd(a, 52, 18, 19, 1024)
    GW = 128
    a("""s_cmp_lg_u32 s3, 7
    s_cbranch_scc1 k1_nogw
    s_cmp_lg_u32 s59, 0
    s_cbranch_scc1 k1_nogw
    v_lshrrev_b32 v8, 4, v1
    v_lshlrev_b32 v8, 4, v8""")
    for i in range(16):
        a(f"buffer_load_dwordx4 v[{GW+4*i}:{GW+4*i+3}], v8, s[52:55], 0 offen offset:{64*i}")
    a.label("k1_nogw")
    a("""v_add_u32 v8, s57, v1
    v_lshlrev_b32 v9, 3, v8
    buffer_load_dwordx2 v[10:11], v9, s[48:51], 0 offen
    s_lshl_b32 s64, s69, 14
    s_add_u32 s64, s64, s58
    s_sub_u32 s64, s64, 3072
    v_lshlrev_b32 v9, 1, v8
    v_add_u32 v9, s64, v9
    buffer_load_ushort v12, v9, s[32:35], 0 offen
    buffer_load_ushort v13, v9, s[32:35], 0 offen offset:1024
    buffer_load_ushort v14, v9, s[32:35], 0 offen offset:2048""")
    kv_tile_dma()
    a("v_lshlrev_b32 v15, 4, v1")
    for kc in range(4):
        gemm_dma_chunk(a, kc, 4, 5, 6, 24, 28, 3, 58)
        a(f"s_lshl_b32 s64, s69, 10\ns_add_u32 s64, s64, {kc*4096}\ns_add_u32 s66, s64, {WKV}")
        dma(a, 15, 40, "s64", "s66")
    a(f"""v_bfe_u32 v16, v1, 2, 2
    v_lshlrev_b32 v16, 7, v16
    v_lshrrev_b32 v17, 4, v1
    v_lshl_add_u32 v16, v17, 5, v16
    v_and_b32 v17, 3, v1
    v_lshl_add_u32 v16, v17, 3, v16
    s_lshl_b32 s64, s69, 11
    s_add_u32 s64, s64, {KT}
    v_add_u32 v16, s64, v16""")
    a(f"""v_and_b32 v17, 15, v1
    v_lshrrev_b32 v18, 4, v1
    v_xor_b32 v19, v17, v18
    v_lshlrev_b32 v19, 4, v19
    v_lshl_add_u32 v19, v17, 8, v19
    s_lshl_b32 s64, s68, 12
    v_add_u32 v20, s64, v19
    v_xor_b32 v21, 64, v20
    v_xor_b32 v22, 128, v20
    v_xor_b32 v23, 192, v20
    v_bfe_u32 v19, v1, 2, 2
    v_lshl_add_u32 v19, v18, 3, v19
    v_lshlrev_b32 v19, 5, v19
    v_and_b32 v24, 3, v1
    v_lshl_add_u32 v24, v24, 3, v19
    v_add_u32 v24, {WKV}, v24""")
    JD, JG, JX, JW = 28, 32, 96, 112
    def job_chunk(kc):
        lbl = f"k1_nojob{kc}"
        a(f"s_cmp_lg_u32 s3, 7\ns_cbranch_scc1 {lbl}")
        for e in range(4):
            a(f"ds_read_b128 v[{JX+4*e}:{JX+4*e+3}], v{20+e} offset:{kc*16384}")
            a(f"ds_read_b64_tr_b16 v[{JW+4*e}:{JW+4*e+1}], v24 offset:{kc*4096 + e*1024}")
            a(f"ds_read_b64_tr_b16 v[{JW+4*e+2}:{JW+4*e+3}], v24 offset:{kc*4096 + e*1024 + 128}")
        a(f"s_waitcnt lgkmcnt(0)\ns_cmp_lg_u32 s59, 0\ns_cbranch_scc1 {lbl}_v")
        for e in range(4):
            c = "0" if (kc == 0 and e == 0) else f"v[{JD}:{JD+3}]"
            a(f"v_mfma_f32_16x16x32_bf16 v[{JD}:{JD+3}], v[{JW+4*e}:{JW+4*e+3}], v[{JX+4*e}:{JX+4*e+3}], {c}")
            c = "0" if (kc == 0 and e == 0) else f"v[{JG}:{JG+3}]"
            g = GW + 16*kc + 4*e
            a(f"v_mfma_f32_16x16x32_bf16 v[{JG}:{JG+3}], v[{g}:{g+3}], v[{JX+4*e}:{JX+4*e+3}], {c}")
        a(f"s_branch {lbl}")
        a.label(f"{lbl}_v")
        for e in range(4):
            c = "0" if (kc == 0 and e == 0) else f"v[{JD}:{JD+3}]"
            a(f"v_mfma_f32_16x16x32_bf16 v[{JD}:{JD+3}], v[{JX+4*e}:{JX+4*e+3}], v[{JW+4*e}:{JW+4*e+3}], {c}")
        a.label(lbl)
    KR, VR, KF, VF = 36, 44, 52, 72
    stamp(a, 1)
    a("s_waitcnt vmcnt(15)\ns_barrier")
    stamp(a, 2)
    for i in range(4):
        a(f"ds_read_b64_tr_b16 v[{KR+2*i}:{KR+2*i+1}], v16 offset:{i*512}")
    for i in range(4):
        a(f"ds_read_b64_tr_b16 v[{VR+2*i}:{VR+2*i+1}], v16 offset:{8192 + i*512}")
    job_chunk(0)
    a("""v_lshlrev_b32 v88, 16, v10
    v_and_b32 v89, 0xffff0000, v10
    v_lshlrev_b32 v90, 16, v11
    v_and_b32 v91, 0xffff0000, v11""")
    for i in range(3): a(f"v_lshlrev_b32 v{KF+i}, 16, v{12+i}")
    a("s_waitcnt lgkmcnt(0)")
    for i in range(8):
        a(f"v_lshlrev_b32 v{KF+3+2*i}, 16, v{KR+i}\nv_and_b32 v{KF+4+2*i}, 0xffff0000, v{KR+i}")
    for i in range(8):
        a(f"v_lshlrev_b32 v{VF+2*i}, 16, v{VR+i}\nv_and_b32 v{VF+1+2*i}, 0xffff0000, v{VR+i}")
    stamp(a, 3)
    a("s_waitcnt vmcnt(10)\ns_barrier")
    job_chunk(1)
    for s in range(16):
        t = 36 + (s % 8)
        a(f"v_mul_f32 v{t}, v{KF+s}, v91")
        a(f"v_fmac_f32 v{t}, v{KF+s+1}, v90")
        a(f"v_fmac_f32 v{t}, v{KF+s+2}, v89")
        a(f"v_fmac_f32 v{t}, v{KF+s+3}, v88")
        a(f"v_mul_f32 v{VF+s}, v{t}, v{VF+s}")
    stamp(a, 4)
    a("s_waitcnt vmcnt(5)\ns_barrier")
    job_chunk(2)
    for q in range(8):
        a(f"v_cvt_pk_bf16_f32 v{44+q}, v{VF+15-2*q}, v{VF+14-2*q}")
    a(f"""s_lshl_b32 s64, s69, 4
    s_add_u32 s64, s64, s56
    s_lshl_b32 s64, s64, 1
    s_sub_u32 s64, {WS_XREV + 4064}, s64
    v_lshlrev_b32 v9, 12, v8
    buffer_store_dwordx4 v[44:47], v9, s[44:47], s64 offen
    buffer_store_dwordx4 v[48:51], v9, s[44:47], s64 offen offset:16
    s_waitcnt vmcnt(2)
    s_barrier""")
    stamp(a, 5)
    job_chunk(3)
    stamp(a, 6)
    a("s_cmp_lg_u32 s3, 7\ns_cbranch_scc1 k1_fin")
    a(f"""s_lshr_b32 s64, s68, 1
    s_lshl_b32 s65, s60, 1
    s_add_u32 s64, s64, s65
    s_lshl_b32 s64, s64, 11
    s_add_u32 s64, s64, {WS_KV}
    s_and_b32 s65, s68, 1
    v_and_b32 v17, 15, v1
    v_lshlrev_b32 v17, 4, v17
    v_lshrrev_b32 v18, 5, v1
    v_lshl_add_u32 v17, v18, 3, v17
    v_bfe_u32 v18, v1, 4, 1
    s_cmp_lg_u32 s59, 0
    s_cbranch_scc1 k1_vepi""")
    a(f"""s_lshl_b32 s65, s65, 8
    s_add_u32 s64, s64, s65
    v_lshl_add_u32 v17, v18, 9, v17
    s_mov_b32 s66, {f32(CSCALE)}""")
    for e in range(4): a(f"v_mul_f32 v{JD+e}, s66, v{JD+e}")
    a(f"""v_cvt_pk_bf16_f32 v36, v{JD}, v{JD+1}
    v_cvt_pk_bf16_f32 v37, v{JD+2}, v{JD+3}
    buffer_store_dwordx2 v[36:37], v17, s[44:47], s64 offen
    v_mul_f32 v38, v{JD}, v{JD}
    v_fmac_f32 v38, v{JD+1}, v{JD+1}
    v_fmac_f32 v38, v{JD+2}, v{JD+2}
    v_fmac_f32 v38, v{JD+3}, v{JD+3}
    v_mov_b32 v39, v38
    v_permlane32_swap_b32 v38, v39
    v_add_f32 v38, v38, v39
    v_mov_b32 v39, v38
    v_permlane16_swap_b32 v38, v39
    v_add_f32 v38, v38, v39
    v_max_f32_dpp v38, v38, v38 row_ror:8 row_mask:0xf bank_mask:0xf
    v_max_f32_dpp v38, v38, v38 row_ror:4 row_mask:0xf bank_mask:0xf
    v_max_f32_dpp v38, v38, v38 row_ror:2 row_mask:0xf bank_mask:0xf
    v_max_f32_dpp v38, v38, v38 row_ror:1 row_mask:0xf bank_mask:0xf
    s_mov_b32 s66, {f32(-math.log2(math.e))}
    v_mul_f32 v40, s66, v{JG}
    v_exp_f32 v40, v40
    v_add_f32 v40, 1.0, v40
    v_rcp_f32 v40, v40
    s_lshl_b32 s65, s60, 2
    s_add_u32 s65, s65, s68
    s_lshl_b32 s66, s65, 6
    s_add_u32 s66, s66, {WS_G}
    s_lshl_b32 s65, s65, 2
    s_add_u32 s65, s65, {WS_KMAX}
    v_lshlrev_b32 v41, 2, v1
    s_mov_b64 exec, 0xffff
    buffer_store_dword v40, v41, s[44:47], s66 offen
    s_mov_b64 exec, 1
    buffer_store_dword v38, v41, s[44:47], s65 offen""")
    fin(a, 0)
    a.label("k1_vepi")
    a(f"""s_lshl_b32 s65, s65, 9
    s_add_u32 s64, s64, s65
    v_lshl_add_u32 v17, v18, 8, v17
    v_cvt_pk_bf16_f32 v36, v{JD}, v{JD+1}
    v_cvt_pk_bf16_f32 v37, v{JD+2}, v{JD+3}
    buffer_store_dwordx2 v[36:37], v17, s[44:47], s64 offen offset:1024""")
    a.label("k1_fin")
    fin(a, 0)
    a.label("k1_end")
    a("s_endpgm")
    return a.finish(), 192

def k2():
    a = Asm()
    CONV0, CSZ, XEOFF, XOOFF = 131072, 13440, 5120, 4160
    a.label("k2_kernel")
    a("""s_cmp_ge_u32 s2, 256
    s_cbranch_scc1 k2_end""")
    stamp(a, 8, True); stamp(a, 0)
    a("""s_load_dwordx4 s[4:7], s[0:1], 32
    s_load_dwordx2 s[20:21], s[0:1], 112
    v_lshrrev_b32 v2, 6, v0
    v_and_b32 v1, 63, v0
    v_readfirstlane_b32 s3, v2""")
    wg_decode(a, 56, 57)
    a("""s_cmp_ge_u32 s3, 8
    s_cbranch_scc1 k2_conv
    s_waitcnt lgkmcnt(0)""")
    srd(a, 44, 20, 21, WS_SIZE)
    srd_off(a, 40, 20, 21, WS_KV, 131072)
    Q, NM, S0, S1, P, O, KB, VB = 4, 8, 24, 40, 56, 64, 80, 88
    vK, vV, vRow = 104, 105, 106
    a(f"""s_and_b32 s62, s3, 1
    s_lshl_b32 s62, s62, 5
    s_add_u32 s62, s62, s56
    s_lshl_b32 s62, s62, 10
    s_lshr_b32 s63, s3, 1
    s_lshl_b32 s64, s61, 2
    s_add_u32 s63, s63, s64
    s_lshl_b32 s63, s63, 5
    s_add_u32 s62, s62, s63
    v_and_b32 v2, 31, v1
    v_lshrrev_b32 v3, 5, v1
    v_lshlrev_b32 v{vRow}, 4, v3
    v_lshl_add_u32 v{vRow}, v2, 10, v{vRow}
    v_lshlrev_b32 v{vK}, 4, v1
    v_lshlrev_b32 v107, 3, v1
    buffer_load_dwordx4 v[{Q}:{Q+3}], v{vRow}, s[44:47], s62 offen offset:{WS_Q}
    s_mov_b32 s63, {WS_KMAX}
    buffer_load_dwordx2 v[108:109], v107, s[44:47], s63 offen
    s_lshl_b32 s64, s3, 10""")
    for i in range(16):
        dma(a, vK, 40, "s64", "s64")
        if i < 15: a("s_add_u32 s64, s64, 8192")
    stamp(a, 1)
    a(f"""v_and_b32 v{vV}, 15, v1
    v_lshlrev_b32 v{vV}, 4, v{vV}
    v_lshl_add_u32 v{vV}, v3, 8, v{vV}
    v_add_u32 v{vV}, 1024, v{vV}
    s_mov_b32 s70, 0xffff
    s_mov_b32 s71, 0xffff""")
    a(f"""v_and_b32 v110, 27, v2
    v_cmp_eq_u32 vcc, 16, v110
    v_mov_b32 v111, 0x3f803f80
    v_cndmask_b32 v{VB}, 0, v111, vcc""")
    for i in range(1, 16): a(f"v_mov_b32 v{VB+i}, v{VB}")
    for i in range(8): a(f"v_mov_b32 v{P+i}, 0")
    for i in range(16): a(f"v_mov_b32 v{O+i}, 0")
    a(f"""s_waitcnt vmcnt(16)
    v_max_f32 v108, v108, v109
    v_dot2_f32_bf16 v110, v{Q}, v{Q}, 0
    v_dot2_f32_bf16 v111, v{Q+1}, v{Q+1}, 0
    v_max_f32_dpp v108, v108, v108 row_ror:8 row_mask:0xf bank_mask:0xf
    v_dot2_f32_bf16 v112, v{Q+2}, v{Q+2}, 0
    v_dot2_f32_bf16 v113, v{Q+3}, v{Q+3}, 0
    v_max_f32_dpp v108, v108, v108 row_ror:4 row_mask:0xf bank_mask:0xf
    s_nop 1
    v_add_f32 v110, v110, v111
    v_max_f32_dpp v108, v108, v108 row_ror:2 row_mask:0xf bank_mask:0xf
    v_add_f32 v112, v112, v113
    v_add_f32 v110, v110, v112
    v_max_f32_dpp v108, v108, v108 row_ror:1 row_mask:0xf bank_mask:0xf
    v_mov_b32 v111, v110
    v_mov_b32 v109, v108
    v_permlane32_swap_b32 v110, v111
    v_permlane32_swap_b32 v108, v109
    v_add_f32 v110, v110, v111
    v_max_f32 v108, v108, v109
    v_mov_b32 v109, v108
    v_permlane16_swap_b32 v108, v109
    v_max_f32 v108, v108, v109
    v_mul_f32 v110, v110, v108
    s_mov_b32 s72, {f32(1600.0)}
    v_cmp_nle_f32 vcc, v110, s72
    v_sqrt_f32 v110, v110
    s_mov_b32 s73, 0
    s_waitcnt vmcnt(13)
    s_barrier
    s_cbranch_vccz k2_fast""")
    a(f"""s_waitcnt vmcnt(0)
    s_barrier
    s_mov_b32 s73, 1
    v_mov_b32 v110, 0xff800000
    v_mov_b32 v107, v{vK}
    s_mov_b32 s74, 64""")
    a.label("k2_maxloop")
    a(f"""ds_read_b128 v[{KB}:{KB+3}], v107
    v_add_u32 v107, 2048, v107
    s_waitcnt lgkmcnt(0)
    v_mfma_f32_32x32x16_bf16 v[{S0}:{S0+15}], v[{KB}:{KB+3}], v[{Q}:{Q+3}], 0""")
    for i in range(8):
        a(f"v_max3_f32 v110, v110, v{S0+2*i}, v{S0+2*i+1}")
    a(f"""s_sub_u32 s74, s74, 1
    s_cmp_lg_u32 s74, 0
    s_cbranch_scc1 k2_maxloop
    v_mov_b32 v111, v110
    v_permlane32_swap_b32 v110, v111
    v_max_f32 v110, v110, v111""")
    a.label("k2_fast")
    stamp(a, 2)
    a(f"v_sub_f32 v{NM}, 0, v110")
    for i in range(1, 16): a(f"v_mov_b32 v{NM+i}, v{NM}")
    a(f"""ds_read_b128 v[{KB}:{KB+3}], v{vK}
    ds_read_b128 v[{KB+4}:{KB+7}], v{vK} offset:2048
    s_mov_b64 exec, s[70:71]
    ds_read_b128 v[{VB}:{VB+3}], v{vV}
    ds_read_b128 v[{VB+4}:{VB+7}], v{vV} offset:512
    s_mov_b64 exec, -1
    s_waitcnt lgkmcnt(3)
    v_mfma_f32_32x32x16_bf16 v[{S0}:{S0+15}], v[{KB}:{KB+3}], v[{Q}:{Q+3}], v[{NM}:{NM+15}]
    s_mov_b32 s74, 0
    s_nop 7""")
    a(".p2align 6")
    a.label("k2_loop")
    for tt in range(8):
        cur = tt & 1; nxt = cur ^ 1
        S = (S0, S1)[cur]; SN = (S0, S1)[nxt]
        Kn = KB + 4*nxt; Kc = KB + 4*cur
        Vc = VB + 8*cur; Vn = VB + 8*nxt
        ex = lambda i: a(f"v_exp_f32 v{S+i}, v{S+i}")
        cv = lambda j: a(f"v_cvt_pk_bf16_f32 v{P+j}, v{S+2*j}, v{S+2*j+1}")
        a("s_waitcnt lgkmcnt(2)")
        a(f"v_mfma_f32_32x32x16_bf16 v[{SN}:{SN+15}], v[{Kn}:{Kn+3}], v[{Q}:{Q+3}], v[{NM}:{NM+15}]")
        a(f"ds_read_b128 v[{Kc}:{Kc+3}], v{vK} offset:{(tt+2)*2048}")
        ex(0); ex(1)
        a(f"v_mfma_f32_32x32x16_bf16 v[{O}:{O+15}], v[{Vn+4}:{Vn+7}], v[{P+4}:{P+7}], v[{O}:{O+15}]")
        ex(2); ex(3); cv(0); ex(4); ex(5); cv(1); ex(6); ex(7); cv(2); ex(8); cv(3); ex(9)
        a("s_waitcnt lgkmcnt(1)")
        ex(10)
        a(f"v_mfma_f32_32x32x16_bf16 v[{O}:{O+15}], v[{Vc}:{Vc+3}], v[{P}:{P+3}], v[{O}:{O+15}]")
        a("s_mov_b64 exec, s[70:71]")
        a(f"ds_read_b128 v[{Vn}:{Vn+3}], v{vV} offset:{(tt+1)*2048}")
        a(f"ds_read_b128 v[{Vn+4}:{Vn+7}], v{vV} offset:{(tt+1)*2048+512}")
        a("s_mov_b64 exec, -1")
        ex(11); cv(4); ex(12); ex(13); cv(5); ex(14); ex(15); cv(6)
        if tt == 7:
            a(f"v_add_u32 v{vK}, 16384, v{vK}\nv_add_u32 v{vV}, 16384, v{vV}")
        else:
            a("s_nop 0")
        cv(7)
    a(f"""s_cmp_lg_u32 s73, 0
    s_cbranch_scc1 k2_nobar
    s_waitcnt vmcnt(0)
    s_barrier
    s_mov_b32 s73, 1""")
    stamp(a, 3)
    a.label("k2_nobar")
    if DIAG:
        a("s_cmp_lg_u32 s74, 1\ns_cbranch_scc1 k2_nost")
        stamp(a, 4)
        a.label("k2_nost")
    a(f"""s_add_u32 s74, s74, 1
    s_cmp_lt_u32 s74, 8
    s_cbranch_scc1 k2_loop""")
    stamp(a, 5)
    a(f"""v_mfma_f32_32x32x16_bf16 v[{O}:{O+15}], v[{VB+12}:{VB+15}], v[{P+4}:{P+7}], v[{O}:{O+15}]
    s_add_u32 s62, s62, {WS_O}
    s_nop 11
    v_rcp_f32 v110, v{O+8}""")
    for i in range(8): a(f"v_mul_f32 v{O+i}, v{O+i}, v110")
    for i in range(4): a(f"v_cvt_pk_bf16_f32 v{P+i}, v{O+2*i}, v{O+2*i+1}")
    a(f"buffer_store_dwordx4 v[{P}:{P+3}], v{vRow}, s[44:47], s62 offen")
    fin(a, 1)
    a.label("k2_conv")
    a(f"""s_setprio 3
    s_sub_u32 s66, s3, 8
    s_lshr_b32 s67, s66, 1
    s_and_b32 s68, s66, 1
    s_lshl_b32 s69, s2, 1
    s_add_u32 s69, s69, s67
    s_lshl_b32 s70, s69, 12
    s_waitcnt lgkmcnt(0)""")
    srd_off(a, 24, 4, 5, "s70", 4096)
    a(f"s_add_u32 s71, s70, {WS_XREV}")
    srd_off(a, 28, 20, 21, "s71", 4096)
    a(f"s_add_u32 s71, s70, {WS_Y}")
    srd_off(a, 32, 20, 21, "s71", 4096)
    srd(a, 36, 6, 7, 1024)
    a(f"""s_lshl_b32 s72, s68, 11
    v_lshlrev_b32 v2, 4, v1
    buffer_load_dwordx4 v[4:7], v2, s[24:27], s72 offen
    buffer_load_dwordx4 v[8:11], v2, s[24:27], s72 offen offset:1024
    buffer_load_dwordx4 v[12:15], v2, s[28:31], s72 offen
    buffer_load_dword v16, v2, s[28:31], s72 offen offset:16
    buffer_load_dwordx4 v[20:23], v2, s[28:31], s72 offen offset:1024
    buffer_load_dword v24, v2, s[28:31], s72 offen offset:1040
    s_lshl_b32 s73, s69, 1
    v_mov_b32 v3, s73
    buffer_load_ushort v25, v3, s[36:39], 0 offen""")
    stamp(a, 1)
    a(f"""s_barrier
    s_mul_i32 s74, s67, {CSZ}
    s_add_u32 s74, s74, {CONV0}
    v_lshrrev_b32 v26, 2, v1
    v_mul_u32_u24 v26, 80, v26
    v_and_b32 v27, 3, v1
    v_lshl_add_u32 v26, v27, 4, v26
    s_mul_i32 s75, s68, 2560
    s_add_u32 s75, s75, s74
    v_add_u32 v26, s75, v26
    s_add_u32 s75, s74, s72
    s_add_u32 s75, s75, {XEOFF}
    v_add_u32 v27, s75, v2
    v_mov_b32 v28, 0
    v_mov_b32 v29, 0
    v_mov_b32 v30, 0
    v_mov_b32 v31, 0
    v_lshrrev_b32 v32, 2, v1
    v_mul_u32_u24 v32, {XOOFF}, v32
    v_and_b32 v33, 3, v1
    v_lshl_add_u32 v32, v33, 4, v32
    s_add_u32 s75, s74, {XEOFF + 4096}
    v_add_u32 v32, s75, v32
    s_mov_b64 exec, 0xff
    ds_write_b128 v32, v[28:31]
    s_mov_b64 exec, -1
    s_waitcnt vmcnt(5)
    ds_write_b128 v26, v[4:7]
    ds_write_b128 v26, v[8:11] offset:1280
    s_waitcnt vmcnt(1)
    ds_write_b128 v27, v[12:15]
    ds_write_b128 v27, v[20:23] offset:1024
    v_alignbit_b32 v36, v13, v12, 16
    v_alignbit_b32 v37, v14, v13, 16
    v_alignbit_b32 v38, v15, v14, 16
    v_alignbit_b32 v39, v16, v15, 16
    v_alignbit_b32 v40, v21, v20, 16
    v_alignbit_b32 v41, v22, v21, 16
    v_alignbit_b32 v42, v23, v22, 16
    v_alignbit_b32 v43, v24, v23, 16
    ds_write_b128 v27, v[36:39] offset:{XOOFF}
    ds_write_b128 v27, v[40:43] offset:{XOOFF+1024}""")
    vA, vBa = 2, 3
    AF, BF, ACC = 48, 80, 112
    a(f"""v_and_b32 v4, 31, v1
    v_lshrrev_b32 v5, 5, v1
    v_or_b32 v6, 1, v4
    v_lshlrev_b32 v7, 3, v5
    v_sub_u32 v6, v7, v6
    s_cmp_eq_u32 s68, 0
    s_cselect_b32 s75, 1055, 31
    v_add_u32 v6, s75, v6
    v_lshlrev_b32 v6, 1, v6
    v_and_b32 v7, 1, v4
    v_xor_b32 v7, 1, v7
    v_mul_u32_u24 v7, {XOOFF}, v7
    s_add_u32 s75, s74, {XEOFF}
    v_add3_u32 v{vA}, v6, v7, s75
    v_mul_u32_u24 v6, 80, v4
    v_lshl_add_u32 v6, v5, 4, v6
    s_sub_u32 s75, s74, {80*31}
    v_add_u32 v{vBa}, s75, v6""")
    for i in range(32): a(f"v_mov_b32 v{BF+i}, 0")
    for i in range(16): a(f"v_mov_b32 v{ACC+i}, 0")
    a("s_waitcnt lgkmcnt(0)")
    stamp(a, 2)
    a("s_barrier")
    stamp(a, 3)
    NB = 4
    def creads(mu):
        b = mu % NB
        if mu % 8 == 0 and mu > 0: a(f"v_add_u32 v{vA}, 512, v{vA}")
        for u in range(2):
            o = ((2*mu + u) % 16) * 8
            r = AF + 8*b + 4*u
            a(f"ds_read2_b32 v[{r}:{r+1}], v{vA} offset0:{o} offset1:{o+1}")
            a(f"ds_read2_b32 v[{r+2}:{r+3}], v{vA} offset0:{o+2} offset1:{o+3}")
        if mu < 31:
            m = (0xffffffff << (31 - mu)) & 0xffffffff
            a(f"s_mov_b32 exec_lo, {m:#x}\ns_mov_b32 exec_hi, {m:#x}")
        for u in range(2):
            r = BF + 8*b + 4*u
            a(f"ds_read_b128 v[{r}:{r+3}], v{vBa} offset:{80*mu + 32*u}")
        if mu < 31: a("s_mov_b64 exec, -1")
    creads(0); creads(1)
    for mu in range(64):
        b = mu % NB
        last = (mu in (30, 31))
        if mu == 30:
            pass
        if mu + 2 < 64:
            a("s_waitcnt lgkmcnt(6)")
        elif mu + 1 < 64:
            a("s_waitcnt lgkmcnt(6)")
        else:
            a("s_waitcnt lgkmcnt(0)")
        for u in range(2):
            a(f"v_mfma_f32_32x32x16_bf16 v[{ACC}:{ACC+15}], v[{AF+8*b+4*u}:{AF+8*b+4*u+3}], v[{BF+8*b+4*u}:{BF+8*b+4*u+3}], v[{ACC}:{ACC+15}]")
        if mu + 2 < 64: creads(mu + 2)
        if mu == 31:
            a("s_cmp_eq_u32 s68, 0\ns_cbranch_scc1 k2_cepi")
    a.label("k2_cepi")
    stamp(a, 4)
    a(f"""s_waitcnt lgkmcnt(0)
    s_lshl_b32 s75, s68, 11
    v_lshlrev_b32 v6, 6, v4
    v_lshl_add_u32 v6, v5, 3, v6
    v_add_u32 v6, s75, v6
    s_add_u32 s75, s74, {XEOFF + 4088 - 48}
    v_sub_u32 v7, s75, v6""")
    for aa in range(4):
        a(f"ds_read_b64 v[{8+2*aa}:{9+2*aa}], v7 offset:{48 - 16*aa}")
    a("s_waitcnt vmcnt(0)\nv_lshlrev_b32 v25, 16, v25\ns_waitcnt lgkmcnt(0)")
    for aa in range(4):
        d0, d1 = 8 + 2*aa, 9 + 2*aa
        a(f"""v_and_b32 v16, 0xffff0000, v{d1}
        v_lshlrev_b32 v17, 16, v{d1}
        v_and_b32 v18, 0xffff0000, v{d0}
        v_lshlrev_b32 v19, 16, v{d0}
        v_fmac_f32 v{ACC+4*aa}, v16, v25
        v_fmac_f32 v{ACC+4*aa+1}, v17, v25
        v_fmac_f32 v{ACC+4*aa+2}, v18, v25
        v_fmac_f32 v{ACC+4*aa+3}, v19, v25
        v_cvt_pk_bf16_f32 v{32+2*aa}, v{ACC+4*aa}, v{ACC+4*aa+1}
        v_cvt_pk_bf16_f32 v{33+2*aa}, v{ACC+4*aa+2}, v{ACC+4*aa+3}
        buffer_store_dwordx2 v[{32+2*aa}:{33+2*aa}], v6, s[32:35], 0 offen offset:{16*aa}""")
    fin(a, 1)
    a.label("k2_end")
    a("s_endpgm")
    return a.finish(), 128

def k3():
    a = Asm()
    YT = 131072
    a.label("k3_kernel")
    a("""s_cmp_ge_u32 s2, 256
    s_cbranch_scc1 k3_end""")
    stamp(a, 8, True); stamp(a, 0)
    a("""s_load_dwordx2 s[4:5], s[0:1], 0
    s_load_dwordx2 s[6:7], s[0:1], 80
    s_load_dwordx2 s[8:9], s[0:1], 96
    s_load_dwordx2 s[20:21], s[0:1], 112
    v_lshrrev_b32 v2, 6, v0
    v_and_b32 v1, 63, v0
    v_readfirstlane_b32 s3, v2""")
    wg_decode(a, 56, 57)
    a("s_lshl_b32 s58, s56, 10")
    gemm_dma_addr(a, 4, 5, 6, 1, 3, 57, 8)
    a("""v_lshrrev_b32 v8, 3, v1
    v_and_b32 v7, 7, v1
    v_lshlrev_b32 v7, 4, v7
    v_lshl_add_u32 v7, v8, 12, v7
    s_waitcnt lgkmcnt(0)""")
    srd_off(a, 24, 20, 21, WS_O, 0x200000)
    srd(a, 28, 6, 7, 0x80000)
    srd(a, 32, 4, 5, 0x200000)
    srd(a, 36, 8, 9, 0x200000)
    srd(a, 44, 20, 21, WS_SIZE)
    a("s_cmp_ge_u32 s3, 4\ns_cbranch_scc1 k3_help")
    XR, GR = 112, 120
    a(f"""s_lshr_b32 s63, s3, 1
    s_lshl_b32 s63, s63, 5
    s_add_u32 s63, s63, s56
    v_and_b32 v8, 31, v1
    v_add_u32 v8, s63, v8
    v_lshlrev_b32 v9, 2, v8
    s_mov_b32 s64, {WS_G}
    buffer_load_dword v{GR}, v9, s[44:47], s64 offen
    v_lshrrev_b32 v9, 5, v1
    v_lshlrev_b32 v9, 3, v9
    v_lshl_add_u32 v12, v8, 10, v9
    s_and_b32 s64, s3, 1
    s_lshl_b32 s64, s64, 6
    s_lshl_b32 s65, s57, 1
    s_add_u32 s59, s64, s65""")
    for aa in range(4):
        a(f"buffer_load_dwordx2 v[{XR+2*aa}:{XR+2*aa+1}], v12, s[32:35], s59 offen offset:{16*aa}")
    def ydma():
        a(f"""s_lshl_b32 s64, s3, 3
        s_add_u32 s64, s64, s57
        s_lshl_b32 s64, s64, 12
        s_lshl_b32 s65, s56, 1
        s_add_u32 s64, s64, s65
        s_add_u32 s64, s64, {WS_Y}
        s_lshl_b32 s65, s3, 10
        s_add_u32 s66, s65, {YT}""")
        dma(a, 7, 44, "s64", "s66")
    for kc in range(4): gemm_dma_chunk(a, kc, 4, 5, 6, 24, 28, 3, 58)
    ydma()
    stamp(a, 1)
    gemm_read_addr(a, 16, 24, 1, 3, 8, True)
    a(f"""v_bfe_u32 v8, v1, 2, 2
    v_lshrrev_b32 v9, 5, v1
    v_lshl_add_u32 v8, v9, 2, v8
    v_lshlrev_b32 v8, 7, v8
    v_bfe_u32 v9, v1, 4, 1
    v_lshl_add_u32 v8, v9, 5, v8
    v_and_b32 v9, 3, v1
    v_lshl_add_u32 v8, v9, 3, v8
    s_and_b32 s64, s3, 1
    s_lshl_b32 s64, s64, 12
    s_lshr_b32 s65, s3, 1
    s_lshl_b32 s65, s65, 6
    s_add_u32 s64, s64, s65
    s_add_u32 s64, s64, {YT}
    v_add_u32 v25, s64, v8""")
    ACC, FA, FB = 32, 48, 80
    for kc in range(4):
        a(f"s_waitcnt vmcnt({13 - 4*kc if kc < 3 else 0})\ns_barrier")
        stamp(a, 2 + kc)
        gemm_chunk(a, kc, 16, 24, FA, FB, ACC, True, kc == 0)
    stamp(a, 6)
    for aa in range(4):
        a(f"ds_read_b64_tr_b16 v[{FA+2*aa}:{FA+2*aa+1}], v25 offset:{1024*aa}")
    a(f"v_sub_f32 v{GR+1}, 1.0, v{GR}\ns_waitcnt lgkmcnt(0)")
    for aa in range(4):
        x0, x1, y0, y1 = XR + 2*aa, XR + 2*aa + 1, FA + 2*aa, FA + 2*aa + 1
        t = FB
        a(f"""v_lshlrev_b32 v{t}, 16, v{x0}
        v_and_b32 v{t+1}, 0xffff0000, v{x0}
        v_lshlrev_b32 v{t+2}, 16, v{x1}
        v_and_b32 v{t+3}, 0xffff0000, v{x1}
        v_lshlrev_b32 v{t+4}, 16, v{y0}
        v_and_b32 v{t+5}, 0xffff0000, v{y0}
        v_lshlrev_b32 v{t+6}, 16, v{y1}
        v_and_b32 v{t+7}, 0xffff0000, v{y1}""")
        for e in range(4):
            a(f"v_mul_f32 v{t+e}, v{t+e}, v{t+4+e}")
        for e in range(4):
            a(f"v_mul_f32 v{t+e}, v{t+e}, v{GR}")
        for e in range(4):
            a(f"v_fmac_f32 v{t+e}, v{ACC+4*aa+e}, v{GR+1}")
        a(f"""v_cvt_pk_bf16_f32 v{t+8+2*aa}, v{t}, v{t+1}
        v_cvt_pk_bf16_f32 v{t+9+2*aa}, v{t+2}, v{t+3}
        buffer_store_dwordx2 v[{t+8+2*aa}:{t+9+2*aa}], v12, s[36:39], s59 offen offset:{16*aa}""")
    fin(a, 2)
    a.label("k3_help")
    for kc in range(4): gemm_dma_chunk(a, kc, 4, 5, 6, 24, 28, 3, 58)
    ydma()
    for kc in range(4):
        a(f"s_waitcnt vmcnt({13 - 4*kc if kc < 3 else 0})\ns_barrier")
    fin(a, 2)
    a.label("k3_end")
    a("s_endpgm")
    return a.finish(), 128

def build(extra_launch=""):
    hdr = open("cdna_kernels/" + NAME + ".s.ref").read().split("; Override launch")[0]
    ks = [("k1_kernel", k1(), 512, 163840), ("k2_kernel", k2(), 768, 157952), ("k3_kernel", k3(), 512, 139264)]
    out = hdr
    for n, _, blk, lds in ks:
        out += f"; @launch kernel={n} grid=(256,1,1) block=({blk},1,1) lds={lds}\n"
    out += extra_launch
    out += '.amdgcn_target "amdgcn-amd-amdhsa--gfx950"\n.text\n'
    for n, (body, nv), _, _ in ks:
        out += f".globl {n}\n.p2align 8\n.type {n},@function\n" + body
    out += '.section .rodata,"a"\n'
    for n, (body, nv), _, _ in ks:
        out += f""".p2align 6
.amdhsa_kernel {n}
  .amdhsa_next_free_vgpr {nv}
  .amdhsa_next_free_sgpr {100 if (DIAG or DBG) else 80}
  .amdhsa_accum_offset {nv}
  .amdhsa_group_segment_fixed_size 0
  .amdhsa_kernarg_size 120
  .amdhsa_user_sgpr_count 2
  .amdhsa_user_sgpr_kernarg_segment_ptr 1
  .amdhsa_system_sgpr_workgroup_id_x 1
.end_amdhsa_kernel
"""
    return out

if __name__ == "__main__":
    if "-g" in sys.argv:
        DBG = True; sys.argv.remove("-g")
    if "-d" in sys.argv:
        DIAG = True; sys.argv.remove("-d")
    dst = sys.argv[1] if len(sys.argv) > 1 else "cdna_kernels/" + NAME + ".s"
    open(dst, "w").write(build())
    print("wrote", dst)
```

```python
import sys, math
from asmlib import Asm

NAME = "gated_mix__ssm_conv_h3__grouped_kv_mqa__prompt"
WS_Q, WS_KV, WS_KMAX, WS_G, WS_XREV, WS_O, WS_Y = 0x000000, 0x200000, 0x220000, 0x221000, 0x300000, 0x500000, 0x700000
WS_SIZE = 0x900000
CSCALE = 0.25 * math.log2(math.e)
import struct
def f32(x): return "0x%08x" % struct.unpack("<I", struct.pack("<f", x))[0]

DIAG = False
WS_DIAG = 0x1000000
def stamp(a, idx, real=False):
    if not DIAG and not (DBG and idx == 8): return
    a(f"{'s_memrealtime' if real else 's_memtime'} s[{80+2*idx}:{81+2*idx}]\ns_waitcnt lgkmcnt(0)")
def dump(a, kid, n=10):
    if not DIAG: return
    stamp(a, 9, True)
    a(f"""s_add_u32 s76, s20, {WS_DIAG + kid*256*16*64}
    s_addc_u32 s77, s21, 0
    s_mov_b32 s78, 0x40000
    s_mov_b32 s79, 0x20000
    s_lshl_b32 s75, s2, 4
    s_add_u32 s75, s75, s3
    s_lshl_b32 s75, s75, 6
    s_mov_b64 exec, 1
    v_mov_b32 v0, 0""")
    for i in range(n):
        a(f"v_mov_b32 v1, s{80+2*i}\nbuffer_store_dword v1, v0, s[76:79], s75 offen offset:{4*i}")

DBG = False
_fl = 0
def fin(a, kid):
    if DBG:
        global _fl
        _fl += 1
        a(f"""s_and_b32 s75, s2, 0x1c
        s_cmp_lg_u32 s75, 0
        s_cbranch_scc1 fin_skip{_fl}
        s_waitcnt vmcnt(0)
        s_load_dwordx2 s[76:77], s[0:1], 104
        s_memrealtime s[98:99]
        s_waitcnt lgkmcnt(0)
        s_add_u32 s76, s76, {512*(2-kid)}
        s_addc_u32 s77, s77, 0
        s_mov_b32 s78, 256
        s_mov_b32 s79, 0x20000
        s_not_b32 s96, s96
        s_mov_b64 exec, 1
        v_mov_b32 v0, 0
        v_mov_b32 v1, s96
        v_mov_b32 v2, s98
        buffer_atomic_umax v1, v0, s[76:79], 0 offen offset:{8*kid}
        buffer_atomic_umax v2, v0, s[76:79], 0 offen offset:{8*kid+4}""")
        a.label(f"fin_skip{_fl}")
    if DIAG:
        a("s_waitcnt vmcnt(0)")
        stamp(a, 7); dump(a, kid)
    a("s_endpgm")

def srd(a, d, lo, hi, size):
    a(f"s_mov_b32 s{d}, s{lo}\ns_mov_b32 s{d+1}, s{hi}\ns_mov_b32 s{d+2}, {size}\ns_mov_b32 s{d+3}, 0x20000")

def srd_off(a, d, lo, hi, off, size):
    a(f"s_add_u32 s{d}, s{lo}, {off}\ns_addc_u32 s{d+1}, s{hi}, 0\ns_mov_b32 s{d+2}, {size}\ns_mov_b32 s{d+3}, 0x20000")

def dma(a, voff, srdn, soff, m0):
    a(f"s_mov_b32 m0, {m0}")
    a(f"buffer_load_dwordx4 v{voff}, s[{srdn}:{srdn+3}], {soff} offen lds")

def wg_decode(a, sS0, sN0):
    a(f"""s_and_b32 s60, s2, 7
    s_lshl_b32 s60, s60, 2
    s_lshr_b32 s61, s2, 3
    s_and_b32 s62, s61, 3
    s_add_u32 s60, s60, s62
    s_lshr_b32 s61, s61, 2
    s_lshl_b32 s{sS0}, s60, 6
    s_lshl_b32 s{sN0}, s61, 6""")

XT, WT = 0, 65536

def gemm_dma_addr(a, vX0, vX1, vW, vl, sW, sN0, tmp):
    t0, t1 = tmp, tmp + 1
    a(f"""s_lshl_b32 s63, s{sW}, 3
    v_lshrrev_b32 v{t0}, 4, v{vl}
    v_add_u32 v{t0}, s63, v{t0}
    v_and_b32 v{t1}, 15, v{vl}
    v_xor_b32 v{vX0}, v{t0}, v{t1}
    v_and_b32 v{vX0}, 15, v{vX0}
    v_lshlrev_b32 v{vX0}, 4, v{vX0}
    v_lshl_add_u32 v{vX0}, v{t0}, 10, v{vX0}
    v_add_u32 v{t0}, 4, v{t0}
    v_xor_b32 v{vX1}, v{t0}, v{t1}
    v_and_b32 v{vX1}, 15, v{vX1}
    v_lshlrev_b32 v{vX1}, 4, v{vX1}
    v_lshl_add_u32 v{vX1}, v{t0}, 10, v{vX1}""")
    a(f"""v_lshrrev_b32 v{t0}, 3, v{vl}
    v_lshlrev_b32 v{t1}, 1, v{t0}
    v_and_b32 v{t1}, 4, v{t1}
    v_and_b32 v{vW}, 7, v{vl}
    v_xor_b32 v{vW}, v{vW}, v{t1}
    v_lshlrev_b32 v{vW}, 4, v{vW}
    v_lshl_add_u32 v{vW}, v{t0}, 10, v{vW}
    s_lshl_b32 s63, s{sN0}, 1
    v_add_u32 v{vW}, s63, v{vW}""")

def gemm_dma_chunk(a, kc, vX0, vX1, vW, srdX, srdW, sW, sXbase):
    a(f"s_add_u32 s64, s{sXbase}, {kc*256}")
    a(f"s_lshl_b32 s65, s{sW}, 11")
    a(f"s_add_u32 s66, s65, {XT + kc*16384}")
    dma(a, vX0, srdX, "s64", "s66")
    a(f"s_add_u32 s66, s66, 1024")
    dma(a, vX1, srdX, "s64", "s66")
    a(f"s_lshl_b32 s67, s{sW}, 14")
    a(f"s_add_u32 s67, s67, {kc*128*1024}")
    a(f"s_add_u32 s66, s65, {WT + kc*16384}")
    dma(a, vW, srdW, "s67", "s66")
    a(f"s_add_u32 s67, s67, 8192")
    a(f"s_add_u32 s66, s66, 1024")
    dma(a, vW, srdW, "s67", "s66")

def gemm_read_addr(a, vB, vA, vl, sW, tmp, phi):
    t0, t1, t2 = tmp, tmp + 1, tmp + 2
    a(f"""s_lshr_b32 s63, s{sW}, 1
    s_lshl_b32 s63, s63, 13
    v_and_b32 v{t0}, 31, v{vl}
    v_lshrrev_b32 v{t1}, 5, v{vl}
    v_and_b32 v{t2}, 15, v{vl}
    v_xor_b32 v{t2}, v{t2}, v{t1}
    v_lshlrev_b32 v{t2}, 4, v{t2}
    v_lshl_add_u32 v{t2}, v{t0}, 8, v{t2}
    v_add_u32 v{vB}, s63, v{t2}""")
    for e in range(1, 8):
        a(f"v_xor_b32 v{vB+e}, {e*32}, v{vB}")
    a(f"""s_and_b32 s63, s{sW}, 1
    v_bfe_u32 v{t0}, v{vl}, 2, 2
    v_lshrrev_b32 v{t2}, 1, v{t0}
    v_xor_b32 v{t2}, s63, v{t2}
    v_lshlrev_b32 v{t2}, 6, v{t2}
    v_lshl_add_u32 v{t0}, v{t1}, {2 if phi else 3}, v{t0}
    v_lshl_add_u32 v{t2}, v{t0}, 7, v{t2}
    v_bfe_u32 v{t0}, v{vl}, 4, 1
    v_lshl_add_u32 v{t2}, v{t0}, 5, v{t2}
    v_and_b32 v{t0}, 3, v{vl}
    v_lshl_add_u32 v{t2}, v{t0}, 3, v{t2}
    v_add_u32 v{vA}, {WT}, v{t2}""")

def gemm_chunk(a, kc, vB, vA, FA, FB, ACC, phi, first):
    tstep = 1024 if phi else 512
    def reads(e):
        a(f"ds_read_b128 v[{FB+4*e}:{FB+4*e+3}], v{vB+e} offset:{kc*16384}")
        a(f"ds_read_b64_tr_b16 v[{FA+4*e}:{FA+4*e+1}], v{vA} offset:{kc*16384 + e*2048}")
        a(f"ds_read_b64_tr_b16 v[{FA+4*e+2}:{FA+4*e+3}], v{vA} offset:{kc*16384 + e*2048 + tstep}")
    for e in range(4): reads(e)
    for e in range(8):
        left = min(7, e + 3) - e
        a(f"s_waitcnt lgkmcnt({3*left})")
        c = "0" if (first and e == 0) else f"v[{ACC}:{ACC+15}]"
        a(f"v_mfma_f32_32x32x16_bf16 v[{ACC}:{ACC+15}], v[{FA+4*e}:{FA+4*e+3}], v[{FB+4*e}:{FB+4*e+3}], {c}")
        if e + 4 < 8: reads(e + 4)

def k1():
    a = Asm()
    WKV, KT, VT = 131072, 147456, 155648
    a.label("k1_kernel")
    a("""s_cmp_ge_u32 s2, 256
    s_cbranch_scc1 k1_end""")
    stamp(a, 8, True); stamp(a, 0)
    a("""s_load_dwordx4 s[4:7], s[0:1], 0
    s_load_dwordx4 s[8:11], s[0:1], 16
    s_load_dwordx4 s[12:15], s[0:1], 56
    s_load_dwordx2 s[16:17], s[0:1], 72
    s_load_dwordx2 s[18:19], s[0:1], 88
    s_load_dwordx2 s[20:21], s[0:1], 112
    v_lshrrev_b32 v2, 6, v0
    v_and_b32 v1, 63, v0
    v_readfirstlane_b32 s3, v2""")
    wg_decode(a, 56, 57)
    a("s_lshl_b32 s58, s56, 10")
    gemm_dma_addr(a, 4, 5, 6, 1, 3, 57, 8)
    a("""v_lshrrev_b32 v8, 3, v1
    v_and_b32 v7, 7, v1
    v_lshlrev_b32 v7, 4, v7
    v_lshl_add_u32 v7, v8, 10, v7
    s_lshl_b32 s63, s57, 1
    v_add_u32 v7, s63, v7
    s_waitcnt lgkmcnt(0)""")
    srd(a, 24, 4, 5, 0x200000)
    srd(a, 28, 12, 13, 0x80000)
    srd(a, 32, 6, 7, 0x200000)
    srd(a, 36, 8, 9, 0x200000)
    srd(a, 44, 20, 21, WS_SIZE)
    a("""s_cmp_ge_u32 s3, 4
    s_cbranch_scc1 k1_kv""")
    def kv_tile_dma():
        a("""s_lshl_b32 s64, s3, 13
        s_add_u32 s64, s64, s58
        s_lshl_b32 s65, s3, 10""")
        a(f"s_add_u32 s66, s65, {KT}")
        dma(a, 7, 32, "s64", "s66")
        a(f"s_add_u32 s66, s65, {VT}")
        dma(a, 7, 36, "s64", "s66")
    kv_tile_dma()
    for kc in range(4): gemm_dma_chunk(a, kc, 4, 5, 6, 24, 28, 3, 58)
    stamp(a, 1)
    gemm_read_addr(a, 16, 24, 1, 3, 8, False)
    ACC, FA, FB = 32, 48, 80
    for kc in range(4):
        a(f"s_waitcnt vmcnt({12 - 4*kc})\ns_barrier")
        stamp(a, 2 + kc)
        gemm_chunk(a, kc, 16, 24, FA, FB, ACC, False, kc == 0)
    stamp(a, 6)
    a("""s_lshr_b32 s63, s3, 1
    s_lshl_b32 s63, s63, 15
    s_add_u32 s63, s63, s58
    s_and_b32 s64, s3, 1
    s_lshl_b32 s64, s64, 6
    s_add_u32 s63, s63, s64
    s_lshl_b32 s64, s57, 1
    s_add_u32 s63, s63, s64
    v_and_b32 v8, 31, v1
    v_lshrrev_b32 v9, 5, v1
    v_lshlrev_b32 v9, 4, v9
    v_lshl_add_u32 v8, v8, 10, v9""")
    for i in range(8):
        a(f"v_cvt_pk_bf16_f32 v{FA+i}, v{ACC+2*i}, v{ACC+2*i+1}")
    a(f"buffer_store_dwordx4 v[{FA}:{FA+3}], v8, s[44:47], s63 offen offset:{WS_Q}")
    a(f"buffer_store_dwordx4 v[{FA+4}:{FA+7}], v8, s[44:47], s63 offen offset:{WS_Q+32}")
    fin(a, 0)
    a.label("k1_kv")
    a("""s_and_b32 s59, s61, 1
    s_lshr_b32 s68, s61, 1
    s_sub_u32 s69, s3, 4
    s_cmp_eq_u32 s59, 0
    s_cselect_b32 s40, s14, s16
    s_cselect_b32 s41, s15, s17
    s_mov_b32 s42, 0x4000
    s_mov_b32 s43, 0x20000""")
    srd(a, 48, 10, 11, 4096)
    srd(a, 52, 18, 19, 1024)
    GW = 128
    a("""s_cmp_lg_u32 s3, 7
    s_cbranch_scc1 k1_nogw
    s_cmp_lg_u32 s59, 0
    s_cbranch_scc1 k1_nogw
    v_lshrrev_b32 v8, 4, v1
    v_lshlrev_b32 v8, 4, v8""")
    for i in range(16):
        a(f"buffer_load_dwordx4 v[{GW+4*i}:{GW+4*i+3}], v8, s[52:55], 0 offen offset:{64*i}")
    a.label("k1_nogw")
    a("""v_add_u32 v8, s57, v1
    v_lshlrev_b32 v9, 3, v8
    buffer_load_dwordx2 v[10:11], v9, s[48:51], 0 offen
    s_lshl_b32 s64, s69, 14
    s_add_u32 s64, s64, s58
    s_sub_u32 s64, s64, 3072
    v_lshlrev_b32 v9, 1, v8
    v_add_u32 v9, s64, v9
    buffer_load_ushort v12, v9, s[32:35], 0 offen
    buffer_load_ushort v13, v9, s[32:35], 0 offen offset:1024
    buffer_load_ushort v14, v9, s[32:35], 0 offen offset:2048""")
    kv_tile_dma()
    a("v_lshlrev_b32 v15, 4, v1")
    for kc in range(4):
        gemm_dma_chunk(a, kc, 4, 5, 6, 24, 28, 3, 58)
        a(f"s_lshl_b32 s64, s69, 10\ns_add_u32 s64, s64, {kc*4096}\ns_add_u32 s66, s64, {WKV}")
        dma(a, 15, 40, "s64", "s66")
    a(f"""v_bfe_u32 v16, v1, 2, 2
    v_lshlrev_b32 v16, 7, v16
    v_lshrrev_b32 v17, 4, v1
    v_lshl_add_u32 v16, v17, 5, v16
    v_and_b32 v17, 3, v1
    v_lshl_add_u32 v16, v17, 3, v16
    s_lshl_b32 s64, s69, 11
    s_add_u32 s64, s64, {KT}
    v_add_u32 v16, s64, v16""")
    a(f"""v_and_b32 v17, 15, v1
    v_lshrrev_b32 v18, 4, v1
    v_xor_b32 v19, v17, v18
    v_lshlrev_b32 v19, 4, v19
    v_lshl_add_u32 v19, v17, 8, v19
    s_lshl_b32 s64, s68, 12
    v_add_u32 v20, s64, v19
    v_xor_b32 v21, 64, v20
    v_xor_b32 v22, 128, v20
    v_xor_b32 v23, 192, v20
    v_bfe_u32 v19, v1, 2, 2
    v_lshl_add_u32 v19, v18, 3, v19
    v_lshlrev_b32 v19, 5, v19
    v_and_b32 v24, 3, v1
    v_lshl_add_u32 v24, v24, 3, v19
    v_add_u32 v24, {WKV}, v24""")
    JD, JG, JX, JW = 28, 32, 96, 112
    def job_chunk(kc):
        lbl = f"k1_nojob{kc}"
        a(f"s_cmp_lg_u32 s3, 7\ns_cbranch_scc1 {lbl}")
        for e in range(4):
            a(f"ds_read_b128 v[{JX+4*e}:{JX+4*e+3}], v{20+e} offset:{kc*16384}")
            a(f"ds_read_b64_tr_b16 v[{JW+4*e}:{JW+4*e+1}], v24 offset:{kc*4096 + e*1024}")
            a(f"ds_read_b64_tr_b16 v[{JW+4*e+2}:{JW+4*e+3}], v24 offset:{kc*4096 + e*1024 + 128}")
        a(f"s_waitcnt lgkmcnt(0)\ns_cmp_lg_u32 s59, 0\ns_cbranch_scc1 {lbl}_v")
        for e in range(4):
            c = "0" if (kc == 0 and e == 0) else f"v[{JD}:{JD+3}]"
            a(f"v_mfma_f32_16x16x32_bf16 v[{JD}:{JD+3}], v[{JW+4*e}:{JW+4*e+3}], v[{JX+4*e}:{JX+4*e+3}], {c}")
            c = "0" if (kc == 0 and e == 0) else f"v[{JG}:{JG+3}]"
            g = GW + 16*kc + 4*e
            a(f"v_mfma_f32_16x16x32_bf16 v[{JG}:{JG+3}], v[{g}:{g+3}], v[{JX+4*e}:{JX+4*e+3}], {c}")
        a(f"s_branch {lbl}")
        a.label(f"{lbl}_v")
        for e in range(4):
            c = "0" if (kc == 0 and e == 0) else f"v[{JD}:{JD+3}]"
            a(f"v_mfma_f32_16x16x32_bf16 v[{JD}:{JD+3}], v[{JX+4*e}:{JX+4*e+3}], v[{JW+4*e}:{JW+4*e+3}], {c}")
        a.label(lbl)
    KR, VR, KF, VF = 36, 44, 52, 72
    stamp(a, 1)
    a("s_waitcnt vmcnt(15)\ns_barrier")
    stamp(a, 2)
    for i in range(4):
        a(f"ds_read_b64_tr_b16 v[{KR+2*i}:{KR+2*i+1}], v16 offset:{i*512}")
    for i in range(4):
        a(f"ds_read_b64_tr_b16 v[{VR+2*i}:{VR+2*i+1}], v16 offset:{8192 + i*512}")
    job_chunk(0)
    a("""v_lshlrev_b32 v88, 16, v10
    v_and_b32 v89, 0xffff0000, v10
    v_lshlrev_b32 v90, 16, v11
    v_and_b32 v91, 0xffff0000, v11""")
    for i in range(3): a(f"v_lshlrev_b32 v{KF+i}, 16, v{12+i}")
    a("s_waitcnt lgkmcnt(0)")
    for i in range(8):
        a(f"v_lshlrev_b32 v{KF+3+2*i}, 16, v{KR+i}\nv_and_b32 v{KF+4+2*i}, 0xffff0000, v{KR+i}")
    for i in range(8):
        a(f"v_lshlrev_b32 v{VF+2*i}, 16, v{VR+i}\nv_and_b32 v{VF+1+2*i}, 0xffff0000, v{VR+i}")
    stamp(a, 3)
    a("s_waitcnt vmcnt(10)\ns_barrier")
    job_chunk(1)
    for s in range(16):
        t = 36 + (s % 8)
        a(f"v_mul_f32 v{t}, v{KF+s}, v91")
        a(f"v_fmac_f32 v{t}, v{KF+s+1}, v90")
        a(f"v_fmac_f32 v{t}, v{KF+s+2}, v89")
        a(f"v_fmac_f32 v{t}, v{KF+s+3}, v88")
        a(f"v_mul_f32 v{VF+s}, v{t}, v{VF+s}")
    stamp(a, 4)
    a("s_waitcnt vmcnt(5)\ns_barrier")
    job_chunk(2)
    for q in range(8):
        a(f"v_cvt_pk_bf16_f32 v{44+q}, v{VF+15-2*q}, v{VF+14-2*q}")
    a(f"""s_lshl_b32 s64, s69, 4
    s_add_u32 s64, s64, s56
    s_lshl_b32 s64, s64, 1
    s_sub_u32 s64, {WS_XREV + 4064}, s64
    v_lshlrev_b32 v9, 12, v8
    buffer_store_dwordx4 v[44:47], v9, s[44:47], s64 offen
    buffer_store_dwordx4 v[48:51], v9, s[44:47], s64 offen offset:16
    s_waitcnt vmcnt(2)
    s_barrier""")
    stamp(a, 5)
    job_chunk(3)
    stamp(a, 6)
    a("s_cmp_lg_u32 s3, 7\ns_cbranch_scc1 k1_fin")
    a(f"""s_lshr_b32 s64, s68, 1
    s_lshl_b32 s65, s60, 1
    s_add_u32 s64, s64, s65
    s_lshl_b32 s64, s64, 11
    s_add_u32 s64, s64, {WS_KV}
    s_and_b32 s65, s68, 1
    v_and_b32 v17, 15, v1
    v_lshlrev_b32 v17, 4, v17
    v_lshrrev_b32 v18, 5, v1
    v_lshl_add_u32 v17, v18, 3, v17
    v_bfe_u32 v18, v1, 4, 1
    s_cmp_lg_u32 s59, 0
    s_cbranch_scc1 k1_vepi""")
    a(f"""s_lshl_b32 s65, s65, 8
    s_add_u32 s64, s64, s65
    v_lshl_add_u32 v17, v18, 9, v17
    s_mov_b32 s66, {f32(CSCALE)}""")
    for e in range(4): a(f"v_mul_f32 v{JD+e}, s66, v{JD+e}")
    a(f"""v_cvt_pk_bf16_f32 v36, v{JD}, v{JD+1}
    v_cvt_pk_bf16_f32 v37, v{JD+2}, v{JD+3}
    buffer_store_dwordx2 v[36:37], v17, s[44:47], s64 offen
    v_mul_f32 v38, v{JD}, v{JD}
    v_fmac_f32 v38, v{JD+1}, v{JD+1}
    v_fmac_f32 v38, v{JD+2}, v{JD+2}
    v_fmac_f32 v38, v{JD+3}, v{JD+3}
    v_mov_b32 v39, v38
    v_permlane32_swap_b32 v38, v39
    v_add_f32 v38, v38, v39
    v_mov_b32 v39, v38
    v_permlane16_swap_b32 v38, v39
    v_add_f32 v38, v38, v39
    v_max_f32_dpp v38, v38, v38 row_ror:8 row_mask:0xf bank_mask:0xf
    v_max_f32_dpp v38, v38, v38 row_ror:4 row_mask:0xf bank_mask:0xf
    v_max_f32_dpp v38, v38, v38 row_ror:2 row_mask:0xf bank_mask:0xf
    v_max_f32_dpp v38, v38, v38 row_ror:1 row_mask:0xf bank_mask:0xf
    s_mov_b32 s66, {f32(-math.log2(math.e))}
    v_mul_f32 v40, s66, v{JG}
    v_exp_f32 v40, v40
    v_add_f32 v40, 1.0, v40
    v_rcp_f32 v40, v40
    s_lshl_b32 s65, s60, 2
    s_add_u32 s65, s65, s68
    s_lshl_b32 s66, s65, 6
    s_add_u32 s66, s66, {WS_G}
    s_lshl_b32 s65, s65, 2
    s_add_u32 s65, s65, {WS_KMAX}
    v_lshlrev_b32 v41, 2, v1
    s_mov_b64 exec, 0xffff
    buffer_store_dword v40, v41, s[44:47], s66 offen
    s_mov_b64 exec, 1
    buffer_store_dword v38, v41, s[44:47], s65 offen""")
    fin(a, 0)
    a.label("k1_vepi")
    a(f"""s_lshl_b32 s65, s65, 9
    s_add_u32 s64, s64, s65
    v_lshl_add_u32 v17, v18, 8, v17
    v_cvt_pk_bf16_f32 v36, v{JD}, v{JD+1}
    v_cvt_pk_bf16_f32 v37, v{JD+2}, v{JD+3}
    buffer_store_dwordx2 v[36:37], v17, s[44:47], s64 offen offset:1024""")
    a.label("k1_fin")
    fin(a, 0)
    a.label("k1_end")
    a("s_endpgm")
    return a.finish(), 192

def k2():
    a = Asm()
    CONV0, CSZ, XEOFF, XOOFF = 131072, 13440, 5120, 4160
    a.label("k2_kernel")
    a("""s_cmp_ge_u32 s2, 256
    s_cbranch_scc1 k2_end""")
    stamp(a, 8, True); stamp(a, 0)
    a("""s_load_dwordx4 s[4:7], s[0:1], 32
    s_load_dwordx2 s[20:21], s[0:1], 112
    v_lshrrev_b32 v2, 6, v0
    v_and_b32 v1, 63, v0
    v_readfirstlane_b32 s3, v2""")
    wg_decode(a, 56, 57)
    a("""s_cmp_ge_u32 s3, 8
    s_cbranch_scc1 k2_conv
    s_waitcnt lgkmcnt(0)""")
    srd(a, 44, 20, 21, WS_SIZE)
    srd_off(a, 40, 20, 21, WS_KV, 131072)
    Q, NM, S0, S1, P, O, KB, VB = 4, 8, 24, 40, 56, 64, 80, 88
    vK, vV, vRow = 104, 105, 106
    a(f"""s_and_b32 s62, s3, 1
    s_lshl_b32 s62, s62, 5
    s_add_u32 s62, s62, s56
    s_lshl_b32 s62, s62, 10
    s_lshr_b32 s63, s3, 1
    s_lshl_b32 s64, s61, 2
    s_add_u32 s63, s63, s64
    s_lshl_b32 s63, s63, 5
    s_add_u32 s62, s62, s63
    v_and_b32 v2, 31, v1
    v_lshrrev_b32 v3, 5, v1
    v_lshlrev_b32 v{vRow}, 4, v3
    v_lshl_add_u32 v{vRow}, v2, 10, v{vRow}
    v_lshlrev_b32 v{vK}, 4, v1
    v_lshlrev_b32 v107, 3, v1
    buffer_load_dwordx4 v[{Q}:{Q+3}], v{vRow}, s[44:47], s62 offen offset:{WS_Q}
    s_mov_b32 s63, {WS_KMAX}
    buffer_load_dwordx2 v[108:109], v107, s[44:47], s63 offen
    s_lshl_b32 s64, s3, 10""")
    for i in range(16):
        dma(a, vK, 40, "s64", "s64")
        if i < 15: a("s_add_u32 s64, s64, 8192")
    stamp(a, 1)
    a(f"""v_and_b32 v{vV}, 15, v1
    v_lshlrev_b32 v{vV}, 4, v{vV}
    v_lshl_add_u32 v{vV}, v3, 8, v{vV}
    v_add_u32 v{vV}, 1024, v{vV}
    s_mov_b32 s70, 0xffff
    s_mov_b32 s71, 0xffff""")
    a(f"""v_and_b32 v110, 27, v2
    v_cmp_eq_u32 vcc, 16, v110
    v_mov_b32 v111, 0x3f803f80
    v_cndmask_b32 v{VB}, 0, v111, vcc""")
    for i in range(1, 16): a(f"v_mov_b32 v{VB+i}, v{VB}")
    for i in range(8): a(f"v_mov_b32 v{P+i}, 0")
    for i in range(16): a(f"v_mov_b32 v{O+i}, 0")
    a(f"""s_waitcnt vmcnt(16)
    v_max_f32 v108, v108, v109
    v_dot2_f32_bf16 v110, v{Q}, v{Q}, 0
    v_dot2_f32_bf16 v111, v{Q+1}, v{Q+1}, 0
    v_max_f32_dpp v108, v108, v108 row_ror:8 row_mask:0xf bank_mask:0xf
    v_dot2_f32_bf16 v112, v{Q+2}, v{Q+2}, 0
    v_dot2_f32_bf16 v113, v{Q+3}, v{Q+3}, 0
    v_max_f32_dpp v108, v108, v108 row_ror:4 row_mask:0xf bank_mask:0xf
    s_nop 1
    v_add_f32 v110, v110, v111
    v_max_f32_dpp v108, v108, v108 row_ror:2 row_mask:0xf bank_mask:0xf
    v_add_f32 v112, v112, v113
    v_add_f32 v110, v110, v112
    v_max_f32_dpp v108, v108, v108 row_ror:1 row_mask:0xf bank_mask:0xf
    v_mov_b32 v111, v110
    v_mov_b32 v109, v108
    v_permlane32_swap_b32 v110, v111
    v_permlane32_swap_b32 v108, v109
    v_add_f32 v110, v110, v111
    v_max_f32 v108, v108, v109
    v_mov_b32 v109, v108
    v_permlane16_swap_b32 v108, v109
    v_max_f32 v108, v108, v109
    v_mul_f32 v110, v110, v108
    s_mov_b32 s72, {f32(1600.0)}
    v_cmp_nle_f32 vcc, v110, s72
    v_sqrt_f32 v110, v110
    s_mov_b32 s73, 0
    s_waitcnt vmcnt(13)
    s_barrier
    s_cbranch_vccz k2_fast""")
    a(f"""s_waitcnt vmcnt(0)
    s_barrier
    s_mov_b32 s73, 1
    v_mov_b32 v110, 0xff800000
    v_mov_b32 v107, v{vK}
    s_mov_b32 s74, 64""")
    a.label("k2_maxloop")
    a(f"""ds_read_b128 v[{KB}:{KB+3}], v107
    v_add_u32 v107, 2048, v107
    s_waitcnt lgkmcnt(0)
    v_mfma_f32_32x32x16_bf16 v[{S0}:{S0+15}], v[{KB}:{KB+3}], v[{Q}:{Q+3}], 0""")
    for i in range(8):
        a(f"v_max3_f32 v110, v110, v{S0+2*i}, v{S0+2*i+1}")
    a(f"""s_sub_u32 s74, s74, 1
    s_cmp_lg_u32 s74, 0
    s_cbranch_scc1 k2_maxloop
    v_mov_b32 v111, v110
    v_permlane32_swap_b32 v110, v111
    v_max_f32 v110, v110, v111""")
    a.label("k2_fast")
    stamp(a, 2)
    a(f"v_sub_f32 v{NM}, 0, v110")
    for i in range(1, 16): a(f"v_mov_b32 v{NM+i}, v{NM}")
    a(f"""ds_read_b128 v[{KB}:{KB+3}], v{vK}
    ds_read_b128 v[{KB+4}:{KB+7}], v{vK} offset:2048
    s_mov_b64 exec, s[70:71]
    ds_read_b128 v[{VB}:{VB+3}], v{vV}
    ds_read_b128 v[{VB+4}:{VB+7}], v{vV} offset:512
    s_mov_b64 exec, -1
    s_waitcnt lgkmcnt(3)
    v_mfma_f32_32x32x16_bf16 v[{S0}:{S0+15}], v[{KB}:{KB+3}], v[{Q}:{Q+3}], v[{NM}:{NM+15}]
    s_mov_b32 s74, 0
    s_nop 7""")
    a(".p2align 6")
    a.label("k2_loop")
    for tt in range(8):
        cur = tt & 1; nxt = cur ^ 1
        S = (S0, S1)[cur]; SN = (S0, S1)[nxt]
        Kn = KB + 4*nxt; Kc = KB + 4*cur
        Vc = VB + 8*cur; Vn = VB + 8*nxt
        ex = lambda i: a(f"v_exp_f32 v{S+i}, v{S+i}")
        cv = lambda j: a(f"v_cvt_pk_bf16_f32 v{P+j}, v{S+2*j}, v{S+2*j+1}")
        a("s_waitcnt lgkmcnt(2)")
        a(f"v_mfma_f32_32x32x16_bf16 v[{SN}:{SN+15}], v[{Kn}:{Kn+3}], v[{Q}:{Q+3}], v[{NM}:{NM+15}]")
        a(f"ds_read_b128 v[{Kc}:{Kc+3}], v{vK} offset:{(tt+2)*2048}")
        ex(0); ex(1)
        a(f"v_mfma_f32_32x32x16_bf16 v[{O}:{O+15}], v[{Vn+4}:{Vn+7}], v[{P+4}:{P+7}], v[{O}:{O+15}]")
        ex(2); ex(3); cv(0); ex(4); ex(5); cv(1); ex(6); ex(7); cv(2); ex(8); cv(3); ex(9)
        a("s_waitcnt lgkmcnt(1)")
        ex(10)
        a(f"v_mfma_f32_32x32x16_bf16 v[{O}:{O+15}], v[{Vc}:{Vc+3}], v[{P}:{P+3}], v[{O}:{O+15}]")
        a("s_mov_b64 exec, s[70:71]")
        a(f"ds_read_b128 v[{Vn}:{Vn+3}], v{vV} offset:{(tt+1)*2048}")
        a(f"ds_read_b128 v[{Vn+4}:{Vn+7}], v{vV} offset:{(tt+1)*2048+512}")
        a("s_mov_b64 exec, -1")
        ex(11); cv(4); ex(12); ex(13); cv(5); ex(14); ex(15); cv(6)
        if tt == 7:
            a(f"v_add_u32 v{vK}, 16384, v{vK}\nv_add_u32 v{vV}, 16384, v{vV}")
        else:
            a("s_nop 0")
        cv(7)
    a(f"""s_cmp_lg_u32 s73, 0
    s_cbranch_scc1 k2_nobar
    s_waitcnt vmcnt(0)
    s_barrier
    s_mov_b32 s73, 1""")
    stamp(a, 3)
    a.label("k2_nobar")
    if DIAG:
        a("s_cmp_lg_u32 s74, 1\ns_cbranch_scc1 k2_nost")
        stamp(a, 4)
        a.label("k2_nost")
    a(f"""s_add_u32 s74, s74, 1
    s_cmp_lt_u32 s74, 8
    s_cbranch_scc1 k2_loop""")
    stamp(a, 5)
    a(f"""v_mfma_f32_32x32x16_bf16 v[{O}:{O+15}], v[{VB+12}:{VB+15}], v[{P+4}:{P+7}], v[{O}:{O+15}]
    s_add_u32 s62, s62, {WS_O}
    s_nop 11
    v_rcp_f32 v110, v{O+8}""")
    for i in range(8): a(f"v_mul_f32 v{O+i}, v{O+i}, v110")
    for i in range(4): a(f"v_cvt_pk_bf16_f32 v{P+i}, v{O+2*i}, v{O+2*i+1}")
    a(f"buffer_store_dwordx4 v[{P}:{P+3}], v{vRow}, s[44:47], s62 offen")
    fin(a, 1)
    a.label("k2_conv")
    a(f"""s_setprio 3
    s_sub_u32 s66, s3, 8
    s_lshr_b32 s67, s66, 1
    s_and_b32 s68, s66, 1
    s_lshl_b32 s69, s2, 1
    s_add_u32 s69, s69, s67
    s_lshl_b32 s70, s69, 12
    s_waitcnt lgkmcnt(0)""")
    srd_off(a, 24, 4, 5, "s70", 4096)
    a(f"s_add_u32 s71, s70, {WS_XREV}")
    srd_off(a, 28, 20, 21, "s71", 4096)
    a(f"s_add_u32 s71, s70, {WS_Y}")
    srd_off(a, 32, 20, 21, "s71", 4096)
    srd(a, 36, 6, 7, 1024)
    a(f"""s_lshl_b32 s72, s68, 11
    v_lshlrev_b32 v2, 4, v1
    buffer_load_dwordx4 v[4:7], v2, s[24:27], s72 offen
    buffer_load_dwordx4 v[8:11], v2, s[24:27], s72 offen offset:1024
    buffer_load_dwordx4 v[12:15], v2, s[28:31], s72 offen
    buffer_load_dword v16, v2, s[28:31], s72 offen offset:16
    buffer_load_dwordx4 v[20:23], v2, s[28:31], s72 offen offset:1024
    buffer_load_dword v24, v2, s[28:31], s72 offen offset:1040
    s_lshl_b32 s73, s69, 1
    v_mov_b32 v3, s73
    buffer_load_ushort v25, v3, s[36:39], 0 offen""")
    stamp(a, 1)
    a(f"""s_barrier
    s_mul_i32 s74, s67, {CSZ}
    s_add_u32 s74, s74, {CONV0}
    v_lshrrev_b32 v26, 2, v1
    v_mul_u32_u24 v26, 80, v26
    v_and_b32 v27, 3, v1
    v_lshl_add_u32 v26, v27, 4, v26
    s_mul_i32 s75, s68, 2560
    s_add_u32 s75, s75, s74
    v_add_u32 v26, s75, v26
    s_add_u32 s75, s74, s72
    s_add_u32 s75, s75, {XEOFF}
    v_add_u32 v27, s75, v2
    v_mov_b32 v28, 0
    v_mov_b32 v29, 0
    v_mov_b32 v30, 0
    v_mov_b32 v31, 0
    v_lshrrev_b32 v32, 2, v1
    v_mul_u32_u24 v32, {XOOFF}, v32
    v_and_b32 v33, 3, v1
    v_lshl_add_u32 v32, v33, 4, v32
    s_add_u32 s75, s74, {XEOFF + 4096}
    v_add_u32 v32, s75, v32
    s_mov_b64 exec, 0xff
    ds_write_b128 v32, v[28:31]
    s_mov_b64 exec, -1
    s_waitcnt vmcnt(5)
    ds_write_b128 v26, v[4:7]
    ds_write_b128 v26, v[8:11] offset:1280
    s_waitcnt vmcnt(1)
    ds_write_b128 v27, v[12:15]
    ds_write_b128 v27, v[20:23] offset:1024
    v_alignbit_b32 v36, v13, v12, 16
    v_alignbit_b32 v37, v14, v13, 16
    v_alignbit_b32 v38, v15, v14, 16
    v_alignbit_b32 v39, v16, v15, 16
    v_alignbit_b32 v40, v21, v20, 16
    v_alignbit_b32 v41, v22, v21, 16
    v_alignbit_b32 v42, v23, v22, 16
    v_alignbit_b32 v43, v24, v23, 16
    ds_write_b128 v27, v[36:39] offset:{XOOFF}
    ds_write_b128 v27, v[40:43] offset:{XOOFF+1024}""")
    vA, vBa = 2, 3
    AF, BF, ACC = 48, 80, 112
    a(f"""v_and_b32 v4, 31, v1
    v_lshrrev_b32 v5, 5, v1
    v_or_b32 v6, 1, v4
    v_lshlrev_b32 v7, 3, v5
    v_sub_u32 v6, v7, v6
    s_cmp_eq_u32 s68, 0
    s_cselect_b32 s75, 1055, 31
    v_add_u32 v6, s75, v6
    v_lshlrev_b32 v6, 1, v6
    v_and_b32 v7, 1, v4
    v_xor_b32 v7, 1, v7
    v_mul_u32_u24 v7, {XOOFF}, v7
    s_add_u32 s75, s74, {XEOFF}
    v_add3_u32 v{vA}, v6, v7, s75
    v_mul_u32_u24 v6, 80, v4
    v_lshl_add_u32 v6, v5, 4, v6
    s_sub_u32 s75, s74, {80*31}
    v_add_u32 v{vBa}, s75, v6""")
    for i in range(32): a(f"v_mov_b32 v{BF+i}, 0")
    for i in range(16): a(f"v_mov_b32 v{ACC+i}, 0")
    a("s_waitcnt lgkmcnt(0)")
    stamp(a, 2)
    a("s_barrier")
    stamp(a, 3)
    NB = 4
    def creads(mu):
        b = mu % NB
        if mu % 8 == 0 and mu > 0: a(f"v_add_u32 v{vA}, 512, v{vA}")
        for u in range(2):
            o = ((2*mu + u) % 16) * 8
            r = AF + 8*b + 4*u
            a(f"ds_read2_b32 v[{r}:{r+1}], v{vA} offset0:{o} offset1:{o+1}")
            a(f"ds_read2_b32 v[{r+2}:{r+3}], v{vA} offset0:{o+2} offset1:{o+3}")
        if mu < 31:
            m = (0xffffffff << (31 - mu)) & 0xffffffff
            a(f"s_mov_b32 exec_lo, {m:#x}\ns_mov_b32 exec_hi, {m:#x}")
        for u in range(2):
            r = BF + 8*b + 4*u
            a(f"ds_read_b128 v[{r}:{r+3}], v{vBa} offset:{80*mu + 32*u}")
        if mu < 31: a("s_mov_b64 exec, -1")
    creads(0); creads(1)
    for mu in range(64):
        b = mu % NB
        last = (mu in (30, 31))
        if mu == 30:
            pass
        if mu + 2 < 64:
            a("s_waitcnt lgkmcnt(6)")
        elif mu + 1 < 64:
            a("s_waitcnt lgkmcnt(6)")
        else:
            a("s_waitcnt lgkmcnt(0)")
        for u in range(2):
            a(f"v_mfma_f32_32x32x16_bf16 v[{ACC}:{ACC+15}], v[{AF+8*b+4*u}:{AF+8*b+4*u+3}], v[{BF+8*b+4*u}:{BF+8*b+4*u+3}], v[{ACC}:{ACC+15}]")
        if mu + 2 < 64: creads(mu + 2)
        if mu == 31:
            a("s_cmp_eq_u32 s68, 0\ns_cbranch_scc1 k2_cepi")
    a.label("k2_cepi")
    stamp(a, 4)
    a(f"""s_waitcnt lgkmcnt(0)
    s_lshl_b32 s75, s68, 11
    v_lshlrev_b32 v6, 6, v4
    v_lshl_add_u32 v6, v5, 3, v6
    v_add_u32 v6, s75, v6
    s_add_u32 s75, s74, {XEOFF + 4088 - 48}
    v_sub_u32 v7, s75, v6""")
    for aa in range(4):
        a(f"ds_read_b64 v[{8+2*aa}:{9+2*aa}], v7 offset:{48 - 16*aa}")
    a("s_waitcnt vmcnt(0)\nv_lshlrev_b32 v25, 16, v25\ns_waitcnt lgkmcnt(0)")
    for aa in range(4):
        d0, d1 = 8 + 2*aa, 9 + 2*aa
        a(f"""v_and_b32 v16, 0xffff0000, v{d1}
        v_lshlrev_b32 v17, 16, v{d1}
        v_and_b32 v18, 0xffff0000, v{d0}
        v_lshlrev_b32 v19, 16, v{d0}
        v_fmac_f32 v{ACC+4*aa}, v16, v25
        v_fmac_f32 v{ACC+4*aa+1}, v17, v25
        v_fmac_f32 v{ACC+4*aa+2}, v18, v25
        v_fmac_f32 v{ACC+4*aa+3}, v19, v25
        v_cvt_pk_bf16_f32 v{32+2*aa}, v{ACC+4*aa}, v{ACC+4*aa+1}
        v_cvt_pk_bf16_f32 v{33+2*aa}, v{ACC+4*aa+2}, v{ACC+4*aa+3}
        buffer_store_dwordx2 v[{32+2*aa}:{33+2*aa}], v6, s[32:35], 0 offen offset:{16*aa}""")
    fin(a, 1)
    a.label("k2_end")
    a("s_endpgm")
    return a.finish(), 128

def k3():
    a = Asm()
    YT = 131072
    a.label("k3_kernel")
    a("""s_cmp_ge_u32 s2, 256
    s_cbranch_scc1 k3_end""")
    stamp(a, 8, True); stamp(a, 0)
    a("""s_load_dwordx2 s[4:5], s[0:1], 0
    s_load_dwordx2 s[6:7], s[0:1], 80
    s_load_dwordx2 s[8:9], s[0:1], 96
    s_load_dwordx2 s[20:21], s[0:1], 112
    v_lshrrev_b32 v2, 6, v0
    v_and_b32 v1, 63, v0
    v_readfirstlane_b32 s3, v2""")
    wg_decode(a, 56, 57)
    a("s_lshl_b32 s58, s56, 10")
    gemm_dma_addr(a, 4, 5, 6, 1, 3, 57, 8)
    a("""v_lshrrev_b32 v8, 3, v1
    v_and_b32 v7, 7, v1
    v_lshlrev_b32 v7, 4, v7
    v_lshl_add_u32 v7, v8, 12, v7
    s_waitcnt lgkmcnt(0)""")
    srd_off(a, 24, 20, 21, WS_O, 0x200000)
    srd(a, 28, 6, 7, 0x80000)
    srd(a, 32, 4, 5, 0x200000)
    srd(a, 36, 8, 9, 0x200000)
    srd(a, 44, 20, 21, WS_SIZE)
    a("s_cmp_ge_u32 s3, 4\ns_cbranch_scc1 k3_help")
    XR, GR = 112, 120
    a(f"""s_lshr_b32 s63, s3, 1
    s_lshl_b32 s63, s63, 5
    s_add_u32 s63, s63, s56
    v_and_b32 v8, 31, v1
    v_add_u32 v8, s63, v8
    v_lshlrev_b32 v9, 2, v8
    s_mov_b32 s64, {WS_G}
    buffer_load_dword v{GR}, v9, s[44:47], s64 offen
    v_lshrrev_b32 v9, 5, v1
    v_lshlrev_b32 v9, 3, v9
    v_lshl_add_u32 v12, v8, 10, v9
    s_and_b32 s64, s3, 1
    s_lshl_b32 s64, s64, 6
    s_lshl_b32 s65, s57, 1
    s_add_u32 s59, s64, s65""")
    for aa in range(4):
        a(f"buffer_load_dwordx2 v[{XR+2*aa}:{XR+2*aa+1}], v12, s[32:35], s59 offen offset:{16*aa}")
    def ydma():
        a(f"""s_lshl_b32 s64, s3, 3
        s_add_u32 s64, s64, s57
        s_lshl_b32 s64, s64, 12
        s_lshl_b32 s65, s56, 1
        s_add_u32 s64, s64, s65
        s_add_u32 s64, s64, {WS_Y}
        s_lshl_b32 s65, s3, 10
        s_add_u32 s66, s65, {YT}""")
        dma(a, 7, 44, "s64", "s66")
    for kc in range(4): gemm_dma_chunk(a, kc, 4, 5, 6, 24, 28, 3, 58)
    ydma()
    stamp(a, 1)
    gemm_read_addr(a, 16, 24, 1, 3, 8, True)
    a(f"""v_bfe_u32 v8, v1, 2, 2
    v_lshrrev_b32 v9, 5, v1
    v_lshl_add_u32 v8, v9, 2, v8
    v_lshlrev_b32 v8, 7, v8
    v_bfe_u32 v9, v1, 4, 1
    v_lshl_add_u32 v8, v9, 5, v8
    v_and_b32 v9, 3, v1
    v_lshl_add_u32 v8, v9, 3, v8
    s_and_b32 s64, s3, 1
    s_lshl_b32 s64, s64, 12
    s_lshr_b32 s65, s3, 1
    s_lshl_b32 s65, s65, 6
    s_add_u32 s64, s64, s65
    s_add_u32 s64, s64, {YT}
    v_add_u32 v25, s64, v8""")
    ACC, FA, FB = 32, 48, 80
    for kc in range(4):
        a(f"s_waitcnt vmcnt({13 - 4*kc if kc < 3 else 0})\ns_barrier")
        stamp(a, 2 + kc)
        gemm_chunk(a, kc, 16, 24, FA, FB, ACC, True, kc == 0)
    stamp(a, 6)
    for aa in range(4):
        a(f"ds_read_b64_tr_b16 v[{FA+2*aa}:{FA+2*aa+1}], v25 offset:{1024*aa}")
    a(f"v_sub_f32 v{GR+1}, 1.0, v{GR}\ns_waitcnt lgkmcnt(0)")
    for aa in range(4):
        x0, x1, y0, y1 = XR + 2*aa, XR + 2*aa + 1, FA + 2*aa, FA + 2*aa + 1
        t = FB
        a(f"""v_lshlrev_b32 v{t}, 16, v{x0}
        v_and_b32 v{t+1}, 0xffff0000, v{x0}
        v_lshlrev_b32 v{t+2}, 16, v{x1}
        v_and_b32 v{t+3}, 0xffff0000, v{x1}
        v_lshlrev_b32 v{t+4}, 16, v{y0}
        v_and_b32 v{t+5}, 0xffff0000, v{y0}
        v_lshlrev_b32 v{t+6}, 16, v{y1}
        v_and_b32 v{t+7}, 0xffff0000, v{y1}""")
        for e in range(4):
            a(f"v_mul_f32 v{t+e}, v{t+e}, v{t+4+e}")
        for e in range(4):
            a(f"v_mul_f32 v{t+e}, v{t+e}, v{GR}")
        for e in range(4):
            a(f"v_fmac_f32 v{t+e}, v{ACC+4*aa+e}, v{GR+1}")
        a(f"""v_cvt_pk_bf16_f32 v{t+8+2*aa}, v{t}, v{t+1}
        v_cvt_pk_bf16_f32 v{t+9+2*aa}, v{t+2}, v{t+3}
        buffer_store_dwordx2 v[{t+8+2*aa}:{t+9+2*aa}], v12, s[36:39], s59 offen offset:{16*aa}""")
    fin(a, 2)
    a.label("k3_help")
    for kc in range(4): gemm_dma_chunk(a, kc, 4, 5, 6, 24, 28, 3, 58)
    ydma()
    for kc in range(4):
        a(f"s_waitcnt vmcnt({13 - 4*kc if kc < 3 else 0})\ns_barrier")
    fin(a, 2)
    a.label("k3_end")
    a("s_endpgm")
    return a.finish(), 128

def build(extra_launch=""):
    hdr = open("cdna_kernels/" + NAME + ".s.ref").read().split("; Override launch")[0]
    ks = [("k1_kernel", k1(), 512, 163840), ("k2_kernel", k2(), 768, 157952), ("k3_kernel", k3(), 512, 139264)]
    out = hdr
    for n, _, blk, lds in ks:
        out += f"; @launch kernel={n} grid=(256,1,1) block=({blk},1,1) lds={lds}\n"
    out += extra_launch
    out += '.amdgcn_target "amdgcn-amd-amdhsa--gfx950"\n.text\n'
    for n, (body, nv), _, _ in ks:
        out += f".globl {n}\n.p2align 8\n.type {n},@function\n" + body
    out += '.section .rodata,"a"\n'
    for n, (body, nv), _, _ in ks:
        out += f""".p2align 6
.amdhsa_kernel {n}
  .amdhsa_next_free_vgpr {nv}
  .amdhsa_next_free_sgpr {100 if (DIAG or DBG) else 80}
  .amdhsa_accum_offset {nv}
  .amdhsa_group_segment_fixed_size 0
  .amdhsa_kernarg_size 120
  .amdhsa_user_sgpr_count 2
  .amdhsa_user_sgpr_kernarg_segment_ptr 1
  .amdhsa_system_sgpr_workgroup_id_x 1
.end_amdhsa_kernel
"""
    return out

if __name__ == "__main__":
    if "-g" in sys.argv:
        DBG = True; sys.argv.remove("-g")
    if "-d" in sys.argv:
        DIAG = True; sys.argv.remove("-d")
    dst = sys.argv[1] if len(sys.argv) > 1 else "cdna_kernels/" + NAME + ".s"
    open(dst, "w").write(build())
    print("wrote", dst)
```

```python
import sys, math
from asmlib import Asm

NAME = "gated_mix__ssm_conv_h3__grouped_kv_mqa__prompt"
WS_Q, WS_KV, WS_KMAX, WS_G, WS_XREV, WS_O, WS_Y = 0x000000, 0x200000, 0x220000, 0x221000, 0x300000, 0x500000, 0x700000
WS_SIZE = 0x900000
CSCALE = 0.25 * math.log2(math.e)
import struct
def f32(x): return "0x%08x" % struct.unpack("<I", struct.pack("<f", x))[0]

DIAG = False
WS_DIAG = 0x1000000
def stamp(a, idx, real=False):
    if not DIAG and not DBG: return
    if DBG: real = True
    a(f"{'s_memrealtime' if real else 's_memtime'} s[{80+2*idx}:{81+2*idx}]\ns_waitcnt lgkmcnt(0)")
def dump(a, kid, n=10):
    if not DIAG: return
    stamp(a, 9, True)
    a(f"""s_add_u32 s76, s20, {WS_DIAG + kid*256*16*64}
    s_addc_u32 s77, s21, 0
    s_mov_b32 s78, 0x40000
    s_mov_b32 s79, 0x20000
    s_lshl_b32 s75, s2, 4
    s_add_u32 s75, s75, s3
    s_lshl_b32 s75, s75, 6
    s_mov_b64 exec, 1
    v_mov_b32 v0, 0""")
    for i in range(n):
        a(f"v_mov_b32 v1, s{80+2*i}\nbuffer_store_dword v1, v0, s[76:79], s75 offen offset:{4*i}")

DBG = False
TOUCH = True
DBGK = 0
DBGW = 0
_fl = 0
def fin(a, kid):
    if DBG:
        global _fl
        _fl += 1
        a(f"""s_and_b32 s75, s2, 0x1c
        s_cmp_lg_u32 s75, 0
        s_cbranch_scc1 fin_skip{_fl}
        s_waitcnt vmcnt(0)
        s_load_dwordx2 s[76:77], s[0:1], 104
        s_memrealtime s[98:99]
        s_waitcnt lgkmcnt(0)
        s_add_u32 s76, s76, {512*(2-kid)}
        s_addc_u32 s77, s77, 0
        s_mov_b32 s78, 256
        s_mov_b32 s79, 0x20000
        s_not_b32 s96, s96
        s_mov_b64 exec, 1
        v_mov_b32 v0, 0
        v_mov_b32 v1, s96
        v_mov_b32 v2, s98
        buffer_atomic_umax v1, v0, s[76:79], 0 offen offset:{8*kid}
        buffer_atomic_umax v2, v0, s[76:79], 0 offen offset:{8*kid+4}""")
        if kid == DBGK:
            a(f"s_cmp_lg_u32 s3, {DBGW}\ns_cbranch_scc1 fin_skip{_fl}")
            for i in range(1, 7):
                a(f"s_sub_u32 s75, s{80+2*i}, s80\nv_mov_b32 v1, s75\nbuffer_atomic_umax v1, v0, s[76:79], 0 offen offset:{24+4*(i-1)}")
            a(f"s_sub_u32 s75, s98, s80\nv_mov_b32 v1, s75\nbuffer_atomic_umax v1, v0, s[76:79], 0 offen offset:48")
        a.label(f"fin_skip{_fl}")
    if DIAG:
        a("s_waitcnt vmcnt(0)")
        stamp(a, 7); dump(a, kid)
    a("s_endpgm")

def srd(a, d, lo, hi, size):
    a(f"s_mov_b32 s{d}, s{lo}\ns_mov_b32 s{d+1}, s{hi}\ns_mov_b32 s{d+2}, {size}\ns_mov_b32 s{d+3}, 0x20000")

def srd_off(a, d, lo, hi, off, size):
    a(f"s_add_u32 s{d}, s{lo}, {off}\ns_addc_u32 s{d+1}, s{hi}, 0\ns_mov_b32 s{d+2}, {size}\ns_mov_b32 s{d+3}, 0x20000")

def dma(a, voff, srdn, soff, m0):
    a(f"s_mov_b32 m0, {m0}")
    a(f"buffer_load_dwordx4 v{voff}, s[{srdn}:{srdn+3}], {soff} offen lds")

def wg_decode(a, sS0, sN0):
    a(f"""s_and_b32 s60, s2, 7
    s_lshl_b32 s60, s60, 2
    s_lshr_b32 s61, s2, 3
    s_and_b32 s62, s61, 3
    s_add_u32 s60, s60, s62
    s_lshr_b32 s61, s61, 2
    s_lshl_b32 s{sS0}, s60, 6
    s_lshl_b32 s{sN0}, s61, 6""")

XT, WT = 0, 65536

def gemm_dma_addr(a, vX0, vX1, vW, vl, sW, sN0, tmp):
    t0, t1 = tmp, tmp + 1
    a(f"""s_lshl_b32 s63, s{sW}, 3
    v_lshrrev_b32 v{t0}, 4, v{vl}
    v_add_u32 v{t0}, s63, v{t0}
    v_and_b32 v{t1}, 15, v{vl}
    v_xor_b32 v{vX0}, v{t0}, v{t1}
    v_and_b32 v{vX0}, 15, v{vX0}
    v_lshlrev_b32 v{vX0}, 4, v{vX0}
    v_lshl_add_u32 v{vX0}, v{t0}, 10, v{vX0}
    v_add_u32 v{t0}, 4, v{t0}
    v_xor_b32 v{vX1}, v{t0}, v{t1}
    v_and_b32 v{vX1}, 15, v{vX1}
    v_lshlrev_b32 v{vX1}, 4, v{vX1}
    v_lshl_add_u32 v{vX1}, v{t0}, 10, v{vX1}""")
    a(f"""v_lshrrev_b32 v{t0}, 3, v{vl}
    v_lshlrev_b32 v{t1}, 1, v{t0}
    v_and_b32 v{t1}, 4, v{t1}
    v_and_b32 v{vW}, 7, v{vl}
    v_xor_b32 v{vW}, v{vW}, v{t1}
    v_lshlrev_b32 v{vW}, 4, v{vW}
    v_lshl_add_u32 v{vW}, v{t0}, 10, v{vW}
    s_lshl_b32 s63, s{sN0}, 1
    v_add_u32 v{vW}, s63, v{vW}""")

def gemm_dma_chunk(a, kc, vX0, vX1, vW, srdX, srdW, sW, sXbase):
    a(f"s_add_u32 s64, s{sXbase}, {kc*256}")
    a(f"s_lshl_b32 s65, s{sW}, 11")
    a(f"s_add_u32 s66, s65, {XT + kc*16384}")
    dma(a, vX0, srdX, "s64", "s66")
    a(f"s_add_u32 s66, s66, 1024")
    dma(a, vX1, srdX, "s64", "s66")
    a(f"s_lshl_b32 s67, s{sW}, 14")
    a(f"s_add_u32 s67, s67, {kc*128*1024}")
    a(f"s_add_u32 s66, s65, {WT + kc*16384}")
    dma(a, vW, srdW, "s67", "s66")
    a(f"s_add_u32 s67, s67, 8192")
    a(f"s_add_u32 s66, s66, 1024")
    dma(a, vW, srdW, "s67", "s66")

def gemm_read_addr(a, vB, vA, vl, sW, tmp, phi):
    t0, t1, t2 = tmp, tmp + 1, tmp + 2
    a(f"""s_lshr_b32 s63, s{sW}, 1
    s_lshl_b32 s63, s63, 13
    v_and_b32 v{t0}, 31, v{vl}
    v_lshrrev_b32 v{t1}, 5, v{vl}
    v_and_b32 v{t2}, 15, v{vl}
    v_xor_b32 v{t2}, v{t2}, v{t1}
    v_lshlrev_b32 v{t2}, 4, v{t2}
    v_lshl_add_u32 v{t2}, v{t0}, 8, v{t2}
    v_add_u32 v{vB}, s63, v{t2}""")
    for e in range(1, 8):
        a(f"v_xor_b32 v{vB+e}, {e*32}, v{vB}")
    a(f"""s_and_b32 s63, s{sW}, 1
    v_bfe_u32 v{t0}, v{vl}, 2, 2
    v_lshrrev_b32 v{t2}, 1, v{t0}
    v_xor_b32 v{t2}, s63, v{t2}
    v_lshlrev_b32 v{t2}, 6, v{t2}
    v_lshl_add_u32 v{t0}, v{t1}, {2 if phi else 3}, v{t0}
    v_lshl_add_u32 v{t2}, v{t0}, 7, v{t2}
    v_bfe_u32 v{t0}, v{vl}, 4, 1
    v_lshl_add_u32 v{t2}, v{t0}, 5, v{t2}
    v_and_b32 v{t0}, 3, v{vl}
    v_lshl_add_u32 v{t2}, v{t0}, 3, v{t2}
    v_add_u32 v{vA}, {WT}, v{t2}""")

def gemm_chunk(a, kc, vB, vA, FA, FB, ACC, phi, first):
    tstep = 1024 if phi else 512
    def reads(e):
        a(f"ds_read_b128 v[{FB+4*e}:{FB+4*e+3}], v{vB+e} offset:{kc*16384}")
        a(f"ds_read_b64_tr_b16 v[{FA+4*e}:{FA+4*e+1}], v{vA} offset:{kc*16384 + e*2048}")
        a(f"ds_read_b64_tr_b16 v[{FA+4*e+2}:{FA+4*e+3}], v{vA} offset:{kc*16384 + e*2048 + tstep}")
    for e in range(4): reads(e)
    for e in range(8):
        left = min(7, e + 3) - e
        a(f"s_waitcnt lgkmcnt({3*left})")
        c = "0" if (first and e == 0) else f"v[{ACC}:{ACC+15}]"
        a(f"v_mfma_f32_32x32x16_bf16 v[{ACC}:{ACC+15}], v[{FA+4*e}:{FA+4*e+3}], v[{FB+4*e}:{FB+4*e+3}], {c}")
        if e + 4 < 8: reads(e + 4)

def k1():
    a = Asm()
    WKV, KT, VT = 131072, 147456, 155648
    a.label("k1_kernel")
    a("""s_cmp_ge_u32 s2, 256
    s_cbranch_scc1 k1_end""")
    stamp(a, 8, True); stamp(a, 0)
    a("""s_load_dwordx4 s[4:7], s[0:1], 0
    s_load_dwordx4 s[8:11], s[0:1], 16
    s_load_dwordx4 s[12:15], s[0:1], 56
    s_load_dwordx2 s[16:17], s[0:1], 72
    s_load_dwordx2 s[18:19], s[0:1], 88
    s_load_dwordx2 s[20:21], s[0:1], 112
    v_lshrrev_b32 v2, 6, v0
    v_and_b32 v1, 63, v0
    v_readfirstlane_b32 s3, v2""")
    wg_decode(a, 56, 57)
    a("s_lshl_b32 s58, s56, 10")
    gemm_dma_addr(a, 4, 5, 6, 1, 3, 57, 8)
    a("""v_lshrrev_b32 v8, 3, v1
    v_and_b32 v7, 7, v1
    v_lshlrev_b32 v7, 4, v7
    v_lshl_add_u32 v7, v8, 10, v7
    s_lshl_b32 s63, s57, 1
    v_add_u32 v7, s63, v7
    s_waitcnt lgkmcnt(0)""")
    srd(a, 24, 4, 5, 0x200000)
    srd(a, 28, 12, 13, 0x80000)
    srd(a, 32, 6, 7, 0x200000)
    srd(a, 36, 8, 9, 0x200000)
    srd(a, 44, 20, 21, WS_SIZE)
    a("""s_cmp_ge_u32 s3, 4
    s_cbranch_scc1 k1_kv""")
    def kv_tile_dma():
        a("""s_lshl_b32 s64, s3, 13
        s_add_u32 s64, s64, s58
        s_lshl_b32 s65, s3, 10""")
        a(f"s_add_u32 s66, s65, {KT}")
        dma(a, 7, 32, "s64", "s66")
        a(f"s_add_u32 s66, s65, {VT}")
        dma(a, 7, 36, "s64", "s66")
    a("""s_lshr_b32 s70, s3, 1
    s_lshl_b32 s70, s70, 15
    s_add_u32 s70, s70, s58
    s_and_b32 s71, s3, 1
    s_lshl_b32 s71, s71, 6
    s_add_u32 s70, s70, s71
    s_lshl_b32 s71, s57, 1
    s_add_u32 s70, s70, s71
    v_and_b32 v12, 31, v1
    v_lshrrev_b32 v13, 5, v1
    v_lshlrev_b32 v13, 4, v13
    v_lshl_add_u32 v12, v12, 10, v13""")
    if TOUCH: a(f"buffer_load_dword v14, v12, s[44:47], s70 offen offset:{WS_Q}")
    kv_tile_dma()
    for kc in range(4): gemm_dma_chunk(a, kc, 4, 5, 6, 24, 28, 3, 58)
    stamp(a, 1)
    gemm_read_addr(a, 16, 24, 1, 3, 8, False)
    ACC, FA, FB = 32, 48, 80
    for kc in range(4):
        a(f"s_waitcnt vmcnt({12 - 4*kc})\ns_barrier")
        stamp(a, 2 + kc)
        gemm_chunk(a, kc, 16, 24, FA, FB, ACC, False, kc == 0)
    stamp(a, 6)
    for i in range(8):
        a(f"v_cvt_pk_bf16_f32 v{FA+i}, v{ACC+2*i}, v{ACC+2*i+1}")
    a(f"buffer_store_dwordx4 v[{FA}:{FA+3}], v12, s[44:47], s70 offen offset:{WS_Q}")
    a(f"buffer_store_dwordx4 v[{FA+4}:{FA+7}], v12, s[44:47], s70 offen offset:{WS_Q+32}")
    fin(a, 0)
    a.label("k1_kv")
    a("""s_and_b32 s59, s61, 1
    s_lshr_b32 s68, s61, 1
    s_sub_u32 s69, s3, 4
    s_cmp_eq_u32 s59, 0
    s_cselect_b32 s40, s14, s16
    s_cselect_b32 s41, s15, s17
    s_mov_b32 s42, 0x4000
    s_mov_b32 s43, 0x20000""")
    srd(a, 48, 10, 11, 4096)
    srd(a, 52, 18, 19, 1024)
    GW = 128
    a("""s_cmp_lg_u32 s3, 7
    s_cbranch_scc1 k1_nogw
    s_cmp_lg_u32 s59, 0
    s_cbranch_scc1 k1_nogw
    v_lshrrev_b32 v8, 4, v1
    v_lshlrev_b32 v8, 4, v8""")
    for i in range(16):
        a(f"buffer_load_dwordx4 v[{GW+4*i}:{GW+4*i+3}], v8, s[52:55], 0 offen offset:{64*i}")
    a.label("k1_nogw")
    if TOUCH:
        a(f"""v_add_u32 v8, s57, v1
        v_lshlrev_b32 v9, 12, v8
        s_mov_b32 s64, {WS_XREV}
        buffer_load_dword v25, v9, s[44:47], s64 offen
        s_mov_b32 s64, {WS_KV}
        v_mov_b32 v9, 0
        buffer_load_dword v26, v9, s[44:47], s64 offen""")
    a("""v_add_u32 v8, s57, v1
    v_lshlrev_b32 v9, 3, v8
    buffer_load_dwordx2 v[10:11], v9, s[48:51], 0 offen
    s_lshl_b32 s64, s69, 14
    s_add_u32 s64, s64, s58
    s_sub_u32 s64, s64, 3072
    v_lshlrev_b32 v9, 1, v8
    v_add_u32 v9, s64, v9
    buffer_load_ushort v12, v9, s[32:35], 0 offen
    buffer_load_ushort v13, v9, s[32:35], 0 offen offset:1024
    buffer_load_ushort v14, v9, s[32:35], 0 offen offset:2048""")
    kv_tile_dma()
    a("v_lshlrev_b32 v15, 4, v1")
    for kc in range(4):
        gemm_dma_chunk(a, kc, 4, 5, 6, 24, 28, 3, 58)
        a(f"s_lshl_b32 s64, s69, 10\ns_add_u32 s64, s64, {kc*4096}\ns_add_u32 s66, s64, {WKV}")
        dma(a, 15, 40, "s64", "s66")
    a(f"""v_bfe_u32 v16, v1, 2, 2
    v_lshlrev_b32 v16, 7, v16
    v_lshrrev_b32 v17, 4, v1
    v_lshl_add_u32 v16, v17, 5, v16
    v_and_b32 v17, 3, v1
    v_lshl_add_u32 v16, v17, 3, v16
    s_lshl_b32 s64, s69, 11
    s_add_u32 s64, s64, {KT}
    v_add_u32 v16, s64, v16""")
    a(f"""v_and_b32 v17, 15, v1
    v_lshrrev_b32 v18, 4, v1
    v_xor_b32 v19, v17, v18
    v_lshlrev_b32 v19, 4, v19
    v_lshl_add_u32 v19, v17, 8, v19
    s_lshl_b32 s64, s68, 12
    v_add_u32 v20, s64, v19
    v_xor_b32 v21, 64, v20
    v_xor_b32 v22, 128, v20
    v_xor_b32 v23, 192, v20
    v_bfe_u32 v19, v1, 2, 2
    v_lshl_add_u32 v19, v18, 3, v19
    v_lshlrev_b32 v19, 5, v19
    v_and_b32 v24, 3, v1
    v_lshl_add_u32 v24, v24, 3, v19
    v_add_u32 v24, {WKV}, v24""")
    JD, JG, JX, JW = 28, 32, 96, 112
    def job_chunk(kc):
        lbl = f"k1_nojob{kc}"
        a(f"s_cmp_lg_u32 s3, 7\ns_cbranch_scc1 {lbl}")
        for e in range(4):
            a(f"ds_read_b128 v[{JX+4*e}:{JX+4*e+3}], v{20+e} offset:{kc*16384}")
            a(f"ds_read_b64_tr_b16 v[{JW+4*e}:{JW+4*e+1}], v24 offset:{kc*4096 + e*1024}")
            a(f"ds_read_b64_tr_b16 v[{JW+4*e+2}:{JW+4*e+3}], v24 offset:{kc*4096 + e*1024 + 128}")
        a(f"s_waitcnt lgkmcnt(0)\ns_cmp_lg_u32 s59, 0\ns_cbranch_scc1 {lbl}_v")
        for e in range(4):
            c = "0" if (kc == 0 and e == 0) else f"v[{JD}:{JD+3}]"
            a(f"v_mfma_f32_16x16x32_bf16 v[{JD}:{JD+3}], v[{JW+4*e}:{JW+4*e+3}], v[{JX+4*e}:{JX+4*e+3}], {c}")
            c = "0" if (kc == 0 and e == 0) else f"v[{JG}:{JG+3}]"
            g = GW + 16*kc + 4*e
            a(f"v_mfma_f32_16x16x32_bf16 v[{JG}:{JG+3}], v[{g}:{g+3}], v[{JX+4*e}:{JX+4*e+3}], {c}")
        a(f"s_branch {lbl}")
        a.label(f"{lbl}_v")
        for e in range(4):
            c = "0" if (kc == 0 and e == 0) else f"v[{JD}:{JD+3}]"
            a(f"v_mfma_f32_16x16x32_bf16 v[{JD}:{JD+3}], v[{JX+4*e}:{JX+4*e+3}], v[{JW+4*e}:{JW+4*e+3}], {c}")
        a.label(lbl)
    KR, VR, KF, VF = 36, 44, 52, 72
    stamp(a, 1)
    a("s_waitcnt vmcnt(15)\ns_barrier")
    stamp(a, 2)
    for i in range(4):
        a(f"ds_read_b64_tr_b16 v[{KR+2*i}:{KR+2*i+1}], v16 offset:{i*512}")
    for i in range(4):
        a(f"ds_read_b64_tr_b16 v[{VR+2*i}:{VR+2*i+1}], v16 offset:{8192 + i*512}")
    job_chunk(0)
    a("""v_lshlrev_b32 v88, 16, v10
    v_and_b32 v89, 0xffff0000, v10
    v_lshlrev_b32 v90, 16, v11
    v_and_b32 v91, 0xffff0000, v11""")
    for i in range(3): a(f"v_lshlrev_b32 v{KF+i}, 16, v{12+i}")
    a("s_waitcnt lgkmcnt(0)")
    for i in range(8):
        a(f"v_lshlrev_b32 v{KF+3+2*i}, 16, v{KR+i}\nv_and_b32 v{KF+4+2*i}, 0xffff0000, v{KR+i}")
    for i in range(8):
        a(f"v_lshlrev_b32 v{VF+2*i}, 16, v{VR+i}\nv_and_b32 v{VF+1+2*i}, 0xffff0000, v{VR+i}")
    stamp(a, 3)
    a("s_waitcnt vmcnt(10)\ns_barrier")
    job_chunk(1)
    for s in range(16):
        t = 36 + (s % 8)
        a(f"v_mul_f32 v{t}, v{KF+s}, v91")
        a(f"v_fmac_f32 v{t}, v{KF+s+1}, v90")
        a(f"v_fmac_f32 v{t}, v{KF+s+2}, v89")
        a(f"v_fmac_f32 v{t}, v{KF+s+3}, v88")
        a(f"v_mul_f32 v{VF+s}, v{t}, v{VF+s}")
    stamp(a, 4)
    a("s_waitcnt vmcnt(5)\ns_barrier")
    job_chunk(2)
    for q in range(8):
        a(f"v_cvt_pk_bf16_f32 v{44+q}, v{VF+15-2*q}, v{VF+14-2*q}")
    a(f"""s_lshl_b32 s64, s69, 4
    s_add_u32 s64, s64, s56
    s_lshl_b32 s64, s64, 1
    s_sub_u32 s64, {WS_XREV + 4064}, s64
    v_lshlrev_b32 v9, 12, v8
    buffer_store_dwordx4 v[44:47], v9, s[44:47], s64 offen
    buffer_store_dwordx4 v[48:51], v9, s[44:47], s64 offen offset:16
    s_waitcnt vmcnt(2)
    s_barrier""")
    stamp(a, 5)
    job_chunk(3)
    stamp(a, 6)
    a("s_cmp_lg_u32 s3, 7\ns_cbranch_scc1 k1_fin")
    a(f"""s_lshr_b32 s64, s68, 1
    s_lshl_b32 s65, s60, 1
    s_add_u32 s64, s64, s65
    s_lshl_b32 s64, s64, 11
    s_add_u32 s64, s64, {WS_KV}
    s_and_b32 s65, s68, 1
    v_and_b32 v17, 15, v1
    v_lshlrev_b32 v17, 4, v17
    v_lshrrev_b32 v18, 5, v1
    v_lshl_add_u32 v17, v18, 3, v17
    v_bfe_u32 v18, v1, 4, 1
    s_cmp_lg_u32 s59, 0
    s_cbranch_scc1 k1_vepi""")
    a(f"""s_lshl_b32 s65, s65, 8
    s_add_u32 s64, s64, s65
    v_lshl_add_u32 v17, v18, 9, v17
    s_mov_b32 s66, {f32(CSCALE)}""")
    for e in range(4): a(f"v_mul_f32 v{JD+e}, s66, v{JD+e}")
    a(f"""v_cvt_pk_bf16_f32 v36, v{JD}, v{JD+1}
    v_cvt_pk_bf16_f32 v37, v{JD+2}, v{JD+3}
    buffer_store_dwordx2 v[36:37], v17, s[44:47], s64 offen
    v_mul_f32 v38, v{JD}, v{JD}
    v_fmac_f32 v38, v{JD+1}, v{JD+1}
    v_fmac_f32 v38, v{JD+2}, v{JD+2}
    v_fmac_f32 v38, v{JD+3}, v{JD+3}
    v_mov_b32 v39, v38
    v_permlane32_swap_b32 v38, v39
    v_add_f32 v38, v38, v39
    v_mov_b32 v39, v38
    v_permlane16_swap_b32 v38, v39
    v_add_f32 v38, v38, v39
    v_max_f32_dpp v38, v38, v38 row_ror:8 row_mask:0xf bank_mask:0xf
    v_max_f32_dpp v38, v38, v38 row_ror:4 row_mask:0xf bank_mask:0xf
    v_max_f32_dpp v38, v38, v38 row_ror:2 row_mask:0xf bank_mask:0xf
    v_max_f32_dpp v38, v38, v38 row_ror:1 row_mask:0xf bank_mask:0xf
    s_mov_b32 s66, {f32(-math.log2(math.e))}
    v_mul_f32 v40, s66, v{JG}
    v_exp_f32 v40, v40
    v_add_f32 v40, 1.0, v40
    v_rcp_f32 v40, v40
    s_lshl_b32 s65, s60, 2
    s_add_u32 s65, s65, s68
    s_lshl_b32 s66, s65, 6
    s_add_u32 s66, s66, {WS_G}
    s_lshl_b32 s65, s65, 2
    s_add_u32 s65, s65, {WS_KMAX}
    v_lshlrev_b32 v41, 2, v1
    s_mov_b64 exec, 0xffff
    buffer_store_dword v40, v41, s[44:47], s66 offen
    s_mov_b64 exec, 1
    buffer_store_dword v38, v41, s[44:47], s65 offen""")
    fin(a, 0)
    a.label("k1_vepi")
    a(f"""s_lshl_b32 s65, s65, 9
    s_add_u32 s64, s64, s65
    v_lshl_add_u32 v17, v18, 8, v17
    v_cvt_pk_bf16_f32 v36, v{JD}, v{JD+1}
    v_cvt_pk_bf16_f32 v37, v{JD+2}, v{JD+3}
    buffer_store_dwordx2 v[36:37], v17, s[44:47], s64 offen offset:1024""")
    a.label("k1_fin")
    fin(a, 0)
    a.label("k1_end")
    a("s_endpgm")
    return a.finish(), 192

def k2():
    a = Asm()
    CONV0, CSZ, XEOFF, XOOFF = 131072, 13440, 5120, 4160
    a.label("k2_kernel")
    a("""s_cmp_ge_u32 s2, 256
    s_cbranch_scc1 k2_end""")
    stamp(a, 8, True); stamp(a, 0)
    a("""s_load_dwordx4 s[4:7], s[0:1], 32
    s_load_dwordx2 s[20:21], s[0:1], 112
    v_lshrrev_b32 v2, 6, v0
    v_and_b32 v1, 63, v0
    v_readfirstlane_b32 s3, v2""")
    wg_decode(a, 56, 57)
    a("""s_cmp_ge_u32 s3, 8
    s_cbranch_scc1 k2_conv
    s_waitcnt lgkmcnt(0)""")
    srd(a, 44, 20, 21, WS_SIZE)
    srd_off(a, 40, 20, 21, WS_KV, 131072)
    Q, NM, S0, S1, P, O, KB, VB = 4, 8, 24, 40, 56, 64, 80, 88
    vK, vV, vRow = 104, 105, 106
    a(f"""s_and_b32 s62, s3, 1
    s_lshl_b32 s62, s62, 5
    s_add_u32 s62, s62, s56
    s_lshl_b32 s62, s62, 10
    s_lshr_b32 s63, s3, 1
    s_lshl_b32 s64, s61, 2
    s_add_u32 s63, s63, s64
    s_lshl_b32 s63, s63, 5
    s_add_u32 s62, s62, s63
    v_and_b32 v2, 31, v1
    v_lshrrev_b32 v3, 5, v1
    v_lshlrev_b32 v{vRow}, 4, v3
    v_lshl_add_u32 v{vRow}, v2, 10, v{vRow}
    v_lshlrev_b32 v{vK}, 4, v1
    v_lshlrev_b32 v107, 3, v1
    s_add_u32 s63, s62, {WS_O}
    {"buffer_load_dword v112, v%d, s[44:47], s63 offen" % vRow if TOUCH else ""}
    buffer_load_dwordx4 v[{Q}:{Q+3}], v{vRow}, s[44:47], s62 offen offset:{WS_Q}
    s_mov_b32 s63, {WS_KMAX}
    buffer_load_dwordx2 v[108:109], v107, s[44:47], s63 offen
    s_lshl_b32 s64, s3, 10""")
    for i in range(16):
        dma(a, vK, 40, "s64", "s64")
        if i < 15: a("s_add_u32 s64, s64, 8192")
    stamp(a, 1)
    a(f"""v_and_b32 v{vV}, 15, v1
    v_lshlrev_b32 v{vV}, 4, v{vV}
    v_lshl_add_u32 v{vV}, v3, 8, v{vV}
    v_add_u32 v{vV}, 1024, v{vV}
    s_mov_b32 s70, 0xffff
    s_mov_b32 s71, 0xffff""")
    a(f"""v_and_b32 v110, 27, v2
    v_cmp_eq_u32 vcc, 16, v110
    v_mov_b32 v111, 0x3f803f80
    v_cndmask_b32 v{VB}, 0, v111, vcc""")
    for i in range(1, 16): a(f"v_mov_b32 v{VB+i}, v{VB}")
    for i in range(8): a(f"v_mov_b32 v{P+i}, 0")
    for i in range(16): a(f"v_mov_b32 v{O+i}, 0")
    a(f"""s_waitcnt vmcnt(16)
    v_max_f32 v108, v108, v109
    v_dot2_f32_bf16 v110, v{Q}, v{Q}, 0
    v_dot2_f32_bf16 v111, v{Q+1}, v{Q+1}, 0
    v_max_f32_dpp v108, v108, v108 row_ror:8 row_mask:0xf bank_mask:0xf
    v_dot2_f32_bf16 v112, v{Q+2}, v{Q+2}, 0
    v_dot2_f32_bf16 v113, v{Q+3}, v{Q+3}, 0
    v_max_f32_dpp v108, v108, v108 row_ror:4 row_mask:0xf bank_mask:0xf
    s_nop 1
    v_add_f32 v110, v110, v111
    v_max_f32_dpp v108, v108, v108 row_ror:2 row_mask:0xf bank_mask:0xf
    v_add_f32 v112, v112, v113
    v_add_f32 v110, v110, v112
    v_max_f32_dpp v108, v108, v108 row_ror:1 row_mask:0xf bank_mask:0xf
    v_mov_b32 v111, v110
    v_mov_b32 v109, v108
    v_permlane32_swap_b32 v110, v111
    v_permlane32_swap_b32 v108, v109
    v_add_f32 v110, v110, v111
    v_max_f32 v108, v108, v109
    v_mov_b32 v109, v108
    v_permlane16_swap_b32 v108, v109
    v_max_f32 v108, v108, v109
    v_mul_f32 v110, v110, v108
    s_mov_b32 s72, {f32(1600.0)}
    v_cmp_nle_f32 vcc, v110, s72
    v_sqrt_f32 v110, v110
    s_mov_b32 s73, 0
    s_waitcnt vmcnt(13)
    s_barrier
    s_cbranch_vccz k2_fast""")
    a(f"""s_waitcnt vmcnt(0)
    s_barrier
    s_mov_b32 s73, 1
    v_mov_b32 v110, 0xff800000
    v_mov_b32 v107, v{vK}
    s_mov_b32 s74, 64""")
    a.label("k2_maxloop")
    a(f"""ds_read_b128 v[{KB}:{KB+3}], v107
    v_add_u32 v107, 2048, v107
    s_waitcnt lgkmcnt(0)
    v_mfma_f32_32x32x16_bf16 v[{S0}:{S0+15}], v[{KB}:{KB+3}], v[{Q}:{Q+3}], 0""")
    for i in range(8):
        a(f"v_max3_f32 v110, v110, v{S0+2*i}, v{S0+2*i+1}")
    a(f"""s_sub_u32 s74, s74, 1
    s_cmp_lg_u32 s74, 0
    s_cbranch_scc1 k2_maxloop
    v_mov_b32 v111, v110
    v_permlane32_swap_b32 v110, v111
    v_max_f32 v110, v110, v111""")
    a.label("k2_fast")
    stamp(a, 2)
    a(f"v_sub_f32 v{NM}, 0, v110")
    for i in range(1, 16): a(f"v_mov_b32 v{NM+i}, v{NM}")
    a(f"""ds_read_b128 v[{KB}:{KB+3}], v{vK}
    ds_read_b128 v[{KB+4}:{KB+7}], v{vK} offset:2048
    s_mov_b64 exec, s[70:71]
    ds_read_b128 v[{VB}:{VB+3}], v{vV}
    ds_read_b128 v[{VB+4}:{VB+7}], v{vV} offset:512
    s_mov_b64 exec, -1
    s_waitcnt lgkmcnt(3)
    v_mfma_f32_32x32x16_bf16 v[{S0}:{S0+15}], v[{KB}:{KB+3}], v[{Q}:{Q+3}], v[{NM}:{NM+15}]
    s_mov_b32 s74, 0
    s_nop 7""")
    a(".p2align 6")
    a.label("k2_loop")
    for tt in range(8):
        cur = tt & 1; nxt = cur ^ 1
        S = (S0, S1)[cur]; SN = (S0, S1)[nxt]
        Kn = KB + 4*nxt; Kc = KB + 4*cur
        Vc = VB + 8*cur; Vn = VB + 8*nxt
        ex = lambda i: a(f"v_exp_f32 v{S+i}, v{S+i}")
        cv = lambda j: a(f"v_cvt_pk_bf16_f32 v{P+j}, v{S+2*j}, v{S+2*j+1}")
        a("s_waitcnt lgkmcnt(2)")
        a(f"v_mfma_f32_32x32x16_bf16 v[{SN}:{SN+15}], v[{Kn}:{Kn+3}], v[{Q}:{Q+3}], v[{NM}:{NM+15}]")
        a(f"ds_read_b128 v[{Kc}:{Kc+3}], v{vK} offset:{(tt+2)*2048}")
        ex(0); ex(1)
        a(f"v_mfma_f32_32x32x16_bf16 v[{O}:{O+15}], v[{Vn+4}:{Vn+7}], v[{P+4}:{P+7}], v[{O}:{O+15}]")
        ex(2); ex(3); cv(0); ex(4); ex(5); cv(1); ex(6); ex(7); cv(2); ex(8); cv(3); ex(9)
        a("s_waitcnt lgkmcnt(1)")
        ex(10)
        a(f"v_mfma_f32_32x32x16_bf16 v[{O}:{O+15}], v[{Vc}:{Vc+3}], v[{P}:{P+3}], v[{O}:{O+15}]")
        a("s_mov_b64 exec, s[70:71]")
        a(f"ds_read_b128 v[{Vn}:{Vn+3}], v{vV} offset:{(tt+1)*2048}")
        a(f"ds_read_b128 v[{Vn+4}:{Vn+7}], v{vV} offset:{(tt+1)*2048+512}")
        a("s_mov_b64 exec, -1")
        ex(11); cv(4); ex(12); ex(13); cv(5); ex(14); ex(15); cv(6)
        if tt == 7:
            a(f"v_add_u32 v{vK}, 16384, v{vK}\nv_add_u32 v{vV}, 16384, v{vV}")
        else:
            a("s_nop 0")
        cv(7)
    a(f"""s_cmp_lg_u32 s73, 0
    s_cbranch_scc1 k2_nobar
    s_waitcnt vmcnt(0)
    s_barrier
    s_mov_b32 s73, 1""")
    stamp(a, 3)
    a.label("k2_nobar")
    if DIAG:
        a("s_cmp_lg_u32 s74, 1\ns_cbranch_scc1 k2_nost")
        stamp(a, 4)
        a.label("k2_nost")
    a(f"""s_add_u32 s74, s74, 1
    s_cmp_lt_u32 s74, 8
    s_cbranch_scc1 k2_loop""")
    stamp(a, 5)
    a(f"""v_mfma_f32_32x32x16_bf16 v[{O}:{O+15}], v[{VB+12}:{VB+15}], v[{P+4}:{P+7}], v[{O}:{O+15}]
    s_add_u32 s62, s62, {WS_O}
    s_nop 11
    v_rcp_f32 v110, v{O+8}""")
    for i in range(8): a(f"v_mul_f32 v{O+i}, v{O+i}, v110")
    for i in range(4): a(f"v_cvt_pk_bf16_f32 v{P+i}, v{O+2*i}, v{O+2*i+1}")
    a(f"buffer_store_dwordx4 v[{P}:{P+3}], v{vRow}, s[44:47], s62 offen")
    fin(a, 1)
    a.label("k2_conv")
    a(f"""s_setprio 3
    s_sub_u32 s66, s3, 8
    s_lshr_b32 s67, s66, 1
    s_and_b32 s68, s66, 1
    s_lshl_b32 s69, s2, 1
    s_add_u32 s69, s69, s67
    s_lshl_b32 s70, s69, 12
    s_waitcnt lgkmcnt(0)""")
    srd_off(a, 24, 4, 5, "s70", 4096)
    a(f"s_add_u32 s71, s70, {WS_XREV}")
    srd_off(a, 28, 20, 21, "s71", 4096)
    a(f"s_add_u32 s71, s70, {WS_Y}")
    srd_off(a, 32, 20, 21, "s71", 4096)
    srd(a, 36, 6, 7, 1024)
    a(f"""s_lshl_b32 s72, s68, 11
    v_lshlrev_b32 v2, 4, v1
    {"buffer_load_dword v44, v2, s[32:35], 0 offen" if TOUCH else ""}
    buffer_load_dwordx4 v[4:7], v2, s[24:27], s72 offen
    buffer_load_dwordx4 v[8:11], v2, s[24:27], s72 offen offset:1024
    buffer_load_dwordx4 v[12:15], v2, s[28:31], s72 offen
    buffer_load_dword v16, v2, s[28:31], s72 offen offset:16
    buffer_load_dwordx4 v[20:23], v2, s[28:31], s72 offen offset:1024
    buffer_load_dword v24, v2, s[28:31], s72 offen offset:1040
    s_lshl_b32 s73, s69, 1
    v_mov_b32 v3, s73
    buffer_load_ushort v25, v3, s[36:39], 0 offen""")
    stamp(a, 1)
    a(f"""s_barrier
    s_mul_i32 s74, s67, {CSZ}
    s_add_u32 s74, s74, {CONV0}
    v_lshrrev_b32 v26, 2, v1
    v_mul_u32_u24 v26, 80, v26
    v_and_b32 v27, 3, v1
    v_lshl_add_u32 v26, v27, 4, v26
    s_mul_i32 s75, s68, 2560
    s_add_u32 s75, s75, s74
    v_add_u32 v26, s75, v26
    s_add_u32 s75, s74, s72
    s_add_u32 s75, s75, {XEOFF}
    v_add_u32 v27, s75, v2
    v_mov_b32 v28, 0
    v_mov_b32 v29, 0
    v_mov_b32 v30, 0
    v_mov_b32 v31, 0
    v_lshrrev_b32 v32, 2, v1
    v_mul_u32_u24 v32, {XOOFF}, v32
    v_and_b32 v33, 3, v1
    v_lshl_add_u32 v32, v33, 4, v32
    s_add_u32 s75, s74, {XEOFF + 4096}
    v_add_u32 v32, s75, v32
    s_mov_b64 exec, 0xff
    ds_write_b128 v32, v[28:31]
    s_mov_b64 exec, -1
    s_waitcnt vmcnt(5)
    ds_write_b128 v26, v[4:7]
    ds_write_b128 v26, v[8:11] offset:1280
    s_waitcnt vmcnt(1)
    ds_write_b128 v27, v[12:15]
    ds_write_b128 v27, v[20:23] offset:1024
    v_alignbit_b32 v36, v13, v12, 16
    v_alignbit_b32 v37, v14, v13, 16
    v_alignbit_b32 v38, v15, v14, 16
    v_alignbit_b32 v39, v16, v15, 16
    v_alignbit_b32 v40, v21, v20, 16
    v_alignbit_b32 v41, v22, v21, 16
    v_alignbit_b32 v42, v23, v22, 16
    v_alignbit_b32 v43, v24, v23, 16
    ds_write_b128 v27, v[36:39] offset:{XOOFF}
    ds_write_b128 v27, v[40:43] offset:{XOOFF+1024}""")
    vA, vBa = 2, 3
    AF, BF, ACC = 48, 80, 112
    a(f"""v_and_b32 v4, 31, v1
    v_lshrrev_b32 v5, 5, v1
    v_or_b32 v6, 1, v4
    v_lshlrev_b32 v7, 3, v5
    v_sub_u32 v6, v7, v6
    s_cmp_eq_u32 s68, 0
    s_cselect_b32 s75, 1055, 31
    v_add_u32 v6, s75, v6
    v_lshlrev_b32 v6, 1, v6
    v_and_b32 v7, 1, v4
    v_xor_b32 v7, 1, v7
    v_mul_u32_u24 v7, {XOOFF}, v7
    s_add_u32 s75, s74, {XEOFF}
    v_add3_u32 v{vA}, v6, v7, s75
    v_mul_u32_u24 v6, 80, v4
    v_lshl_add_u32 v6, v5, 4, v6
    s_sub_u32 s75, s74, {80*31}
    v_add_u32 v{vBa}, s75, v6""")
    for i in range(32): a(f"v_mov_b32 v{BF+i}, 0")
    for i in range(16): a(f"v_mov_b32 v{ACC+i}, 0")
    a("s_waitcnt lgkmcnt(0)")
    stamp(a, 2)
    a("s_barrier")
    stamp(a, 3)
    NB = 4
    def creads(mu):
        b = mu % NB
        if mu % 8 == 0 and mu > 0: a(f"v_add_u32 v{vA}, 512, v{vA}")
        for u in range(2):
            o = ((2*mu + u) % 16) * 8
            r = AF + 8*b + 4*u
            a(f"ds_read2_b32 v[{r}:{r+1}], v{vA} offset0:{o} offset1:{o+1}")
            a(f"ds_read2_b32 v[{r+2}:{r+3}], v{vA} offset0:{o+2} offset1:{o+3}")
        if mu < 31:
            m = (0xffffffff << (31 - mu)) & 0xffffffff
            a(f"s_mov_b32 exec_lo, {m:#x}\ns_mov_b32 exec_hi, {m:#x}")
        for u in range(2):
            r = BF + 8*b + 4*u
            a(f"ds_read_b128 v[{r}:{r+3}], v{vBa} offset:{80*mu + 32*u}")
        if mu < 31: a("s_mov_b64 exec, -1")
    creads(0); creads(1)
    for mu in range(64):
        b = mu % NB
        last = (mu in (30, 31))
        if mu == 30:
            pass
        if mu + 2 < 64:
            a("s_waitcnt lgkmcnt(6)")
        elif mu + 1 < 64:
            a("s_waitcnt lgkmcnt(6)")
        else:
            a("s_waitcnt lgkmcnt(0)")
        for u in range(2):
            a(f"v_mfma_f32_32x32x16_bf16 v[{ACC}:{ACC+15}], v[{AF+8*b+4*u}:{AF+8*b+4*u+3}], v[{BF+8*b+4*u}:{BF+8*b+4*u+3}], v[{ACC}:{ACC+15}]")
        if mu + 2 < 64: creads(mu + 2)
        if mu == 31:
            a("s_cmp_eq_u32 s68, 0\ns_cbranch_scc1 k2_cepi")
    a.label("k2_cepi")
    stamp(a, 4)
    a(f"""s_waitcnt lgkmcnt(0)
    s_lshl_b32 s75, s68, 11
    v_lshlrev_b32 v6, 6, v4
    v_lshl_add_u32 v6, v5, 3, v6
    v_add_u32 v6, s75, v6
    s_add_u32 s75, s74, {XEOFF + 4088 - 48}
    v_sub_u32 v7, s75, v6""")
    for aa in range(4):
        a(f"ds_read_b64 v[{8+2*aa}:{9+2*aa}], v7 offset:{48 - 16*aa}")
    a("s_waitcnt vmcnt(0)\nv_lshlrev_b32 v25, 16, v25\ns_waitcnt lgkmcnt(0)")
    for aa in range(4):
        d0, d1 = 8 + 2*aa, 9 + 2*aa
        a(f"""v_and_b32 v16, 0xffff0000, v{d1}
        v_lshlrev_b32 v17, 16, v{d1}
        v_and_b32 v18, 0xffff0000, v{d0}
        v_lshlrev_b32 v19, 16, v{d0}
        v_fmac_f32 v{ACC+4*aa}, v16, v25
        v_fmac_f32 v{ACC+4*aa+1}, v17, v25
        v_fmac_f32 v{ACC+4*aa+2}, v18, v25
        v_fmac_f32 v{ACC+4*aa+3}, v19, v25
        v_cvt_pk_bf16_f32 v{32+2*aa}, v{ACC+4*aa}, v{ACC+4*aa+1}
        v_cvt_pk_bf16_f32 v{33+2*aa}, v{ACC+4*aa+2}, v{ACC+4*aa+3}
        buffer_store_dwordx2 v[{32+2*aa}:{33+2*aa}], v6, s[32:35], 0 offen offset:{16*aa}""")
    fin(a, 1)
    a.label("k2_end")
    a("s_endpgm")
    return a.finish(), 128

def k3():
    a = Asm()
    YT = 131072
    a.label("k3_kernel")
    a("""s_cmp_ge_u32 s2, 256
    s_cbranch_scc1 k3_end""")
    stamp(a, 8, True); stamp(a, 0)
    a("""s_load_dwordx2 s[4:5], s[0:1], 0
    s_load_dwordx2 s[6:7], s[0:1], 80
    s_load_dwordx2 s[8:9], s[0:1], 96
    s_load_dwordx2 s[20:21], s[0:1], 112
    v_lshrrev_b32 v2, 6, v0
    v_and_b32 v1, 63, v0
    v_readfirstlane_b32 s3, v2""")
    wg_decode(a, 56, 57)
    a("s_lshl_b32 s58, s56, 10")
    gemm_dma_addr(a, 4, 5, 6, 1, 3, 57, 8)
    a("""v_lshrrev_b32 v8, 3, v1
    v_and_b32 v7, 7, v1
    v_lshlrev_b32 v7, 4, v7
    v_lshl_add_u32 v7, v8, 12, v7
    s_waitcnt lgkmcnt(0)""")
    srd_off(a, 24, 20, 21, WS_O, 0x200000)
    srd(a, 28, 6, 7, 0x80000)
    srd(a, 32, 4, 5, 0x200000)
    srd(a, 36, 8, 9, 0x200000)
    srd(a, 44, 20, 21, WS_SIZE)
    a("s_cmp_ge_u32 s3, 4\ns_cbranch_scc1 k3_help")
    XR, GR = 112, 120
    a(f"""s_lshr_b32 s63, s3, 1
    s_lshl_b32 s63, s63, 5
    s_add_u32 s63, s63, s56
    v_and_b32 v8, 31, v1
    v_add_u32 v8, s63, v8
    v_lshlrev_b32 v9, 2, v8
    s_mov_b32 s64, {WS_G}
    buffer_load_dword v{GR}, v9, s[44:47], s64 offen
    v_lshrrev_b32 v9, 5, v1
    v_lshlrev_b32 v9, 3, v9
    v_lshl_add_u32 v12, v8, 10, v9
    s_and_b32 s64, s3, 1
    s_lshl_b32 s64, s64, 6
    s_lshl_b32 s65, s57, 1
    s_add_u32 s59, s64, s65""")
    if TOUCH: a("buffer_load_dword v13, v12, s[36:39], s59 offen")
    for aa in range(4):
        a(f"buffer_load_dwordx2 v[{XR+2*aa}:{XR+2*aa+1}], v12, s[32:35], s59 offen offset:{16*aa}")
    def ydma():
        a(f"""s_lshl_b32 s64, s3, 3
        s_add_u32 s64, s64, s57
        s_lshl_b32 s64, s64, 12
        s_lshl_b32 s65, s56, 1
        s_add_u32 s64, s64, s65
        s_add_u32 s64, s64, {WS_Y}
        s_lshl_b32 s65, s3, 10
        s_add_u32 s66, s65, {YT}""")
        dma(a, 7, 44, "s64", "s66")
    for kc in range(4): gemm_dma_chunk(a, kc, 4, 5, 6, 24, 28, 3, 58)
    ydma()
    stamp(a, 1)
    gemm_read_addr(a, 16, 24, 1, 3, 8, True)
    a(f"""v_bfe_u32 v8, v1, 2, 2
    v_lshrrev_b32 v9, 5, v1
    v_lshl_add_u32 v8, v9, 2, v8
    v_lshlrev_b32 v8, 7, v8
    v_bfe_u32 v9, v1, 4, 1
    v_lshl_add_u32 v8, v9, 5, v8
    v_and_b32 v9, 3, v1
    v_lshl_add_u32 v8, v9, 3, v8
    s_and_b32 s64, s3, 1
    s_lshl_b32 s64, s64, 12
    s_lshr_b32 s65, s3, 1
    s_lshl_b32 s65, s65, 6
    s_add_u32 s64, s64, s65
    s_add_u32 s64, s64, {YT}
    v_add_u32 v25, s64, v8""")
    ACC, FA, FB = 32, 48, 80
    for kc in range(4):
        a(f"s_waitcnt vmcnt({13 - 4*kc if kc < 3 else 0})\ns_barrier")
        stamp(a, 2 + kc)
        gemm_chunk(a, kc, 16, 24, FA, FB, ACC, True, kc == 0)
    stamp(a, 6)
    for aa in range(4):
        a(f"ds_read_b64_tr_b16 v[{FA+2*aa}:{FA+2*aa+1}], v25 offset:{1024*aa}")
    a(f"v_sub_f32 v{GR+1}, 1.0, v{GR}\ns_waitcnt lgkmcnt(0)")
    for aa in range(4):
        x0, x1, y0, y1 = XR + 2*aa, XR + 2*aa + 1, FA + 2*aa, FA + 2*aa + 1
        t = FB
        a(f"""v_lshlrev_b32 v{t}, 16, v{x0}
        v_and_b32 v{t+1}, 0xffff0000, v{x0}
        v_lshlrev_b32 v{t+2}, 16, v{x1}
        v_and_b32 v{t+3}, 0xffff0000, v{x1}
        v_lshlrev_b32 v{t+4}, 16, v{y0}
        v_and_b32 v{t+5}, 0xffff0000, v{y0}
        v_lshlrev_b32 v{t+6}, 16, v{y1}
        v_and_b32 v{t+7}, 0xffff0000, v{y1}""")
        for e in range(4):
            a(f"v_mul_f32 v{t+e}, v{t+e}, v{t+4+e}")
        for e in range(4):
            a(f"v_mul_f32 v{t+e}, v{t+e}, v{GR}")
        for e in range(4):
            a(f"v_fmac_f32 v{t+e}, v{ACC+4*aa+e}, v{GR+1}")
        a(f"""v_cvt_pk_bf16_f32 v{t+8+2*aa}, v{t}, v{t+1}
        v_cvt_pk_bf16_f32 v{t+9+2*aa}, v{t+2}, v{t+3}
        buffer_store_dwordx2 v[{t+8+2*aa}:{t+9+2*aa}], v12, s[36:39], s59 offen offset:{16*aa}""")
    fin(a, 2)
    a.label("k3_help")
    for kc in range(4): gemm_dma_chunk(a, kc, 4, 5, 6, 24, 28, 3, 58)
    ydma()
    for kc in range(4):
        a(f"s_waitcnt vmcnt({13 - 4*kc if kc < 3 else 0})\ns_barrier")
    fin(a, 2)
    a.label("k3_end")
    a("s_endpgm")
    return a.finish(), 128

def build(extra_launch=""):
    hdr = open("cdna_kernels/" + NAME + ".s.ref").read().split("; Override launch")[0]
    ks = [("k1_kernel", k1(), 512, 163840), ("k2_kernel", k2(), 768, 157952), ("k3_kernel", k3(), 512, 139264)]
    out = hdr
    for n, _, blk, lds in ks:
        out += f"; @launch kernel={n} grid=(256,1,1) block=({blk},1,1) lds={lds}\n"
    out += extra_launch
    out += '.amdgcn_target "amdgcn-amd-amdhsa--gfx950"\n.text\n'
    for n, (body, nv), _, _ in ks:
        out += f".globl {n}\n.p2align 8\n.type {n},@function\n" + body
    out += '.section .rodata,"a"\n'
    for n, (body, nv), _, _ in ks:
        out += f""".p2align 6
.amdhsa_kernel {n}
  .amdhsa_next_free_vgpr {nv}
  .amdhsa_next_free_sgpr {100 if (DIAG or DBG) else 80}
  .amdhsa_accum_offset {nv}
  .amdhsa_group_segment_fixed_size 0
  .amdhsa_kernarg_size 120
  .amdhsa_user_sgpr_count 2
  .amdhsa_user_sgpr_kernarg_segment_ptr 1
  .amdhsa_system_sgpr_workgroup_id_x 1
.end_amdhsa_kernel
"""
    return out

if __name__ == "__main__":
    if "-g" in sys.argv:
        i = sys.argv.index("-g"); DBG = True; DBGK = int(sys.argv[i+1]); DBGW = int(sys.argv[i+2]); del sys.argv[i:i+3]
    if "-d" in sys.argv:
        DIAG = True; sys.argv.remove("-d")
    dst = sys.argv[1] if len(sys.argv) > 1 else "cdna_kernels/" + NAME + ".s"
    open(dst, "w").write(build())
    print("wrote", dst)
```

```python
import sys, math, struct
from asmlib import Asm

NAME = "gated_mix__ssm_conv_h3__grouped_kv_mqa__prompt"
WS_Q, WS_KV, WS_KMAX, WS_G, WS_FLAG, WS_XREV, WS_O, WS_Y = 0x000000, 0x200000, 0x224000, 0x225000, 0x228000, 0x300000, 0x500000, 0x700000
WS_SIZE = 0x900000
ST = 2080
KVBYTES = 64 * ST
CSCALE = 0.25 * math.log2(math.e)
def f32(x): return "0x%08x" % struct.unpack("<I", struct.pack("<f", x))[0]

DIAG = False
USE_INV = True
WS_DIAG = 0x1000000
def stamp(a, idx, real=False):
    if not DIAG: return
    a(f"{'s_memrealtime' if real else 's_memtime'} s[{80+2*idx}:{81+2*idx}]\ns_waitcnt lgkmcnt(0)")
def fin(a, kid):
    if DIAG:
        a("s_waitcnt vmcnt(0)")
        stamp(a, 7); stamp(a, 9, True)
        a(f"""s_add_u32 s76, s20, {WS_DIAG + kid*256*16*64}
        s_addc_u32 s77, s21, 0
        s_mov_b32 s78, 0x40000
        s_mov_b32 s79, 0x20000
        s_lshl_b32 s75, s2, 4
        s_add_u32 s75, s75, s3
        s_lshl_b32 s75, s75, 6
        s_mov_b64 exec, 1
        v_mov_b32 v0, 0""")
        for i in range(10):
            a(f"v_mov_b32 v1, s{80+2*i}\nbuffer_store_dword v1, v0, s[76:79], s75 offen offset:{4*i}")
    a("s_endpgm")

def srd(a, d, lo, hi, size):
    a(f"s_mov_b32 s{d}, s{lo}\ns_mov_b32 s{d+1}, s{hi}\ns_mov_b32 s{d+2}, {size}\ns_mov_b32 s{d+3}, 0x20000")
def srd_off(a, d, lo, hi, off, size):
    a(f"s_add_u32 s{d}, s{lo}, {off}\ns_addc_u32 s{d+1}, s{hi}, 0\ns_mov_b32 s{d+2}, {size}\ns_mov_b32 s{d+3}, 0x20000")
def dma(a, voff, srdn, soff, m0):
    a(f"s_mov_b32 m0, {m0}")
    a(f"buffer_load_dwordx4 v{voff}, s[{srdn}:{srdn+3}], {soff} offen lds")

def wg_decode(a):
    a("""s_and_b32 s60, s2, 7
    s_lshl_b32 s60, s60, 2
    s_lshr_b32 s61, s2, 3
    s_and_b32 s62, s61, 3
    s_add_u32 s60, s60, s62
    s_lshr_b32 s61, s61, 2
    s_lshl_b32 s56, s60, 6
    s_lshl_b32 s57, s61, 6""")

XT, WT = 0, 65536

def loader_addr(a):
    a("v_lshrrev_b32 v9, 4, v1\nv_and_b32 v10, 15, v1")
    for q in range(4):
        a(f"""v_add_u32 v11, {4*q}, v9
        v_xor_b32 v12, v11, v10
        v_lshlrev_b32 v12, 4, v12
        v_lshl_add_u32 v{4+q}, v11, 10, v12""")
    a("""v_lshrrev_b32 v9, 3, v1
    v_lshlrev_b32 v10, 1, v9
    v_and_b32 v10, 4, v10
    v_and_b32 v8, 7, v1
    v_xor_b32 v8, v8, v10
    v_lshlrev_b32 v8, 4, v8
    v_lshl_add_u32 v8, v9, 10, v8
    s_lshl_b32 s63, s57, 1
    v_add_u32 v8, s63, v8""")

def loader_issue(a, slot, srdX, srdW, wkv=None):
    a(f"""s_add_u32 s63, s59, {slot}
    s_and_b32 s63, s63, 3
    s_lshl_b32 s64, s63, 8
    s_add_u32 s64, s64, s58
    s_lshl_b32 s65, s69, 12
    s_lshl_b32 s67, s63, 17
    s_lshl_b32 s66, s69, 15
    s_add_u32 s67, s67, s66""")
    for q in range(4):
        a(f"s_add_u32 s66, s65, {XT + slot*16384 + q*1024}")
        dma(a, 4 + q, srdX, "s64", "s66")
        a(f"s_add_u32 s66, s65, {WT + slot*16384 + q*1024}")
        dma(a, 8, srdW, "s67", "s66")
        if q < 3: a("s_add_u32 s67, s67, 8192")
    if wkv is not None:
        srdn, base, voff = wkv
        a(f"""s_lshl_b32 s64, s63, 12
        s_lshl_b32 s66, s69, 10
        s_add_u32 s64, s64, s66
        s_add_u32 s66, s66, {base + slot*4096}""")
        dma(a, voff, srdn, "s64", "s66")

def loader_body(a, srdX, srdW, wkv=None):
    n = 9 if wkv else 8
    loader_issue(a, 0, srdX, srdW, wkv)
    loader_issue(a, 1, srdX, srdW, wkv)
    stamp(a, 1)
    a(f"s_waitcnt vmcnt({n})\ns_barrier")
    stamp(a, 2)
    loader_issue(a, 2, srdX, srdW, wkv)
    a(f"s_waitcnt vmcnt({n})\ns_barrier")
    stamp(a, 3)
    loader_issue(a, 3, srdX, srdW, wkv)
    a(f"s_waitcnt vmcnt({n})\ns_barrier")
    stamp(a, 4)
    a("s_waitcnt vmcnt(0)\ns_barrier")
    stamp(a, 5)

def gemm_read_addr(a, vB, vA, tmp, phi):
    t0, t1, t2 = tmp, tmp + 1, tmp + 2
    a(f"""s_lshr_b32 s63, s3, 1
    s_lshl_b32 s63, s63, 13
    v_and_b32 v{t0}, 31, v1
    v_lshrrev_b32 v{t1}, 5, v1
    v_and_b32 v{t2}, 15, v1
    v_xor_b32 v{t2}, v{t2}, v{t1}
    v_lshlrev_b32 v{t2}, 4, v{t2}
    v_lshl_add_u32 v{t2}, v{t0}, 8, v{t2}
    v_add_u32 v{vB}, s63, v{t2}""")
    for e in range(1, 8):
        a(f"v_xor_b32 v{vB+e}, {e*32}, v{vB}")
    a(f"""s_and_b32 s63, s3, 1
    v_bfe_u32 v{t0}, v1, 2, 2
    v_lshrrev_b32 v{t2}, 1, v{t0}
    v_xor_b32 v{t2}, s63, v{t2}
    v_lshlrev_b32 v{t2}, 6, v{t2}
    v_lshl_add_u32 v{t0}, v{t1}, {2 if phi else 3}, v{t0}
    v_lshl_add_u32 v{t2}, v{t0}, 7, v{t2}
    v_bfe_u32 v{t0}, v1, 4, 1
    v_lshl_add_u32 v{t2}, v{t0}, 5, v{t2}
    v_and_b32 v{t0}, 3, v1
    v_lshl_add_u32 v{t2}, v{t0}, 3, v{t2}
    v_add_u32 v{vA}, {WT}, v{t2}""")

def gemm_chunk(a, kc, vB, vA, FA, FB, ACC, phi, first):
    tstep = 1024 if phi else 512
    def reads(e):
        a(f"ds_read_b128 v[{FB+4*e}:{FB+4*e+3}], v{vB+e} offset:{kc*16384}")
        a(f"ds_read_b64_tr_b16 v[{FA+4*e}:{FA+4*e+1}], v{vA} offset:{kc*16384 + e*2048}")
        a(f"ds_read_b64_tr_b16 v[{FA+4*e+2}:{FA+4*e+3}], v{vA} offset:{kc*16384 + e*2048 + tstep}")
    for e in range(5): reads(e)
    for e in range(8):
        left = min(7, e + 4) - e
        a(f"s_waitcnt lgkmcnt({3*left})")
        c = "0" if (first and e == 0) else f"v[{ACC}:{ACC+15}]"
        a(f"v_mfma_f32_32x32x16_bf16 v[{ACC}:{ACC+15}], v[{FA+4*e}:{FA+4*e+3}], v[{FB+4*e}:{FB+4*e+3}], {c}")
        if e + 5 < 8: reads(e + 5)

def head(a, k, loads):
    a.label(f"k{k}_kernel")
    a(f"s_cmp_ge_u32 s2, 256\ns_cbranch_scc1 k{k}_end")
    stamp(a, 8, True); stamp(a, 0)
    a(loads)
    a("v_lshrrev_b32 v2, 6, v0\nv_and_b32 v1, 63, v0\nv_readfirstlane_b32 s3, v2")
    wg_decode(a)

def k1():
    a = Asm()
    WKV = 131072
    head(a, 1, """s_load_dwordx2 s[4:5], s[0:1], 0
    s_load_dwordx4 s[12:15], s[0:1], 56
    s_load_dwordx2 s[16:17], s[0:1], 72
    s_load_dwordx2 s[18:19], s[0:1], 88
    s_load_dwordx2 s[20:21], s[0:1], 112""")
    a("""s_add_u32 s59, s61, s62
    s_add_u32 s59, s59, s2
    s_and_b32 s59, s59, 3
    s_cmp_lt_u32 s3, 4
    s_cbranch_scc1 k1_gemm
    s_cmp_eq_u32 s3, 8
    s_cbranch_scc1 k1_job""")
    a("""s_sub_u32 s69, s3, 4
    s_lshl_b32 s58, s56, 10
    s_lshl_b32 s63, s69, 14
    s_add_u32 s58, s58, s63""")
    loader_addr(a)
    a("""v_lshlrev_b32 v13, 4, v1
    s_and_b32 s68, s61, 1
    s_waitcnt lgkmcnt(0)""")
    srd(a, 24, 4, 5, 0x200000)
    srd(a, 28, 12, 13, 0x80000)
    a("""s_cmp_eq_u32 s68, 0
    s_cselect_b32 s40, s14, s16
    s_cselect_b32 s41, s15, s17
    s_mov_b32 s42, 0x4000
    s_mov_b32 s43, 0x20000""")
    loader_body(a, 24, 28, (40, WKV, 13))
    fin(a, 0)
    a.label("k1_gemm")
    gemm_read_addr(a, 16, 24, 8, False)
    a("""s_lshr_b32 s70, s3, 1
    s_lshl_b32 s70, s70, 5
    s_add_u32 s70, s70, s56
    s_lshl_b32 s70, s70, 10
    s_and_b32 s71, s3, 1
    s_lshl_b32 s71, s71, 6
    s_add_u32 s70, s70, s71
    s_lshl_b32 s71, s57, 1
    s_add_u32 s70, s70, s71
    v_and_b32 v12, 31, v1
    v_lshrrev_b32 v13, 5, v1
    v_lshlrev_b32 v13, 4, v13
    v_lshl_add_u32 v12, v12, 10, v13
    s_waitcnt lgkmcnt(0)""")
    srd(a, 44, 20, 21, WS_SIZE)
    ACC, FA, FB = 32, 48, 80
    for kc in range(4):
        a("s_barrier")
        stamp(a, 2 + kc)
        gemm_chunk(a, kc, 16, 24, FA, FB, ACC, False, kc == 0)
    stamp(a, 6)
    for i in range(8):
        a(f"v_cvt_pk_bf16_f32 v{FA+i}, v{ACC+2*i}, v{ACC+2*i+1}")
    a(f"buffer_store_dwordx4 v[{FA}:{FA+3}], v12, s[44:47], s70 offen offset:{WS_Q}")
    a(f"buffer_store_dwordx4 v[{FA+4}:{FA+7}], v12, s[44:47], s70 offen offset:{WS_Q+32}")
    fin(a, 0)
    a.label("k1_job")
    GW = 64
    a("""s_and_b32 s68, s61, 1
    s_lshr_b32 s69, s61, 1
    v_lshrrev_b32 v8, 4, v1
    v_lshlrev_b32 v8, 4, v8
    s_waitcnt lgkmcnt(0)""")
    srd(a, 44, 20, 21, WS_SIZE)
    srd(a, 52, 18, 19, 1024)
    a("s_cmp_lg_u32 s68, 0\ns_cbranch_scc1 k1_nogw")
    for p in range(4):
        a(f"s_add_u32 s63, s59, {p}\ns_and_b32 s63, s63, 3\ns_lshl_b32 s63, s63, 8")
        for e in range(4):
            r = GW + 16*p + 4*e
            a(f"buffer_load_dwordx4 v[{r}:{r+3}], v8, s[52:55], s63 offen offset:{64*e}")
    a.label("k1_nogw")
    a(f"""s_lshl_b32 s63, s61, 5
    s_add_u32 s63, s63, s60
    s_lshl_b32 s63, s63, 2
    s_add_u32 s63, s63, {WS_FLAG}
    v_mov_b32 v9, 0
    s_mov_b64 exec, 1
    buffer_store_dword v9, v9, s[44:47], s63 offen
    s_mov_b64 exec, -1
    s_getpc_b64 s[48:49]""")
    a.label("k1_pc")
    a("""s_add_u32 s48, s48, k2_kernel-k1_pc
    s_addc_u32 s49, s49, 0
    s_mov_b32 s50, code_end-k2_kernel
    s_mov_b32 s51, 0x20000
    s_lshr_b32 s63, s2, 3
    s_lshl_b32 s63, s63, 10
    v_lshlrev_b32 v10, 4, v1
    buffer_load_dwordx4 v[12:15], v10, s[48:51], s63 offen""")
    a(f"""v_and_b32 v17, 15, v1
    v_lshrrev_b32 v18, 4, v1
    v_xor_b32 v19, v17, v18
    v_lshlrev_b32 v19, 4, v19
    v_lshl_add_u32 v19, v17, 8, v19
    s_lshl_b32 s64, s69, 12
    v_add_u32 v20, s64, v19
    v_xor_b32 v21, 64, v20
    v_xor_b32 v22, 128, v20
    v_xor_b32 v23, 192, v20
    v_bfe_u32 v19, v1, 2, 2
    v_lshl_add_u32 v19, v18, 3, v19
    v_lshlrev_b32 v19, 5, v19
    v_and_b32 v24, 3, v1
    v_lshl_add_u32 v24, v24, 3, v19
    v_add_u32 v24, {WKV}, v24""")
    JD, JG, JX, JW = 28, 4, 32, 48
    def job_reads(kc):
        for e in range(4):
            a(f"ds_read_b128 v[{JX+4*e}:{JX+4*e+3}], v{20+e} offset:{kc*16384}")
            a(f"ds_read_b64_tr_b16 v[{JW+4*e}:{JW+4*e+1}], v24 offset:{kc*4096 + e*1024}")
            a(f"ds_read_b64_tr_b16 v[{JW+4*e+2}:{JW+4*e+3}], v24 offset:{kc*4096 + e*1024 + 128}")
    a(f"""s_lshr_b32 s64, s69, 1
    s_lshl_b32 s65, s60, 1
    s_add_u32 s64, s64, s65
    s_mul_i32 s64, s64, {ST}
    s_add_u32 s64, s64, {WS_KV}
    s_and_b32 s65, s69, 1
    v_and_b32 v17, 15, v1
    v_lshlrev_b32 v17, 4, v17
    v_lshrrev_b32 v18, 5, v1
    v_lshl_add_u32 v17, v18, 3, v17
    v_bfe_u32 v18, v1, 4, 1
    s_cmp_lg_u32 s68, 0
    s_cbranch_scc1 k1_vjob""")
    for kc in range(4):
        a("s_barrier")
        job_reads(kc)
        if kc == 0: a("s_waitcnt vmcnt(2)")
        for e in range(4):
            a(f"s_waitcnt lgkmcnt({9-3*e})")
            c = "0" if (kc == 0 and e == 0) else f"v[{JD}:{JD+3}]"
            a(f"v_mfma_f32_16x16x32_bf16 v[{JD}:{JD+3}], v[{JW+4*e}:{JW+4*e+3}], v[{JX+4*e}:{JX+4*e+3}], {c}")
            c = "0" if (kc == 0 and e == 0) else f"v[{JG}:{JG+3}]"
            g = GW + 16*kc + 4*e
            a(f"v_mfma_f32_16x16x32_bf16 v[{JG}:{JG+3}], v[{g}:{g+3}], v[{JX+4*e}:{JX+4*e+3}], {c}")
    stamp(a, 6)
    a(f"""s_lshl_b32 s65, s65, 8
    s_add_u32 s64, s64, s65
    v_lshl_add_u32 v17, v18, 9, v17
    s_mov_b32 s66, {f32(CSCALE)}""")
    for e in range(4): a(f"v_mul_f32 v{JD+e}, s66, v{JD+e}")
    a(f"""v_cvt_pk_bf16_f32 v36, v{JD}, v{JD+1}
    v_cvt_pk_bf16_f32 v37, v{JD+2}, v{JD+3}
    buffer_store_dwordx2 v[36:37], v17, s[44:47], s64 offen
    s_mov_b32 s66, {f32(-math.log2(math.e))}
    v_mul_f32 v40, s66, v{JG}
    v_exp_f32 v40, v40
    v_mul_f32 v38, v{JD}, v{JD}
    v_add_f32 v40, 1.0, v40
    v_rcp_f32 v40, v40
    v_fmac_f32 v38, v{JD+1}, v{JD+1}
    v_fmac_f32 v38, v{JD+2}, v{JD+2}
    v_fmac_f32 v38, v{JD+3}, v{JD+3}
    s_lshl_b32 s65, s60, 2
    s_add_u32 s65, s65, s69
    s_lshl_b32 s66, s65, 6
    s_add_u32 s66, s66, {WS_G}
    s_lshl_b32 s65, s65, 2
    s_add_u32 s65, s65, {WS_KMAX}
    v_lshlrev_b32 v41, 2, v1
    s_mov_b64 exec, 0xffff
    buffer_store_dword v40, v41, s[44:47], s66 offen
    s_mov_b64 exec, -1
    v_mov_b32 v39, v38
    v_permlane32_swap_b32 v38, v39
    v_add_f32 v38, v38, v39
    v_mov_b32 v39, v38
    v_permlane16_swap_b32 v38, v39
    v_add_f32 v38, v38, v39
    v_max_f32_dpp v38, v38, v38 row_ror:8 row_mask:0xf bank_mask:0xf
    v_max_f32_dpp v38, v38, v38 row_ror:4 row_mask:0xf bank_mask:0xf
    v_max_f32_dpp v38, v38, v38 row_ror:2 row_mask:0xf bank_mask:0xf
    v_max_f32_dpp v38, v38, v38 row_ror:1 row_mask:0xf bank_mask:0xf
    s_mov_b64 exec, 1
    buffer_store_dword v38, v41, s[44:47], s65 offen""")
    fin(a, 0)
    a.label("k1_vjob")
    a(f"""s_mul_i32 s65, s65, 528
    s_add_u32 s64, s64, s65
    v_mov_b32 v4, 0x3f803f80
    v_mov_b32 v5, 0x3f803f80
    v_mov_b32 v6, 0x3f803f80
    v_mov_b32 v7, 0x3f803f80
    s_mov_b64 exec, 1
    buffer_store_dwordx4 v[4:7], v9, s[44:47], s64 offen offset:1536
    s_mov_b64 exec, -1
    v_lshl_add_u32 v17, v18, 8, v17""")
    for kc in range(4):
        a("s_barrier")
        job_reads(kc)
        for e in range(4):
            a(f"s_waitcnt lgkmcnt({9-3*e})")
            c = "0" if (kc == 0 and e == 0) else f"v[{JD}:{JD+3}]"
            a(f"v_mfma_f32_16x16x32_bf16 v[{JD}:{JD+3}], v[{JX+4*e}:{JX+4*e+3}], v[{JW+4*e}:{JW+4*e+3}], {c}")
    stamp(a, 6)
    a(f"""v_cvt_pk_bf16_f32 v36, v{JD}, v{JD+1}
    v_cvt_pk_bf16_f32 v37, v{JD+2}, v{JD+3}
    buffer_store_dwordx2 v[36:37], v17, s[44:47], s64 offen offset:1024""")
    fin(a, 0)
    a.label("k1_end")
    a("s_endpgm")
    return a.finish(), 128

def k2():
    a = Asm()
    CONV0, CSZ, XEOFF, XOOFF = KVBYTES, 13440, 5120, 4160
    LCNT = CONV0 + 2*CSZ
    head(a, 2, """s_load_dwordx4 s[4:7], s[0:1], 8
    s_load_dwordx4 s[8:11], s[0:1], 24
    s_load_dwordx2 s[12:13], s[0:1], 40
    s_load_dwordx2 s[14:15], s[0:1], 80
    s_load_dwordx2 s[20:21], s[0:1], 112""")
    a(f"""s_lshr_b32 s58, s2, 3
    s_and_b32 s58, s58, 7
    s_mul_i32 s59, s58, 65
    s_lshr_b32 s59, s59, 2
    s_add_u32 s59, s59, s3
    v_lshlrev_b32 v2, 4, v1
    s_waitcnt lgkmcnt(0)""")
    srd_off(a, 40, 20, 21, WS_KV, KVBYTES)
    srd(a, 44, 20, 21, WS_SIZE)
    def kv_unit(step):
        a(f"""s_cmp_ge_u32 s59, 130
        s_cselect_b32 s63, 130, 0
        s_sub_u32 s59, s59, s63
        s_lshl_b32 s63, s59, 10""")
        dma(a, 2, 40, "s63", "s63")
        a(f"s_add_u32 s59, s59, {step}")
    kv_unit(8); kv_unit(8)
    a("s_cmp_ge_u32 s3, 4\ns_cbranch_scc1 k2_help")
    kv_unit(8)
    QA, QB, NMA, NMB, SA, SB, PA, PB, OA, OB, KB, VB = 4, 8, 12, 28, 44, 60, 76, 84, 92, 108, 124, 132
    vK, vV, vKn, vVn, vKl, vVl, vRow, T = 148, 149, 150, 151, 2, 153, 154, 156
    a(f"""s_lshl_b32 s62, s56, 10
    s_lshl_b32 s64, s61, 2
    s_add_u32 s63, s3, s64
    s_lshl_b32 s63, s63, 5
    s_add_u32 s62, s62, s63
    v_and_b32 v{T}, 31, v1
    v_lshrrev_b32 v3, 5, v1
    v_lshlrev_b32 v{vRow}, 4, v3
    v_lshl_add_u32 v{vRow}, v{T}, 10, v{vRow}
    v_lshlrev_b32 v{T+1}, 3, v1
    s_add_u32 s63, s62, 32768
    buffer_load_dwordx4 v[{QA}:{QA+3}], v{vRow}, s[44:47], s62 offen offset:{WS_Q}
    buffer_load_dwordx4 v[{QB}:{QB+3}], v{vRow}, s[44:47], s63 offen offset:{WS_Q}
    s_mov_b32 s63, {WS_KMAX}
    buffer_load_dwordx2 v[{T+2}:{T+3}], v{T+1}, s[44:47], s63 offen""")
    stamp(a, 1)
    a(f"""v_and_b32 v{T+4}, 15, v1
    v_lshlrev_b32 v{T+4}, 4, v{T+4}
    v_lshl_add_u32 v{T+4}, v3, 8, v{T+4}
    v_add_u32 v{T+4}, 1024, v{T+4}
    v_mov_b32 v{vVl}, 0x100000
    v_and_b32 v{T+5}, 27, v{T}
    v_cmp_eq_u32 vcc, 16, v{T+5}
    v_mov_b32 v{T+5}, 1536
    v_cndmask_b32 v{vVl}, v{vVl}, v{T+5}, vcc
    v_cmp_gt_u32 vcc, 16, v{T}
    s_mul_i32 s70, s58, {8*ST}
    v_cndmask_b32 v{vVl}, v{vVl}, v{T+4}, vcc
    v_add_u32 v{vK}, s70, v{vKl}
    v_add_u32 v{vV}, s70, v{vVl}
    s_add_u32 s71, s58, 1
    s_and_b32 s71, s71, 7
    s_mul_i32 s70, s71, {8*ST}
    v_add_u32 v{vKn}, s70, v{vKl}
    v_add_u32 v{vVn}, s70, v{vVl}""")
    for r in list(range(PB, PB + 8)) + [SB + 14, SB + 15] + list(range(OA, OA + 32)) + list(range(VB + 8, VB + 16)):
        a(f"v_mov_b32 v{r}, 0")
    K2, NA, NB_ = T + 2, T + 6, T + 10
    a("s_waitcnt vmcnt(0)")
    a(f"v_max_f32 v{K2}, v{K2}, v{K2+1}")
    for i in range(4): a(f"v_dot2_f32_bf16 v{NA+i}, v{QA+i}, v{QA+i}, 0")
    a(f"v_max_f32_dpp v{K2}, v{K2}, v{K2} row_ror:8 row_mask:0xf bank_mask:0xf")
    for i in range(4): a(f"v_dot2_f32_bf16 v{NB_+i}, v{QB+i}, v{QB+i}, 0")
    a(f"""v_max_f32_dpp v{K2}, v{K2}, v{K2} row_ror:4 row_mask:0xf bank_mask:0xf
    v_add_f32 v{NA}, v{NA}, v{NA+1}
    v_add_f32 v{NA+2}, v{NA+2}, v{NA+3}
    v_max_f32_dpp v{K2}, v{K2}, v{K2} row_ror:2 row_mask:0xf bank_mask:0xf
    v_add_f32 v{NB_}, v{NB_}, v{NB_+1}
    v_add_f32 v{NB_+2}, v{NB_+2}, v{NB_+3}
    v_max_f32_dpp v{K2}, v{K2}, v{K2} row_ror:1 row_mask:0xf bank_mask:0xf
    v_add_f32 v{NA}, v{NA}, v{NA+2}
    v_add_f32 v{NB_}, v{NB_}, v{NB_+2}
    v_mov_b32 v{K2+1}, v{K2}
    v_mov_b32 v{NA+1}, v{NA}
    v_mov_b32 v{NB_+1}, v{NB_}
    v_permlane32_swap_b32 v{K2}, v{K2+1}
    v_permlane32_swap_b32 v{NA}, v{NA+1}
    v_permlane32_swap_b32 v{NB_}, v{NB_+1}
    v_max_f32 v{K2}, v{K2}, v{K2+1}
    v_add_f32 v{NA}, v{NA}, v{NA+1}
    v_add_f32 v{NB_}, v{NB_}, v{NB_+1}
    v_mov_b32 v{K2+1}, v{K2}
    v_permlane16_swap_b32 v{K2}, v{K2+1}
    v_max_f32 v{K2}, v{K2}, v{K2+1}
    v_mul_f32 v{NA}, v{NA}, v{K2}
    v_mul_f32 v{NB_}, v{NB_}, v{K2}
    s_mov_b32 s72, {f32(1600.0)}
    v_cmp_nle_f32 vcc, v{NA}, s72
    v_cmp_nle_f32 s[74:75], v{NB_}, s72
    v_sqrt_f32 v{NA}, v{NA}
    v_sqrt_f32 v{NB_}, v{NB_}
    s_or_b64 vcc, vcc, s[74:75]
    s_mov_b32 s73, 2
    s_barrier
    s_cbranch_vccz k2_fast""")
    a(f"""s_barrier
    s_barrier
    s_mov_b32 s73, 0
    v_mov_b32 v{NA}, 0xff800000
    v_mov_b32 v{NB_}, 0xff800000
    v_mov_b32 v{T}, v{vKl}
    s_mov_b32 s74, 64""")
    a.label("k2_maxloop")
    a(f"""ds_read_b128 v[{KB}:{KB+3}], v{T}
    v_add_u32 v{T}, {ST}, v{T}
    s_waitcnt lgkmcnt(0)
    v_mfma_f32_32x32x16_bf16 v[{SA}:{SA+15}], v[{KB}:{KB+3}], v[{QA}:{QA+3}], 0
    v_mfma_f32_32x32x16_bf16 v[{NMA}:{NMA+15}], v[{KB}:{KB+3}], v[{QB}:{QB+3}], 0""")
    for i in range(8): a(f"v_max3_f32 v{NA}, v{NA}, v{SA+2*i}, v{SA+2*i+1}")
    for i in range(8): a(f"v_max3_f32 v{NB_}, v{NB_}, v{NMA+2*i}, v{NMA+2*i+1}")
    a(f"""s_sub_u32 s74, s74, 1
    s_cmp_lg_u32 s74, 0
    s_cbranch_scc1 k2_maxloop
    v_mov_b32 v{NA+1}, v{NA}
    v_mov_b32 v{NB_+1}, v{NB_}
    v_permlane32_swap_b32 v{NA}, v{NA+1}
    v_permlane32_swap_b32 v{NB_}, v{NB_+1}
    v_max_f32 v{NA}, v{NA}, v{NA+1}
    v_max_f32 v{NB_}, v{NB_}, v{NB_+1}""")
    a.label("k2_fast")
    stamp(a, 2)
    a(f"""ds_read_b128 v[{KB}:{KB+3}], v{vK}
    ds_read_b128 v[{KB+4}:{KB+7}], v{vK} offset:{ST}
    ds_read_b128 v[{VB}:{VB+3}], v{vV}
    ds_read_b128 v[{VB+4}:{VB+7}], v{vV} offset:528""")
    for i in range(16): a(f"v_sub_f32 v{NMA+i}, 0, v{NA}")
    for i in range(16): a(f"v_sub_f32 v{NMB+i}, 0, v{NB_}")
    M = lambda d, A, B, C: a(f"v_mfma_f32_32x32x16_bf16 v[{d}:{d+15}], v[{A}:{A+3}], v[{B}:{B+3}], v[{C}:{C+15}]")
    a("s_waitcnt lgkmcnt(0)")
    M(SA, KB, QA, NMA)
    a("s_mov_b32 s74, 8\ns_nop 10")
    a(".p2align 6")
    a.label("k2_loop")
    for tt in range(8):
        cur = tt & 1; nxt = cur ^ 1
        Kc, Kn = KB + 4*cur, KB + 4*nxt
        Vc, Vn = VB + 8*cur, VB + 8*nxt
        kreg, koff = (vK, (tt + 2) * ST) if tt < 6 else (vKn, (tt - 6) * ST)
        vreg, voff = (vV, (tt + 1) * ST) if tt < 7 else (vVn, 0)
        for ph in range(2):
            S, P, Po, So, O = (SA, PA, PB, SB, OA) if ph == 0 else (SB, PB, PA, SA, OB)
            ex = lambda i: a(f"v_exp_f32 v{S+i}, v{S+i}")
            cv = lambda j: a(f"v_cvt_pk_bf16_f32 v{P+j}, v{S+2*j}, v{S+2*j+1}")
            ex(0)
            a(f"v_cvt_pk_bf16_f32 v{Po+7}, v{So+14}, v{So+15}")
            ex(1)
            if ph == 0:
                M(SB, Kc, QB, NMB)
                a(f"ds_read_b128 v[{Kc}:{Kc+3}], v{kreg} offset:{koff}")
            else:
                M(SA, Kn, QA, NMA)
                if tt == 7: a("s_add_u32 s71, s71, 1")
                if tt == 6: a("s_sub_u32 s74, s74, 1")
            ex(2); ex(3); cv(0); ex(4); ex(5); cv(1)
            if ph == 0:
                M(OB, Vn + 4, PB + 4, OB)
                a(f"ds_read_b128 v[{Vn}:{Vn+3}], v{vreg} offset:{voff}")
            else:
                M(OA, Vc + 4, PA + 4, OA)
                a("s_waitcnt lgkmcnt(0)")
            ex(6); ex(7); cv(2); ex(8); ex(9); cv(3); ex(10); ex(11)
            M(O, Vc, P, O)
            if ph == 0:
                a(f"ds_read_b128 v[{Vn+4}:{Vn+7}], v{vreg} offset:{voff+528}")
            elif tt == 7:
                a("s_and_b32 s71, s71, 7")
            cv(4); ex(12); ex(13); cv(5); ex(14); ex(15)
            if ph == 1 and tt == 7:
                a(f"""s_mul_i32 s70, s71, {8*ST}
                v_mov_b32 v{vK}, v{vKn}
                v_mov_b32 v{vV}, v{vVn}
                v_add_u32 v{vKn}, s70, v{vKl}
                v_add_u32 v{vVn}, s70, v{vVl}""")
            cv(6)
    a("""s_cmp_eq_u32 s73, 0
    s_cbranch_scc1 k2_nobar
    s_sub_u32 s73, s73, 1
    s_barrier""")
    if DIAG:
        a("s_cmp_eq_u32 s73, 0\ns_cbranch_scc1 k2_st4")
        stamp(a, 3)
        a("s_branch k2_nobar")
        a.label("k2_st4")
        stamp(a, 4)
    a.label("k2_nobar")
    a("s_cmp_lg_u32 s74, 0\ns_cbranch_scc1 k2_loop")
    stamp(a, 5)
    a(f"v_cvt_pk_bf16_f32 v{PB+7}, v{SB+14}, v{SB+15}")
    a(f"v_rcp_f32 v{T}, v{OA+8}")
    M(OB, VB + 12, PB + 4, OB)
    a(f"s_add_u32 s62, s62, {WS_O}\ns_add_u32 s63, s62, 32768")
    for i in range(8): a(f"v_mul_f32 v{OA+i}, v{OA+i}, v{T}")
    for i in range(4): a(f"v_cvt_pk_bf16_f32 v{PA+i}, v{OA+2*i}, v{OA+2*i+1}")
    a(f"buffer_store_dwordx4 v[{PA}:{PA+3}], v{vRow}, s[44:47], s62 offen")
    a(f"v_rcp_f32 v{T}, v{OB+8}")
    for i in range(8): a(f"v_mul_f32 v{OB+i}, v{OB+i}, v{T}")
    for i in range(4): a(f"v_cvt_pk_bf16_f32 v{PB+i}, v{OB+2*i}, v{OB+2*i+1}")
    a(f"buffer_store_dwordx4 v[{PB}:{PB+3}], v{vRow}, s[44:47], s63 offen")
    fin(a, 1)

    a.label("k2_help")
    kv_unit(4)
    a(f"""s_setprio 3
    s_sub_u32 s66, s3, 4
    s_lshr_b32 s67, s66, 1
    s_and_b32 s68, s66, 1
    s_lshl_b32 s69, s60, 1
    s_add_u32 s69, s69, s57
    s_add_u32 s69, s69, s67
    s_lshl_b32 s70, s69, 12
    v_mov_b32 v3, {LCNT}
    v_mov_b32 v4, 0
    ds_write_b32 v3, v4""")
    srd(a, 24, 4, 5, 0x200000)
    srd(a, 28, 6, 7, 0x200000)
    srd(a, 32, 8, 9, 4096)
    srd_off(a, 36, 10, 11, "s70", 4096)
    srd(a, 48, 12, 13, 1024)
    a("s_waitcnt vmcnt(0) lgkmcnt(0)\ns_barrier")
    a("s_mov_b32 s72, 9")
    a.label("k2_ld1")
    kv_unit(4)
    a("s_sub_u32 s72, s72, 1\ns_cmp_lg_u32 s72, 0\ns_cbranch_scc1 k2_ld1")
    H = 128
    a(f"""v_lshrrev_b32 v5, 3, v1
    v_and_b32 v6, 7, v1
    v_lshlrev_b32 v6, 4, v6
    v_lshl_add_u32 v6, v5, 10, v6
    s_lshl_b32 s63, s57, 1
    v_add_u32 v6, s63, v6
    s_lshl_b32 s71, s66, 4
    s_add_u32 s71, s71, s56
    s_lshl_b32 s64, s71, 10
    s_add_u32 s65, s64, 8192
    s_lshl_b32 s73, s66, 12
    s_add_u32 s73, s73, {CONV0}""")
    dma(a, 6, 24, "s64", "s73")
    a("s_add_u32 s63, s73, 1024"); dma(a, 6, 24, "s65", "s63")
    a("s_add_u32 s63, s73, 2048"); dma(a, 6, 28, "s64", "s63")
    a("s_add_u32 s63, s73, 3072"); dma(a, 6, 28, "s65", "s63")
    a(f"""v_add_u32 v8, s57, v1
    v_lshlrev_b32 v9, 3, v8
    buffer_load_dwordx2 v[10:11], v9, s[32:35], 0 offen
    s_sub_u32 s64, s64, 3072
    v_lshlrev_b32 v9, 1, v8
    v_add_u32 v9, s64, v9
    buffer_load_ushort v12, v9, s[24:27], 0 offen
    buffer_load_ushort v13, v9, s[24:27], 0 offen offset:1024
    buffer_load_ushort v14, v9, s[24:27], 0 offen offset:2048""")
    for i in range(4):
        a(f"buffer_load_dwordx4 v[{H+4*i}:{H+4*i+3}], v2, s[36:39], 0 offen offset:{1024*i}")
    a(f"""s_lshl_b32 s63, s69, 1
    v_mov_b32 v15, s63
    buffer_load_ushort v25, v15, s[48:51], 0 offen
    s_waitcnt vmcnt(13)
    s_barrier""")
    stamp(a, 1)
    a("s_mov_b32 s72, 18")
    a.label("k2_ld2")
    kv_unit(4)
    a("s_sub_u32 s72, s72, 1\ns_cmp_lg_u32 s72, 0\ns_cbranch_scc1 k2_ld2")
    a(f"""v_bfe_u32 v16, v1, 2, 2
    v_lshlrev_b32 v16, 7, v16
    v_lshrrev_b32 v17, 4, v1
    v_lshl_add_u32 v16, v17, 5, v16
    v_and_b32 v17, 3, v1
    v_lshl_add_u32 v16, v17, 3, v16
    v_add_u32 v16, s73, v16
    s_waitcnt vmcnt(0)
    s_barrier""")
    stamp(a, 2)
    KR, VR, KF, VF = 36, 44, 52, 72
    for i in range(4): a(f"ds_read_b64_tr_b16 v[{KR+2*i}:{KR+2*i+1}], v16 offset:{i*512}")
    for i in range(4): a(f"ds_read_b64_tr_b16 v[{VR+2*i}:{VR+2*i+1}], v16 offset:{2048 + i*512}")
    a("""v_lshlrev_b32 v88, 16, v10
    v_and_b32 v89, 0xffff0000, v10
    v_lshlrev_b32 v90, 16, v11
    v_and_b32 v91, 0xffff0000, v11""")
    for i in range(3): a(f"v_lshlrev_b32 v{KF+i}, 16, v{12+i}")
    a("s_waitcnt lgkmcnt(4)")
    for i in range(8):
        a(f"v_lshlrev_b32 v{KF+3+2*i}, 16, v{KR+i}\nv_and_b32 v{KF+4+2*i}, 0xffff0000, v{KR+i}")
    a("s_waitcnt lgkmcnt(0)")
    for i in range(8):
        a(f"v_lshlrev_b32 v{VF+2*i}, 16, v{VR+i}\nv_and_b32 v{VF+1+2*i}, 0xffff0000, v{VR+i}")
    for s in range(16):
        t = 36 + (s % 8)
        a(f"""v_mul_f32 v{t}, v{KF+s}, v91
        v_fmac_f32 v{t}, v{KF+s+1}, v90
        v_fmac_f32 v{t}, v{KF+s+2}, v89
        v_fmac_f32 v{t}, v{KF+s+3}, v88
        v_mul_f32 v{VF+s}, v{t}, v{VF+s}""")
    for q in range(8):
        a(f"v_cvt_pk_bf16_f32 v{44+q}, v{VF+15-2*q}, v{VF+14-2*q}")
    a(f"""s_lshl_b32 s64, s71, 1
    s_sub_u32 s64, {WS_XREV + 4064}, s64
    v_lshlrev_b32 v9, 12, v8
    buffer_store_dwordx4 v[44:47], v9, s[44:47], s64 offen sc1
    buffer_store_dwordx4 v[48:51], v9, s[44:47], s64 offen offset:16 sc1
    v_mov_b32 v4, 1
    s_lshl_b32 s64, s61, 7
    s_add_u32 s64, s64, {WS_FLAG}
    s_lshl_b32 s65, s60, 2
    s_add_u32 s65, s65, s64
    s_waitcnt vmcnt(0)
    s_mov_b64 exec, 1
    ds_add_rtn_u32 v5, v3, v4
    v_mov_b32 v7, 0
    s_waitcnt lgkmcnt(0)
    v_readfirstlane_b32 s63, v5
    s_cmp_lg_u32 s63, 3
    s_cbranch_scc1 k2_nosig
    buffer_store_dword v4, v7, s[44:47], s65 offen sc1""")
    a.label("k2_nosig")
    stamp(a, 3)
    a(f"""s_mov_b32 exec_lo, -1
    s_mov_b32 exec_hi, 0
    v_lshlrev_b32 v7, 2, v1
    s_mov_b32 s72, 0x40000""")
    a.label("k2_poll")
    a(f"""buffer_load_dword v5, v7, s[44:47], s64 offen sc1
    s_sub_u32 s72, s72, 1
    s_waitcnt vmcnt(0)
    v_cmp_ne_u32 vcc, 1, v5
    s_cbranch_vccz k2_ready
    s_sleep 4
    s_cmp_lg_u32 s72, 0
    s_cbranch_scc1 k2_poll""")
    a.label("k2_ready")
    stamp(a, 4)
    a(f"""s_mov_b64 exec, -1
    {"buffer_inv sc1" if USE_INV else ""}
    s_add_u32 s71, s70, {WS_XREV}""")
    srd_off(a, 28, 20, 21, "s71", 4096)
    a(f"s_add_u32 s71, s70, {WS_Y}")
    srd_off(a, 32, 20, 21, "s71", 4096)
    X = 144
    for i in range(4):
        a(f"buffer_load_dwordx4 v[{X+8*i}:{X+8*i+3}], v2, s[28:31], 0 offen offset:{1024*i} sc1")
        a(f"buffer_load_dword v{X+8*i+4}, v2, s[28:31], 0 offen offset:{1024*i+16} sc1")
    a(f"""s_mul_i32 s74, s67, {CSZ}
    s_add_u32 s74, s74, {CONV0}
    v_lshrrev_b32 v26, 2, v1
    v_mul_u32_u24 v26, 80, v26
    v_and_b32 v27, 3, v1
    v_lshl_add_u32 v26, v27, 4, v26
    v_add_u32 v26, s74, v26""")
    for i in range(4):
        a(f"ds_write_b128 v26, v[{H+4*i}:{H+4*i+3}] offset:{1280*i}")
    a(f"""s_add_u32 s75, s74, {XEOFF}
    v_add_u32 v27, s75, v2
    v_mov_b32 v28, 0
    v_mov_b32 v29, 0
    v_mov_b32 v30, 0
    v_mov_b32 v31, 0
    v_lshrrev_b32 v32, 2, v1
    v_mul_u32_u24 v32, {XOOFF}, v32
    v_and_b32 v33, 3, v1
    v_lshl_add_u32 v32, v33, 4, v32
    s_add_u32 s75, s74, {XEOFF + 4096}
    v_add_u32 v32, s75, v32
    s_mov_b64 exec, 0xff
    ds_write_b128 v32, v[28:31]
    s_mov_b64 exec, -1""")
    vA, vBa = 34, 35
    AF, BF, ACC = 48, 80, 112
    a(f"""v_and_b32 v4, 31, v1
    v_lshrrev_b32 v5, 5, v1
    v_or_b32 v6, 1, v4
    v_lshlrev_b32 v7, 3, v5
    v_sub_u32 v6, v7, v6
    s_cmp_eq_u32 s68, 0
    s_cselect_b32 s75, 1055, 31
    v_add_u32 v6, s75, v6
    v_lshlrev_b32 v6, 1, v6
    v_and_b32 v7, 1, v4
    v_xor_b32 v7, 1, v7
    v_mul_u32_u24 v7, {XOOFF}, v7
    s_add_u32 s75, s74, {XEOFF}
    v_add3_u32 v{vA}, v6, v7, s75
    v_mul_u32_u24 v6, 80, v4
    v_lshl_add_u32 v6, v5, 4, v6
    s_sub_u32 s75, s74, {80*31}
    v_add_u32 v{vBa}, s75, v6""")
    for i in range(32): a(f"v_mov_b32 v{BF+i}, 0")
    for i in range(16): a(f"v_mov_b32 v{ACC+i}, 0")
    for i in range(4):
        x = X + 8*i
        a(f"s_waitcnt vmcnt({6-2*i})")
        a(f"ds_write_b128 v27, v[{x}:{x+3}] offset:{1024*i}")
        for j in range(4): a(f"v_alignbit_b32 v{36+j}, v{x+j+1}, v{x+j}, 16")
        a(f"ds_write_b128 v27, v[36:39] offset:{XOOFF+1024*i}")
    a("s_waitcnt lgkmcnt(0)")
    stamp(a, 5)
    NB = 4
    def creads(mu):
        b = mu % NB
        if mu % 8 == 0 and mu > 0: a(f"v_add_u32 v{vA}, 512, v{vA}")
        for u in range(2):
            o = ((2*mu + u) % 16) * 8
            r = AF + 8*b + 4*u
            a(f"ds_read2_b32 v[{r}:{r+1}], v{vA} offset0:{o} offset1:{o+1}")
            a(f"ds_read2_b32 v[{r+2}:{r+3}], v{vA} offset0:{o+2} offset1:{o+3}")
        if mu < 31:
            m = (0xffffffff << (31 - mu)) & 0xffffffff
            a(f"s_mov_b32 exec_lo, {m:#x}\ns_mov_b32 exec_hi, {m:#x}")
        for u in range(2):
            r = BF + 8*b + 4*u
            a(f"ds_read_b128 v[{r}:{r+3}], v{vBa} offset:{80*mu + 32*u}")
        if mu < 31: a("s_mov_b64 exec, -1")
    creads(0); creads(1)
    for mu in range(64):
        b = mu % NB
        a(f"s_waitcnt lgkmcnt({6 if mu < 63 else 0})")
        for u in range(2):
            a(f"v_mfma_f32_32x32x16_bf16 v[{ACC}:{ACC+15}], v[{AF+8*b+4*u}:{AF+8*b+4*u+3}], v[{BF+8*b+4*u}:{BF+8*b+4*u+3}], v[{ACC}:{ACC+15}]")
        if mu + 2 < 64: creads(mu + 2)
        if mu == 31: a("s_cmp_eq_u32 s68, 0\ns_cbranch_scc1 k2_cepi")
    a.label("k2_cepi")
    stamp(a, 6)
    a(f"""s_waitcnt lgkmcnt(0)
    s_lshl_b32 s75, s68, 11
    v_lshlrev_b32 v6, 6, v4
    v_lshl_add_u32 v6, v5, 3, v6
    v_add_u32 v6, s75, v6
    s_add_u32 s75, s74, {XEOFF + 4088 - 48}
    v_sub_u32 v7, s75, v6""")
    for aa in range(4):
        a(f"ds_read_b64 v[{8+2*aa}:{9+2*aa}], v7 offset:{48 - 16*aa}")
    a("v_lshlrev_b32 v25, 16, v25\ns_waitcnt lgkmcnt(0)")
    for aa in range(4):
        d0, d1 = 8 + 2*aa, 9 + 2*aa
        a(f"""v_and_b32 v16, 0xffff0000, v{d1}
        v_lshlrev_b32 v17, 16, v{d1}
        v_and_b32 v18, 0xffff0000, v{d0}
        v_lshlrev_b32 v19, 16, v{d0}
        v_fmac_f32 v{ACC+4*aa}, v16, v25
        v_fmac_f32 v{ACC+4*aa+1}, v17, v25
        v_fmac_f32 v{ACC+4*aa+2}, v18, v25
        v_fmac_f32 v{ACC+4*aa+3}, v19, v25
        v_cvt_pk_bf16_f32 v{36+2*aa}, v{ACC+4*aa}, v{ACC+4*aa+1}
        v_cvt_pk_bf16_f32 v{37+2*aa}, v{ACC+4*aa+2}, v{ACC+4*aa+3}
        buffer_store_dwordx2 v[{36+2*aa}:{37+2*aa}], v6, s[32:35], 0 offen offset:{16*aa}""")
    srd(a, 24, 14, 15, 0x80000)
    a("""s_lshr_b32 s63, s2, 3
    s_lshl_b32 s63, s63, 14
    s_lshl_b32 s64, s66, 12
    s_add_u32 s63, s63, s64""")
    for i in range(4):
        a(f"buffer_load_dwordx4 v[{H+4*i}:{H+4*i+3}], v2, s[24:27], s63 offen offset:{1024*i}")
    fin(a, 1)
    a.label("k2_end")
    a("s_endpgm")
    return a.finish(), 176

def k3():
    a = Asm()
    YT = 131072
    head(a, 3, """s_load_dwordx2 s[4:5], s[0:1], 0
    s_load_dwordx2 s[6:7], s[0:1], 80
    s_load_dwordx2 s[8:9], s[0:1], 96
    s_load_dwordx2 s[20:21], s[0:1], 112""")
    a("""s_add_u32 s59, s61, s62
    s_and_b32 s59, s59, 3
    s_cmp_lt_u32 s3, 4
    s_cbranch_scc1 k3_gemm
    s_sub_u32 s69, s3, 4
    s_lshl_b32 s58, s56, 10
    s_lshl_b32 s63, s69, 14
    s_add_u32 s58, s58, s63""")
    loader_addr(a)
    a(f"""v_lshrrev_b32 v9, 3, v1
    v_and_b32 v13, 7, v1
    v_lshlrev_b32 v13, 4, v13
    v_lshl_add_u32 v13, v9, 12, v13
    s_lshl_b32 s64, s69, 4
    s_add_u32 s64, s64, s57
    s_lshl_b32 s64, s64, 12
    s_lshl_b32 s65, s56, 1
    s_add_u32 s64, s64, s65
    s_add_u32 s64, s64, {WS_Y}
    s_lshl_b32 s65, s69, 11
    s_add_u32 s65, s65, {YT}
    s_waitcnt lgkmcnt(0)""")
    srd_off(a, 24, 20, 21, WS_O, 0x200000)
    srd(a, 28, 6, 7, 0x80000)
    srd(a, 44, 20, 21, WS_SIZE)
    dma(a, 13, 44, "s64", "s65")
    a("s_add_u32 s64, s64, 32768\ns_add_u32 s65, s65, 1024")
    dma(a, 13, 44, "s64", "s65")
    loader_body(a, 24, 28)
    fin(a, 2)
    a.label("k3_gemm")
    XR, GR = 112, 120
    a(f"""s_lshr_b32 s63, s3, 1
    s_lshl_b32 s63, s63, 5
    s_add_u32 s63, s63, s56
    v_and_b32 v8, 31, v1
    v_add_u32 v8, s63, v8
    v_lshlrev_b32 v9, 2, v8
    v_lshrrev_b32 v10, 5, v1
    v_lshlrev_b32 v11, 3, v10
    v_lshl_add_u32 v12, v8, 10, v11
    v_lshlrev_b32 v11, 4, v10
    v_lshl_add_u32 v13, v8, 10, v11
    s_and_b32 s64, s3, 1
    s_lshl_b32 s64, s64, 6
    s_lshl_b32 s65, s57, 1
    s_add_u32 s59, s64, s65
    s_mov_b32 s64, {WS_G}
    s_waitcnt lgkmcnt(0)""")
    srd(a, 32, 4, 5, 0x200000)
    srd(a, 36, 8, 9, 0x200000)
    srd(a, 44, 20, 21, WS_SIZE)
    a(f"buffer_load_dword v{GR}, v9, s[44:47], s64 offen")
    for aa in range(4):
        a(f"buffer_load_dwordx2 v[{XR+2*aa}:{XR+2*aa+1}], v12, s[32:35], s59 offen offset:{16*aa}")
    gemm_read_addr(a, 16, 24, 8, True)
    a(f"""v_bfe_u32 v8, v1, 2, 2
    v_lshrrev_b32 v9, 5, v1
    v_lshl_add_u32 v8, v9, 2, v8
    v_lshlrev_b32 v8, 7, v8
    v_bfe_u32 v9, v1, 4, 1
    v_lshl_add_u32 v8, v9, 5, v8
    v_and_b32 v9, 3, v1
    v_lshl_add_u32 v8, v9, 3, v8
    s_and_b32 s64, s3, 1
    s_lshl_b32 s64, s64, 12
    s_lshr_b32 s65, s3, 1
    s_lshl_b32 s65, s65, 6
    s_add_u32 s64, s64, s65
    s_add_u32 s64, s64, {YT}
    v_add_u32 v25, s64, v8""")
    ACC, FA, FB, AX = 32, 48, 80, 124
    for kc in range(4):
        a("s_barrier")
        stamp(a, 2 + kc)
        gemm_chunk(a, kc, 16, 24, FA, FB, ACC, True, kc == 0)
        if kc == 0:
            for aa in range(4):
                a(f"ds_read_b64_tr_b16 v[{140+2*aa}:{141+2*aa}], v25 offset:{1024*aa}")
            a(f"s_waitcnt vmcnt(0) lgkmcnt(0)\nv_sub_f32 v{GR+1}, 1.0, v{GR}")
            for aa in range(4):
                x0, x1, y0, y1, t = XR + 2*aa, XR + 2*aa + 1, 140 + 2*aa, 141 + 2*aa, AX + 4*aa
                a(f"""v_lshlrev_b32 v{t}, 16, v{x0}
                v_and_b32 v{t+1}, 0xffff0000, v{x0}
                v_lshlrev_b32 v{t+2}, 16, v{x1}
                v_and_b32 v{t+3}, 0xffff0000, v{x1}
                v_lshlrev_b32 v8, 16, v{y0}
                v_and_b32 v9, 0xffff0000, v{y0}
                v_lshlrev_b32 v10, 16, v{y1}
                v_and_b32 v11, 0xffff0000, v{y1}""")
                for e in range(4): a(f"v_mul_f32 v{t+e}, v{t+e}, v{8+e}")
                for e in range(4): a(f"v_mul_f32 v{t+e}, v{t+e}, v{GR}")
    stamp(a, 6)
    for i in range(16): a(f"v_fmac_f32 v{AX+i}, v{ACC+i}, v{GR+1}")
    for i in range(8): a(f"v_cvt_pk_bf16_f32 v{FA+i}, v{AX+2*i}, v{AX+2*i+1}")
    for p in range(2):
        r = FA + 4*p
        a(f"v_permlane32_swap_b32 v{r}, v{r+2}\nv_permlane32_swap_b32 v{r+1}, v{r+3}")
        a(f"buffer_store_dwordx4 v[{r}:{r+3}], v13, s[36:39], s59 offen offset:{32*p}")
    fin(a, 2)
    a.label("k3_end")
    a("s_endpgm")
    return a.finish(), 152

def build():
    hdr = open("cdna_kernels/" + NAME + ".s.ref").read().split("; Override launch")[0]
    ks = [("k1_kernel", k1(), 576, 147456), ("k2_kernel", k2(), 512, 160016), ("k3_kernel", k3(), 512, 139264)]
    out = hdr
    for n, _, blk, lds in ks:
        out += f"; @launch kernel={n} grid=(256,1,1) block=({blk},1,1) lds={lds}\n"
    out += '.amdgcn_target "amdgcn-amd-amdhsa--gfx950"\n.text\n'
    for n, (body, nv), _, _ in ks:
        out += f".globl {n}\n.p2align 8\n.type {n},@function\n" + body
    out += "code_end:\n"
    out += '.section .rodata,"a"\n'
    for n, (body, nv), _, _ in ks:
        out += f""".p2align 6
.amdhsa_kernel {n}
  .amdhsa_next_free_vgpr {nv}
  .amdhsa_next_free_sgpr {100 if DIAG else 80}
  .amdhsa_accum_offset {nv}
  .amdhsa_group_segment_fixed_size 0
  .amdhsa_kernarg_size 120
  .amdhsa_user_sgpr_count 2
  .amdhsa_user_sgpr_kernarg_segment_ptr 1
  .amdhsa_system_sgpr_workgroup_id_x 1
.end_amdhsa_kernel
"""
    return out

if __name__ == "__main__":
    if "-noinv" in sys.argv:
        USE_INV = False; sys.argv.remove("-noinv")
    if "-d" in sys.argv:
        DIAG = True; sys.argv.remove("-d")
    dst = sys.argv[1] if len(sys.argv) > 1 else "cdna_kernels/" + NAME + ".s"
    open(dst, "w").write(build())
    print("wrote", dst)
```

```python
import sys, math, struct
from asmlib import Asm

NAME = "gated_mix__ssm_conv_h3__grouped_kv_mqa__prompt"
KN = NAME + "_kernel"
WS_KV, WS_KMAX, WS_G = 0x000000, 0x024000, 0x025000
WS_FKV, WS_FX, WS_FY = 0x028000, 0x02c000, 0x030000
WS_XREV, WS_O, WS_Y = 0x100000, 0x300000, 0x500000
WS_SIZE = 0x700000
ST = 2080
KVBYTES = 64 * ST
CSCALE = 0.25 * math.log2(math.e)
def f32(x): return "0x%08x" % struct.unpack("<I", struct.pack("<f", x))[0]

XT, WT, WKV = 0, 65536, 131072
QX = KVBYTES
XE0, XESZ, XOOFF = KVBYTES, 8320, 4160
CNT = 149760
LEND = 163840
OX0, OX1 = 141312, 149824

DIAG = False
WS_DIAG = 0x1000000
def stamp(a, idx, real=False):
    if not DIAG: return
    a(f"{'s_memrealtime' if real else 's_memtime'} s[{80+2*idx}:{81+2*idx}]\ns_waitcnt lgkmcnt(0)")
def fin(a):
    if DIAG:
        a("s_waitcnt vmcnt(0)")
        stamp(a, 7); stamp(a, 9, True)
        a(f"""s_add_u32 s68, s30, {WS_DIAG}
        s_addc_u32 s69, s31, 0
        s_mov_b32 s70, 0x40000
        s_mov_b32 s71, 0x20000
        s_lshl_b32 s67, s2, 4
        s_add_u32 s67, s67, s3
        s_lshl_b32 s67, s67, 6
        s_mov_b64 exec, 1
        v_mov_b32 v0, 0""")
        for i in range(10):
            a(f"v_mov_b32 v1, s{80+2*i}\nbuffer_store_dword v1, v0, s[68:71], s67 offen offset:{4*i}")
    a("s_endpgm")

def srd(a, d, lo, size):
    a(f"s_mov_b32 s{d}, s{lo}\ns_mov_b32 s{d+1}, s{lo+1}\ns_mov_b32 s{d+2}, {size}\ns_mov_b32 s{d+3}, 0x20000")
def srd_off(a, d, lo, off, size):
    a(f"s_add_u32 s{d}, s{lo}, {off}\ns_addc_u32 s{d+1}, s{lo+1}, 0\ns_mov_b32 s{d+2}, {size}\ns_mov_b32 s{d+3}, 0x20000")
def dma(a, voff, srdn, soff, m0, flags=""):
    a(f"s_mov_b32 m0, {m0}")
    a(f"buffer_load_dwordx4 v{voff}, s[{srdn}:{srdn+3}], {soff} offen {flags} lds")
PX, PK, PV, PSH, PH, PD, PWQ, PWK, PWV, PWO, PGW, POUT, PWS = 4, 6, 8, 10, 12, 14, 18, 20, 22, 24, 26, 28, 30
WSR = 32
TAG = 77
_n = [0]
def lds_wait(a, vaddr, off, val, vt, sleep=1):
    _n[0] += 1; l = f"lw{_n[0]}"
    a("s_mov_b32 s75, 0x100000")
    a.label(l)
    a(f"""ds_read_b32 v{vt}, v{vaddr} offset:{off}
    s_sub_u32 s75, s75, 1
    s_waitcnt lgkmcnt(0)
    v_readfirstlane_b32 s74, v{vt}
    s_cmp_ge_u32 s74, {val}
    s_cbranch_scc1 {l}_ok
    s_sleep {sleep}
    s_cmp_lg_u32 s75, 0
    s_cbranch_scc1 {l}""")
    a.label(l + "_ok")
def lds_add(a, vaddr, off, vone):
    a(f"s_mov_b64 exec, 1\nds_add_u32 v{vaddr}, v{vone} offset:{off}\ns_mov_b64 exec, -1")
def publish(a, vaddr, off, vone, vt, sflag, nwaves):
    _n[0] += 1; l = f"pb{_n[0]}"
    a(f"""s_mov_b64 exec, 1
    ds_add_rtn_u32 v{vt}, v{vaddr}, v{vone} offset:{off}
    s_waitcnt lgkmcnt(0)
    v_readfirstlane_b32 s74, v{vt}
    s_cmp_lg_u32 s74, {nwaves-1}
    s_cbranch_scc1 {l}
    v_mov_b32 v{vt}, s{TAG}
    v_mov_b32 v{vt+1}, 0
    buffer_store_dword v{vt}, v{vt+1}, s[{WSR}:{WSR+3}], s{sflag} offen sc1""")
    a.label(l)
    a("s_mov_b64 exec, -1")
def poll32(a, sbase, vt):
    _n[0] += 1; l = f"pl{_n[0]}"
    a(f"s_mov_b32 exec_hi, 0\nv_lshlrev_b32 v{vt}, 6, v1\ns_mov_b32 s75, 0x40000")
    a.label(l)
    a(f"""buffer_load_dword v{vt+1}, v{vt}, s[{WSR}:{WSR+3}], s{sbase} offen sc1
    s_sub_u32 s75, s75, 1
    s_waitcnt vmcnt(0)
    v_cmp_ne_u32 vcc, s{TAG}, v{vt+1}
    s_cbranch_vccz {l}_ok
    s_mov_b64 exec, vcc
    s_sleep 4
    s_cmp_lg_u32 s75, 0
    s_cbranch_scc1 {l}""")
    a.label(l + "_ok")
    a("s_mov_b64 exec, -1")

def w_src(a, v, t0, t1):
    a(f"""v_lshrrev_b32 v{t0}, 3, v1
    v_lshlrev_b32 v{t1}, 1, v{t0}
    v_and_b32 v{t1}, 4, v{t1}
    v_and_b32 v{v}, 7, v1
    v_xor_b32 v{v}, v{v}, v{t1}
    v_lshlrev_b32 v{v}, 4, v{v}
    v_lshl_add_u32 v{v}, v{t0}, 10, v{v}
    s_lshl_b32 s63, s57, 1
    v_add_u32 v{v}, s63, v{v}""")

MF = lambda a, d, A, B, C: a(f"v_mfma_f32_32x32x16_bf16 v[{d}:{d+15}], v[{A}:{A+3}], v[{B}:{B+3}], " + ("0" if C is None else f"v[{C}:{C+15}]"))

def kv_unit_step(a, step):
    a(f"""s_cmp_ge_u32 s59, 130
    s_cselect_b32 s63, 130, 0
    s_sub_u32 s59, s59, s63
    s_lshl_b32 s63, s59, 10
    s_add_u32 s59, s59, {step}""")

def kernel():
    a = Asm()
    a.label(KN)
    a("s_cmp_ge_u32 s2, 256\ns_cbranch_scc1 k_end")
    stamp(a, 8, True); stamp(a, 0)
    a("""s_load_dwordx2 s[30:31], s[0:1], 112
    s_load_dwordx16 s[4:19], s[0:1], 0
    s_load_dwordx8 s[20:27], s[0:1], 64
    s_load_dwordx2 s[28:29], s[0:1], 96
    v_lshrrev_b32 v2, 6, v0
    v_and_b32 v1, 63, v0
    v_readfirstlane_b32 s3, v2
    s_and_b32 s60, s2, 7
    s_lshl_b32 s60, s60, 2
    s_lshr_b32 s61, s2, 3
    s_and_b32 s62, s61, 3
    s_add_u32 s60, s60, s62
    s_lshr_b32 s61, s61, 2
    s_lshl_b32 s56, s60, 6
    s_lshl_b32 s57, s61, 6
    s_add_u32 s59, s61, s62
    s_add_u32 s59, s59, s2
    s_and_b32 s59, s59, 3
    s_lshr_b32 s76, s61, 1
    s_lshl_b32 s58, s62, 1
    v_lshlrev_b32 v2, 4, v1
    s_cmp_lt_u32 s3, 8
    s_cbranch_scc1 k_att""")
    a("s_sub_u32 s66, s3, 8\nv_lshrrev_b32 v9, 4, v1\nv_and_b32 v10, 15, v1")
    for q in range(4):
        a(f"""v_add_u32 v11, {4*q}, v9
        v_xor_b32 v12, v11, v10
        v_lshlrev_b32 v12, 4, v12
        v_lshl_add_u32 v{4+q}, v11, 10, v12""")
    a("""s_add_u32 s63, s59, s66
    s_and_b32 s63, s63, 3
    s_lshl_b32 s64, s76, 4
    s_add_u32 s64, s64, s56
    s_lshl_b32 s64, s64, 10
    s_lshl_b32 s65, s63, 8
    s_add_u32 s64, s64, s65
    s_lshl_b32 s65, s63, 12
    s_lshl_b32 s67, s66, 14
    s_lshl_b32 s68, s76, 12
    s_add_u32 s67, s67, s68
    s_lshl_b32 s68, s66, 12
    s_and_b32 s69, s61, 1
    s_cmp_eq_u32 s69, 0
    s_waitcnt lgkmcnt(0)""")
    a(f"""s_cselect_b32 s40, s{PWK}, s{PWV}
    s_cselect_b32 s41, s{PWK+1}, s{PWV+1}
    s_mov_b32 s42, 0x4000
    s_mov_b32 s43, 0x20000""")
    srd(a, 36, PX, 0x200000)
    for q in range(4):
        a(f"s_add_u32 s63, s67, {XT + q*1024}")
        dma(a, 4 + q, 36, "s64", "s63")
        a(f"s_add_u32 s63, s68, {WKV + q*1024}")
        dma(a, 2, 40, "s65", "s63")
        if q < 3: a("s_add_u32 s65, s65, 1024")
    srd(a, 44, PWQ, 0x80000)
    srd(a, WSR, PWS, WS_SIZE)
    a(f"s_add_u32 s78, s30, {WS_FY}\ns_addc_u32 s79, s31, 0\ns_load_dword s{TAG}, s[78:79], 0")
    w_src(a, 8, 9, 10)
    a(f"""s_lshl_b32 s63, s66, 2
    v_lshrrev_b32 v9, 4, v1
    v_add_u32 v11, s63, v9
    v_and_b32 v10, 15, v1
    v_xor_b32 v12, v11, v10
    v_lshlrev_b32 v12, 4, v12
    v_lshl_add_u32 v13, v11, 10, v12
    v_mov_b32 v3, {CNT}""")
    def stage1(slot):
        a(f"""s_add_u32 s63, s59, {slot}
        s_and_b32 s63, s63, 3
        s_lshl_b32 s67, s63, 17
        s_lshl_b32 s64, s66, 15
        s_add_u32 s67, s67, s64
        s_lshl_b32 s65, s63, 8
        s_lshl_b32 s64, s56, 10
        s_add_u32 s65, s65, s64
        s_lshl_b32 s69, s66, 10""")
        for q in range(4):
            a(f"s_add_u32 s63, s68, {WT + slot*16384 + q*1024}")
            dma(a, 8, 44, "s67", "s63")
            if q < 3:
                a(f"""s_add_u32 s67, s67, 8192
                s_add_u32 s63, s76, {q+1}
                s_and_b32 s63, s63, 3
                s_lshl_b32 s64, s63, 14
                s_add_u32 s64, s64, s65
                s_lshl_b32 s63, s63, 12
                s_add_u32 s63, s63, s69
                s_add_u32 s63, s63, {XT + slot*16384}""")
                dma(a, 13, 36, "s64", "s63")
    stage1(0)
    a("""v_lshl_add_u32 v14, v1, 2, v3
    v_mov_b32 v15, 0
    s_mov_b64 exec, 0xfff
    ds_write_b32 v14, v15
    s_mov_b64 exec, -1
    v_mov_b32 v14, 1""")
    stamp(a, 1)
    a("s_waitcnt vmcnt(7) lgkmcnt(0)\ns_barrier")
    stamp(a, 2)
    a(f"s_mul_i32 s{TAG}, s{TAG}, 0x9e3779b1\ns_add_u32 s{TAG}, s{TAG}, 0x7f4a7c15")
    stage1(1); stage1(2); stage1(3)
    a("s_waitcnt vmcnt(14)\ns_barrier\ns_waitcnt vmcnt(0)\ns_barrier")
    stamp(a, 3)
    a(f"""s_add_u32 s63, s58, 4
    s_and_b32 s63, s63, 7
    s_mul_i32 s59, s63, 65
    s_lshr_b32 s59, s59, 2
    s_add_u32 s59, s59, s66
    s_cmp_lg_u32 s66, 0
    s_cbranch_scc1 h_wait_go
    s_mov_b32 s64, {WS_FKV}
    v_lshlrev_b32 v20, 6, v1
    s_mov_b32 s75, 0x40000""")
    a.label("h_pollkv")
    a(f"""buffer_load_dwordx4 v[16:19], v20, s[{WSR}:{WSR+3}], s64 offen sc1
    s_sub_u32 s75, s75, 1
    s_waitcnt vmcnt(0)
    v_xor_b32 v16, s{TAG}, v16
    v_xor_b32 v17, s{TAG}, v17
    v_xor_b32 v18, s{TAG}, v18
    v_xor_b32 v19, s{TAG}, v19
    v_or3_b32 v16, v16, v17, v18
    v_or_b32 v16, v16, v19
    v_cmp_ne_u32 vcc, 0, v16
    s_cbranch_vccz h_kvready
    s_mov_b64 exec, vcc
    s_sleep 1
    s_cmp_lg_u32 s75, 0
    s_cbranch_scc1 h_pollkv""")
    a.label("h_kvready")
    a(f"""s_mov_b64 exec, -1
    ds_write_b32 v3, v14
    v_lshlrev_b32 v16, 3, v1
    s_mov_b32 s64, {WS_KMAX}
    buffer_load_dwordx2 v[16:17], v16, s[{WSR}:{WSR+3}], s64 offen sc1
    s_branch h_go""")
    a.label("h_wait_go")
    lds_wait(a, 3, 0, 1, 16)
    a.label("h_go")
    stamp(a, 4)
    def first_units(R, AD):
        for j in range(6):
            kv_unit_step(a, 4)
            a(f"s_mov_b32 s{AD+j}, s63")
            a(f"buffer_load_dwordx4 v[{R+4*j}:{R+4*j+3}], v2, s[{WSR}:{WSR+3}], s63 offen sc1")
    def first_writes(R, AD, vt):
        for j in range(6):
            a(f"v_add_u32 v{vt+(j&1)}, s{AD+j}, v2\nds_write_b128 v{vt+(j&1)}, v[{R+4*j}:{R+4*j+3}]")
    first_units(20, 46)
    a(f"""s_cmp_lg_u32 s66, 0
    s_cbranch_scc1 h_nokmax
    s_waitcnt vmcnt(6)
    v_max_f32 v16, v16, v17
    v_max_f32_dpp v16, v16, v16 row_ror:8 row_mask:0xf bank_mask:0xf
    v_max_f32_dpp v16, v16, v16 row_ror:4 row_mask:0xf bank_mask:0xf
    v_max_f32_dpp v16, v16, v16 row_ror:2 row_mask:0xf bank_mask:0xf
    v_max_f32_dpp v16, v16, v16 row_ror:1 row_mask:0xf bank_mask:0xf
    v_mov_b32 v17, v16
    v_permlane32_swap_b32 v16, v17
    v_max_f32 v16, v16, v17
    v_mov_b32 v17, v16
    v_permlane16_swap_b32 v16, v17
    v_max_f32 v16, v16, v17
    ds_write_b32 v3, v16 offset:40""")
    a.label("h_nokmax")
    a("s_waitcnt vmcnt(0) lgkmcnt(0)\ns_barrier")
    first_writes(20, 46, 16)
    a(f"""s_setprio 3
    s_lshr_b32 s67, s66, 1
    s_and_b32 s68, s66, 1
    s_lshl_b32 s63, s67, 2
    s_add_u32 s63, s63, s58
    s_and_b32 s63, s63, 7
    s_mul_i32 s59, s63, 65
    s_lshr_b32 s59, s59, 2
    s_add_u32 s59, s59, s68
    s_add_u32 s59, s59, 24
    s_lshl_b32 s69, s60, 1
    s_add_u32 s69, s69, s57
    s_add_u32 s69, s69, s67
    s_lshl_b32 s70, s69, 12""")
    srd(a, 36, PK, 0x200000)
    srd(a, 40, PV, 0x200000)
    srd(a, 44, PSH, 4096)
    srd_off(a, 48, PH, "s70", 4096)
    srd(a, 52, PD, 1024)
    a("s_waitcnt lgkmcnt(0)\ns_barrier")
    stamp(a, 5)
    def bulk(n, lbl):
        a(f"s_mov_b32 s72, {n}")
        a.label(lbl)
        kv_unit_step(a, 2)
        dma(a, 2, WSR, "s63", "s63", "sc1")
        a(f"s_sub_u32 s72, s72, 1\ns_cmp_lg_u32 s72, 0\ns_cbranch_scc1 {lbl}")
    bulk(8, "h_bulk1")
    H = 128
    a(f"""v_lshrrev_b32 v5, 3, v1
    v_and_b32 v6, 7, v1
    v_lshlrev_b32 v6, 4, v6
    v_lshl_add_u32 v6, v5, 10, v6
    s_lshl_b32 s63, s57, 1
    v_add_u32 v6, s63, v6
    s_lshl_b32 s71, s66, 4
    s_add_u32 s71, s71, s56
    s_lshl_b32 s64, s71, 10
    s_add_u32 s65, s64, 8192
    s_lshl_b32 s73, s66, 12
    s_add_u32 s73, s73, {XE0}""")
    dma(a, 6, 36, "s64", "s73")
    a("s_add_u32 s63, s73, 1024"); dma(a, 6, 36, "s65", "s63")
    a("s_add_u32 s63, s73, 2048"); dma(a, 6, 40, "s64", "s63")
    a("s_add_u32 s63, s73, 3072"); dma(a, 6, 40, "s65", "s63")
    a(f"""v_add_u32 v7, s57, v1
    v_lshlrev_b32 v9, 3, v7
    buffer_load_dwordx2 v[10:11], v9, s[44:47], 0 offen
    s_sub_u32 s64, s64, 3072
    v_lshlrev_b32 v9, 1, v7
    v_add_u32 v9, s64, v9
    buffer_load_ushort v12, v9, s[36:39], 0 offen
    buffer_load_ushort v13, v9, s[36:39], 0 offen offset:1024
    buffer_load_ushort v15, v9, s[36:39], 0 offen offset:2048""")
    for i in range(4):
        a(f"buffer_load_dwordx4 v[{H+4*i}:{H+4*i+3}], v2, s[48:51], 0 offen offset:{1024*i}")
    a(f"""s_lshl_b32 s63, s69, 1
    v_mov_b32 v9, s63
    buffer_load_ushort v25, v9, s[52:55], 0 offen
    s_waitcnt vmcnt(13)""")
    lds_add(a, 3, 4, 14)
    bulk(13, "h_bulk2")
    a(f"""v_bfe_u32 v16, v1, 2, 2
    v_lshlrev_b32 v16, 7, v16
    v_lshrrev_b32 v17, 4, v1
    v_lshl_add_u32 v16, v17, 5, v16
    v_and_b32 v17, 3, v1
    v_lshl_add_u32 v16, v17, 3, v16
    v_add_u32 v16, s73, v16
    v_lshrrev_b32 v26, 2, v1
    v_mul_u32_u24 v26, 144, v26
    v_lshlrev_b32 v17, 4, v17
    v_sub_u32 v26, v17, v26
    s_lshl_b32 s63, s67, 6
    s_add_u32 s63, s63, {LEND - 144 - 3*2304}
    v_add_u32 v26, s63, v26
    s_waitcnt vmcnt(13)""")
    stamp(a, 6)
    KR, VR, KF, VF = 36, 44, 52, 72
    for i in range(4): a(f"ds_read_b64_tr_b16 v[{KR+2*i}:{KR+2*i+1}], v16 offset:{i*512}")
    for i in range(4): a(f"ds_read_b64_tr_b16 v[{VR+2*i}:{VR+2*i+1}], v16 offset:{2048 + i*512}")
    for i in range(4): a(f"ds_write_b128 v26, v[{H+4*i}:{H+4*i+3}] offset:{2304*(3-i)}")
    a(f"""v_lshlrev_b32 v88, 16, v10
    v_and_b32 v89, 0xffff0000, v10
    v_lshlrev_b32 v90, 16, v11
    v_and_b32 v91, 0xffff0000, v11
    v_lshlrev_b32 v{KF}, 16, v12
    v_lshlrev_b32 v{KF+1}, 16, v13
    v_lshlrev_b32 v{KF+2}, 16, v15
    s_waitcnt lgkmcnt(8)""")
    for i in range(8):
        a(f"v_lshlrev_b32 v{KF+3+2*i}, 16, v{KR+i}\nv_and_b32 v{KF+4+2*i}, 0xffff0000, v{KR+i}")
    a("s_waitcnt lgkmcnt(4)")
    for i in range(8):
        a(f"v_lshlrev_b32 v{VF+2*i}, 16, v{VR+i}\nv_and_b32 v{VF+1+2*i}, 0xffff0000, v{VR+i}")
    for s in range(16):
        t = 36 + (s % 8)
        a(f"""v_mul_f32 v{t}, v{KF+s}, v91
        v_fmac_f32 v{t}, v{KF+s+1}, v90
        v_fmac_f32 v{t}, v{KF+s+2}, v89
        v_fmac_f32 v{t}, v{KF+s+3}, v88
        v_mul_f32 v{VF+s}, v{t}, v{VF+s}""")
    for q in range(8):
        a(f"v_cvt_pk_bf16_f32 v{44+q}, v{VF+15-2*q}, v{VF+14-2*q}")
    a(f"""s_lshl_b32 s64, s71, 1
    s_sub_u32 s64, {WS_XREV + 4064}, s64
    v_lshlrev_b32 v9, 12, v7
    buffer_store_dwordx4 v[44:47], v9, s[{WSR}:{WSR+3}], s64 offen sc1
    buffer_store_dwordx4 v[48:51], v9, s[{WSR}:{WSR+3}], s64 offen offset:16 sc1
    s_lshl_b32 s72, s61, 11
    s_lshl_b32 s65, s60, 6
    s_add_u32 s65, s65, s72
    s_add_u32 s64, s72, {WS_FX}
    s_add_u32 s73, s65, {WS_FX}
    s_waitcnt vmcnt(2)""")
    lds_add(a, 3, 8, 14)
    a("s_waitcnt vmcnt(0)")
    publish(a, 3, 16, 14, 16, 73, 4)
    srd(a, 36, PWO, 0x80000)
    a("s_lshr_b32 s63, s2, 3\ns_lshl_b32 s63, s63, 14\ns_lshl_b32 s74, s66, 12\ns_add_u32 s63, s63, s74")
    for i in range(4):
        a(f"buffer_load_dwordx4 v[{H+4*i}:{H+4*i+3}], v2, s[36:39], s63 offen offset:{1024*i}")
    a(f"s_add_u32 s71, s70, {WS_XREV}")
    srd_off(a, 40, PWS, "s71", 4096)
    a(f"s_add_u32 s71, s70, {WS_Y}")
    srd_off(a, 44, PWS, "s71", 4096)
    vA, vB0, vB1 = 34, 35, 33
    AF, BF, B2F, ACC0, ACC1 = 48, 80, 112, 128, 144
    a(f"""s_mul_i32 s71, s67, {XESZ}
    s_add_u32 s71, s71, {XE0}
    v_add_u32 v27, s71, v2
    v_and_b32 v4, 31, v1
    v_lshrrev_b32 v5, 5, v1
    v_or_b32 v6, 1, v4
    v_lshlrev_b32 v9, 3, v5
    v_sub_u32 v6, v9, v6
    s_cmp_eq_u32 s68, 0
    s_cselect_b32 s63, 1055, 31
    v_add_u32 v6, s63, v6
    v_lshlrev_b32 v6, 1, v6
    v_and_b32 v9, 1, v4
    v_xor_b32 v9, 1, v9
    v_mul_u32_u24 v9, {XOOFF}, v9
    v_add3_u32 v{vA}, v6, v9, s71
    v_mul_u32_u24 v6, 144, v4
    v_lshlrev_b32 v9, 4, v5
    v_sub_u32 v6, v9, v6
    s_lshl_b32 s63, s67, 6
    s_add_u32 s63, s63, {LEND + 144*23}
    v_add_u32 v{vB0}, s63, v6
    v_mov_b32 v28, 0
    v_mov_b32 v29, 0
    v_mov_b32 v30, 0
    v_mov_b32 v31, 0
    v_lshrrev_b32 v32, 2, v1
    v_mul_u32_u24 v32, {XOOFF}, v32
    v_and_b32 v9, 3, v1
    v_lshl_add_u32 v32, v9, 4, v32
    s_add_u32 s63, s71, 4096
    v_add_u32 v32, s63, v32""")
    poll32(a, 64, 16)
    X = 52
    for i in range(4):
        a(f"buffer_load_dwordx4 v[{X+6*i}:{X+6*i+3}], v2, s[40:43], 0 offen offset:{1024*i} sc1")
        a(f"buffer_load_dword v{X+6*i+4}, v2, s[40:43], 0 offen offset:{1024*i+16} sc1")
    a("s_mov_b64 exec, 0xff\nds_write_b128 v32, v[28:31]\ns_mov_b64 exec, -1")
    for i in range(4):
        x = X + 6*i
        a(f"s_waitcnt vmcnt({6-2*i})")
        a(f"ds_write_b128 v27, v[{x}:{x+3}] offset:{1024*i}")
        for j in range(4): a(f"v_alignbit_b32 v{36+4*(i&1)+j}, v{x+j+1}, v{x+j}, 16")
        a(f"ds_write_b128 v27, v[{36+4*(i&1)}:{39+4*(i&1)}] offset:{XOOFF+1024*i}")
    for i in range(16): a(f"v_mov_b32 v{ACC0+i}, 0")
    a("s_waitcnt lgkmcnt(0)")
    def creads(t, dual):
        b = t % 4; b2 = t % 2
        if t == 0:
            a(f"v_add_u32 v{vA}, 512, v{vA}\nv_subrev_u32 v{vB0}, 1152, v{vB0}")
            if dual: a(f"v_subrev_u32 v{vB1}, 1152, v{vB1}")
        for u in range(2):
            o = (2*t + u) * 8
            r = AF + 8*b + 4*u
            a(f"ds_read2_b32 v[{r}:{r+1}], v{vA} offset0:{o} offset1:{o+1}")
            a(f"ds_read2_b32 v[{r+2}:{r+3}], v{vA} offset0:{o+2} offset1:{o+3}")
        for u in range(2):
            r = BF + 8*b + 4*u
            a(f"ds_read_b128 v[{r}:{r+3}], v{vB0} offset:{144*(7-t) + 32*u}")
        if dual:
            for u in range(2):
                r = B2F + 8*b2 + 4*u
                a(f"ds_read_b128 v[{r}:{r+3}], v{vB1} offset:{144*(7-t) + 32*u}")
    a(f"v_subrev_u32 v{vA}, 512, v{vA}\nv_add_u32 v{vB0}, 1152, v{vB0}")
    a("s_cmp_eq_u32 s68, 0\ns_cselect_b32 s72, 2, 6")
    creads(0, False); creads(1, False)
    a.label("h_conv1")
    for t in range(8):
        b = t % 4
        a("s_waitcnt lgkmcnt(6)")
        for u in range(2): MF(a, ACC0, AF + 8*b + 4*u, BF + 8*b + 4*u, ACC0)
        creads((t + 2) % 8, False)
    a("s_sub_u32 s72, s72, 1\ns_cmp_lg_u32 s72, 0\ns_cbranch_scc1 h_conv1")
    a("s_cmp_lg_u32 s68, 0\ns_cbranch_scc1 h_convb")
    a(f"""s_waitcnt lgkmcnt(0)
    v_subrev_u32 v{vA}, 512, v{vA}
    v_add_u32 v{vB0}, 1152, v{vB0}
    v_subrev_u32 v{vB1}, {144*32}, v{vB0}
    s_mov_b32 s72, 2""")
    for i in range(16): a(f"v_mov_b32 v{ACC1+i}, 0")
    creads(0, True)
    a.label("h_conv2")
    for t in range(8):
        b = t % 4; b2 = t % 2
        a("s_waitcnt lgkmcnt(0)")
        creads((t + 1) % 8, True)
        for u in range(2):
            MF(a, ACC0, AF + 8*b + 4*u, BF + 8*b + 4*u, ACC0)
            MF(a, ACC1, AF + 8*b + 4*u, B2F + 8*b2 + 4*u, ACC1)
    a("s_sub_u32 s72, s72, 1\ns_cmp_lg_u32 s72, 0\ns_cbranch_scc1 h_conv2")
    a(f"s_lshl_b32 s63, s67, 2\nv_add_u32 v9, s63, v3\ns_waitcnt lgkmcnt(0)")
    lds_wait(a, 9, 32, 1, 16)
    for i in range(4): a(f"ds_write_b128 v27, v[{ACC1+4*i}:{ACC1+4*i+3}] offset:{XOOFF + 1024*i}")
    a("s_waitcnt lgkmcnt(0)")
    lds_add(a, 9, 24, 14)
    a("s_branch h_cepi")
    a.label("h_convb")
    a(f"s_lshl_b32 s63, s67, 2\nv_add_u32 v9, s63, v3\ns_waitcnt lgkmcnt(0)")
    lds_add(a, 9, 32, 14)
    lds_wait(a, 9, 24, 1, 16)
    for i in range(4): a(f"ds_read_b128 v[{ACC1+4*i}:{ACC1+4*i+3}], v27 offset:{XOOFF + 1024*i}")
    a("s_waitcnt lgkmcnt(0)")
    for i in range(8): a(f"v_pk_add_f32 v[{ACC0+2*i}:{ACC0+2*i+1}], v[{ACC0+2*i}:{ACC0+2*i+1}], v[{ACC1+2*i}:{ACC1+2*i+1}]")
    a.label("h_cepi")
    a(f"""s_lshl_b32 s63, s68, 11
    v_lshlrev_b32 v6, 6, v4
    v_lshl_add_u32 v6, v5, 3, v6
    v_add_u32 v6, s63, v6
    s_add_u32 s63, s71, {4088 - 48}
    v_sub_u32 v7, s63, v6""")
    for aa in range(4):
        a(f"ds_read_b64 v[{16+2*aa}:{17+2*aa}], v7 offset:{48 - 16*aa}")
    a("v_lshlrev_b32 v25, 16, v25\ns_waitcnt lgkmcnt(0)")
    for aa in range(4):
        d0, d1 = 16 + 2*aa, 17 + 2*aa
        a(f"""v_and_b32 v36, 0xffff0000, v{d1}
        v_lshlrev_b32 v37, 16, v{d1}
        v_and_b32 v38, 0xffff0000, v{d0}
        v_lshlrev_b32 v39, 16, v{d0}
        v_fmac_f32 v{ACC0+4*aa}, v36, v25
        v_fmac_f32 v{ACC0+4*aa+1}, v37, v25
        v_fmac_f32 v{ACC0+4*aa+2}, v38, v25
        v_fmac_f32 v{ACC0+4*aa+3}, v39, v25
        v_cvt_pk_bf16_f32 v{40+2*aa}, v{ACC0+4*aa}, v{ACC0+4*aa+1}
        v_cvt_pk_bf16_f32 v{41+2*aa}, v{ACC0+4*aa+2}, v{ACC0+4*aa+3}""")
    for p in range(2):
        r = 40 + 4*p
        a(f"v_permlane32_swap_b32 v{r}, v{r+2}\nv_permlane32_swap_b32 v{r+1}, v{r+3}")
    a("v_lshl_add_u32 v6, v5, 3, v6")
    for p in range(2):
        a(f"buffer_store_dwordx4 v[{40+4*p}:{43+4*p}], v6, s[44:47], 0 offen offset:{32*p} sc1")
    a(f"s_add_u32 s73, s65, {WS_FY}\ns_lshl_b32 s64, s61, 11\ns_add_u32 s64, s64, {WS_FY}\ns_waitcnt vmcnt(0)")
    publish(a, 3, 20, 14, 16, 73, 4)
    w_src(a, 8, 9, 10)
    lds_wait(a, 3, 12, 8, 16, 4)
    a(f"""s_mul_i32 s72, s58, {8*ST}
    s_add_u32 s63, s58, 4
    s_and_b32 s63, s63, 7
    s_mul_i32 s73, s63, {8*ST}
    s_lshl_b32 s63, s66, 12
    s_add_u32 s72, s72, s63
    s_add_u32 s73, s73, s63
    s_lshl_b32 s67, s66, 15""")
    for sl in range(4):
        for q in range(4):
            a(f"s_add_u32 s63, s{72 + (sl>>1)}, {(sl&1)*16384 + q*1024}")
            dma(a, 8, 36, "s67", "s63")
            a(f"s_add_u32 s67, s67, {8192 if q < 3 else 131072 - 3*8192}")
    poll32(a, 64, 16)
    a(f"""v_lshrrev_b32 v9, 3, v1
    v_and_b32 v13, 7, v1
    v_lshlrev_b32 v13, 4, v13
    v_lshl_add_u32 v13, v9, 12, v13
    s_lshl_b32 s64, s66, 4
    s_add_u32 s64, s64, s57
    s_lshl_b32 s64, s64, 12
    s_lshl_b32 s65, s56, 1
    s_add_u32 s64, s64, s65
    s_add_u32 s64, s64, {WS_Y}
    s_add_u32 s65, s64, 32768
    buffer_load_dwordx4 v[16:19], v13, s[{WSR}:{WSR+3}], s64 offen sc1
    buffer_load_dwordx4 v[20:23], v13, s[{WSR}:{WSR+3}], s65 offen sc1
    s_lshl_b32 s63, s66, 11
    s_add_u32 s63, s63, {QX}
    v_add_u32 v9, s63, v2
    s_waitcnt vmcnt(0)
    ds_write_b128 v9, v[16:19]
    ds_write_b128 v9, v[20:23] offset:1024
    s_waitcnt lgkmcnt(0)""")
    fin(a)

    a.label("k_att")
    QA, QB, NMA, NMB, SA, SB, PA, PB, OA, OB, KB, VB = 4, 8, 12, 28, 44, 60, 76, 84, 92, 108, 124, 132
    vK, vV, vKn, vVn, vKl, vVl, vC, T = 148, 149, 150, 151, 2, 152, 153, 154
    a(f"""s_lshr_b32 s63, s3, 2
    s_lshl_b32 s62, s60, 1
    s_add_u32 s62, s62, s63
    s_lshl_b32 s62, s62, 5
    s_lshl_b32 s63, s61, 2
    s_add_u32 s62, s62, s63
    s_and_b32 s63, s3, 3
    s_add_u32 s62, s62, s63
    s_lshl_b32 s62, s62, 10
    s_add_u32 s62, s62, {WS_O}
    v_mov_b32 v4, -1
    v_mov_b32 v5, -1
    v_mov_b32 v6, -1
    v_mov_b32 v7, -1
    v_mov_b32 v{vC}, {CNT}
    s_waitcnt lgkmcnt(0)""")
    srd(a, WSR, PWS, WS_SIZE)
    a(f"""buffer_store_dwordx4 v[4:7], v2, s[{WSR}:{WSR+3}], s62 offen sc1
    s_cmp_lt_u32 s3, 4
    s_cbranch_scc1 a_gemm
    s_cmp_lg_u32 s3, 4
    s_cbranch_scc1 a_idle""")
    GW = 64
    a(f"""s_add_u32 s78, s30, {WS_FY}
    s_addc_u32 s79, s31, 0
    s_load_dword s{TAG}, s[78:79], 0
    s_and_b32 s68, s61, 1
    v_lshrrev_b32 v8, 4, v1
    v_lshlrev_b32 v8, 4, v8
    s_lshr_b32 s64, s76, 1
    s_lshl_b32 s65, s60, 1
    s_add_u32 s64, s64, s65
    s_mul_i32 s64, s64, {ST}
    s_and_b32 s65, s76, 1
    v_and_b32 v17, 15, v1
    v_lshrrev_b32 v18, 4, v1
    v_xor_b32 v19, v17, v18
    v_lshlrev_b32 v19, 4, v19
    v_lshl_add_u32 v19, v17, 8, v19
    s_lshl_b32 s63, s76, 12
    v_add_u32 v20, s63, v19
    v_xor_b32 v21, 64, v20
    v_xor_b32 v22, 128, v20
    v_xor_b32 v23, 192, v20
    v_bfe_u32 v19, v1, 2, 2
    v_lshl_add_u32 v19, v18, 3, v19
    v_lshlrev_b32 v19, 5, v19
    v_and_b32 v24, 3, v1
    v_lshl_add_u32 v24, v24, 3, v19
    v_add_u32 v24, {WKV}, v24
    v_lshlrev_b32 v17, 4, v17
    v_lshrrev_b32 v18, 5, v1
    v_lshl_add_u32 v17, v18, 3, v17
    v_bfe_u32 v18, v1, 4, 1
    v_mov_b32 v9, 0
    s_lshr_b32 s69, s2, 2
    s_lshl_b32 s69, s69, 6
    s_and_b32 s63, s2, 3
    s_lshl_b32 s63, s63, 2
    s_add_u32 s69, s69, s63
    s_add_u32 s69, s69, {WS_FKV}
    s_cmp_lg_u32 s68, 0
    s_cbranch_scc1 a_vjob""")
    srd(a, 52, PGW, 1024)
    for p in range(4):
        a(f"s_add_u32 s63, s59, {p}\ns_and_b32 s63, s63, 3\ns_lshl_b32 s63, s63, 8")
        for e in range(4):
            r = GW + 16*p + 4*e
            a(f"buffer_load_dwordx4 v[{r}:{r+3}], v8, s[52:55], s63 offen offset:{64*e}")
    JD, JG, JX, JW = 28, 4, 32, 48
    def job(ktype):
        def reads(n):
            kc, e = n >> 2, n & 3
            a(f"ds_read_b128 v[{JX+4*e}:{JX+4*e+3}], v{20+e} offset:{kc*16384}")
            a(f"ds_read_b64_tr_b16 v[{JW+4*e}:{JW+4*e+1}], v24 offset:{kc*4096 + e*1024}")
            a(f"ds_read_b64_tr_b16 v[{JW+4*e+2}:{JW+4*e+3}], v24 offset:{kc*4096 + e*1024 + 128}")
        for n in range(4): reads(n)
        for n in range(16):
            e = n & 3
            a(f"s_waitcnt lgkmcnt({3*min(3, 15-n)})")
            x, w = f"v[{JX+4*e}:{JX+4*e+3}]", f"v[{JW+4*e}:{JW+4*e+3}]"
            c = "0" if n == 0 else f"v[{JD}:{JD+3}]"
            if ktype:
                a(f"v_mfma_f32_16x16x32_bf16 v[{JD}:{JD+3}], {w}, {x}, {c}")
                c = "0" if n == 0 else f"v[{JG}:{JG+3}]"
                a(f"v_mfma_f32_16x16x32_bf16 v[{JG}:{JG+3}], v[{GW+4*n}:{GW+4*n+3}], {x}, {c}")
            else:
                a(f"v_mfma_f32_16x16x32_bf16 v[{JD}:{JD+3}], {x}, {w}, {c}")
            if n + 4 < 16: reads(n + 4)
    a(f"""s_lshl_b32 s65, s65, 8
    s_add_u32 s64, s64, s65
    v_lshl_add_u32 v17, v18, 9, v17
    s_lshl_b32 s65, s60, 2
    s_add_u32 s65, s65, s76
    s_lshl_b32 s67, s65, 6
    s_add_u32 s67, s67, {WS_G}
    s_lshl_b32 s65, s65, 2
    s_add_u32 s65, s65, {WS_KMAX}
    v_lshlrev_b32 v25, 2, v1
    s_waitcnt vmcnt(0) lgkmcnt(0)
    s_barrier""")
    job(True)
    a(f"s_mov_b32 s63, {f32(CSCALE)}")
    for e in range(4): a(f"v_mul_f32 v{JD+e}, s63, v{JD+e}")
    a(f"""v_cvt_pk_bf16_f32 v36, v{JD}, v{JD+1}
    v_cvt_pk_bf16_f32 v37, v{JD+2}, v{JD+3}
    buffer_store_dwordx2 v[36:37], v17, s[{WSR}:{WSR+3}], s64 offen sc1
    v_mul_f32 v38, v{JD}, v{JD}
    v_fmac_f32 v38, v{JD+1}, v{JD+1}
    v_fmac_f32 v38, v{JD+2}, v{JD+2}
    v_fmac_f32 v38, v{JD+3}, v{JD+3}
    s_mov_b32 s63, {f32(-math.log2(math.e))}
    v_mul_f32 v40, s63, v{JG}
    v_mov_b32 v39, v38
    v_exp_f32 v40, v40
    v_permlane32_swap_b32 v38, v39
    v_add_f32 v40, 1.0, v40
    v_add_f32 v38, v38, v39
    v_rcp_f32 v40, v40
    v_mov_b32 v39, v38
    v_permlane16_swap_b32 v38, v39
    v_add_f32 v38, v38, v39
    s_mov_b64 exec, 0xffff
    buffer_store_dword v40, v25, s[{WSR}:{WSR+3}], s67 offen sc1
    s_mov_b64 exec, -1
    v_max_f32_dpp v38, v38, v38 row_ror:8 row_mask:0xf bank_mask:0xf
    v_max_f32_dpp v38, v38, v38 row_ror:4 row_mask:0xf bank_mask:0xf
    v_max_f32_dpp v38, v38, v38 row_ror:2 row_mask:0xf bank_mask:0xf
    v_max_f32_dpp v38, v38, v38 row_ror:1 row_mask:0xf bank_mask:0xf
    s_mov_b64 exec, 1
    buffer_store_dword v38, v9, s[{WSR}:{WSR+3}], s65 offen sc1
    s_branch a_jobdone""")
    a.label("a_vjob")
    a(f"""s_mul_i32 s65, s65, 528
    s_add_u32 s64, s64, s65
    v_mov_b32 v12, 0x3f803f80
    v_mov_b32 v13, 0x3f803f80
    v_mov_b32 v14, 0x3f803f80
    v_mov_b32 v15, 0x3f803f80
    s_mov_b64 exec, 1
    buffer_store_dwordx4 v[12:15], v9, s[{WSR}:{WSR+3}], s64 offen offset:1536 sc1
    s_mov_b64 exec, -1
    v_lshl_add_u32 v17, v18, 8, v17
    s_waitcnt vmcnt(0) lgkmcnt(0)
    s_barrier""")
    job(False)
    a(f"""v_cvt_pk_bf16_f32 v36, v{JD}, v{JD+1}
    v_cvt_pk_bf16_f32 v37, v{JD+2}, v{JD+3}
    buffer_store_dwordx2 v[36:37], v17, s[{WSR}:{WSR+3}], s64 offen offset:1024 sc1
    s_mov_b64 exec, 1""")
    a.label("a_jobdone")
    stamp(a, 1)
    a(f"""s_mul_i32 s{TAG}, s{TAG}, 0x9e3779b1
    s_add_u32 s{TAG}, s{TAG}, 0x7f4a7c15
    v_mov_b32 v10, s{TAG}
    s_waitcnt vmcnt(0)
    buffer_store_dword v10, v9, s[{WSR}:{WSR+3}], s69 offen sc1
    s_mov_b64 exec, -1
    s_branch a_fetch""")
    a.label("a_idle")
    a("s_waitcnt vmcnt(0)\ns_barrier")
    a.label("a_fetch")
    a(f"""s_barrier
    s_barrier
    s_mul_i32 s59, s58, 65
    s_lshr_b32 s59, s59, 2
    s_add_u32 s59, s59, s3
    s_sub_u32 s59, s59, 4""")
    lds_wait(a, vC, 0, 1, T)
    first_units(SA, 46)
    a("s_waitcnt vmcnt(0)\ns_barrier")
    first_writes(SA, 46, T)
    a("s_branch a_common")
    a.label("a_gemm")
    vB, vAg, ACC, FA, FB = 16, 24, 32, 48, 80
    a(f"""s_lshr_b32 s63, s3, 1
    s_lshl_b32 s63, s63, 13
    v_and_b32 v8, 31, v1
    v_lshrrev_b32 v9, 5, v1
    v_and_b32 v10, 15, v1
    v_xor_b32 v10, v10, v9
    v_lshlrev_b32 v10, 4, v10
    v_lshl_add_u32 v10, v8, 8, v10
    v_add_u32 v{vB}, s63, v10""")
    for e in range(1, 8): a(f"v_xor_b32 v{vB+e}, {e*32}, v{vB}")
    a(f"""s_and_b32 s63, s3, 1
    v_bfe_u32 v8, v1, 2, 2
    v_lshrrev_b32 v10, 1, v8
    v_xor_b32 v10, s63, v10
    v_lshlrev_b32 v10, 6, v10
    v_lshl_add_u32 v8, v9, 3, v8
    v_lshl_add_u32 v10, v8, 7, v10
    v_bfe_u32 v8, v1, 4, 1
    v_lshl_add_u32 v10, v8, 5, v10
    v_and_b32 v8, 3, v1
    v_lshl_add_u32 v10, v8, 3, v10
    v_add_u32 v{vAg}, {WT}, v10
    s_lshl_b32 s63, s63, 12
    s_lshr_b32 s64, s3, 1
    s_lshl_b32 s64, s64, 10
    s_add_u32 s63, s63, s64
    s_add_u32 s63, s63, {QX}
    v_add_u32 v25, s63, v2
    s_waitcnt vmcnt(0)
    s_barrier""")
    def gemm_half(h):
        def reads(n):
            kc, e = n >> 3, n & 7
            a(f"ds_read_b128 v[{FB+4*e}:{FB+4*e+3}], v{vB+e} offset:{kc*16384}")
            a(f"ds_read_b64_tr_b16 v[{FA+4*e}:{FA+4*e+1}], v{vAg} offset:{kc*16384 + e*2048}")
            a(f"ds_read_b64_tr_b16 v[{FA+4*e+2}:{FA+4*e+3}], v{vAg} offset:{kc*16384 + e*2048 + 512}")
        n0 = 16*h
        for n in range(5): reads(n0 + n)
        for n in range(16):
            e = n & 7
            a(f"s_waitcnt lgkmcnt({3*min(4, 15-n)})")
            MF(a, ACC, FA + 4*e, FB + 4*e, None if (h == 0 and n == 0) else ACC)
            if n + 5 < 16: reads(n0 + n + 5)
    a("s_barrier"); stamp(a, 1); gemm_half(0)
    a("s_barrier"); gemm_half(1)
    for i in range(8): a(f"v_cvt_pk_bf16_f32 v{FA+i}, v{ACC+2*i}, v{ACC+2*i+1}")
    a(f"""ds_write_b128 v25, v[{FA}:{FA+3}]
    ds_write_b128 v25, v[{FA+4}:{FA+7}] offset:2048""")
    stamp(a, 2)
    a("s_waitcnt lgkmcnt(0)\ns_barrier")
    a.label("a_common")
    K2, NA, NB_ = T + 2, T + 6, T + 10
    a(f"""s_and_b32 s63, s3, 3
    s_lshl_b32 s63, s63, 11
    s_add_u32 s63, s63, {QX}
    v_add_u32 v{T+3}, s63, v2
    ds_read_b128 v[{QA}:{QA+3}], v{T+3}
    ds_read_b128 v[{QB}:{QB+3}], v{T+3} offset:1024
    ds_read_b32 v{K2}, v{vC} offset:40
    s_and_b32 s64, s3, 4
    s_add_u32 s71, s58, s64
    s_and_b32 s71, s71, 7
    v_and_b32 v{T+3}, 31, v1
    v_lshrrev_b32 v3, 5, v1
    v_and_b32 v{T+4}, 15, v1
    v_lshlrev_b32 v{T+4}, 4, v{T+4}
    v_lshl_add_u32 v{T+4}, v3, 8, v{T+4}
    v_add_u32 v{T+4}, 1024, v{T+4}
    v_mov_b32 v{vVl}, 0x100000
    v_and_b32 v{T+5}, 27, v{T+3}
    v_cmp_eq_u32 vcc, 16, v{T+5}
    v_mov_b32 v{T+5}, 1536
    v_cndmask_b32 v{vVl}, v{vVl}, v{T+5}, vcc
    v_cmp_gt_u32 vcc, 16, v{T+3}
    s_mul_i32 s70, s71, {8*ST}
    v_cndmask_b32 v{vVl}, v{vVl}, v{T+4}, vcc
    v_add_u32 v{vK}, s70, v{vKl}
    v_add_u32 v{vV}, s70, v{vVl}
    s_add_u32 s71, s71, 1
    s_and_b32 s71, s71, 7
    s_mul_i32 s70, s71, {8*ST}
    v_add_u32 v{vKn}, s70, v{vKl}
    v_add_u32 v{vVn}, s70, v{vVl}""")
    for r in list(range(PB, PB + 8)) + list(range(OA, OA + 32)) + list(range(VB + 8, VB + 16)):
        a(f"v_mov_b32 v{r}, 0")
    a("s_waitcnt lgkmcnt(0)")
    for i in range(4): a(f"v_dot2_f32_bf16 v{NA+i}, v{QA+i}, v{QA+i}, 0")
    for i in range(4): a(f"v_dot2_f32_bf16 v{NB_+i}, v{QB+i}, v{QB+i}, 0")
    a(f"""v_mov_b32 v{SB+14}, 0
    v_mov_b32 v{SB+15}, 0
    v_add_f32 v{NA}, v{NA}, v{NA+1}
    v_add_f32 v{NA+2}, v{NA+2}, v{NA+3}
    v_add_f32 v{NB_}, v{NB_}, v{NB_+1}
    v_add_f32 v{NB_+2}, v{NB_+2}, v{NB_+3}
    v_add_f32 v{NA}, v{NA}, v{NA+2}
    v_add_f32 v{NB_}, v{NB_}, v{NB_+2}
    v_mov_b32 v{NA+1}, v{NA}
    v_mov_b32 v{NB_+1}, v{NB_}
    v_permlane32_swap_b32 v{NA}, v{NA+1}
    v_permlane32_swap_b32 v{NB_}, v{NB_+1}
    v_add_f32 v{NA}, v{NA}, v{NA+1}
    v_add_f32 v{NB_}, v{NB_}, v{NB_+1}
    v_mul_f32 v{NA}, v{NA}, v{K2}
    v_mul_f32 v{NB_}, v{NB_}, v{K2}
    s_mov_b32 s72, {f32(1600.0)}
    v_cmp_nle_f32 vcc, v{NA}, s72
    v_cmp_nle_f32 s[74:75], v{NB_}, s72
    v_sqrt_f32 v{NA}, v{NA}
    v_sqrt_f32 v{NB_}, v{NB_}
    s_or_b64 vcc, vcc, s[74:75]
    v_mov_b32 v{T+1}, 1
    s_barrier
    s_cbranch_vccz a_fast""")
    lds_wait(a, vC, 4, 4, T)
    lds_wait(a, vC, 8, 4, T)
    a(f"""v_mov_b32 v{NA}, 0xff800000
    v_mov_b32 v{NB_}, 0xff800000
    v_mov_b32 v{T}, v{vKl}
    s_mov_b32 s74, 64""")
    a.label("a_maxloop")
    a(f"ds_read_b128 v[{KB}:{KB+3}], v{T}\nv_add_u32 v{T}, {ST}, v{T}\ns_waitcnt lgkmcnt(0)")
    MF(a, SA, KB, QA, None); MF(a, NMA, KB, QB, None)
    for i in range(8): a(f"v_max3_f32 v{NA}, v{NA}, v{SA+2*i}, v{SA+2*i+1}")
    for i in range(8): a(f"v_max3_f32 v{NB_}, v{NB_}, v{NMA+2*i}, v{NMA+2*i+1}")
    a(f"""s_sub_u32 s74, s74, 1
    s_cmp_lg_u32 s74, 0
    s_cbranch_scc1 a_maxloop
    v_mov_b32 v{NA+1}, v{NA}
    v_mov_b32 v{NB_+1}, v{NB_}
    v_permlane32_swap_b32 v{NA}, v{NA+1}
    v_permlane32_swap_b32 v{NB_}, v{NB_+1}
    v_max_f32 v{NA}, v{NA}, v{NA+1}
    v_max_f32 v{NB_}, v{NB_}, v{NB_+1}""")
    a.label("a_fast")
    stamp(a, 3)
    a(f"""ds_read_b128 v[{KB}:{KB+3}], v{vK}
    ds_read_b128 v[{KB+4}:{KB+7}], v{vK} offset:{ST}
    ds_read_b128 v[{VB}:{VB+3}], v{vV}
    ds_read_b128 v[{VB+4}:{VB+7}], v{vV} offset:528""")
    for i in range(16): a(f"v_sub_f32 v{NMA+i}, 0, v{NA}")
    for i in range(16): a(f"v_sub_f32 v{NMB+i}, 0, v{NB_}")
    a("s_waitcnt lgkmcnt(0)")
    MF(a, SA, KB, QA, NMA)
    a("s_mov_b32 s73, 4\ns_setprio 2\ns_nop 9")
    a(".p2align 6")
    a.label("a_loop")
    for tt in range(8):
        cur = tt & 1; nxt = cur ^ 1
        Kc, Kn = KB + 4*cur, KB + 4*nxt
        Vc, Vn = VB + 8*cur, VB + 8*nxt
        kreg, koff = (vK, (tt + 2) * ST) if tt < 6 else (vKn, (tt - 6) * ST)
        vreg, voff = (vV, (tt + 1) * ST) if tt < 7 else (vVn, 0)
        for ph in range(2):
            S, P, Po, So, O = (SA, PA, PB, SB, OA) if ph == 0 else (SB, PB, PA, SA, OB)
            ex = lambda i: a(f"v_exp_f32 v{S+i}, v{S+i}")
            cv = lambda j: a(f"v_cvt_pk_bf16_f32 v{P+j}, v{S+2*j}, v{S+2*j+1}")
            ex(0)
            a(f"v_cvt_pk_bf16_f32 v{Po+7}, v{So+14}, v{So+15}")
            ex(1)
            if ph == 0:
                MF(a, SB, Kc, QB, NMB)
                a(f"ds_read_b128 v[{Kc}:{Kc+3}], v{kreg} offset:{koff}")
            else:
                MF(a, SA, Kn, QA, NMA)
                if tt == 7: a("s_add_u32 s71, s71, 1")
                if tt == 6: a("s_sub_u32 s73, s73, 1")
            ex(2); ex(3); cv(0); ex(4); ex(5); cv(1)
            if ph == 0:
                MF(a, OB, Vn + 4, PB + 4, OB)
                a(f"ds_read_b128 v[{Vn}:{Vn+3}], v{vreg} offset:{voff}")
            else:
                MF(a, OA, Vc + 4, PA + 4, OA)
                a("s_waitcnt lgkmcnt(0)")
            ex(6); ex(7); cv(2); ex(8); ex(9); cv(3); ex(10); ex(11)
            MF(a, O, Vc, P, O)
            if ph == 0:
                a(f"ds_read_b128 v[{Vn+4}:{Vn+7}], v{vreg} offset:{voff+528}")
            elif tt == 7:
                a("s_and_b32 s71, s71, 7")
            cv(4); ex(12); ex(13); cv(5); ex(14); ex(15)
            if ph == 1 and tt == 7:
                a(f"""s_mul_i32 s70, s71, {8*ST}
                v_mov_b32 v{vK}, v{vKn}
                v_mov_b32 v{vV}, v{vVn}
                v_add_u32 v{vKn}, s70, v{vKl}
                v_add_u32 v{vVn}, s70, v{vVl}""")
            cv(6)
    a("s_cmp_eq_u32 s73, 1\ns_cbranch_scc1 a_it2\ns_cmp_eq_u32 s73, 0\ns_cbranch_scc1 a_done")
    a("s_cmp_eq_u32 s73, 3\ns_cbranch_scc0 a_it1")
    lds_wait(a, vC, 4, 4, T)
    stamp(a, 4)
    a("s_setprio 2\ns_branch a_loop")
    a.label("a_it1")
    lds_add(a, vC, 12, T + 1)
    lds_wait(a, vC, 8, 4, T)
    a("s_setprio 1\ns_branch a_loop")
    a.label("a_it2")
    a("s_setprio 0\ns_branch a_loop")
    a.label("a_done")
    stamp(a, 5)
    a(f"""v_cvt_pk_bf16_f32 v{PB+7}, v{SB+14}, v{SB+15}
    s_cmp_lt_u32 s3, 3
    s_cselect_b32 s63, 0, {OX1 - 3*2304 - OX0}
    s_add_u32 s63, s63, {OX0}
    s_mul_i32 s64, s3, 2304
    s_add_u32 s63, s63, s64
    v_add_u32 v{T}, s63, v2
    s_xor_b32 s65, s3, 4
    s_cmp_lt_u32 s65, 3
    s_cselect_b32 s63, 0, {OX1 - 3*2304 - OX0}
    s_add_u32 s63, s63, {OX0}
    s_mul_i32 s64, s65, 2304
    s_add_u32 s63, s63, s64""")
    MF(a, OB, VB + 12, PB + 4, OB)
    a(f"""v_add_u32 v{T+1}, s63, v2
    v_lshrrev_b32 v{T+2}, 2, v2
    v_sub_u32 v{T+3}, v{T+2}, v2
    v_add_u32 v{T+2}, v{T+3}, v{T}
    v_add_u32 v{T+3}, v{T+3}, v{T+1}
    s_barrier
    s_cmp_ge_u32 s3, 4
    s_cbranch_scc1 a_red1""")
    for (lbl, W, Kp) in (("", OB, OA), ("a_red1", OA, OB)):
        if lbl: a.label(lbl)
        a(f"""ds_write_b128 v{T}, v[{W}:{W+3}]
        ds_write_b128 v{T}, v[{W+4}:{W+7}] offset:1024
        ds_write_b32 v{T+2}, v{W+8} offset:2048
        s_waitcnt lgkmcnt(0)
        s_barrier
        ds_read_b32 v{SA+8}, v{T+3} offset:2048
        ds_read_b128 v[{SA}:{SA+3}], v{T+1}
        ds_read_b128 v[{SA+4}:{SA+7}], v{T+1} offset:1024
        s_waitcnt lgkmcnt(2)
        v_add_f32 v{Kp+8}, v{Kp+8}, v{SA+8}
        v_rcp_f32 v{T+4}, v{Kp+8}
        s_waitcnt lgkmcnt(0)""")
        for i in range(8): a(f"v_add_f32 v{Kp+i}, v{Kp+i}, v{SA+i}")
        for i in range(8): a(f"v_mul_f32 v{Kp+i}, v{Kp+i}, v{T+4}")
        for i in range(4): a(f"v_cvt_pk_bf16_f32 v{PA+i}, v{Kp+2*i}, v{Kp+2*i+1}")
        if not lbl: a("s_branch a_p3")
    a.label("a_p3")
    a(f"buffer_store_dwordx4 v[{PA}:{PA+3}], v2, s[{WSR}:{WSR+3}], s62 offen sc1")
    OF, WF, C0, C1, AX, XR, YR, GR = 12, 44, 108, 124, 140, 148, 152, 156
    a(f"""s_and_b32 s66, s3, 1
    s_lshr_b32 s67, s3, 1
    s_lshl_b32 s62, s60, 1
    s_add_u32 s62, s62, s66
    s_lshl_b32 s62, s62, 5
    s_lshl_b32 s63, s67, 3
    s_add_u32 s62, s62, s63
    s_lshl_b32 s62, s62, 10
    s_add_u32 s62, s62, {WS_O}
    s_add_u32 s59, s62, 4096""")
    def oloads():
        for i in range(8):
            a(f"buffer_load_dwordx4 v[{OF+4*i}:{OF+4*i+3}], v2, s[{WSR}:{WSR+3}], s{62 if i < 4 else 59} offen offset:{1024*(i&3)} sc1")
    srd(a, 36, PX, 0x200000)
    srd(a, 40, POUT, 0x200000)
    a(f"""s_lshl_b32 s63, s66, 5
    s_add_u32 s63, s63, s56
    v_and_b32 v4, 31, v1
    v_add_u32 v4, s63, v4
    v_lshlrev_b32 v5, 2, v4
    s_mov_b32 s64, {WS_G}
    buffer_load_dword v{GR}, v5, s[{WSR}:{WSR+3}], s64 offen sc1
    v_lshlrev_b32 v5, 3, v3
    v_lshl_add_u32 v5, v4, 10, v5
    s_lshl_b32 s65, s67, 5
    s_lshl_b32 s63, s57, 1
    s_add_u32 s65, s65, s63
    buffer_load_dwordx2 v[{XR}:{XR+1}], v5, s[36:39], s65 offen
    buffer_load_dwordx2 v[{XR+2}:{XR+3}], v5, s[36:39], s65 offen offset:16
    v_lshl_add_u32 v5, v3, 3, v5""")
    oloads()
    a(f"""s_lshl_b32 s63, s67, 1
    s_and_b32 s63, s63, 4
    s_add_u32 s63, s63, s58
    s_and_b32 s63, s63, 7
    s_mul_i32 s63, s63, {8*ST}
    s_and_b32 s64, s67, 1
    s_lshl_b32 s64, s64, 14
    s_add_u32 s63, s63, s64
    v_bfe_u32 v6, v1, 2, 2
    v_lshrrev_b32 v7, 1, v6
    v_lshl_add_u32 v6, v3, 2, v6
    v_lshlrev_b32 v6, 7, v6
    v_bfe_u32 v8, v1, 4, 1
    v_lshl_add_u32 v6, v8, 5, v6
    v_and_b32 v8, 3, v1
    v_lshl_add_u32 v6, v8, 3, v6
    v_lshl_add_u32 v8, v7, 6, v6
    v_add_u32 v8, s63, v8
    v_xor_b32 v9, 64, v8
    s_lshl_b32 s63, s67, 11
    s_lshl_b32 s64, s66, 6
    s_add_u32 s63, s63, s64
    s_add_u32 s63, s63, {QX}
    v_add_u32 v6, s63, v6
    ds_read_b64_tr_b16 v[{YR}:{YR+1}], v6
    ds_read_b64_tr_b16 v[{YR+2}:{YR+3}], v6 offset:1024""")
    for e in range(8):
        for mt in range(2):
            r = WF + 8*e + 4*mt
            if e == 3 and mt == 0: a("s_waitcnt lgkmcnt(6)")
            if e == 5 and mt == 0: a("s_waitcnt lgkmcnt(6)")
            if e == 7 and mt == 0: a("s_waitcnt lgkmcnt(6)")
            a(f"ds_read_b64_tr_b16 v[{r}:{r+1}], v{8+mt} offset:{e*2048}")
            a(f"ds_read_b64_tr_b16 v[{r+2}:{r+3}], v{8+mt} offset:{e*2048+1024}")
    a(f"""s_lshl_b32 s63, s66, 2
    s_add_u32 s63, s63, s58
    s_add_u32 s63, s63, 2
    s_and_b32 s63, s63, 7
    s_mul_i32 s70, s63, {8*ST}
    s_waitcnt vmcnt(8)
    v_sub_f32 v{GR+1}, 1.0, v{GR}""")
    for aa in range(2):
        x0, x1, y0, y1, t = XR + 2*aa, XR + 2*aa + 1, YR + 2*aa, YR + 2*aa + 1, AX + 4*aa
        a(f"""v_lshlrev_b32 v{t}, 16, v{x0}
        v_and_b32 v{t+1}, 0xffff0000, v{x0}
        v_lshlrev_b32 v{t+2}, 16, v{x1}
        v_and_b32 v{t+3}, 0xffff0000, v{x1}
        v_lshlrev_b32 v158, 16, v{y0}
        v_and_b32 v159, 0xffff0000, v{y0}
        v_lshlrev_b32 v160, 16, v{y1}
        v_and_b32 v161, 0xffff0000, v{y1}""")
        for e in range(4): a(f"v_mul_f32 v{t+e}, v{t+e}, v{158+e}")
        for e in range(4): a(f"v_mul_f32 v{t+e}, v{t+e}, v{GR}")
    a("s_mov_b32 s75, 0x40000")
    a.label("a_opoll")
    a(f"s_waitcnt vmcnt(0)\nv_max3_u32 v10, v{OF}, v{OF+1}, v{OF+2}")
    for i in range(3, 31, 2): a(f"v_max3_u32 v10, v10, v{OF+i}, v{OF+i+1}")
    a(f"""v_max_u32 v10, v10, v{OF+31}
    s_sub_u32 s75, s75, 1
    v_cmp_eq_u32 vcc, -1, v10
    s_cbranch_vccz a_oready
    s_cmp_eq_u32 s75, 0
    s_cbranch_scc1 a_oready""")
    oloads()
    a("s_branch a_opoll")
    a.label("a_oready")
    stamp(a, 6)
    a("s_waitcnt lgkmcnt(0)")
    for e in range(8):
        MF(a, C0, WF + 8*e, OF + 4*e, None if e == 0 else C0)
        MF(a, C1, WF + 8*e + 4, OF + 4*e, None if e == 0 else C1)
    a(f"""s_lshl_b32 s63, s67, 11
    s_add_u32 s63, s63, s70
    v_add_u32 v10, s63, v2
    s_lshl_b32 s63, s67, 13
    s_add_u32 s63, s63, s70
    v_add_u32 v11, s63, v2""")
    for ow in range(4):
        a(f"ds_write_b128 v10, v[{C0+8*ow}:{C0+8*ow+3}] offset:{8192*ow}")
        a(f"ds_write_b128 v10, v[{C0+8*ow+4}:{C0+8*ow+7}] offset:{8192*ow+1024}")
    a("s_waitcnt lgkmcnt(0)\ns_barrier")
    for sr in range(4):
        a(f"ds_read_b128 v[{OF+8*sr}:{OF+8*sr+3}], v11 offset:{2048*sr}")
        a(f"ds_read_b128 v[{OF+8*sr+4}:{OF+8*sr+7}], v11 offset:{2048*sr+1024}")
    a("s_waitcnt lgkmcnt(4)")
    for i in range(8): a(f"v_add_f32 v{OF+i}, v{OF+i}, v{OF+8+i}")
    a("s_waitcnt lgkmcnt(0)")
    for i in range(8): a(f"v_add_f32 v{OF+16+i}, v{OF+16+i}, v{OF+24+i}")
    for i in range(8): a(f"v_add_f32 v{OF+i}, v{OF+i}, v{OF+16+i}")
    for i in range(8): a(f"v_fmac_f32 v{AX+i}, v{OF+i}, v{GR+1}")
    for i in range(4): a(f"v_cvt_pk_bf16_f32 v{OF+i}, v{AX+2*i}, v{AX+2*i+1}")
    a(f"""v_permlane32_swap_b32 v{OF}, v{OF+2}
    v_permlane32_swap_b32 v{OF+1}, v{OF+3}
    buffer_store_dwordx4 v[{OF}:{OF+3}], v5, s[40:43], s65 offen""")
    fin(a)
    a.label("k_end")
    a("s_endpgm")
    return a.finish()

def build():
    hdr = open("cdna_kernels/" + NAME + ".s.ref").read().split("; Override launch")[0]
    out = hdr + f"; @launch grid=(256,1,1) block=(768,1,1) lds={LEND}\n"
    out += f'.amdgcn_target "amdgcn-amd-amdhsa--gfx950"\n.text\n.globl {KN}\n.p2align 8\n.type {KN},@function\n' + kernel()
    out += f""".section .rodata,"a"
.p2align 6
.amdhsa_kernel {KN}
  .amdhsa_next_free_vgpr 168
  .amdhsa_next_free_sgpr {100 if DIAG else 80}
  .amdhsa_accum_offset 168
  .amdhsa_group_segment_fixed_size 0
  .amdhsa_kernarg_size 120
  .amdhsa_user_sgpr_count 2
  .amdhsa_user_sgpr_kernarg_segment_ptr 1
  .amdhsa_system_sgpr_workgroup_id_x 1
.end_amdhsa_kernel
"""
    return out

if __name__ == "__main__":
    if "-d" in sys.argv:
        DIAG = True; sys.argv.remove("-d")
    dst = sys.argv[1] if len(sys.argv) > 1 else "cdna_kernels/" + NAME + ".s"
    open(dst, "w").write(build())
    print("wrote", dst)
```

```python
import sys, math, struct
from asmlib import Asm

NAME = "gated_mix__ssm_conv_h3__grouped_kv_mqa__prompt"
KN = NAME + "_kernel"
WS_KV, WS_KMAX, WS_G = 0x000000, 0x024000, 0x025000
WS_FKV, WS_FX, WS_FY = 0x028000, 0x02c000, 0x030000
WS_XREV, WS_O, WS_Y = 0x100000, 0x300000, 0x500000
WS_SIZE = 0x700000
ST = 2080
KVBYTES = 64 * ST
CSCALE = 0.25 * math.log2(math.e)
def f32(x): return "0x%08x" % struct.unpack("<I", struct.pack("<f", x))[0]

XT, WT, WKV = 0, 65536, 131072
QX = 149824
YT = KVBYTES
XE0, XESZ, XOOFF = KVBYTES, 8320, 4160
CNT = 149760
LEND = 163840
OX0, OX1 = 141312, 149824

DIAG = False
LIGHT = False
OPT = {}
WS_DIAG = 0x1000000
def hst(a, idx, tail):
    if bool(OPT.get("tailst")) == tail: stamp(a, idx)
def stamp(a, idx, real=False):
    if not DIAG: return
    if LIGHT and idx < 8: return
    a(f"{'s_memrealtime' if real else 's_memtime'} s[{80+2*idx}:{81+2*idx}]\ns_waitcnt lgkmcnt(0)")
def fin(a):
    if DIAG:
        a("s_waitcnt vmcnt(0)")
        stamp(a, 7); stamp(a, 9, True)
        a(f"""s_add_u32 s68, s30, {WS_DIAG}
        s_addc_u32 s69, s31, 0
        s_mov_b32 s70, 0x40000
        s_mov_b32 s71, 0x20000
        s_lshl_b32 s67, s2, 4
        s_add_u32 s67, s67, s3
        s_lshl_b32 s67, s67, 6
        s_mov_b64 exec, 1
        v_mov_b32 v0, 0""")
        for i in range(10):
            a(f"v_mov_b32 v1, s{80+2*i}\nbuffer_store_dword v1, v0, s[68:71], s67 offen offset:{4*i}")
    a("s_endpgm")

def srd(a, d, lo, size):
    a(f"s_mov_b32 s{d}, s{lo}\ns_mov_b32 s{d+1}, s{lo+1}\ns_mov_b32 s{d+2}, {size}\ns_mov_b32 s{d+3}, 0x20000")
def srd_off(a, d, lo, off, size):
    a(f"s_add_u32 s{d}, s{lo}, {off}\ns_addc_u32 s{d+1}, s{lo+1}, 0\ns_mov_b32 s{d+2}, {size}\ns_mov_b32 s{d+3}, 0x20000")
def dma(a, voff, srdn, soff, m0, flags=""):
    a(f"s_mov_b32 m0, {m0}")
    a(f"buffer_load_dwordx4 v{voff}, s[{srdn}:{srdn+3}], {soff} offen {flags} lds")
PX, PK, PV, PSH, PH, PD, PWQ, PWK, PWV, PWO, PGW, POUT, PWS = 4, 6, 8, 10, 12, 14, 18, 20, 22, 24, 26, 28, 30
WSR = 32
TAG = 77
_n = [0]
def lds_wait(a, vaddr, off, val, vt, sleep=1):
    _n[0] += 1; l = f"lw{_n[0]}"
    a("s_mov_b32 s75, 0x100000")
    a.label(l)
    a(f"""ds_read_b32 v{vt}, v{vaddr} offset:{off}
    s_sub_u32 s75, s75, 1
    s_waitcnt lgkmcnt(0)
    v_readfirstlane_b32 s74, v{vt}
    s_cmp_ge_u32 s74, {val}
    s_cbranch_scc1 {l}_ok
    s_sleep {sleep}
    s_cmp_lg_u32 s75, 0
    s_cbranch_scc1 {l}""")
    a.label(l + "_ok")
def lds_add(a, vaddr, off, vone):
    a(f"s_mov_b64 exec, 1\nds_add_u32 v{vaddr}, v{vone} offset:{off}\ns_mov_b64 exec, -1")
def publish(a, vaddr, off, vone, vt, sflag, nwaves):
    _n[0] += 1; l = f"pb{_n[0]}"
    a(f"""s_mov_b64 exec, 1
    ds_add_rtn_u32 v{vt}, v{vaddr}, v{vone} offset:{off}
    s_waitcnt lgkmcnt(0)
    v_readfirstlane_b32 s74, v{vt}
    s_cmp_lg_u32 s74, {nwaves-1}
    s_cbranch_scc1 {l}
    v_mov_b32 v{vt}, s{TAG}
    v_mov_b32 v{vt+1}, 0
    buffer_store_dword v{vt}, v{vt+1}, s[{WSR}:{WSR+3}], s{sflag} offen sc1""")
    a.label(l)
    a("s_mov_b64 exec, -1")
def poll32(a, sbase, vt, word, rowgrp=False):
    _n[0] += 1; l = f"pl{_n[0]}"
    a(f"s_cmp_lg_u32 s66, 0\ns_cbranch_scc1 {l}_lds")
    a(f"v_lshlrev_b32 v{vt}, 6, v1")
    if rowgrp:
        a(f"""s_lshl_b32 s74, s61, 11
        v_add_u32 v{vt}, s74, v{vt}
        s_lshl_b32 s74, s60, 6
        s_mov_b32 exec_lo, 0
        v_and_b32 v{vt}, 7, v1
        v_lshlrev_b32 v{vt}, 11, v{vt}
        v_add_u32 v{vt}, s74, v{vt}
        s_mov_b32 exec_lo, -1""")
    a(f"s_mov_b32 exec_hi, {0xff if rowgrp else 0}\ns_mov_b32 s75, 0x40000")
    a.label(l)
    a(f"""buffer_load_dword v{vt+1}, v{vt}, s[{WSR}:{WSR+3}], s{sbase} offen sc1
    s_sub_u32 s75, s75, 1
    s_waitcnt vmcnt(0)
    v_cmp_ne_u32 vcc, s{TAG}, v{vt+1}
    s_cbranch_vccz {l}_ok
    s_mov_b64 exec, vcc
    s_sleep 4
    s_cmp_lg_u32 s75, 0
    s_cbranch_scc1 {l}""")
    a.label(l + "_ok")
    a(f"s_mov_b64 exec, -1\nds_write_b32 v3, v14 offset:{word}\ns_branch {l}_done")
    a.label(l + "_lds")
    lds_wait(a, 3, word, 1, vt, 2)
    a.label(l + "_done")

def w_src(a, v, t0, t1):
    a(f"""v_lshrrev_b32 v{t0}, 3, v1
    v_lshlrev_b32 v{t1}, 1, v{t0}
    v_and_b32 v{t1}, 4, v{t1}
    v_and_b32 v{v}, 7, v1
    v_xor_b32 v{v}, v{v}, v{t1}
    v_lshlrev_b32 v{v}, 4, v{v}
    v_lshl_add_u32 v{v}, v{t0}, 10, v{v}
    s_lshl_b32 s63, s57, 1
    v_add_u32 v{v}, s63, v{v}""")

MF = lambda a, d, A, B, C: a(f"v_mfma_f32_32x32x16_bf16 v[{d}:{d+15}], v[{A}:{A+3}], v[{B}:{B+3}], " + ("0" if C is None else f"v[{C}:{C+15}]"))

def kv_unit_step(a, step):
    a(f"""s_cmp_ge_u32 s59, 130
    s_cselect_b32 s63, 130, 0
    s_sub_u32 s59, s59, s63
    s_lshl_b32 s63, s59, 10
    s_add_u32 s59, s59, {step}""")

def kernel():
    a = Asm()
    a.label(KN)
    a("s_cmp_ge_u32 s2, 256\ns_cbranch_scc1 k_end")
    stamp(a, 8, True); stamp(a, 0)
    a("""s_load_dwordx2 s[30:31], s[0:1], 112
    s_load_dwordx16 s[4:19], s[0:1], 0
    s_load_dwordx8 s[20:27], s[0:1], 64
    s_load_dwordx2 s[28:29], s[0:1], 96
    v_lshrrev_b32 v2, 6, v0
    v_and_b32 v1, 63, v0
    v_readfirstlane_b32 s3, v2
    s_and_b32 s60, s2, 7
    s_lshl_b32 s60, s60, 2
    s_lshr_b32 s61, s2, 3
    s_and_b32 s62, s61, 3
    s_add_u32 s60, s60, s62
    s_lshr_b32 s61, s61, 2
    s_lshl_b32 s56, s60, 6
    s_lshl_b32 s57, s61, 6
    s_add_u32 s59, s61, s62
    s_add_u32 s59, s59, s2
    s_and_b32 s59, s59, 3
    s_lshr_b32 s76, s61, 1
    s_lshl_b32 s58, s62, 1
    v_lshlrev_b32 v2, 4, v1
    s_cmp_lt_u32 s3, 8
    s_cbranch_scc1 k_att""")
    a("s_sub_u32 s66, s3, 8\nv_lshrrev_b32 v9, 4, v1\nv_and_b32 v10, 15, v1")
    for q in range(4):
        a(f"""v_add_u32 v11, {4*q}, v9
        v_xor_b32 v12, v11, v10
        v_lshlrev_b32 v12, 4, v12
        v_lshl_add_u32 v{4+q}, v11, 10, v12""")
    a("""s_add_u32 s63, s59, s66
    s_and_b32 s63, s63, 3
    s_lshl_b32 s64, s76, 4
    s_add_u32 s64, s64, s56
    s_lshl_b32 s64, s64, 10
    s_lshl_b32 s65, s63, 8
    s_add_u32 s64, s64, s65
    s_lshl_b32 s65, s63, 12
    s_lshl_b32 s67, s66, 14
    s_lshl_b32 s68, s76, 12
    s_add_u32 s67, s67, s68
    s_lshl_b32 s68, s66, 12
    s_and_b32 s69, s61, 1
    s_cmp_eq_u32 s69, 0
    s_waitcnt lgkmcnt(0)""")
    a(f"""s_cselect_b32 s40, s{PWK}, s{PWV}
    s_cselect_b32 s41, s{PWK+1}, s{PWV+1}
    s_mov_b32 s42, 0x4000
    s_mov_b32 s43, 0x20000""")
    srd(a, 36, PX, 0x200000)
    for q in range(4):
        a(f"s_add_u32 s63, s67, {XT + q*1024}")
        dma(a, 4 + q, 36, "s64", "s63")
        a(f"s_add_u32 s63, s68, {WKV + q*1024}")
        dma(a, 2, 40, "s65", "s63")
        if q < 3: a("s_add_u32 s65, s65, 1024")
    srd(a, 44, PWQ, 0x80000)
    srd(a, WSR, PWS, WS_SIZE)
    a(f"s_add_u32 s78, s30, {WS_FY}\ns_addc_u32 s79, s31, 0\ns_load_dword s{TAG}, s[78:79], 0")
    w_src(a, 8, 9, 10)
    a(f"""s_lshl_b32 s63, s66, 2
    v_lshrrev_b32 v9, 4, v1
    v_add_u32 v11, s63, v9
    v_and_b32 v10, 15, v1
    v_xor_b32 v12, v11, v10
    v_lshlrev_b32 v12, 4, v12
    v_lshl_add_u32 v13, v11, 10, v12
    v_mov_b32 v3, {CNT}""")
    def stage1(slot):
        a(f"""s_add_u32 s63, s59, {slot}
        s_and_b32 s63, s63, 3
        s_lshl_b32 s67, s63, 17
        s_lshl_b32 s64, s66, 15
        s_add_u32 s67, s67, s64
        s_lshl_b32 s65, s63, 8
        s_lshl_b32 s64, s56, 10
        s_add_u32 s65, s65, s64
        s_lshl_b32 s69, s66, 10""")
        for q in range(4):
            a(f"s_add_u32 s63, s68, {WT + slot*16384 + q*1024}")
            dma(a, 8, 44, "s67", "s63")
            if q < 3:
                a(f"""s_add_u32 s67, s67, 8192
                s_add_u32 s63, s76, {q+1}
                s_and_b32 s63, s63, 3
                s_lshl_b32 s64, s63, 14
                s_add_u32 s64, s64, s65
                s_lshl_b32 s63, s63, 12
                s_add_u32 s63, s63, s69
                s_add_u32 s63, s63, {XT + slot*16384}""")
                dma(a, 13, 36, "s64", "s63")
    a("""v_lshl_add_u32 v14, v1, 2, v3
    v_mov_b32 v15, 0
    s_mov_b64 exec, 0xffff
    ds_write_b32 v14, v15
    s_mov_b64 exec, -1
    v_mov_b32 v14, 1""")
    a("s_waitcnt vmcnt(0) lgkmcnt(0)\ns_barrier")
    a(f"s_mul_i32 s{TAG}, s{TAG}, 0x9e3779b1\ns_add_u32 s{TAG}, s{TAG}, 0x7f4a7c15")
    stage1(0); stage1(1); stage1(2); stage1(3)
    a("s_waitcnt vmcnt(14)\ns_barrier\ns_waitcnt vmcnt(0)\ns_barrier")
    a(f"""s_setprio 3
    s_lshr_b32 s67, s66, 1
    s_and_b32 s68, s66, 1
    s_lshl_b32 s69, s60, 1
    s_add_u32 s69, s69, s57
    s_add_u32 s69, s69, s67
    s_lshl_b32 s70, s69, 12""")
    srd(a, 36, PK, 0x200000)
    srd(a, 40, PV, 0x200000)
    srd(a, 44, PSH, 4096)
    srd_off(a, 48, PH, "s70", 4096)
    srd(a, 52, PD, 1024)
    def first_batch(n):
        for j in range(n):
            kv_unit_step(a, 4)
            dma(a, 2, WSR, "s63", "s63", "sc1")
    a(f"""s_lshl_b32 s63, s67, 2
    s_add_u32 s63, s63, s58
    s_and_b32 s63, s63, 7
    s_mul_i32 s59, s63, 65
    s_lshr_b32 s59, s59, 2
    s_add_u32 s59, s59, s68
    s_add_u32 s59, s59, 12""")
    def bulk(n, lbl):
        a(f"s_mov_b32 s72, {n}")
        a.label(lbl)
        kv_unit_step(a, 2)
        dma(a, 2, WSR, "s63", "s63", "sc1")
        a(f"s_sub_u32 s72, s72, 1\ns_cmp_lg_u32 s72, 0\ns_cbranch_scc1 {lbl}")
    H = 160 - 16
    vA, vB0, vB1 = 34, 35, 33
    AF, BF, B2F, ACC0, ACC1 = 48, 80, 112, 128, 144
    a(f"""v_lshrrev_b32 v5, 3, v1
    v_and_b32 v6, 7, v1
    v_lshlrev_b32 v6, 4, v6
    v_lshl_add_u32 v6, v5, 10, v6
    s_lshl_b32 s63, s57, 1
    v_add_u32 v6, s63, v6
    s_lshl_b32 s63, s66, 4
    s_add_u32 s63, s63, s57
    v_and_b32 v7, 15, v1
    v_add_u32 v7, s63, v7
    v_lshlrev_b32 v18, 3, v7
    s_lshl_b32 s64, s56, 10
    s_sub_u32 s64, s64, 3072
    v_lshrrev_b32 v17, 4, v1
    v_lshlrev_b32 v19, 14, v17
    v_lshl_add_u32 v19, v7, 1, v19
    v_add_u32 v19, s64, v19
    s_lshl_b32 s63, s69, 1
    v_mov_b32 v20, s63
    v_bfe_u32 v16, v1, 2, 2
    v_lshlrev_b32 v16, 7, v16
    v_lshl_add_u32 v16, v17, 12, v16
    v_lshlrev_b32 v24, 5, v17
    v_and_b32 v17, 3, v1
    v_lshl_add_u32 v16, v17, 3, v16
    s_lshl_b32 s63, s66, 5
    s_add_u32 s63, s63, {XE0}
    v_add_u32 v16, s63, v16
    v_lshrrev_b32 v26, 2, v1
    v_mul_u32_u24 v32, {XOOFF}, v26
    v_mul_u32_u24 v26, 144, v26
    v_lshlrev_b32 v17, 4, v17
    v_sub_u32 v26, v17, v26
    s_lshl_b32 s63, s67, 6
    s_add_u32 s63, s63, {LEND - 144 - 3*2304}
    v_add_u32 v26, s63, v26
    v_and_b32 v21, 0x1f7, v7
    v_lshlrev_b32 v21, 12, v21
    v_sub_u32 v21, v21, v24
    v_and_b32 v9, 8, v1
    v_lshl_add_u32 v21, v9, 1, v21
    v_add_u32 v21, 96, v21
    s_mul_i32 s71, s67, {XESZ}
    s_add_u32 s71, s71, {XE0}
    v_add_u32 v27, s71, v2
    v_add_u32 v32, v32, v17
    s_add_u32 s63, s71, 4096
    v_add_u32 v32, s63, v32
    v_and_b32 v4, 31, v1
    v_lshrrev_b32 v5, 5, v1
    v_or_b32 v9, 1, v4
    v_lshlrev_b32 v17, 3, v5
    v_sub_u32 v9, v17, v9
    s_cmp_eq_u32 s68, 0
    s_cselect_b32 s63, 1055, 31
    s_sub_u32 s63, s63, 256
    v_add_u32 v9, s63, v9
    v_lshlrev_b32 v9, 1, v9
    v_and_b32 v17, 1, v4
    v_xor_b32 v17, 1, v17
    v_mul_u32_u24 v17, {XOOFF}, v17
    v_add3_u32 v{vA}, v9, v17, s71
    v_mul_u32_u24 v9, 144, v4
    v_lshlrev_b32 v17, 4, v5
    v_sub_u32 v9, v17, v9
    s_lshl_b32 s63, s67, 6
    s_add_u32 s63, s63, {LEND + 144*23 + 1152}
    v_add_u32 v{vB0}, s63, v9
    v_mov_b32 v28, 0
    v_mov_b32 v29, 0
    v_mov_b32 v30, 0
    v_mov_b32 v31, 0
    s_lshl_b32 s63, s68, 11
    v_lshlrev_b32 v22, 6, v4
    v_lshl_add_u32 v22, v5, 3, v22
    v_add_u32 v22, s63, v22
    s_add_u32 s63, s71, {4088 - 48}
    v_sub_u32 v22, s63, v22
    v_and_b32 v23, 27, v4
    v_lshlrev_b32 v23, 6, v23
    v_lshl_add_u32 v23, v5, 4, v23
    v_and_b32 v9, 4, v4
    v_lshl_add_u32 v23, v9, 3, v23
    s_lshl_b32 s63, s68, 11
    v_add_u32 v23, s63, v23""")
    for i in range(16): a(f"v_mov_b32 v{ACC0+i}, 0")
    w_src(a, 8, 9, 10)
    a(f"""s_lshl_b32 s64, s66, 4
    s_add_u32 s64, s64, s56
    s_lshl_b32 s64, s64, 10
    s_add_u32 s65, s64, 8192
    s_lshl_b32 s73, s66, 12
    s_add_u32 s73, s73, {XE0}
    s_barrier
    s_barrier""")
    hst(a, 1, False)
    bulk(12, "h_bulk1")
    a("s_waitcnt vmcnt(4)")
    lds_add(a, 3, 4, 14)
    dma(a, 6, 36, "s64", "s73")
    a("s_add_u32 s63, s73, 1024"); dma(a, 6, 36, "s65", "s63")
    a("s_add_u32 s63, s73, 2048"); dma(a, 6, 40, "s64", "s63")
    a("s_add_u32 s63, s73, 3072"); dma(a, 6, 40, "s65", "s63")
    a(f"""buffer_load_dwordx2 v[10:11], v18, s[44:47], 0 offen
    buffer_load_ushort v12, v19, s[36:39], 0 offen
    buffer_load_ushort v13, v19, s[36:39], 0 offen offset:1024
    buffer_load_ushort v15, v19, s[36:39], 0 offen offset:2048""")
    bulk(15, "h_bulk2")
    for i in range(4):
        a(f"buffer_load_dwordx4 v[{H+4*i}:{H+4*i+3}], v2, s[48:51], 0 offen offset:{1024*i}")
    a("buffer_load_ushort v25, v20, s[52:55], 0 offen\ns_waitcnt vmcnt(5)")
    lds_add(a, 3, 8, 14)
    if OPT.get("noconv"): fin(a)
    lds_add(a, 3, 40, 14)
    lds_wait(a, 3, 40, 4, 9)
    hst(a, 2, False)
    KR, VR, KF, VF = 36, 44, 52, 72
    for i in range(4): a(f"ds_read_b64_tr_b16 v[{KR+2*i}:{KR+2*i+1}], v16 offset:{i*512}")
    for i in range(4): a(f"ds_read_b64_tr_b16 v[{VR+2*i}:{VR+2*i+1}], v16 offset:{2048 + i*512}")
    a(f"""v_lshlrev_b32 v88, 16, v10
    v_and_b32 v89, 0xffff0000, v10
    v_lshlrev_b32 v90, 16, v11
    v_and_b32 v91, 0xffff0000, v11
    v_lshlrev_b32 v{KF}, 16, v12
    v_lshlrev_b32 v{KF+1}, 16, v13
    v_lshlrev_b32 v{KF+2}, 16, v15
    s_waitcnt lgkmcnt(4)""")
    for i in range(8):
        a(f"v_lshlrev_b32 v{KF+3+2*i}, 16, v{KR+i}\nv_and_b32 v{KF+4+2*i}, 0xffff0000, v{KR+i}")
    a("s_waitcnt lgkmcnt(0)")
    for i in range(8):
        a(f"v_lshlrev_b32 v{VF+2*i}, 16, v{VR+i}\nv_and_b32 v{VF+1+2*i}, 0xffff0000, v{VR+i}")
    for s in range(16):
        t = 36 + (s % 8)
        a(f"""v_mul_f32 v{t}, v{KF+s}, v91
        v_fmac_f32 v{t}, v{KF+s+1}, v90
        v_fmac_f32 v{t}, v{KF+s+2}, v89
        v_fmac_f32 v{t}, v{KF+s+3}, v88
        v_mul_f32 v{VF+s}, v{t}, v{VF+s}""")
    for q in range(8):
        a(f"v_cvt_pk_bf16_f32 v{44+q}, v{VF+15-2*q}, v{VF+14-2*q}")
    for i in range(4):
        a(f"v_mov_b32 v{52+i}, v{44+i}")
    for i in range(4):
        a(f"v_mov_b32_dpp v{44+i}, v{48+i} row_ror:8 row_mask:0xf bank_mask:0xc")
        a(f"v_mov_b32_dpp v{48+i}, v{52+i} row_ror:8 row_mask:0xf bank_mask:0x3")
    a(f"""s_lshl_b32 s64, s56, 1
    s_sub_u32 s64, {WS_XREV + 4064 - 96}, s64
    s_add_u32 s63, s64, 32768
    buffer_store_dwordx4 v[44:47], v21, s[{WSR}:{WSR+3}], s64 offen sc1
    buffer_store_dwordx4 v[48:51], v21, s[{WSR}:{WSR+3}], s63 offen sc1
    s_lshl_b32 s72, s61, 11
    s_lshl_b32 s65, s60, 6
    s_add_u32 s65, s65, s72
    s_add_u32 s64, s72, {WS_FX}
    s_add_u32 s73, s65, {WS_FX}
    s_waitcnt vmcnt(2)""")
    for i in range(4): a(f"ds_write_b128 v26, v[{H+4*i}:{H+4*i+3}] offset:{2304*(3-i)}")
    a("s_waitcnt vmcnt(0)")
    publish(a, 3, 16, 14, 16, 73, 4)
    hst(a, 3, False)
    a(f"s_add_u32 s63, s70, {WS_XREV}")
    srd_off(a, 40, PWS, "s63", 4096)
    a(f"s_add_u32 s63, s70, {WS_Y}")
    srd_off(a, 44, PWS, "s63", 4096)
    poll32(a, 64, 16, 52)
    hst(a, 4, False)
    X = 52
    for i in range(4):
        a(f"buffer_load_dwordx4 v[{X+6*i}:{X+6*i+3}], v2, s[40:43], 0 offen offset:{1024*i} sc1")
        a(f"buffer_load_dword v{X+6*i+4}, v2, s[40:43], 0 offen offset:{1024*i+16} sc1")
    srd(a, 36, PWO, 0x80000)
    a("s_lshr_b32 s63, s2, 3\ns_lshl_b32 s63, s63, 14\ns_lshl_b32 s74, s66, 12\ns_add_u32 s63, s63, s74")
    for i in range(4):
        a(f"buffer_load_dwordx4 v[160:163], v2, s[36:39], s63 offen offset:{1024*i}")
    a("s_mov_b64 exec, 0xff\nds_write_b128 v32, v[28:31]\ns_mov_b64 exec, -1")
    for i in range(4):
        x = X + 6*i
        a(f"s_waitcnt vmcnt({10-2*i})")
        a(f"ds_write_b128 v27, v[{x}:{x+3}] offset:{1024*i}")
        for j in range(4): a(f"v_alignbit_b32 v{36+4*(i&1)+j}, v{x+j+1}, v{x+j}, 16")
        a(f"ds_write_b128 v27, v[{36+4*(i&1)}:{39+4*(i&1)}] offset:{XOOFF+1024*i}")
    a("s_waitcnt lgkmcnt(0)")
    def creads(t, dual):
        b = t % 4; b2 = t % 2
        if t == 0:
            a(f"v_add_u32 v{vA}, 512, v{vA}\nv_subrev_u32 v{vB0}, 1152, v{vB0}")
            if dual: a(f"v_subrev_u32 v{vB1}, 1152, v{vB1}")
        for u in range(2):
            o = (2*t + u) * 8
            r = AF + 8*b + 4*u
            a(f"ds_read2_b32 v[{r}:{r+1}], v{vA} offset0:{o} offset1:{o+1}")
            a(f"ds_read2_b32 v[{r+2}:{r+3}], v{vA} offset0:{o+2} offset1:{o+3}")
        for u in range(2):
            r = BF + 8*b + 4*u
            a(f"ds_read_b128 v[{r}:{r+3}], v{vB0} offset:{144*(7-t) + 32*u}")
        if dual:
            for u in range(2):
                r = B2F + 8*b2 + 4*u
                a(f"ds_read_b128 v[{r}:{r+3}], v{vB1} offset:{144*(7-t) + 32*u}")
    a("s_cmp_eq_u32 s68, 0\ns_cselect_b32 s72, 2, 6")
    creads(0, False); creads(1, False)
    a.label("h_conv1")
    for t in range(8):
        b = t % 4
        a("s_waitcnt lgkmcnt(6)")
        for u in range(2): MF(a, ACC0, AF + 8*b + 4*u, BF + 8*b + 4*u, ACC0)
        creads((t + 2) % 8, False)
    a("s_sub_u32 s72, s72, 1\ns_cmp_lg_u32 s72, 0\ns_cbranch_scc1 h_conv1")
    a("s_cmp_lg_u32 s68, 0\ns_cbranch_scc1 h_convb")
    a(f"""s_waitcnt lgkmcnt(0)
    v_subrev_u32 v{vA}, 512, v{vA}
    v_add_u32 v{vB0}, 1152, v{vB0}
    v_subrev_u32 v{vB1}, {144*32}, v{vB0}
    s_mov_b32 s72, 2""")
    for i in range(16): a(f"v_mov_b32 v{ACC1+i}, 0")
    creads(0, True)
    a.label("h_conv2")
    for t in range(8):
        b = t % 4; b2 = t % 2
        a("s_waitcnt lgkmcnt(0)")
        creads((t + 1) % 8, True)
        for u in range(2):
            MF(a, ACC0, AF + 8*b + 4*u, BF + 8*b + 4*u, ACC0)
            MF(a, ACC1, AF + 8*b + 4*u, B2F + 8*b2 + 4*u, ACC1)
    a("s_sub_u32 s72, s72, 1\ns_cmp_lg_u32 s72, 0\ns_cbranch_scc1 h_conv2")
    a(f"s_lshl_b32 s63, s67, 2\nv_add_u32 v9, s63, v3\ns_waitcnt lgkmcnt(0)")
    lds_wait(a, 9, 32, 1, 16)
    for i in range(4): a(f"ds_write_b128 v27, v[{ACC1+4*i}:{ACC1+4*i+3}] offset:{XOOFF + 1024*i}")
    a("s_waitcnt lgkmcnt(0)")
    lds_add(a, 9, 24, 14)
    a("s_branch h_cepi")
    a.label("h_convb")
    a(f"s_lshl_b32 s63, s67, 2\nv_add_u32 v9, s63, v3\ns_waitcnt lgkmcnt(0)")
    lds_add(a, 9, 32, 14)
    lds_wait(a, 9, 24, 1, 16)
    for i in range(4): a(f"ds_read_b128 v[{ACC1+4*i}:{ACC1+4*i+3}], v27 offset:{XOOFF + 1024*i}")
    a("s_waitcnt lgkmcnt(0)")
    for i in range(8): a(f"v_pk_add_f32 v[{ACC0+2*i}:{ACC0+2*i+1}], v[{ACC0+2*i}:{ACC0+2*i+1}], v[{ACC1+2*i}:{ACC1+2*i+1}]")
    a.label("h_cepi")
    hst(a, 1, True)
    hst(a, 5, False)
    for aa in range(4):
        a(f"ds_read_b64 v[{48+2*aa}:{49+2*aa}], v22 offset:{48 - 16*aa}")
    a("v_lshlrev_b32 v25, 16, v25\ns_waitcnt lgkmcnt(0)")
    for aa in range(4):
        d0, d1 = 48 + 2*aa, 49 + 2*aa
        a(f"""v_and_b32 v36, 0xffff0000, v{d1}
        v_lshlrev_b32 v37, 16, v{d1}
        v_and_b32 v38, 0xffff0000, v{d0}
        v_lshlrev_b32 v39, 16, v{d0}
        v_fmac_f32 v{ACC0+4*aa}, v36, v25
        v_fmac_f32 v{ACC0+4*aa+1}, v37, v25
        v_fmac_f32 v{ACC0+4*aa+2}, v38, v25
        v_fmac_f32 v{ACC0+4*aa+3}, v39, v25
        v_cvt_pk_bf16_f32 v{40+2*aa}, v{ACC0+4*aa}, v{ACC0+4*aa+1}
        v_cvt_pk_bf16_f32 v{41+2*aa}, v{ACC0+4*aa+2}, v{ACC0+4*aa+3}""")
    for p in range(2):
        r = 40 + 4*p
        a(f"v_permlane32_swap_b32 v{r}, v{r+2}\nv_permlane32_swap_b32 v{r+1}, v{r+3}")
    for i in range(4): a(f"v_mov_b32 v{56+i}, v{40+i}")
    for i in range(4):
        a(f"v_mov_b32_dpp v{40+i}, v{44+i} row_shr:4 row_mask:0xf bank_mask:0xa")
        a(f"v_mov_b32_dpp v{44+i}, v{56+i} row_shl:4 row_mask:0xf bank_mask:0x5")
    for p in range(2):
        a(f"buffer_store_dwordx4 v[{40+4*p}:{43+4*p}], v23, s[44:47], 0 offen offset:{256*p} sc1")
    a(f"s_add_u32 s73, s65, {WS_FY}\ns_mov_b32 s64, {WS_FY}")
    lds_wait(a, 3, 44, 8, 16)
    a("s_waitcnt vmcnt(0)")
    publish(a, 3, 20, 14, 16, 73, 4)
    hst(a, 2, True)
    lds_wait(a, 3, 12, 8, 16, 4)
    hst(a, 3, True)
    a(f"""s_mul_i32 s72, s58, {8*ST}
    s_add_u32 s63, s58, 4
    s_and_b32 s63, s63, 7
    s_mul_i32 s73, s63, {8*ST}
    s_lshl_b32 s63, s66, 12
    s_add_u32 s72, s72, s63
    s_add_u32 s73, s73, s63
    s_lshl_b32 s67, s66, 15""")
    for sl in range(4):
        for q in range(4):
            a(f"s_add_u32 s63, s{72 + (sl>>1)}, {(sl&1)*16384 + q*1024}")
            dma(a, 8, 36, "s67", "s63")
            a(f"s_add_u32 s67, s67, {8192 if q < 3 else 131072 - 3*8192}")
    hst(a, 6, False)
    hst(a, 4, True)
    poll32(a, 64, 16, 56, True)
    hst(a, 5, True)
    a(f"""v_lshrrev_b32 v9, 3, v1
    v_and_b32 v13, 7, v1
    v_lshlrev_b32 v13, 4, v13
    v_lshl_add_u32 v13, v9, 12, v13
    s_lshl_b32 s64, s66, 4
    s_add_u32 s64, s64, s57
    s_lshl_b32 s64, s64, 12
    s_lshl_b32 s65, s56, 1
    s_add_u32 s64, s64, s65
    s_add_u32 s64, s64, {WS_Y}
    s_add_u32 s65, s64, 32768
    buffer_load_dwordx4 v[16:19], v13, s[{WSR}:{WSR+3}], s64 offen sc1
    buffer_load_dwordx4 v[20:23], v13, s[{WSR}:{WSR+3}], s65 offen sc1
    s_lshl_b32 s63, s66, 11
    s_add_u32 s63, s63, {YT}
    v_add_u32 v9, s63, v2
    s_waitcnt vmcnt(0)
    ds_write_b128 v9, v[16:19]
    ds_write_b128 v9, v[20:23] offset:1024
    s_waitcnt lgkmcnt(0)""")
    fin(a)

    a.label("k_att")
    QA, QB, NMA, NMB, SA, SB, PA, PB, OA, OB, KB, VB = 4, 8, 12, 28, 44, 60, 76, 84, 92, 108, 124, 132
    vK, vV, vKn, vVn, vKl, vVl, vC, T = 148, 149, 150, 151, 2, 152, 153, 154
    a(f"""s_lshr_b32 s63, s3, 2
    s_lshl_b32 s62, s60, 1
    s_add_u32 s62, s62, s63
    s_lshl_b32 s62, s62, 5
    s_lshl_b32 s63, s61, 2
    s_add_u32 s62, s62, s63
    s_and_b32 s63, s3, 3
    s_add_u32 s62, s62, s63
    s_lshl_b32 s62, s62, 10
    s_add_u32 s62, s62, {WS_O}
    v_mov_b32 v{vC}, {CNT}
    s_waitcnt lgkmcnt(0)""")
    srd(a, WSR, PWS, WS_SIZE)
    a(f"""s_cmp_lt_u32 s3, 4
    s_cbranch_scc1 a_gemm
    s_cmp_lg_u32 s3, 4
    s_cbranch_scc1 a_idle""")
    GW = 64
    a(f"""s_add_u32 s78, s30, {WS_FY}
    s_addc_u32 s79, s31, 0
    s_load_dword s{TAG}, s[78:79], 0
    s_and_b32 s68, s61, 1
    v_lshrrev_b32 v8, 4, v1
    v_lshlrev_b32 v8, 4, v8
    s_lshr_b32 s64, s76, 1
    s_lshl_b32 s65, s60, 1
    s_add_u32 s64, s64, s65
    s_mul_i32 s64, s64, {ST}
    s_and_b32 s65, s76, 1
    v_and_b32 v17, 15, v1
    v_lshrrev_b32 v18, 4, v1
    v_xor_b32 v19, v17, v18
    v_lshlrev_b32 v19, 4, v19
    v_lshl_add_u32 v19, v17, 8, v19
    s_lshl_b32 s63, s76, 12
    v_add_u32 v20, s63, v19
    v_xor_b32 v21, 64, v20
    v_xor_b32 v22, 128, v20
    v_xor_b32 v23, 192, v20
    v_bfe_u32 v19, v1, 2, 2
    v_lshl_add_u32 v19, v18, 3, v19
    v_lshlrev_b32 v19, 5, v19
    v_and_b32 v24, 3, v1
    v_lshl_add_u32 v24, v24, 3, v19
    v_add_u32 v24, {WKV}, v24
    v_lshlrev_b32 v17, 4, v17
    v_lshrrev_b32 v18, 5, v1
    v_lshl_add_u32 v17, v18, 3, v17
    v_bfe_u32 v18, v1, 4, 1
    v_mov_b32 v9, 0
    s_lshr_b32 s69, s2, 2
    s_lshl_b32 s69, s69, 6
    s_and_b32 s63, s2, 3
    s_lshl_b32 s63, s63, 2
    s_add_u32 s69, s69, s63
    s_add_u32 s69, s69, {WS_FKV}
    s_cmp_lg_u32 s68, 0
    s_cbranch_scc1 a_vjob""")
    JD, JG, JX, JW = 28, 4, 32, 48
    def job(ktype):
        def reads(n):
            kc, e = n >> 2, n & 3
            a(f"ds_read_b128 v[{JX+4*e}:{JX+4*e+3}], v{20+e} offset:{kc*16384}")
            a(f"ds_read_b64_tr_b16 v[{JW+4*e}:{JW+4*e+1}], v24 offset:{kc*4096 + e*1024}")
            a(f"ds_read_b64_tr_b16 v[{JW+4*e+2}:{JW+4*e+3}], v24 offset:{kc*4096 + e*1024 + 128}")
        for n in range(4): reads(n)
        for n in range(16):
            e = n & 3
            a(f"s_waitcnt lgkmcnt({3*min(3, 15-n)})")
            x, w = f"v[{JX+4*e}:{JX+4*e+3}]", f"v[{JW+4*e}:{JW+4*e+3}]"
            c = "0" if n == 0 else f"v[{JD}:{JD+3}]"
            if ktype:
                a(f"v_mfma_f32_16x16x32_bf16 v[{JD}:{JD+3}], {w}, {x}, {c}")
            else:
                a(f"v_mfma_f32_16x16x32_bf16 v[{JD}:{JD+3}], {x}, {w}, {c}")
            if n + 4 < 16: reads(n + 4)
    a(f"""s_lshl_b32 s65, s65, 8
    s_add_u32 s64, s64, s65
    v_lshl_add_u32 v17, v18, 9, v17
    s_lshl_b32 s65, s60, 2
    s_add_u32 s65, s65, s76
    s_lshl_b32 s65, s65, 2
    s_add_u32 s65, s65, {WS_KMAX}
    s_waitcnt lgkmcnt(0)
    s_barrier""")
    job(True)
    a(f"s_mov_b32 s63, {f32(CSCALE)}")
    for e in range(4): a(f"v_mul_f32 v{JD+e}, s63, v{JD+e}")
    a(f"""v_cvt_pk_bf16_f32 v36, v{JD}, v{JD+1}
    v_cvt_pk_bf16_f32 v37, v{JD+2}, v{JD+3}
    buffer_store_dwordx2 v[36:37], v17, s[{WSR}:{WSR+3}], s64 offen sc1
    v_mul_f32 v38, v{JD}, v{JD}
    v_fmac_f32 v38, v{JD+1}, v{JD+1}
    v_fmac_f32 v38, v{JD+2}, v{JD+2}
    v_fmac_f32 v38, v{JD+3}, v{JD+3}
    v_mov_b32 v39, v38
    v_permlane32_swap_b32 v38, v39
    v_add_f32 v38, v38, v39
    v_mov_b32 v39, v38
    v_permlane16_swap_b32 v38, v39
    v_add_f32 v38, v38, v39
    v_max_f32_dpp v38, v38, v38 row_ror:8 row_mask:0xf bank_mask:0xf
    v_max_f32_dpp v38, v38, v38 row_ror:4 row_mask:0xf bank_mask:0xf
    v_max_f32_dpp v38, v38, v38 row_ror:2 row_mask:0xf bank_mask:0xf
    v_max_f32_dpp v38, v38, v38 row_ror:1 row_mask:0xf bank_mask:0xf
    s_mov_b64 exec, 1
    buffer_store_dword v38, v9, s[{WSR}:{WSR+3}], s65 offen sc1
    s_branch a_jobdone""")
    a.label("a_vjob")
    a(f"""s_mul_i32 s65, s65, 528
    s_add_u32 s64, s64, s65
    v_mov_b32 v12, 0x3f803f80
    v_mov_b32 v13, 0x3f803f80
    v_mov_b32 v14, 0x3f803f80
    v_mov_b32 v15, 0x3f803f80
    s_mov_b64 exec, 1
    buffer_store_dwordx4 v[12:15], v9, s[{WSR}:{WSR+3}], s64 offen offset:1536 sc1
    s_mov_b64 exec, -1
    v_lshl_add_u32 v17, v18, 8, v17
    s_waitcnt lgkmcnt(0)
    s_barrier""")
    job(False)
    a(f"""v_cvt_pk_bf16_f32 v36, v{JD}, v{JD+1}
    v_cvt_pk_bf16_f32 v37, v{JD+2}, v{JD+3}
    buffer_store_dwordx2 v[36:37], v17, s[{WSR}:{WSR+3}], s64 offen offset:1024 sc1
    s_mov_b64 exec, 1""")
    a.label("a_jobdone")
    stamp(a, 1)
    a(f"""s_mul_i32 s{TAG}, s{TAG}, 0x9e3779b1
    s_add_u32 s{TAG}, s{TAG}, 0x7f4a7c15
    v_mov_b32 v10, s{TAG}
    s_waitcnt vmcnt(0)
    buffer_store_dword v10, v9, s[{WSR}:{WSR+3}], s69 offen sc1
    s_mov_b64 exec, -1
    s_branch a_fetch""")
    a.label("a_idle")
    a("s_getpc_b64 s[48:49]")
    a.label("a_pc")
    a(f"""s_sub_u32 s48, s48, a_pc-{KN}
    s_subb_u32 s49, s49, 0
    s_mov_b32 s50, code_end-{KN}
    s_mov_b32 s51, 0x20000
    s_lshr_b32 s63, s2, 3
    s_lshl_b32 s63, s63, 10
    s_cmp_lg_u32 s3, 5
    s_cbranch_scc1 a_wqpf
    buffer_load_dwordx4 v[12:15], v2, s[48:51], s63 offen
    s_and_b32 s68, s61, 1
    s_cmp_lg_u32 s68, 0
    s_cbranch_scc1 a_bj
    v_lshrrev_b32 v8, 4, v1
    v_lshlrev_b32 v8, 4, v8""")
    srd(a, 52, PGW, 1024)
    for p in range(4):
        a(f"s_add_u32 s63, s59, {p}\ns_and_b32 s63, s63, 3\ns_lshl_b32 s63, s63, 8")
        for e in range(4):
            r = GW + 16*p + 4*e
            a(f"buffer_load_dwordx4 v[{r}:{r+3}], v8, s[52:55], s63 offen offset:{64*e}")
    a(f"""v_and_b32 v17, 15, v1
    v_lshrrev_b32 v18, 4, v1
    v_xor_b32 v19, v17, v18
    v_lshlrev_b32 v19, 4, v19
    v_lshl_add_u32 v19, v17, 8, v19
    s_lshl_b32 s63, s76, 12
    v_add_u32 v20, s63, v19
    v_xor_b32 v21, 64, v20
    v_xor_b32 v22, 128, v20
    v_xor_b32 v23, 192, v20
    s_lshl_b32 s65, s60, 2
    s_add_u32 s65, s65, s76
    s_lshl_b32 s67, s65, 6
    s_add_u32 s67, s67, {WS_G}
    v_lshlrev_b32 v25, 2, v1
    s_barrier""")
    for n in range(8): a(f"ds_read_b128 v[{32+4*n}:{35+4*n}], v{20+(n&3)} offset:{(n>>2)*16384}")
    a("s_waitcnt vmcnt(0)")
    for n in range(16):
        a(f"s_waitcnt lgkmcnt({min(7, 15-n)})")
        r = 32 + 4*(n & 7)
        a(f"v_mfma_f32_16x16x32_bf16 v[{JG}:{JG+3}], v[{GW+4*n}:{GW+4*n+3}], v[{r}:{r+3}], " + ("0" if n == 0 else f"v[{JG}:{JG+3}]"))
        if n + 8 < 16: a(f"ds_read_b128 v[{r}:{r+3}], v{20+(n&3)} offset:{((n+8)>>2)*16384}")
    a(f"""s_mov_b32 s63, {f32(-math.log2(math.e))}
    v_mul_f32 v10, s63, v{JG}
    v_exp_f32 v10, v10
    v_add_f32 v10, 1.0, v10
    v_rcp_f32 v10, v10
    s_mov_b64 exec, 0xffff
    buffer_store_dword v10, v25, s[{WSR}:{WSR+3}], s67 offen sc1
    s_mov_b64 exec, -1
    s_branch a_fetch""")
    a.label("a_wqpf")
    a(f"s_add_u32 s78, s30, {WS_FY}\ns_addc_u32 s79, s31, 0\ns_load_dword s{TAG}, s[78:79], 0")
    srd(a, 48, PWQ, 0x80000)
    a("""s_lshl_b32 s63, s63, 4
    s_and_b32 s64, s3, 1
    s_lshl_b32 s64, s64, 13
    s_add_u32 s63, s63, s64
    s_add_u32 s64, s63, 4096""")
    for i in range(8):
        a(f"buffer_load_dwordx4 v[{8+4*i}:{11+4*i}], v2, s[48:51], s{63 + (i>>2)} offen offset:{1024*(i&3)}")
    a.label("a_bj")
    a("s_waitcnt lgkmcnt(0)\ns_barrier")
    a.label("a_fetch")
    stamp(a, 2)
    a("s_barrier\ns_barrier\ns_waitcnt vmcnt(0)\ns_barrier\ns_branch a_common")
    a.label("a_gemm")
    vB, vAg, ACC, FA, FB = 16, 24, 32, 48, 80
    a(f"""s_lshr_b32 s63, s3, 1
    s_lshl_b32 s63, s63, 13
    v_and_b32 v8, 31, v1
    v_lshrrev_b32 v9, 5, v1
    v_and_b32 v10, 15, v1
    v_xor_b32 v10, v10, v9
    v_lshlrev_b32 v10, 4, v10
    v_lshl_add_u32 v10, v8, 8, v10
    v_add_u32 v{vB}, s63, v10""")
    for e in range(1, 8): a(f"v_xor_b32 v{vB+e}, {e*32}, v{vB}")
    a(f"""s_and_b32 s63, s3, 1
    v_bfe_u32 v8, v1, 2, 2
    v_lshrrev_b32 v10, 1, v8
    v_xor_b32 v10, s63, v10
    v_lshlrev_b32 v10, 6, v10
    v_lshl_add_u32 v8, v9, 3, v8
    v_lshl_add_u32 v10, v8, 7, v10
    v_bfe_u32 v8, v1, 4, 1
    v_lshl_add_u32 v10, v8, 5, v10
    v_and_b32 v8, 3, v1
    v_lshl_add_u32 v10, v8, 3, v10
    v_add_u32 v{vAg}, {WT}, v10
    s_lshl_b32 s63, s63, 12
    s_lshr_b32 s64, s3, 1
    s_lshl_b32 s64, s64, 10
    s_add_u32 s63, s63, s64
    s_add_u32 s63, s63, {QX}
    v_add_u32 v25, s63, v2
    s_barrier""")
    def gemm_half(h):
        def reads(n):
            kc, e = n >> 3, n & 7
            a(f"ds_read_b128 v[{FB+4*e}:{FB+4*e+3}], v{vB+e} offset:{kc*16384}")
            a(f"ds_read_b64_tr_b16 v[{FA+4*e}:{FA+4*e+1}], v{vAg} offset:{kc*16384 + e*2048}")
            a(f"ds_read_b64_tr_b16 v[{FA+4*e+2}:{FA+4*e+3}], v{vAg} offset:{kc*16384 + e*2048 + 512}")
        n0 = 16*h
        for n in range(5): reads(n0 + n)
        for n in range(16):
            e = n & 7
            a(f"s_waitcnt lgkmcnt({3*min(4, 15-n)})")
            MF(a, ACC, FA + 4*e, FB + 4*e, None if (h == 0 and n == 0) else ACC)
            if n + 5 < 16: reads(n0 + n + 5)
    a("s_barrier"); stamp(a, 1); gemm_half(0)
    a("s_barrier"); gemm_half(1)
    for i in range(8): a(f"v_cvt_pk_bf16_f32 v{FA+i}, v{ACC+2*i}, v{ACC+2*i+1}")
    a(f"""ds_write_b128 v25, v[{FA}:{FA+3}]
    ds_write_b128 v25, v[{FA+4}:{FA+7}] offset:2048""")
    stamp(a, 2)
    a("s_waitcnt lgkmcnt(0)\ns_barrier")
    a.label("a_common")
    K2, NA, NB_ = T + 2, T + 6, T + 10
    a(f"""s_mov_b32 s67, {WS_FKV}
    v_lshlrev_b32 v{T}, 6, v1
    s_cmp_lg_u32 s3, 7
    s_cbranch_scc1 a_nopoll
    buffer_load_dwordx4 v[{SA}:{SA+3}], v{T}, s[{WSR}:{WSR+3}], s67 offen sc1""")
    a.label("a_nopoll")
    a(f"""s_and_b32 s63, s3, 3
    s_lshl_b32 s63, s63, 11
    s_add_u32 s63, s63, {QX}
    v_add_u32 v{T+3}, s63, v2
    ds_read_b128 v[{QA}:{QA+3}], v{T+3}
    ds_read_b128 v[{QB}:{QB+3}], v{T+3} offset:1024
    s_and_b32 s64, s3, 4
    s_add_u32 s71, s58, s64
    s_and_b32 s71, s71, 7
    v_and_b32 v{T+3}, 31, v1
    v_lshrrev_b32 v3, 5, v1
    v_and_b32 v{T+4}, 15, v1
    v_lshlrev_b32 v{T+4}, 4, v{T+4}
    v_lshl_add_u32 v{T+4}, v3, 8, v{T+4}
    v_add_u32 v{T+4}, 1024, v{T+4}
    v_mov_b32 v{vVl}, 0x100000
    v_and_b32 v{T+5}, 27, v{T+3}
    v_cmp_eq_u32 vcc, 16, v{T+5}
    v_mov_b32 v{T+5}, 1536
    v_cndmask_b32 v{vVl}, v{vVl}, v{T+5}, vcc
    v_cmp_gt_u32 vcc, 16, v{T+3}
    s_mul_i32 s70, s71, {8*ST}
    v_cndmask_b32 v{vVl}, v{vVl}, v{T+4}, vcc
    v_add_u32 v{vK}, s70, v{vKl}
    v_add_u32 v{vV}, s70, v{vVl}
    s_add_u32 s71, s71, 1
    s_and_b32 s71, s71, 7
    s_mul_i32 s70, s71, {8*ST}
    v_add_u32 v{vKn}, s70, v{vKl}
    v_add_u32 v{vVn}, s70, v{vVl}""")
    for r in list(range(PB, PB + 8)) + list(range(OA, OA + 32)) + list(range(VB + 8, VB + 16)):
        a(f"v_mov_b32 v{r}, 0")
    a("s_waitcnt lgkmcnt(0)")
    for i in range(4): a(f"v_dot2_f32_bf16 v{NA+i}, v{QA+i}, v{QA+i}, 0")
    for i in range(4): a(f"v_dot2_f32_bf16 v{NB_+i}, v{QB+i}, v{QB+i}, 0")
    a(f"""v_mov_b32 v{SB+14}, 0
    v_mov_b32 v{SB+15}, 0
    v_add_f32 v{NA}, v{NA}, v{NA+1}
    v_add_f32 v{NA+2}, v{NA+2}, v{NA+3}
    v_add_f32 v{NB_}, v{NB_}, v{NB_+1}
    v_add_f32 v{NB_+2}, v{NB_+2}, v{NB_+3}
    v_add_f32 v{NA}, v{NA}, v{NA+2}
    v_add_f32 v{NB_}, v{NB_}, v{NB_+2}
    v_mov_b32 v{NA+1}, v{NA}
    v_mov_b32 v{NB_+1}, v{NB_}
    v_permlane32_swap_b32 v{NA}, v{NA+1}
    v_permlane32_swap_b32 v{NB_}, v{NB_+1}
    v_add_f32 v{NA}, v{NA}, v{NA+1}
    v_add_f32 v{NB_}, v{NB_}, v{NB_+1}
    s_and_b32 s63, s3, 4
    s_add_u32 s63, s63, s58
    s_and_b32 s63, s63, 7
    s_mul_i32 s59, s63, 65
    s_lshr_b32 s59, s59, 2
    s_and_b32 s64, s3, 3
    s_add_u32 s59, s59, s64
    v_lshlrev_b32 v{T+1}, 3, v1
    s_mov_b32 s65, {WS_KMAX}
    s_cmp_lg_u32 s3, 7
    s_cbranch_scc1 a_wait_go
    s_mul_i32 s{TAG}, s{TAG}, 0x9e3779b1
    s_add_u32 s{TAG}, s{TAG}, 0x7f4a7c15
    s_mov_b32 s75, 0x40000""")
    a.label("a_pollkv")
    a(f"""s_sub_u32 s75, s75, 1
    s_waitcnt vmcnt(0)
    v_xor_b32 v{SA}, s{TAG}, v{SA}
    v_xor_b32 v{SA+1}, s{TAG}, v{SA+1}
    v_xor_b32 v{SA+2}, s{TAG}, v{SA+2}
    v_xor_b32 v{SA+3}, s{TAG}, v{SA+3}
    v_or3_b32 v{SA}, v{SA}, v{SA+1}, v{SA+2}
    v_or_b32 v{SA}, v{SA}, v{SA+3}
    v_cmp_ne_u32 vcc, 0, v{SA}
    s_cbranch_vccz a_kvready
    s_mov_b64 exec, vcc
    buffer_load_dwordx4 v[{SA}:{SA+3}], v{T}, s[{WSR}:{WSR+3}], s67 offen sc1
    s_cmp_lg_u32 s75, 0
    s_cbranch_scc1 a_pollkv""")
    a.label("a_kvready")
    a(f"s_waitcnt vmcnt(0)\ns_mov_b64 exec, -1\nv_mov_b32 v{T}, 1\nds_write_b32 v{vC}, v{T}\ns_branch a_go")
    a.label("a_wait_go")
    lds_wait(a, vC, 0, 1, T)
    a.label("a_go")
    if DIAG:
        a("s_cmp_lt_u32 s3, 5\ns_cbranch_scc1 a_nost")
        stamp(a, 1)
        a.label("a_nost")
    a(f"buffer_load_dwordx2 v[{K2}:{K2+1}], v{T+1}, s[{WSR}:{WSR+3}], s65 offen sc1")
    first_batch(3)
    a(f"""s_waitcnt vmcnt(3)
    v_max_f32 v{K2}, v{K2}, v{K2+1}
    v_max_f32_dpp v{K2}, v{K2}, v{K2} row_ror:8 row_mask:0xf bank_mask:0xf
    v_max_f32_dpp v{K2}, v{K2}, v{K2} row_ror:4 row_mask:0xf bank_mask:0xf
    v_max_f32_dpp v{K2}, v{K2}, v{K2} row_ror:2 row_mask:0xf bank_mask:0xf
    v_max_f32_dpp v{K2}, v{K2}, v{K2} row_ror:1 row_mask:0xf bank_mask:0xf
    v_mov_b32 v{K2+1}, v{K2}
    v_permlane32_swap_b32 v{K2}, v{K2+1}
    v_max_f32 v{K2}, v{K2}, v{K2+1}
    v_mov_b32 v{K2+1}, v{K2}
    v_permlane16_swap_b32 v{K2}, v{K2+1}
    v_max_f32 v{K2}, v{K2}, v{K2+1}
    v_mul_f32 v{NA}, v{NA}, v{K2}
    v_mul_f32 v{NB_}, v{NB_}, v{K2}
    s_mov_b32 s72, {f32(1600.0)}
    v_cmp_nle_f32 vcc, v{NA}, s72
    v_cmp_nle_f32 s[74:75], v{NB_}, s72
    v_sqrt_f32 v{NA}, v{NA}
    v_sqrt_f32 v{NB_}, v{NB_}
    s_or_b64 vcc, vcc, s[74:75]
    v_mov_b32 v{T+1}, 1
    s_waitcnt vmcnt(0)
    s_barrier""")
    a("s_cbranch_vccz a_fast")
    lds_wait(a, vC, 8, 4, T)
    a(f"""v_mov_b32 v{NA}, 0xff800000
    v_mov_b32 v{NB_}, 0xff800000
    v_mov_b32 v{T}, v{vKl}
    s_mov_b32 s74, 64""")
    a.label("a_maxloop")
    a(f"ds_read_b128 v[{KB}:{KB+3}], v{T}\nv_add_u32 v{T}, {ST}, v{T}\ns_waitcnt lgkmcnt(0)")
    MF(a, SA, KB, QA, None); MF(a, NMA, KB, QB, None)
    for i in range(8): a(f"v_max3_f32 v{NA}, v{NA}, v{SA+2*i}, v{SA+2*i+1}")
    for i in range(8): a(f"v_max3_f32 v{NB_}, v{NB_}, v{NMA+2*i}, v{NMA+2*i+1}")
    a(f"""s_sub_u32 s74, s74, 1
    s_cmp_lg_u32 s74, 0
    s_cbranch_scc1 a_maxloop
    v_mov_b32 v{NA+1}, v{NA}
    v_mov_b32 v{NB_+1}, v{NB_}
    v_permlane32_swap_b32 v{NA}, v{NA+1}
    v_permlane32_swap_b32 v{NB_}, v{NB_+1}
    v_max_f32 v{NA}, v{NA}, v{NA+1}
    v_max_f32 v{NB_}, v{NB_}, v{NB_+1}""")
    a.label("a_fast")
    stamp(a, 3)
    a(f"""ds_read_b128 v[{KB}:{KB+3}], v{vK}
    ds_read_b128 v[{KB+4}:{KB+7}], v{vK} offset:{ST}
    ds_read_b128 v[{VB}:{VB+3}], v{vV}
    ds_read_b128 v[{VB+4}:{VB+7}], v{vV} offset:528""")
    for i in range(4): a(f"v_mov_b32 v{PA+i}, -1")
    a(f"buffer_store_dwordx4 v[{PA}:{PA+3}], v2, s[{WSR}:{WSR+3}], s62 offen sc1")
    for i in range(16): a(f"v_sub_f32 v{NMA+i}, 0, v{NA}")
    for i in range(16): a(f"v_sub_f32 v{NMB+i}, 0, v{NB_}")
    a("s_waitcnt lgkmcnt(0)")
    MF(a, SA, KB, QA, NMA)
    a("s_mov_b32 s73, 4\ns_setprio 2\ns_nop 9")
    a(".p2align 6")
    a.label("a_loop")
    for tt in range(8):
        cur = tt & 1; nxt = cur ^ 1
        Kc, Kn = KB + 4*cur, KB + 4*nxt
        Vc, Vn = VB + 8*cur, VB + 8*nxt
        kreg, koff = (vK, (tt + 2) * ST) if tt < 6 else (vKn, (tt - 6) * ST)
        vreg, voff = (vV, (tt + 1) * ST) if tt < 7 else (vVn, 0)
        for ph in range(2):
            S, P, Po, So, O = (SA, PA, PB, SB, OA) if ph == 0 else (SB, PB, PA, SA, OB)
            ex = lambda i: a(f"v_exp_f32 v{S+i}, v{S+i}")
            cv = lambda j: a(f"v_cvt_pk_bf16_f32 v{P+j}, v{S+2*j}, v{S+2*j+1}")
            ex(0)
            a(f"v_cvt_pk_bf16_f32 v{Po+7}, v{So+14}, v{So+15}")
            ex(1)
            if ph == 0:
                MF(a, SB, Kc, QB, NMB)
                a(f"ds_read_b128 v[{Kc}:{Kc+3}], v{kreg} offset:{koff}")
            else:
                MF(a, SA, Kn, QA, NMA)
                if tt == 7: a("s_add_u32 s71, s71, 1")
                if tt == 6: a("s_sub_u32 s73, s73, 1")
                if tt == 2: a("s_cmp_eq_u32 s73, 4")
            ex(2); ex(3); cv(0); ex(4); ex(5); cv(1)
            if ph == 0:
                MF(a, OB, Vn + 4, PB + 4, OB)
                a(f"ds_read_b128 v[{Vn}:{Vn+3}], v{vreg} offset:{voff}")
            else:
                MF(a, OA, Vc + 4, PA + 4, OA)
                a("s_waitcnt lgkmcnt(0)")
            ex(6); ex(7); cv(2); ex(8); ex(9); cv(3); ex(10); ex(11)
            MF(a, O, Vc, P, O)
            if ph == 0:
                a(f"ds_read_b128 v[{Vn+4}:{Vn+7}], v{vreg} offset:{voff+528}")
            elif tt == 7:
                a("s_and_b32 s71, s71, 7")
            cv(4); ex(12); ex(13); cv(5); ex(14); ex(15)
            if ph == 1 and tt == 7:
                a(f"""s_mul_i32 s70, s71, {8*ST}
                v_mov_b32 v{vK}, v{vKn}
                v_mov_b32 v{vV}, v{vVn}
                v_add_u32 v{vKn}, s70, v{vKl}
                v_add_u32 v{vVn}, s70, v{vVl}""")
            cv(6)
        if tt == 2:
            a("s_cbranch_scc1 a_chk1")
            a.label("a_ret1")
    a("s_cmp_eq_u32 s73, 1\ns_cbranch_scc1 a_it2\ns_cmp_eq_u32 s73, 0\ns_cbranch_scc1 a_done")
    a("s_cmp_eq_u32 s73, 3\ns_cbranch_scc0 a_it1")
    stamp(a, 4)
    a("s_waitcnt vmcnt(0)")
    lds_add(a, vC, 44, T + 1)
    lds_wait(a, vC, 8, 4, T)
    a("s_branch a_loop")
    a.label("a_chk1")
    lds_wait(a, vC, 4, 4, T)
    a("s_branch a_ret1")
    a.label("a_it1")
    lds_add(a, vC, 12, T + 1)
    a("s_setprio 1\ns_branch a_loop")
    a.label("a_it2")
    a("s_setprio 0\ns_branch a_loop")
    a.label("a_done")
    stamp(a, 5)
    a(f"""v_cvt_pk_bf16_f32 v{PB+7}, v{SB+14}, v{SB+15}
    s_cmp_lt_u32 s3, 3
    s_cselect_b32 s63, 0, {OX1 - 3*2304 - OX0}
    s_add_u32 s63, s63, {OX0}
    s_mul_i32 s64, s3, 2304
    s_add_u32 s63, s63, s64
    v_add_u32 v{T}, s63, v2
    s_xor_b32 s65, s3, 4
    s_cmp_lt_u32 s65, 3
    s_cselect_b32 s63, 0, {OX1 - 3*2304 - OX0}
    s_add_u32 s63, s63, {OX0}
    s_mul_i32 s64, s65, 2304
    s_add_u32 s63, s63, s64""")
    MF(a, OB, VB + 12, PB + 4, OB)
    a(f"""v_add_u32 v{T+1}, s63, v2
    v_lshrrev_b32 v{T+2}, 2, v2
    v_sub_u32 v{T+3}, v{T+2}, v2
    v_add_u32 v{T+2}, v{T+3}, v{T}
    v_add_u32 v{T+3}, v{T+3}, v{T+1}
    s_barrier
    s_cmp_ge_u32 s3, 4
    s_cbranch_scc1 a_red1""")
    for (lbl, W, Kp) in (("", OB, OA), ("a_red1", OA, OB)):
        if lbl: a.label(lbl)
        a(f"""ds_write_b128 v{T}, v[{W}:{W+3}]
        ds_write_b128 v{T}, v[{W+4}:{W+7}] offset:1024
        ds_write_b32 v{T+2}, v{W+8} offset:2048
        s_waitcnt lgkmcnt(0)
        s_barrier
        ds_read_b32 v{SA+8}, v{T+3} offset:2048
        ds_read_b128 v[{SA}:{SA+3}], v{T+1}
        ds_read_b128 v[{SA+4}:{SA+7}], v{T+1} offset:1024
        s_waitcnt lgkmcnt(2)
        v_add_f32 v{Kp+8}, v{Kp+8}, v{SA+8}
        v_rcp_f32 v{T+4}, v{Kp+8}
        s_waitcnt lgkmcnt(0)""")
        for i in range(8): a(f"v_add_f32 v{Kp+i}, v{Kp+i}, v{SA+i}")
        for i in range(8): a(f"v_mul_f32 v{Kp+i}, v{Kp+i}, v{T+4}")
        for i in range(4): a(f"v_cvt_pk_bf16_f32 v{PA+i}, v{Kp+2*i}, v{Kp+2*i+1}")
        if not lbl: a("s_branch a_p3")
    a.label("a_p3")
    a(f"buffer_store_dwordx4 v[{PA}:{PA+3}], v2, s[{WSR}:{WSR+3}], s62 offen sc1")
    OF, WF, C0, C1, AX, XR, YR, GR = 12, 44, 108, 124, 140, 148, 152, 156
    a(f"""s_and_b32 s66, s3, 1
    s_lshr_b32 s67, s3, 1
    s_lshl_b32 s62, s60, 1
    s_add_u32 s62, s62, s66
    s_lshl_b32 s62, s62, 5
    s_lshl_b32 s63, s67, 3
    s_add_u32 s62, s62, s63
    s_lshl_b32 s62, s62, 10
    s_add_u32 s62, s62, {WS_O}
    s_add_u32 s59, s62, 4096""")
    def oloads():
        for i in range(8):
            a(f"buffer_load_dwordx4 v[{OF+4*i}:{OF+4*i+3}], v2, s[{WSR}:{WSR+3}], s{62 if i < 4 else 59} offen offset:{1024*(i&3)} sc1")
    srd(a, 36, PX, 0x200000)
    srd(a, 40, POUT, 0x200000)
    a(f"""s_lshl_b32 s63, s66, 5
    s_add_u32 s63, s63, s56
    v_and_b32 v4, 31, v1
    v_add_u32 v4, s63, v4
    v_lshlrev_b32 v5, 2, v4
    s_mov_b32 s64, {WS_G}
    buffer_load_dword v{GR}, v5, s[{WSR}:{WSR+3}], s64 offen sc1
    v_lshlrev_b32 v5, 3, v3
    v_lshl_add_u32 v5, v4, 10, v5
    s_lshl_b32 s65, s67, 5
    s_lshl_b32 s63, s57, 1
    s_add_u32 s65, s65, s63
    buffer_load_dwordx2 v[{XR}:{XR+1}], v5, s[36:39], s65 offen
    buffer_load_dwordx2 v[{XR+2}:{XR+3}], v5, s[36:39], s65 offen offset:16
    v_lshl_add_u32 v5, v3, 3, v5""")
    a(f"""s_lshl_b32 s63, s67, 1
    s_and_b32 s63, s63, 4
    s_add_u32 s63, s63, s58
    s_and_b32 s63, s63, 7
    s_mul_i32 s63, s63, {8*ST}
    s_and_b32 s64, s67, 1
    s_lshl_b32 s64, s64, 14
    s_add_u32 s63, s63, s64
    v_bfe_u32 v6, v1, 2, 2
    v_lshrrev_b32 v7, 1, v6
    v_lshl_add_u32 v6, v3, 2, v6
    v_lshlrev_b32 v6, 7, v6
    v_bfe_u32 v8, v1, 4, 1
    v_lshl_add_u32 v6, v8, 5, v6
    v_and_b32 v8, 3, v1
    v_lshl_add_u32 v6, v8, 3, v6
    v_lshl_add_u32 v8, v7, 6, v6
    v_add_u32 v8, s63, v8
    v_xor_b32 v9, 64, v8
    s_lshl_b32 s63, s67, 11
    s_lshl_b32 s64, s66, 6
    s_add_u32 s63, s63, s64
    s_add_u32 s63, s63, {YT}
    v_add_u32 v6, s63, v6
    ds_read_b64_tr_b16 v[{YR}:{YR+1}], v6
    ds_read_b64_tr_b16 v[{YR+2}:{YR+3}], v6 offset:1024""")
    for e in range(8):
        for mt in range(2):
            r = WF + 8*e + 4*mt
            if e == 3 and mt == 0: a("s_waitcnt lgkmcnt(6)")
            if e == 5 and mt == 0: a("s_waitcnt lgkmcnt(6)")
            if e == 7 and mt == 0: a("s_waitcnt lgkmcnt(6)")
            a(f"ds_read_b64_tr_b16 v[{r}:{r+1}], v{8+mt} offset:{e*2048}")
            a(f"ds_read_b64_tr_b16 v[{r+2}:{r+3}], v{8+mt} offset:{e*2048+1024}")
    a(f"""s_lshl_b32 s63, s66, 2
    s_add_u32 s63, s63, s58
    s_add_u32 s63, s63, 2
    s_and_b32 s63, s63, 7
    s_mul_i32 s70, s63, {8*ST}
    s_waitcnt vmcnt(0)
    v_sub_f32 v{GR+1}, 1.0, v{GR}""")
    for aa in range(2):
        x0, x1, y0, y1, t = XR + 2*aa, XR + 2*aa + 1, YR + 2*aa, YR + 2*aa + 1, AX + 4*aa
        a(f"""v_lshlrev_b32 v{t}, 16, v{x0}
        v_and_b32 v{t+1}, 0xffff0000, v{x0}
        v_lshlrev_b32 v{t+2}, 16, v{x1}
        v_and_b32 v{t+3}, 0xffff0000, v{x1}
        v_lshlrev_b32 v158, 16, v{y0}
        v_and_b32 v159, 0xffff0000, v{y0}
        v_lshlrev_b32 v160, 16, v{y1}
        v_and_b32 v161, 0xffff0000, v{y1}""")
        for e in range(4): a(f"v_mul_f32 v{t+e}, v{t+e}, v{158+e}")
        for e in range(4): a(f"v_mul_f32 v{t+e}, v{t+e}, v{GR}")
    a("s_mov_b32 s75, 0x40000")
    oloads()
    a.label("a_opoll")
    a(f"s_waitcnt vmcnt(0)\nv_max3_u32 v10, v{OF}, v{OF+1}, v{OF+2}")
    for i in range(3, 31, 2): a(f"v_max3_u32 v10, v10, v{OF+i}, v{OF+i+1}")
    a(f"""v_max_u32 v10, v10, v{OF+31}
    s_sub_u32 s75, s75, 1
    v_cmp_eq_u32 vcc, -1, v10
    s_cbranch_vccz a_oready
    s_cmp_eq_u32 s75, 0
    s_cbranch_scc1 a_oready""")
    oloads()
    a("s_branch a_opoll")
    a.label("a_oready")
    stamp(a, 6)
    a("s_waitcnt lgkmcnt(0)")
    for e in range(8):
        MF(a, C0, WF + 8*e, OF + 4*e, None if e == 0 else C0)
        MF(a, C1, WF + 8*e + 4, OF + 4*e, None if e == 0 else C1)
    a(f"""s_lshl_b32 s63, s67, 11
    s_add_u32 s63, s63, s70
    v_add_u32 v10, s63, v2
    s_lshl_b32 s63, s67, 13
    s_add_u32 s63, s63, s70
    v_add_u32 v11, s63, v2""")
    for ow in range(4):
        a(f"ds_write_b128 v10, v[{C0+8*ow}:{C0+8*ow+3}] offset:{8192*ow}")
        a(f"ds_write_b128 v10, v[{C0+8*ow+4}:{C0+8*ow+7}] offset:{8192*ow+1024}")
    a("s_waitcnt lgkmcnt(0)\ns_barrier")
    for sr in range(4):
        a(f"ds_read_b128 v[{OF+8*sr}:{OF+8*sr+3}], v11 offset:{2048*sr}")
        a(f"ds_read_b128 v[{OF+8*sr+4}:{OF+8*sr+7}], v11 offset:{2048*sr+1024}")
    a("s_waitcnt lgkmcnt(4)")
    for i in range(8): a(f"v_add_f32 v{OF+i}, v{OF+i}, v{OF+8+i}")
    a("s_waitcnt lgkmcnt(0)")
    for i in range(8): a(f"v_add_f32 v{OF+16+i}, v{OF+16+i}, v{OF+24+i}")
    for i in range(8): a(f"v_add_f32 v{OF+i}, v{OF+i}, v{OF+16+i}")
    for i in range(8): a(f"v_fmac_f32 v{AX+i}, v{OF+i}, v{GR+1}")
    for i in range(4): a(f"v_cvt_pk_bf16_f32 v{OF+i}, v{AX+2*i}, v{AX+2*i+1}")
    a(f"""v_permlane32_swap_b32 v{OF}, v{OF+2}
    v_permlane32_swap_b32 v{OF+1}, v{OF+3}
    buffer_store_dwordx4 v[{OF}:{OF+3}], v5, s[40:43], s65 offen""")
    fin(a)
    a.label("k_end")
    a("s_endpgm")
    return a.finish()

def build():
    hdr = open("cdna_kernels/" + NAME + ".s.ref").read().split("; Override launch")[0]
    out = hdr + f"; @launch grid=(256,1,1) block=(768,1,1) lds={LEND}\n"
    out += f'.amdgcn_target "amdgcn-amd-amdhsa--gfx950"\n.text\n.globl {KN}\n.p2align 8\n.type {KN},@function\n' + kernel() + "code_end:\n"
    out += f""".section .rodata,"a"
.p2align 6
.amdhsa_kernel {KN}
  .amdhsa_next_free_vgpr 168
  .amdhsa_next_free_sgpr {100 if DIAG else 80}
  .amdhsa_accum_offset 168
  .amdhsa_group_segment_fixed_size 0
  .amdhsa_kernarg_size 120
  .amdhsa_user_sgpr_count 2
  .amdhsa_user_sgpr_kernarg_segment_ptr 1
  .amdhsa_system_sgpr_workgroup_id_x 1
.end_amdhsa_kernel
"""
    return out

if __name__ == "__main__":
    for x in list(sys.argv):
        if "=" in x:
            kk, vv = x.split("="); OPT[kk] = int(vv); sys.argv.remove(x)
    if "-l" in sys.argv:
        DIAG = True; LIGHT = True; sys.argv.remove("-l")
    if "-d" in sys.argv:
        DIAG = True; sys.argv.remove("-d")
    dst = sys.argv[1] if len(sys.argv) > 1 else "cdna_kernels/" + NAME + ".s"
    open(dst, "w").write(build())
    print("wrote", dst)
```

```python
import sys, math, struct
from asmlib import Asm

NAME = "gated_mix__ssm_conv_h3__grouped_kv_mqa__prompt"
KN = NAME + "_kernel"
WS_KV, WS_KMAX, WS_G = 0x000000, 0x024000, 0x025000
WS_FKV, WS_FX, WS_FY = 0x028000, 0x02c000, 0x030000
WS_XREV, WS_O, WS_Y = 0x100000, 0x300000, 0x500000
WS_SIZE = 0x700000
ST = 2080
KVBYTES = 64 * ST
CSCALE = 0.25 * math.log2(math.e)
def f32(x): return "0x%08x" % struct.unpack("<I", struct.pack("<f", x))[0]

XT, WT, WKV = 0, 65536, 131072
QX = 149824
YT = KVBYTES
XE0, XESZ, XOOFF = KVBYTES, 8320, 4160
CNT = 149760
LEND = 163840
OX0, OX1 = 141312, 149824

DIAG = False
LIGHT = False
OPT = {"oack": 0, "oflag": 1, "obulk": 1, "early": 1, "wqpf": 0}
WS_DIAG = 0x1000000
def ast(a, idx, tail):
    if bool(OPT.get("tail2")) == tail: stamp(a, idx)
def hst(a, idx, tail):
    if bool(OPT.get("tailst")) == tail: stamp(a, idx)
def stamp(a, idx, real=False):
    if not DIAG: return
    if LIGHT and idx < 8: return
    if OPT.get("dbg"): real = True
    a(f"{'s_memrealtime' if real else 's_memtime'} s[{80+2*idx}:{81+2*idx}]\ns_waitcnt lgkmcnt(0)")
def fin(a):
    if OPT.get("dbg"):
        _n[0] += 1; l = f"fin{_n[0]}"
        a(f"""s_waitcnt vmcnt(0)
        s_memrealtime s[94:95]
        s_load_dwordx2 s[68:69], s[0:1], 104
        s_waitcnt lgkmcnt(0)
        s_cmp_lg_u32 s2, 77
        s_cbranch_scc1 {l}
        s_cmp_eq_u32 s3, {OPT["dbg"]}
        s_cselect_b32 s67, 0, 32
        s_cbranch_scc1 {l}_go
        s_cmp_lg_u32 s3, 8
        s_cbranch_scc1 {l}""")
        a.label(l + "_go")
        a("s_mov_b32 s70, 256\ns_mov_b32 s71, 0x20000\ns_mov_b64 exec, 1\nv_mov_b32 v0, 0")
        for i in range(1, 8):
            a(f"s_sub_u32 s66, s{80+2*i}, s80\nv_mov_b32 v{i}, s66\nbuffer_store_dword v{i}, v0, s[68:71], s67 offen offset:{4*(i-1)}")
        a.label(l)
        a("s_endpgm")
        return
    if DIAG:
        a("s_waitcnt vmcnt(0)")
        stamp(a, 7); stamp(a, 9, True)
        a(f"""s_add_u32 s68, s30, {WS_DIAG}
        s_addc_u32 s69, s31, 0
        s_mov_b32 s70, 0x40000
        s_mov_b32 s71, 0x20000
        s_lshl_b32 s67, s2, 4
        s_add_u32 s67, s67, s3
        s_lshl_b32 s67, s67, 6
        s_mov_b64 exec, 1
        v_mov_b32 v0, 0""")
        for i in range(10):
            a(f"v_mov_b32 v1, s{80+2*i}\nbuffer_store_dword v1, v0, s[68:71], s67 offen offset:{4*i}")
    a("s_endpgm")

def srd(a, d, lo, size):
    a(f"s_mov_b32 s{d}, s{lo}\ns_mov_b32 s{d+1}, s{lo+1}\ns_mov_b32 s{d+2}, {size}\ns_mov_b32 s{d+3}, 0x20000")
def srd_off(a, d, lo, off, size):
    a(f"s_add_u32 s{d}, s{lo}, {off}\ns_addc_u32 s{d+1}, s{lo+1}, 0\ns_mov_b32 s{d+2}, {size}\ns_mov_b32 s{d+3}, 0x20000")
def dma(a, voff, srdn, soff, m0, flags=""):
    a(f"s_mov_b32 m0, {m0}")
    a(f"buffer_load_dwordx4 v{voff}, s[{srdn}:{srdn+3}], {soff} offen {flags} lds")
PX, PK, PV, PSH, PH, PD, PWQ, PWK, PWV, PWO, PGW, POUT, PWS = 4, 6, 8, 10, 12, 14, 18, 20, 22, 24, 26, 28, 30
WSR = 32
TAG = 77
_n = [0]
def lds_wait(a, vaddr, off, val, vt, sleep=1):
    _n[0] += 1; l = f"lw{_n[0]}"
    a("s_mov_b32 s75, 0x100000")
    a.label(l)
    a(f"""ds_read_b32 v{vt}, v{vaddr} offset:{off}
    s_sub_u32 s75, s75, 1
    s_waitcnt lgkmcnt(0)
    v_readfirstlane_b32 s74, v{vt}
    s_cmp_ge_u32 s74, {val}
    s_cbranch_scc1 {l}_ok
    s_sleep {sleep}
    s_cmp_lg_u32 s75, 0
    s_cbranch_scc1 {l}""")
    a.label(l + "_ok")
def lds_add(a, vaddr, off, vone):
    a(f"s_mov_b64 exec, 1\nds_add_u32 v{vaddr}, v{vone} offset:{off}\ns_mov_b64 exec, -1")
def publish(a, vaddr, off, vone, vt, sflag, nwaves, xcc=False):
    _n[0] += 1; l = f"pb{_n[0]}"
    a(f"""s_mov_b64 exec, 1
    ds_add_rtn_u32 v{vt}, v{vaddr}, v{vone} offset:{off}
    s_waitcnt lgkmcnt(0)
    v_readfirstlane_b32 s74, v{vt}
    s_cmp_lg_u32 s74, {nwaves-1}
    s_cbranch_scc1 {l}
    v_mov_b32 v{vt}, s{TAG}
    v_mov_b32 v{vt+2}, 0""")
    if xcc:
        a(f"""s_getreg_b32 s74, hwreg(HW_REG_XCC_ID)
        v_mov_b32 v{vt+1}, s74
        buffer_store_dwordx2 v[{vt}:{vt+1}], v{vt+2}, s[{WSR}:{WSR+3}], s{sflag} offen sc1""")
    else:
        a(f"buffer_store_dword v{vt}, v{vt+2}, s[{WSR}:{WSR+3}], s{sflag} offen sc1")
    a.label(l)
    a("s_mov_b64 exec, -1")
def poll32(a, sbase, vt, word, rowgrp=False):
    _n[0] += 1; l = f"pl{_n[0]}"
    a(f"s_cmp_lg_u32 s66, 0\ns_cbranch_scc1 {l}_lds")
    a(f"v_lshlrev_b32 v{vt}, 6, v1")
    if rowgrp:
        a(f"""s_lshl_b32 s74, s61, 11
        v_add_u32 v{vt}, s74, v{vt}
        s_lshl_b32 s74, s60, 6
        s_mov_b32 exec_lo, 0
        v_and_b32 v{vt}, 7, v1
        v_lshlrev_b32 v{vt}, 11, v{vt}
        v_add_u32 v{vt}, s74, v{vt}
        s_mov_b32 exec_lo, -1""")
    a(f"s_mov_b32 exec_hi, {0xff if rowgrp else 0}\ns_mov_b32 s75, 0x40000")
    a.label(l)
    a(f"""buffer_load_dword v{vt+1}, v{vt}, s[{WSR}:{WSR+3}], s{sbase} offen sc1
    s_sub_u32 s75, s75, 1
    s_waitcnt vmcnt(0)
    v_cmp_ne_u32 vcc, s{TAG}, v{vt+1}
    s_cbranch_vccz {l}_ok
    s_mov_b64 exec, vcc
    s_sleep 4
    s_cmp_lg_u32 s75, 0
    s_cbranch_scc1 {l}""")
    a.label(l + "_ok")
    a(f"s_mov_b64 exec, -1\nds_write_b32 v3, v14 offset:{word}\ns_branch {l}_done")
    a.label(l + "_lds")
    lds_wait(a, 3, word, 1, vt, 2)
    a.label(l + "_done")

def w_src(a, v, t0, t1):
    a(f"""v_lshrrev_b32 v{t0}, 3, v1
    v_lshlrev_b32 v{t1}, 1, v{t0}
    v_and_b32 v{t1}, 4, v{t1}
    v_and_b32 v{v}, 7, v1
    v_xor_b32 v{v}, v{v}, v{t1}
    v_lshlrev_b32 v{v}, 4, v{v}
    v_lshl_add_u32 v{v}, v{t0}, 10, v{v}
    s_lshl_b32 s63, s57, 1
    v_add_u32 v{v}, s63, v{v}""")

MF = lambda a, d, A, B, C: a(f"v_mfma_f32_32x32x16_bf16 v[{d}:{d+15}], v[{A}:{A+3}], v[{B}:{B+3}], " + ("0" if C is None else f"v[{C}:{C+15}]"))

def kv_unit_step(a, step):
    a(f"""s_cmp_ge_u32 s59, 130
    s_cselect_b32 s63, 130, 0
    s_sub_u32 s59, s59, s63
    s_lshl_b32 s63, s59, 10
    s_add_u32 s59, s59, {step}""")

def kernel():
    a = Asm()
    a.label(KN)
    a("s_cmp_ge_u32 s2, 256\ns_cbranch_scc1 k_end")
    if OPT.get("scramble"):
        a("s_lshr_b32 s60, s2, 5\ns_and_b32 s2, s2, 31\ns_lshl_b32 s2, s2, 3\ns_or_b32 s2, s2, s60")
    stamp(a, 8, True); stamp(a, 0)
    a("""s_load_dwordx2 s[30:31], s[0:1], 112
    s_load_dwordx16 s[4:19], s[0:1], 0
    s_load_dwordx8 s[20:27], s[0:1], 64
    s_load_dwordx2 s[28:29], s[0:1], 96
    v_lshrrev_b32 v2, 6, v0
    v_and_b32 v1, 63, v0
    v_readfirstlane_b32 s3, v2
    s_and_b32 s60, s2, 7
    s_lshl_b32 s60, s60, 2
    s_lshr_b32 s61, s2, 3
    s_and_b32 s62, s61, 3
    s_add_u32 s60, s60, s62
    s_lshr_b32 s61, s61, 2
    s_lshl_b32 s56, s60, 6
    s_lshl_b32 s57, s61, 6
    s_add_u32 s59, s61, s62
    s_add_u32 s59, s59, s2
    s_and_b32 s59, s59, 3
    s_lshr_b32 s76, s61, 1
    s_lshl_b32 s58, s62, 1
    v_lshlrev_b32 v2, 4, v1
    s_cmp_lt_u32 s3, 8
    s_cbranch_scc1 k_att""")
    a("s_sub_u32 s66, s3, 8\nv_lshrrev_b32 v9, 4, v1\nv_and_b32 v10, 15, v1")
    for q in range(4):
        a(f"""v_add_u32 v11, {4*q}, v9
        v_xor_b32 v12, v11, v10
        v_lshlrev_b32 v12, 4, v12
        v_lshl_add_u32 v{4+q}, v11, 10, v12""")
    a("""s_add_u32 s63, s59, s66
    s_and_b32 s63, s63, 3
    s_lshl_b32 s64, s76, 4
    s_add_u32 s64, s64, s56
    s_lshl_b32 s64, s64, 10
    s_lshl_b32 s65, s63, 8
    s_add_u32 s64, s64, s65
    s_lshl_b32 s65, s63, 12
    s_lshl_b32 s67, s66, 14
    s_lshl_b32 s68, s76, 12
    s_add_u32 s67, s67, s68
    s_lshl_b32 s68, s66, 12
    s_and_b32 s69, s61, 1
    s_cmp_eq_u32 s69, 0
    s_waitcnt lgkmcnt(0)""")
    a(f"""s_cselect_b32 s40, s{PWK}, s{PWV}
    s_cselect_b32 s41, s{PWK+1}, s{PWV+1}
    s_mov_b32 s42, 0x4000
    s_mov_b32 s43, 0x20000""")
    srd(a, 36, PX, 0x200000)
    for q in range(4):
        a(f"s_add_u32 s63, s67, {XT + q*1024}")
        dma(a, 4 + q, 36, "s64", "s63")
        a(f"s_add_u32 s63, s68, {WKV + q*1024}")
        dma(a, 2, 40, "s65", "s63")
        if q < 3: a("s_add_u32 s65, s65, 1024")
    srd(a, 44, PWQ, 0x80000)
    srd(a, WSR, PWS, WS_SIZE)
    a(f"s_add_u32 s78, s30, {WS_FY}\ns_addc_u32 s79, s31, 0\ns_load_dword s{TAG}, s[78:79], 0")
    w_src(a, 8, 9, 10)
    a(f"""s_lshl_b32 s63, s66, 2
    v_lshrrev_b32 v9, 4, v1
    v_add_u32 v11, s63, v9
    v_and_b32 v10, 15, v1
    v_xor_b32 v12, v11, v10
    v_lshlrev_b32 v12, 4, v12
    v_lshl_add_u32 v13, v11, 10, v12
    v_mov_b32 v3, {CNT}""")
    def stage1(slot):
        a(f"""s_add_u32 s63, s59, {slot}
        s_and_b32 s63, s63, 3
        s_lshl_b32 s67, s63, 17
        s_lshl_b32 s64, s66, 15
        s_add_u32 s67, s67, s64
        s_lshl_b32 s65, s63, 8
        s_lshl_b32 s64, s56, 10
        s_add_u32 s65, s65, s64
        s_lshl_b32 s69, s66, 10""")
        for q in range(4):
            a(f"s_add_u32 s63, s68, {WT + slot*16384 + q*1024}")
            dma(a, 8, 44, "s67", "s63")
            if q < 3:
                a(f"""s_add_u32 s67, s67, 8192
                s_add_u32 s63, s76, {q+1}
                s_and_b32 s63, s63, 3
                s_lshl_b32 s64, s63, 14
                s_add_u32 s64, s64, s65
                s_lshl_b32 s63, s63, 12
                s_add_u32 s63, s63, s69
                s_add_u32 s63, s63, {XT + slot*16384}""")
                dma(a, 13, 36, "s64", "s63")
    if OPT.get("early"): stage1(0)
    a("""v_lshl_add_u32 v14, v1, 2, v3
    v_mov_b32 v15, 0
    s_mov_b64 exec, 0xffff
    ds_write_b32 v14, v15
    s_mov_b64 exec, -1
    v_mov_b32 v14, 1""")
    a(f"s_waitcnt vmcnt({7 if OPT.get('early') else 0}) lgkmcnt(0)\ns_barrier")
    a(f"s_mul_i32 s{TAG}, s{TAG}, 0x9e3779b1\ns_add_u32 s{TAG}, s{TAG}, 0x7f4a7c15")
    if not OPT.get('early'): stage1(0)
    stage1(1); stage1(2); stage1(3)
    if OPT.get("qcnt"):
        a("s_waitcnt vmcnt(14)")
        lds_add(a, 3, 48, 14)
        a("s_waitcnt vmcnt(0)")
        lds_add(a, 3, 60, 14)
    else:
        a("s_waitcnt vmcnt(14)\ns_barrier\ns_waitcnt vmcnt(0)\ns_barrier")
    a(f"""s_setprio 3
    s_lshr_b32 s67, s66, 1
    s_and_b32 s68, s66, 1
    s_lshl_b32 s69, s60, 1
    s_add_u32 s69, s69, s57
    s_add_u32 s69, s69, s67
    s_lshl_b32 s70, s69, 12""")
    srd(a, 36, PK, 0x200000)
    srd(a, 40, PV, 0x200000)
    srd(a, 44, PSH, 4096)
    srd_off(a, 48, PH, "s70", 4096)
    srd(a, 52, PD, 1024)
    def first_batch(n):
        for j in range(n):
            kv_unit_step(a, 4)
            dma(a, 2, WSR, "s63", "s63", "sc1")
    a(f"""s_lshl_b32 s63, s67, 2
    s_add_u32 s63, s63, s58
    s_and_b32 s63, s63, 7
    s_mul_i32 s59, s63, 65
    s_lshr_b32 s59, s59, 2
    s_add_u32 s59, s59, s68
    s_add_u32 s59, s59, 12""")
    def bulk(n, lbl):
        a(f"s_mov_b32 s72, {n}")
        a.label(lbl)
        kv_unit_step(a, 2)
        dma(a, 2, WSR, "s63", "s63", "sc1")
        a(f"s_sub_u32 s72, s72, 1\ns_cmp_lg_u32 s72, 0\ns_cbranch_scc1 {lbl}")
    H = 160 - 16
    vA, vB0, vB1 = 34, 35, 33
    AF, BF, B2F, ACC0, ACC1 = 48, 80, 112, 128, 144
    a(f"""v_lshrrev_b32 v5, 3, v1
    v_and_b32 v6, 7, v1
    v_lshlrev_b32 v6, 4, v6
    v_lshl_add_u32 v6, v5, 10, v6
    s_lshl_b32 s63, s57, 1
    v_add_u32 v6, s63, v6
    s_lshl_b32 s63, s66, 4
    s_add_u32 s63, s63, s57
    v_and_b32 v7, 15, v1
    v_add_u32 v7, s63, v7
    v_lshlrev_b32 v18, 3, v7
    s_lshl_b32 s64, s56, 10
    s_sub_u32 s64, s64, 3072
    v_lshrrev_b32 v17, 4, v1
    v_lshlrev_b32 v19, 14, v17
    v_lshl_add_u32 v19, v7, 1, v19
    v_add_u32 v19, s64, v19
    s_lshl_b32 s63, s69, 1
    v_mov_b32 v20, s63
    v_bfe_u32 v16, v1, 2, 2
    v_lshlrev_b32 v16, 7, v16
    v_lshl_add_u32 v16, v17, 12, v16
    v_lshlrev_b32 v24, 5, v17
    v_and_b32 v17, 3, v1
    v_lshl_add_u32 v16, v17, 3, v16
    s_lshl_b32 s63, s66, 5
    s_add_u32 s63, s63, {XE0}
    v_add_u32 v16, s63, v16
    v_lshrrev_b32 v26, 2, v1
    v_mul_u32_u24 v32, {XOOFF}, v26
    v_mul_u32_u24 v26, 144, v26
    v_lshlrev_b32 v17, 4, v17
    v_sub_u32 v26, v17, v26
    s_lshl_b32 s63, s67, 6
    s_add_u32 s63, s63, {LEND - 144 - 3*2304}
    v_add_u32 v26, s63, v26
    v_and_b32 v21, 0x1f7, v7
    v_lshlrev_b32 v21, 12, v21
    v_sub_u32 v21, v21, v24
    v_and_b32 v9, 8, v1
    v_lshl_add_u32 v21, v9, 1, v21
    v_add_u32 v21, 96, v21
    s_mul_i32 s71, s67, {XESZ}
    s_add_u32 s71, s71, {XE0}
    v_add_u32 v27, s71, v2
    v_add_u32 v32, v32, v17
    s_add_u32 s63, s71, 4096
    v_add_u32 v32, s63, v32
    v_and_b32 v4, 31, v1
    v_lshrrev_b32 v5, 5, v1
    v_or_b32 v9, 1, v4
    v_lshlrev_b32 v17, 3, v5
    v_sub_u32 v9, v17, v9
    s_cmp_eq_u32 s68, 0
    s_cselect_b32 s63, 1055, 31
    s_sub_u32 s63, s63, 256
    v_add_u32 v9, s63, v9
    v_lshlrev_b32 v9, 1, v9
    v_and_b32 v17, 1, v4
    v_xor_b32 v17, 1, v17
    v_mul_u32_u24 v17, {XOOFF}, v17
    v_add3_u32 v{vA}, v9, v17, s71
    v_mul_u32_u24 v9, 144, v4
    v_lshlrev_b32 v17, 4, v5
    v_sub_u32 v9, v17, v9
    s_lshl_b32 s63, s67, 6
    s_add_u32 s63, s63, {LEND + 144*23 + 1152}
    v_add_u32 v{vB0}, s63, v9
    v_mov_b32 v28, 0
    v_mov_b32 v29, 0
    v_mov_b32 v30, 0
    v_mov_b32 v31, 0
    s_lshl_b32 s63, s68, 11
    v_lshlrev_b32 v22, 6, v4
    v_lshl_add_u32 v22, v5, 3, v22
    v_add_u32 v22, s63, v22
    s_add_u32 s63, s71, {4088 - 48}
    v_sub_u32 v22, s63, v22
    v_and_b32 v23, 27, v4
    v_lshlrev_b32 v23, 6, v23
    v_lshl_add_u32 v23, v5, 4, v23
    v_and_b32 v9, 4, v4
    v_lshl_add_u32 v23, v9, 3, v23
    s_lshl_b32 s63, s68, 11
    v_add_u32 v23, s63, v23""")
    for i in range(16): a(f"v_mov_b32 v{ACC0+i}, 0")
    w_src(a, 8, 9, 10)
    a(f"""s_lshl_b32 s64, s66, 4
    s_add_u32 s64, s64, s56
    s_lshl_b32 s64, s64, 10
    s_add_u32 s65, s64, 8192
    s_lshl_b32 s73, s66, 12
    s_add_u32 s73, s73, {XE0}
    s_barrier
    s_barrier""")
    hst(a, 1, False)
    bulk(12, "h_bulk1")
    a("s_waitcnt vmcnt(4)")
    lds_add(a, 3, 4, 14)
    dma(a, 6, 36, "s64", "s73")
    a("s_add_u32 s63, s73, 1024"); dma(a, 6, 36, "s65", "s63")
    a("s_add_u32 s63, s73, 2048"); dma(a, 6, 40, "s64", "s63")
    a("s_add_u32 s63, s73, 3072"); dma(a, 6, 40, "s65", "s63")
    a(f"""buffer_load_dwordx2 v[10:11], v18, s[44:47], 0 offen
    buffer_load_ushort v12, v19, s[36:39], 0 offen
    buffer_load_ushort v13, v19, s[36:39], 0 offen offset:1024
    buffer_load_ushort v15, v19, s[36:39], 0 offen offset:2048""")
    bulk(15, "h_bulk2")
    for i in range(4):
        a(f"buffer_load_dwordx4 v[{H+4*i}:{H+4*i+3}], v2, s[48:51], 0 offen offset:{1024*i}")
    a("buffer_load_ushort v25, v20, s[52:55], 0 offen\ns_waitcnt vmcnt(20)")
    lds_add(a, 3, 40, 14)
    lds_wait(a, 3, 40, 4, 9)
    hst(a, 2, False)
    KR, VR, KF, VF = 36, 44, 52, 72
    for i in range(4): a(f"ds_read_b64_tr_b16 v[{KR+2*i}:{KR+2*i+1}], v16 offset:{i*512}")
    for i in range(4): a(f"ds_read_b64_tr_b16 v[{VR+2*i}:{VR+2*i+1}], v16 offset:{2048 + i*512}")
    a(f"""v_lshlrev_b32 v88, 16, v10
    v_and_b32 v89, 0xffff0000, v10
    v_lshlrev_b32 v90, 16, v11
    v_and_b32 v91, 0xffff0000, v11
    v_lshlrev_b32 v{KF}, 16, v12
    v_lshlrev_b32 v{KF+1}, 16, v13
    v_lshlrev_b32 v{KF+2}, 16, v15
    s_waitcnt lgkmcnt(4)""")
    for i in range(8):
        a(f"v_lshlrev_b32 v{KF+3+2*i}, 16, v{KR+i}\nv_and_b32 v{KF+4+2*i}, 0xffff0000, v{KR+i}")
    a("s_waitcnt lgkmcnt(0)")
    for i in range(8):
        a(f"v_lshlrev_b32 v{VF+2*i}, 16, v{VR+i}\nv_and_b32 v{VF+1+2*i}, 0xffff0000, v{VR+i}")
    a("s_waitcnt vmcnt(5)")
    lds_add(a, 3, 8, 14)
    if OPT.get("noconv"): fin(a)
    for s in range(16):
        t = 36 + (s % 8)
        a(f"""v_mul_f32 v{t}, v{KF+s}, v91
        v_fmac_f32 v{t}, v{KF+s+1}, v90
        v_fmac_f32 v{t}, v{KF+s+2}, v89
        v_fmac_f32 v{t}, v{KF+s+3}, v88
        v_mul_f32 v{VF+s}, v{t}, v{VF+s}""")
    for q in range(8):
        a(f"v_cvt_pk_bf16_f32 v{44+q}, v{VF+15-2*q}, v{VF+14-2*q}")
    for i in range(4):
        a(f"v_mov_b32 v{52+i}, v{44+i}")
    for i in range(4):
        a(f"v_mov_b32_dpp v{44+i}, v{48+i} row_ror:8 row_mask:0xf bank_mask:0xc")
        a(f"v_mov_b32_dpp v{48+i}, v{52+i} row_ror:8 row_mask:0xf bank_mask:0x3")
    a(f"""s_lshl_b32 s64, s56, 1
    s_sub_u32 s64, {WS_XREV + 4064 - 96}, s64
    s_add_u32 s63, s64, 32768
    buffer_store_dwordx4 v[44:47], v21, s[{WSR}:{WSR+3}], s64 offen sc1
    buffer_store_dwordx4 v[48:51], v21, s[{WSR}:{WSR+3}], s63 offen sc1
    s_lshl_b32 s72, s61, 11
    s_lshl_b32 s65, s60, 6
    s_add_u32 s65, s65, s72
    s_add_u32 s64, s72, {WS_FX}
    s_add_u32 s73, s65, {WS_FX}
    s_waitcnt vmcnt(2)""")
    for i in range(4): a(f"ds_write_b128 v26, v[{H+4*i}:{H+4*i+3}] offset:{2304*(3-i)}")
    a("s_waitcnt vmcnt(0)")
    publish(a, 3, 16, 14, 16, 73, 4)
    hst(a, 3, False)
    a(f"s_add_u32 s63, s70, {WS_XREV}")
    srd_off(a, 40, PWS, "s63", 4096)
    a(f"s_add_u32 s63, s70, {WS_Y}")
    srd_off(a, 44, PWS, "s63", 4096)
    poll32(a, 64, 16, 52)
    hst(a, 4, False)
    X = 52
    for i in range(4):
        a(f"buffer_load_dwordx4 v[{X+6*i}:{X+6*i+3}], v2, s[40:43], 0 offen offset:{1024*i} sc1")
        a(f"buffer_load_dword v{X+6*i+4}, v2, s[40:43], 0 offen offset:{1024*i+16} sc1")
    srd(a, 36, PWO, 0x80000)
    a("s_lshr_b32 s63, s2, 3\ns_lshl_b32 s63, s63, 14\ns_lshl_b32 s74, s66, 12\ns_add_u32 s63, s63, s74")
    for i in range(4):
        a(f"buffer_load_dwordx4 v[160:163], v2, s[36:39], s63 offen offset:{1024*i}")
    a("s_mov_b64 exec, 0xff\nds_write_b128 v32, v[28:31]\ns_mov_b64 exec, -1")
    for i in range(4):
        x = X + 6*i
        a(f"s_waitcnt vmcnt({10-2*i})")
        a(f"ds_write_b128 v27, v[{x}:{x+3}] offset:{1024*i}")
        for j in range(4): a(f"v_alignbit_b32 v{36+4*(i&1)+j}, v{x+j+1}, v{x+j}, 16")
        a(f"ds_write_b128 v27, v[{36+4*(i&1)}:{39+4*(i&1)}] offset:{XOOFF+1024*i}")
    a("s_waitcnt lgkmcnt(0)")
    def creads(t, dual):
        b = t % 4; b2 = t % 2
        if t == 0:
            a(f"v_add_u32 v{vA}, 512, v{vA}\nv_subrev_u32 v{vB0}, 1152, v{vB0}")
            if dual: a(f"v_subrev_u32 v{vB1}, 1152, v{vB1}")
        for u in range(2):
            o = (2*t + u) * 8
            r = AF + 8*b + 4*u
            a(f"ds_read2_b32 v[{r}:{r+1}], v{vA} offset0:{o} offset1:{o+1}")
            a(f"ds_read2_b32 v[{r+2}:{r+3}], v{vA} offset0:{o+2} offset1:{o+3}")
        for u in range(2):
            r = BF + 8*b + 4*u
            a(f"ds_read_b128 v[{r}:{r+3}], v{vB0} offset:{144*(7-t) + 32*u}")
        if dual:
            for u in range(2):
                r = B2F + 8*b2 + 4*u
                a(f"ds_read_b128 v[{r}:{r+3}], v{vB1} offset:{144*(7-t) + 32*u}")
    a("s_cmp_eq_u32 s68, 0\ns_cselect_b32 s72, 2, 6")
    a(f"s_setprio {OPT.get('cprio', 3)}")
    PF = OPT.get("cpf", 2)
    for t in range(PF): creads(t, False)
    a.label("h_conv1")
    for t in range(8):
        b = t % 4
        if PF == 0: creads(t, False)
        a(f"s_waitcnt lgkmcnt({6 if PF == 2 else 0})")
        for u in range(2): MF(a, ACC0, AF + 8*b + 4*u, BF + 8*b + 4*u, ACC0)
        if PF: creads((t + PF) % 8, False)
    a("s_sub_u32 s72, s72, 1\ns_cmp_lg_u32 s72, 0\ns_cbranch_scc1 h_conv1")
    a("s_cmp_lg_u32 s68, 0\ns_cbranch_scc1 h_convb")
    if PF: a(f"v_subrev_u32 v{vA}, 512, v{vA}\nv_add_u32 v{vB0}, 1152, v{vB0}")
    a(f"""s_waitcnt lgkmcnt(0)
    v_subrev_u32 v{vB1}, {144*32}, v{vB0}
    s_mov_b32 s72, 2""")
    for i in range(16): a(f"v_mov_b32 v{ACC1+i}, 0")
    if PF == 2: creads(0, True)
    a.label("h_conv2")
    for t in range(8):
        b = t % 4; b2 = t % 2
        if PF < 2: creads(t, True)
        a("s_waitcnt lgkmcnt(0)")
        if PF == 2: creads((t + 1) % 8, True)
        for u in range(2):
            MF(a, ACC0, AF + 8*b + 4*u, BF + 8*b + 4*u, ACC0)
            MF(a, ACC1, AF + 8*b + 4*u, B2F + 8*b2 + 4*u, ACC1)
    a("s_sub_u32 s72, s72, 1\ns_cmp_lg_u32 s72, 0\ns_cbranch_scc1 h_conv2")
    a(f"s_lshl_b32 s63, s67, 2\nv_add_u32 v9, s63, v3\ns_waitcnt lgkmcnt(0)")
    lds_wait(a, 9, 32, 1, 16)
    for i in range(4): a(f"ds_write_b128 v27, v[{ACC1+4*i}:{ACC1+4*i+3}] offset:{XOOFF + 1024*i}")
    a("s_waitcnt lgkmcnt(0)")
    lds_add(a, 9, 24, 14)
    a("s_branch h_cepi")
    a.label("h_convb")
    a(f"s_lshl_b32 s63, s67, 2\nv_add_u32 v9, s63, v3\ns_waitcnt lgkmcnt(0)")
    lds_add(a, 9, 32, 14)
    lds_wait(a, 9, 24, 1, 16)
    for i in range(4): a(f"ds_read_b128 v[{ACC1+4*i}:{ACC1+4*i+3}], v27 offset:{XOOFF + 1024*i}")
    a("s_waitcnt lgkmcnt(0)")
    for i in range(8): a(f"v_pk_add_f32 v[{ACC0+2*i}:{ACC0+2*i+1}], v[{ACC0+2*i}:{ACC0+2*i+1}], v[{ACC1+2*i}:{ACC1+2*i+1}]")
    a.label("h_cepi")
    a("s_setprio 3")
    hst(a, 1, True)
    hst(a, 5, False)
    for aa in range(4):
        a(f"ds_read_b64 v[{48+2*aa}:{49+2*aa}], v22 offset:{48 - 16*aa}")
    a("v_lshlrev_b32 v25, 16, v25\ns_waitcnt lgkmcnt(0)")
    for aa in range(4):
        d0, d1 = 48 + 2*aa, 49 + 2*aa
        a(f"""v_and_b32 v36, 0xffff0000, v{d1}
        v_lshlrev_b32 v37, 16, v{d1}
        v_and_b32 v38, 0xffff0000, v{d0}
        v_lshlrev_b32 v39, 16, v{d0}
        v_fmac_f32 v{ACC0+4*aa}, v36, v25
        v_fmac_f32 v{ACC0+4*aa+1}, v37, v25
        v_fmac_f32 v{ACC0+4*aa+2}, v38, v25
        v_fmac_f32 v{ACC0+4*aa+3}, v39, v25
        v_cvt_pk_bf16_f32 v{40+2*aa}, v{ACC0+4*aa}, v{ACC0+4*aa+1}
        v_cvt_pk_bf16_f32 v{41+2*aa}, v{ACC0+4*aa+2}, v{ACC0+4*aa+3}""")
    for p in range(2):
        r = 40 + 4*p
        a(f"v_permlane32_swap_b32 v{r}, v{r+2}\nv_permlane32_swap_b32 v{r+1}, v{r+3}")
    for i in range(4): a(f"v_mov_b32 v{56+i}, v{40+i}")
    for i in range(4):
        a(f"v_mov_b32_dpp v{40+i}, v{44+i} row_shr:4 row_mask:0xf bank_mask:0xa")
        a(f"v_mov_b32_dpp v{44+i}, v{56+i} row_shl:4 row_mask:0xf bank_mask:0x5")
    for p in range(2):
        a(f"buffer_store_dwordx4 v[{40+4*p}:{43+4*p}], v23, s[44:47], 0 offen offset:{256*p} sc1")
    a(f"s_add_u32 s73, s65, {WS_FY}")
    lds_wait(a, 3, 44, 8, 16)
    a("s_waitcnt vmcnt(0)")
    publish(a, 3, 20, 14, 16, 73, 4, True)
    hst(a, 2, True)
    lds_wait(a, 3, 12, 8, 16, 4)
    hst(a, 3, True)
    a(f"""s_mul_i32 s72, s58, {8*ST}
    s_add_u32 s63, s58, 4
    s_and_b32 s63, s63, 7
    s_mul_i32 s73, s63, {8*ST}
    s_lshl_b32 s63, s66, 12
    s_add_u32 s72, s72, s63
    s_add_u32 s73, s73, s63
    s_lshl_b32 s67, s66, 15""")
    for sl in range(4):
        for q in range(4):
            a(f"s_add_u32 s63, s{72 + (sl>>1)}, {(sl&1)*16384 + q*1024}")
            dma(a, 8, 36, "s67", "s63")
            a(f"s_add_u32 s67, s67, {8192 if q < 3 else 131072 - 3*8192}")
    hst(a, 6, False)
    a("s_waitcnt vmcnt(0)")
    fin(a)

    a.label("k_att")
    QA, QB, NMA, NMB, SA, SB, PA, PB, OA, OB, KB, VB = 4, 8, 12, 28, 44, 60, 76, 84, 92, 108, 124, 132
    vK, vV, vKn, vVn, vKl, vVl, vC, T = 148, 149, 150, 151, 2, 152, 153, 154
    a(f"""s_lshr_b32 s63, s3, 2
    s_lshl_b32 s62, s60, 1
    s_add_u32 s62, s62, s63
    s_lshl_b32 s62, s62, 5
    s_lshl_b32 s63, s61, 2
    s_add_u32 s62, s62, s63
    s_and_b32 s63, s3, 3
    s_add_u32 s62, s62, s63
    s_lshl_b32 s62, s62, 10
    s_add_u32 s62, s62, {WS_O}
    v_mov_b32 v{vC}, {CNT}
    s_waitcnt lgkmcnt(0)""")
    srd(a, WSR, PWS, WS_SIZE)
    a(f"""s_add_u32 s78, s30, {WS_FY}
    s_addc_u32 s79, s31, 0
    s_load_dword s{TAG}, s[78:79], 0
    s_cmp_lt_u32 s3, 4
    s_cbranch_scc1 a_gemm
    s_cmp_lg_u32 s3, 4
    s_cbranch_scc1 a_idle""")
    GW = 64
    a(f"""s_and_b32 s68, s61, 1
    v_lshrrev_b32 v8, 4, v1
    v_lshlrev_b32 v8, 4, v8
    s_lshr_b32 s64, s76, 1
    s_lshl_b32 s65, s60, 1
    s_add_u32 s64, s64, s65
    s_mul_i32 s64, s64, {ST}
    s_and_b32 s65, s76, 1
    v_and_b32 v17, 15, v1
    v_lshrrev_b32 v18, 4, v1
    v_xor_b32 v19, v17, v18
    v_lshlrev_b32 v19, 4, v19
    v_lshl_add_u32 v19, v17, 8, v19
    s_lshl_b32 s63, s76, 12
    v_add_u32 v20, s63, v19
    v_xor_b32 v21, 64, v20
    v_xor_b32 v22, 128, v20
    v_xor_b32 v23, 192, v20
    v_bfe_u32 v19, v1, 2, 2
    v_lshl_add_u32 v19, v18, 3, v19
    v_lshlrev_b32 v19, 5, v19
    v_and_b32 v24, 3, v1
    v_lshl_add_u32 v24, v24, 3, v19
    v_add_u32 v24, {WKV}, v24
    v_lshlrev_b32 v17, 4, v17
    v_lshrrev_b32 v18, 5, v1
    v_lshl_add_u32 v17, v18, 3, v17
    v_bfe_u32 v18, v1, 4, 1
    v_mov_b32 v9, 0
    s_lshr_b32 s69, s2, 2
    s_lshl_b32 s69, s69, 6
    s_and_b32 s63, s2, 3
    s_lshl_b32 s63, s63, 2
    s_add_u32 s69, s69, s63
    s_add_u32 s69, s69, {WS_FKV}
    s_cmp_lg_u32 s68, 0
    s_cbranch_scc1 a_vjob""")
    JD, JG, JX, JW = 28, 4, 32, 48
    def job(ktype):
        def reads(n):
            kc, e = n >> 2, n & 3
            a(f"ds_read_b128 v[{JX+4*e}:{JX+4*e+3}], v{20+e} offset:{kc*16384}")
            a(f"ds_read_b64_tr_b16 v[{JW+4*e}:{JW+4*e+1}], v24 offset:{kc*4096 + e*1024}")
            a(f"ds_read_b64_tr_b16 v[{JW+4*e+2}:{JW+4*e+3}], v24 offset:{kc*4096 + e*1024 + 128}")
        for n in range(4): reads(n)
        for n in range(16):
            e = n & 3
            a(f"s_waitcnt lgkmcnt({3*min(3, 15-n)})")
            x, w = f"v[{JX+4*e}:{JX+4*e+3}]", f"v[{JW+4*e}:{JW+4*e+3}]"
            c = "0" if n == 0 else f"v[{JD}:{JD+3}]"
            if ktype:
                a(f"v_mfma_f32_16x16x32_bf16 v[{JD}:{JD+3}], {w}, {x}, {c}")
            else:
                a(f"v_mfma_f32_16x16x32_bf16 v[{JD}:{JD+3}], {x}, {w}, {c}")
            if n + 4 < 16: reads(n + 4)
    a(f"""s_lshl_b32 s65, s65, 8
    s_add_u32 s64, s64, s65
    v_lshl_add_u32 v17, v18, 9, v17
    s_lshl_b32 s65, s60, 2
    s_add_u32 s65, s65, s76
    s_lshl_b32 s65, s65, 2
    s_add_u32 s65, s65, {WS_KMAX}
    s_waitcnt lgkmcnt(0)
    s_mul_i32 s{TAG}, s{TAG}, 0x9e3779b1
    s_add_u32 s{TAG}, s{TAG}, 0x7f4a7c15
    s_barrier""")
    job(True)
    a(f"s_mov_b32 s63, {f32(CSCALE)}")
    for e in range(4): a(f"v_mul_f32 v{JD+e}, s63, v{JD+e}")
    a(f"""v_cvt_pk_bf16_f32 v36, v{JD}, v{JD+1}
    v_cvt_pk_bf16_f32 v37, v{JD+2}, v{JD+3}
    buffer_store_dwordx2 v[36:37], v17, s[{WSR}:{WSR+3}], s64 offen sc1
    v_mul_f32 v38, v{JD}, v{JD}
    v_fmac_f32 v38, v{JD+1}, v{JD+1}
    v_fmac_f32 v38, v{JD+2}, v{JD+2}
    v_fmac_f32 v38, v{JD+3}, v{JD+3}
    v_mov_b32 v39, v38
    v_permlane32_swap_b32 v38, v39
    v_add_f32 v38, v38, v39
    v_mov_b32 v39, v38
    v_permlane16_swap_b32 v38, v39
    v_add_f32 v38, v38, v39
    v_max_f32_dpp v38, v38, v38 row_ror:8 row_mask:0xf bank_mask:0xf
    v_max_f32_dpp v38, v38, v38 row_ror:4 row_mask:0xf bank_mask:0xf
    v_max_f32_dpp v38, v38, v38 row_ror:2 row_mask:0xf bank_mask:0xf
    v_max_f32_dpp v38, v38, v38 row_ror:1 row_mask:0xf bank_mask:0xf
    s_mov_b64 exec, 1
    buffer_store_dword v38, v9, s[{WSR}:{WSR+3}], s65 offen sc1
    s_branch a_jobdone""")
    a.label("a_vjob")
    a(f"""s_mul_i32 s65, s65, 528
    s_add_u32 s64, s64, s65
    v_mov_b32 v12, 0x3f803f80
    v_mov_b32 v13, 0x3f803f80
    v_mov_b32 v14, 0x3f803f80
    v_mov_b32 v15, 0x3f803f80
    s_mov_b64 exec, 1
    buffer_store_dwordx4 v[12:15], v9, s[{WSR}:{WSR+3}], s64 offen offset:1536 sc1
    s_mov_b64 exec, -1
    v_lshl_add_u32 v17, v18, 8, v17
    s_waitcnt lgkmcnt(0)
    s_mul_i32 s{TAG}, s{TAG}, 0x9e3779b1
    s_add_u32 s{TAG}, s{TAG}, 0x7f4a7c15
    s_barrier""")
    job(False)
    a(f"""v_cvt_pk_bf16_f32 v36, v{JD}, v{JD+1}
    v_cvt_pk_bf16_f32 v37, v{JD+2}, v{JD+3}
    buffer_store_dwordx2 v[36:37], v17, s[{WSR}:{WSR+3}], s64 offen offset:1024 sc1
    s_mov_b64 exec, 1""")
    a.label("a_jobdone")
    ast(a, 1, False)
    a(f"""v_mov_b32 v10, s{TAG}
    s_waitcnt vmcnt(0)
    buffer_store_dword v10, v9, s[{WSR}:{WSR+3}], s69 offen sc1
    s_mov_b64 exec, -1
    s_branch a_fetch""")
    a.label("a_idle")
    a("s_getpc_b64 s[48:49]")
    a.label("a_pc")
    a(f"""s_sub_u32 s48, s48, a_pc-{KN}
    s_subb_u32 s49, s49, 0
    s_mov_b32 s50, code_end-{KN}
    s_mov_b32 s51, 0x20000
    s_lshr_b32 s63, s2, 3
    s_lshl_b32 s63, s63, 10
    s_cmp_lg_u32 s3, 5
    s_cbranch_scc1 a_wqpf
    buffer_load_dwordx4 v[12:15], v2, s[48:51], s63 offen
    s_and_b32 s68, s61, 1
    s_cmp_lg_u32 s68, 0
    s_cbranch_scc1 a_bj
    v_lshrrev_b32 v8, 4, v1
    v_lshlrev_b32 v8, 4, v8""")
    srd(a, 52, PGW, 1024)
    for p in range(4):
        a(f"s_add_u32 s63, s59, {p}\ns_and_b32 s63, s63, 3\ns_lshl_b32 s63, s63, 8")
        for e in range(4):
            r = GW + 16*p + 4*e
            a(f"buffer_load_dwordx4 v[{r}:{r+3}], v8, s[52:55], s63 offen offset:{64*e}")
    a(f"""v_and_b32 v17, 15, v1
    v_lshrrev_b32 v18, 4, v1
    v_xor_b32 v19, v17, v18
    v_lshlrev_b32 v19, 4, v19
    v_lshl_add_u32 v19, v17, 8, v19
    s_lshl_b32 s63, s76, 12
    v_add_u32 v20, s63, v19
    v_xor_b32 v21, 64, v20
    v_xor_b32 v22, 128, v20
    v_xor_b32 v23, 192, v20
    s_lshl_b32 s65, s60, 2
    s_add_u32 s65, s65, s76
    s_lshl_b32 s67, s65, 6
    s_add_u32 s67, s67, {WS_G}
    v_lshlrev_b32 v25, 2, v1
    s_waitcnt lgkmcnt(0)
    s_mul_i32 s{TAG}, s{TAG}, 0x9e3779b1
    s_add_u32 s{TAG}, s{TAG}, 0x7f4a7c15
    s_barrier""")
    for n in range(8): a(f"ds_read_b128 v[{32+4*n}:{35+4*n}], v{20+(n&3)} offset:{(n>>2)*16384}")
    a("s_waitcnt vmcnt(0)")
    for n in range(16):
        a(f"s_waitcnt lgkmcnt({min(7, 15-n)})")
        r = 32 + 4*(n & 7)
        a(f"v_mfma_f32_16x16x32_bf16 v[{JG}:{JG+3}], v[{GW+4*n}:{GW+4*n+3}], v[{r}:{r+3}], " + ("0" if n == 0 else f"v[{JG}:{JG+3}]"))
        if n + 8 < 16: a(f"ds_read_b128 v[{r}:{r+3}], v{20+(n&3)} offset:{((n+8)>>2)*16384}")
    a(f"""s_mov_b32 s63, {f32(-math.log2(math.e))}
    v_mul_f32 v10, s63, v{JG}
    v_exp_f32 v10, v10
    v_add_f32 v10, 1.0, v10
    v_rcp_f32 v10, v10
    s_mov_b64 exec, 0xffff
    buffer_store_dword v10, v25, s[{WSR}:{WSR+3}], s67 offen sc1
    s_mov_b64 exec, -1
    s_branch a_fetch""")
    a.label("a_wqpf")
    srd(a, 48, PWQ, 0x80000)
    a("""s_lshl_b32 s63, s63, 4
    s_and_b32 s64, s3, 1
    s_lshl_b32 s64, s64, 13
    s_add_u32 s63, s63, s64
    s_add_u32 s64, s63, 4096""")
    for i in range(8 if OPT.get("wqpf", 1) else 0):
        a(f"buffer_load_dwordx4 v[{8+4*i}:{11+4*i}], v2, s[48:51], s{63 + (i>>2)} offen offset:{1024*(i&3)}")
    a.label("a_bj")
    a(f"""s_waitcnt lgkmcnt(0)
    s_mul_i32 s{TAG}, s{TAG}, 0x9e3779b1
    s_add_u32 s{TAG}, s{TAG}, 0x7f4a7c15
    s_barrier""")
    a.label("a_fetch")
    ast(a, 2, False)
    if not OPT.get("qcnt"): a("s_barrier\ns_barrier")
    a("s_waitcnt vmcnt(0)\ns_barrier\ns_branch a_common")
    a.label("a_gemm")
    vB, vAg, ACC, FA, FB = 16, 24, 32, 48, 80
    a(f"""s_lshr_b32 s63, s3, 1
    s_lshl_b32 s63, s63, 13
    v_and_b32 v8, 31, v1
    v_lshrrev_b32 v9, 5, v1
    v_and_b32 v10, 15, v1
    v_xor_b32 v10, v10, v9
    v_lshlrev_b32 v10, 4, v10
    v_lshl_add_u32 v10, v8, 8, v10
    v_add_u32 v{vB}, s63, v10""")
    for e in range(1, 8): a(f"v_xor_b32 v{vB+e}, {e*32}, v{vB}")
    a(f"""s_and_b32 s63, s3, 1
    v_bfe_u32 v8, v1, 2, 2
    v_lshrrev_b32 v10, 1, v8
    v_xor_b32 v10, s63, v10
    v_lshlrev_b32 v10, 6, v10
    v_lshl_add_u32 v8, v9, 3, v8
    v_lshl_add_u32 v10, v8, 7, v10
    v_bfe_u32 v8, v1, 4, 1
    v_lshl_add_u32 v10, v8, 5, v10
    v_and_b32 v8, 3, v1
    v_lshl_add_u32 v10, v8, 3, v10
    v_add_u32 v{vAg}, {WT}, v10
    s_lshl_b32 s63, s63, 12
    s_lshr_b32 s64, s3, 1
    s_lshl_b32 s64, s64, 10
    s_add_u32 s63, s63, s64
    s_add_u32 s63, s63, {QX}
    v_add_u32 v25, s63, v2
    s_waitcnt lgkmcnt(0)
    s_mul_i32 s{TAG}, s{TAG}, 0x9e3779b1
    s_add_u32 s{TAG}, s{TAG}, 0x7f4a7c15
    s_barrier""")
    def gemm_half(h):
        def reads(n):
            kc, e = n >> 3, n & 7
            a(f"ds_read_b128 v[{FB+4*e}:{FB+4*e+3}], v{vB+e} offset:{kc*16384}")
            a(f"ds_read_b64_tr_b16 v[{FA+4*e}:{FA+4*e+1}], v{vAg} offset:{kc*16384 + e*2048}")
            a(f"ds_read_b64_tr_b16 v[{FA+4*e+2}:{FA+4*e+3}], v{vAg} offset:{kc*16384 + e*2048 + 512}")
        n0 = 16*h
        for n in range(5): reads(n0 + n)
        for n in range(16):
            e = n & 7
            a(f"s_waitcnt lgkmcnt({3*min(4, 15-n)})")
            MF(a, ACC, FA + 4*e, FB + 4*e, None if (h == 0 and n == 0) else ACC)
            if n + 5 < 16: reads(n0 + n + 5)
    if OPT.get("qcnt"):
        lds_wait(a, vC, 48, 4, 8); ast(a, 1, False); gemm_half(0)
        lds_wait(a, vC, 60, 4, 8); gemm_half(1)
    else:
        a("s_barrier"); ast(a, 1, False); gemm_half(0)
        a("s_barrier"); gemm_half(1)
    for i in range(8): a(f"v_cvt_pk_bf16_f32 v{FA+i}, v{ACC+2*i}, v{ACC+2*i+1}")
    a(f"""ds_write_b128 v25, v[{FA}:{FA+3}]
    ds_write_b128 v25, v[{FA+4}:{FA+7}] offset:2048""")
    ast(a, 2, False)
    a("s_waitcnt lgkmcnt(0)\ns_barrier")
    a.label("a_common")
    srd(a, 36, PX, 0x200000)
    srd(a, 40, POUT, 0x200000)
    K2, NA, NB_ = T + 2, T + 6, T + 10
    a(f"""s_mov_b32 s67, {WS_FKV}
    v_lshlrev_b32 v{T}, 6, v1
    s_cmp_lg_u32 s3, 7
    s_cbranch_scc1 a_nopoll
    buffer_load_dwordx4 v[{SA}:{SA+3}], v{T}, s[{WSR}:{WSR+3}], s67 offen sc1""")
    a.label("a_nopoll")
    a(f"""s_and_b32 s63, s3, 3
    s_lshl_b32 s63, s63, 11
    s_add_u32 s63, s63, {QX}
    v_add_u32 v{T+3}, s63, v2
    ds_read_b128 v[{QA}:{QA+3}], v{T+3}
    ds_read_b128 v[{QB}:{QB+3}], v{T+3} offset:1024
    s_and_b32 s64, s3, 4
    s_add_u32 s71, s58, s64
    s_and_b32 s71, s71, 7
    v_and_b32 v{T+3}, 31, v1
    v_lshrrev_b32 v3, 5, v1
    v_and_b32 v{T+4}, 15, v1
    v_lshlrev_b32 v{T+4}, 4, v{T+4}
    v_lshl_add_u32 v{T+4}, v3, 8, v{T+4}
    v_add_u32 v{T+4}, 1024, v{T+4}
    v_mov_b32 v{vVl}, 0x100000
    v_and_b32 v{T+5}, 27, v{T+3}
    v_cmp_eq_u32 vcc, 16, v{T+5}
    v_mov_b32 v{T+5}, 1536
    v_cndmask_b32 v{vVl}, v{vVl}, v{T+5}, vcc
    v_cmp_gt_u32 vcc, 16, v{T+3}
    s_mul_i32 s70, s71, {8*ST}
    v_cndmask_b32 v{vVl}, v{vVl}, v{T+4}, vcc
    v_add_u32 v{vK}, s70, v{vKl}
    v_add_u32 v{vV}, s70, v{vVl}
    s_add_u32 s71, s71, 1
    s_and_b32 s71, s71, 7
    s_mul_i32 s70, s71, {8*ST}
    v_add_u32 v{vKn}, s70, v{vKl}
    v_add_u32 v{vVn}, s70, v{vVl}""")
    for r in list(range(PB, PB + 8)) + list(range(OA, OA + 32)) + list(range(VB + 8, VB + 16)):
        a(f"v_mov_b32 v{r}, 0")
    a("s_waitcnt lgkmcnt(0)")
    for i in range(4): a(f"v_dot2_f32_bf16 v{NA+i}, v{QA+i}, v{QA+i}, 0")
    for i in range(4): a(f"v_dot2_f32_bf16 v{NB_+i}, v{QB+i}, v{QB+i}, 0")
    a(f"""v_mov_b32 v{SB+14}, 0
    v_mov_b32 v{SB+15}, 0
    v_add_f32 v{NA}, v{NA}, v{NA+1}
    v_add_f32 v{NA+2}, v{NA+2}, v{NA+3}
    v_add_f32 v{NB_}, v{NB_}, v{NB_+1}
    v_add_f32 v{NB_+2}, v{NB_+2}, v{NB_+3}
    v_add_f32 v{NA}, v{NA}, v{NA+2}
    v_add_f32 v{NB_}, v{NB_}, v{NB_+2}
    v_mov_b32 v{NA+1}, v{NA}
    v_mov_b32 v{NB_+1}, v{NB_}
    v_permlane32_swap_b32 v{NA}, v{NA+1}
    v_permlane32_swap_b32 v{NB_}, v{NB_+1}
    v_add_f32 v{NA}, v{NA}, v{NA+1}
    v_add_f32 v{NB_}, v{NB_}, v{NB_+1}
    s_and_b32 s63, s3, 4
    s_add_u32 s63, s63, s58
    s_and_b32 s63, s63, 7
    s_mul_i32 s59, s63, 65
    s_lshr_b32 s59, s59, 2
    s_and_b32 s64, s3, 3
    s_add_u32 s59, s59, s64
    v_lshlrev_b32 v{T+1}, 3, v1
    s_mov_b32 s65, {WS_KMAX}
    s_cmp_lg_u32 s3, 7
    s_cbranch_scc1 a_wait_go
    s_mov_b32 s75, 0x40000""")
    a.label("a_pollkv")
    a(f"""s_sub_u32 s75, s75, 1
    s_waitcnt vmcnt(0)
    v_xor_b32 v{SA}, s{TAG}, v{SA}
    v_xor_b32 v{SA+1}, s{TAG}, v{SA+1}
    v_xor_b32 v{SA+2}, s{TAG}, v{SA+2}
    v_xor_b32 v{SA+3}, s{TAG}, v{SA+3}
    v_or3_b32 v{SA}, v{SA}, v{SA+1}, v{SA+2}
    v_or_b32 v{SA}, v{SA}, v{SA+3}
    v_cmp_ne_u32 vcc, 0, v{SA}
    s_cbranch_vccz a_kvready
    s_mov_b64 exec, vcc
    buffer_load_dwordx4 v[{SA}:{SA+3}], v{T}, s[{WSR}:{WSR+3}], s67 offen sc1
    s_cmp_lg_u32 s75, 0
    s_cbranch_scc1 a_pollkv""")
    a.label("a_kvready")
    a(f"s_waitcnt vmcnt(0)\ns_mov_b64 exec, -1\nv_mov_b32 v{T}, 1\nds_write_b32 v{vC}, v{T}\ns_branch a_go")
    a.label("a_wait_go")
    lds_wait(a, vC, 0, 1, T)
    a.label("a_go")
    if DIAG:
        a("s_cmp_lt_u32 s3, 5\ns_cbranch_scc1 a_nost")
        ast(a, 1, False)
        a.label("a_nost")
    a(f"buffer_load_dwordx2 v[{K2}:{K2+1}], v{T+1}, s[{WSR}:{WSR+3}], s65 offen sc1")
    first_batch(3)
    a(f"""s_waitcnt vmcnt(3)
    v_max_f32 v{K2}, v{K2}, v{K2+1}
    v_max_f32_dpp v{K2}, v{K2}, v{K2} row_ror:8 row_mask:0xf bank_mask:0xf
    v_max_f32_dpp v{K2}, v{K2}, v{K2} row_ror:4 row_mask:0xf bank_mask:0xf
    v_max_f32_dpp v{K2}, v{K2}, v{K2} row_ror:2 row_mask:0xf bank_mask:0xf
    v_max_f32_dpp v{K2}, v{K2}, v{K2} row_ror:1 row_mask:0xf bank_mask:0xf
    v_mov_b32 v{K2+1}, v{K2}
    v_permlane32_swap_b32 v{K2}, v{K2+1}
    v_max_f32 v{K2}, v{K2}, v{K2+1}
    v_mov_b32 v{K2+1}, v{K2}
    v_permlane16_swap_b32 v{K2}, v{K2+1}
    v_max_f32 v{K2}, v{K2}, v{K2+1}
    v_mul_f32 v{NA}, v{NA}, v{K2}
    v_mul_f32 v{NB_}, v{NB_}, v{K2}
    s_mov_b32 s72, {f32(1600.0)}
    v_cmp_nle_f32 vcc, v{NA}, s72
    v_cmp_nle_f32 s[74:75], v{NB_}, s72
    v_sqrt_f32 v{NA}, v{NA}
    v_sqrt_f32 v{NB_}, v{NB_}
    s_or_b64 vcc, vcc, s[74:75]
    v_mov_b32 v{T+1}, 1
    s_waitcnt vmcnt(0)
    s_barrier""")
    a("s_cbranch_vccz a_fast")
    lds_wait(a, vC, 8, 4, T)
    a(f"""v_mov_b32 v{NA}, 0xff800000
    v_mov_b32 v{NB_}, 0xff800000
    v_mov_b32 v{T}, v{vKl}
    s_mov_b32 s74, 64""")
    a.label("a_maxloop")
    a(f"ds_read_b128 v[{KB}:{KB+3}], v{T}\nv_add_u32 v{T}, {ST}, v{T}\ns_waitcnt lgkmcnt(0)")
    MF(a, SA, KB, QA, None); MF(a, NMA, KB, QB, None)
    for i in range(8): a(f"v_max3_f32 v{NA}, v{NA}, v{SA+2*i}, v{SA+2*i+1}")
    for i in range(8): a(f"v_max3_f32 v{NB_}, v{NB_}, v{NMA+2*i}, v{NMA+2*i+1}")
    a(f"""s_sub_u32 s74, s74, 1
    s_cmp_lg_u32 s74, 0
    s_cbranch_scc1 a_maxloop
    v_mov_b32 v{NA+1}, v{NA}
    v_mov_b32 v{NB_+1}, v{NB_}
    v_permlane32_swap_b32 v{NA}, v{NA+1}
    v_permlane32_swap_b32 v{NB_}, v{NB_+1}
    v_max_f32 v{NA}, v{NA}, v{NA+1}
    v_max_f32 v{NB_}, v{NB_}, v{NB_+1}""")
    a.label("a_fast")
    ast(a, 3, False)
    a(f"""ds_read_b128 v[{KB}:{KB+3}], v{vK}
    ds_read_b128 v[{KB+4}:{KB+7}], v{vK} offset:{ST}
    ds_read_b128 v[{VB}:{VB+3}], v{vV}
    ds_read_b128 v[{VB+4}:{VB+7}], v{vV} offset:528""")
    for i in range(4): a(f"v_mov_b32 v{PA+i}, -1")
    a(f"buffer_store_dwordx4 v[{PA}:{PA+3}], v2, s[{WSR}:{WSR+3}], s62 offen sc1")
    for i in range(16): a(f"v_sub_f32 v{NMA+i}, 0, v{NA}")
    for i in range(16): a(f"v_sub_f32 v{NMB+i}, 0, v{NB_}")
    a("s_waitcnt lgkmcnt(0)")
    MF(a, SA, KB, QA, NMA)
    a("s_mov_b32 s73, 4\ns_setprio 2\ns_nop 9")
    a(".p2align 6")
    a.label("a_loop")
    for tt in range(8):
        cur = tt & 1; nxt = cur ^ 1
        Kc, Kn = KB + 4*cur, KB + 4*nxt
        Vc, Vn = VB + 8*cur, VB + 8*nxt
        kreg, koff = (vK, (tt + 2) * ST) if tt < 6 else (vKn, (tt - 6) * ST)
        vreg, voff = (vV, (tt + 1) * ST) if tt < 7 else (vVn, 0)
        for ph in range(2):
            S, P, Po, So, O = (SA, PA, PB, SB, OA) if ph == 0 else (SB, PB, PA, SA, OB)
            ex = lambda i: a(f"v_exp_f32 v{S+i}, v{S+i}")
            cv = lambda j: a(f"v_cvt_pk_bf16_f32 v{P+j}, v{S+2*j}, v{S+2*j+1}")
            ex(0)
            a(f"v_cvt_pk_bf16_f32 v{Po+7}, v{So+14}, v{So+15}")
            ex(1)
            if ph == 0:
                MF(a, SB, Kc, QB, NMB)
                a(f"ds_read_b128 v[{Kc}:{Kc+3}], v{kreg} offset:{koff}")
            else:
                MF(a, SA, Kn, QA, NMA)
                if tt == 7: a("s_add_u32 s71, s71, 1")
                if tt == 6: a("s_sub_u32 s73, s73, 1")
                if tt == 2: a("s_cmp_eq_u32 s73, 4")
            ex(2); ex(3); cv(0); ex(4); ex(5); cv(1)
            if ph == 0:
                MF(a, OB, Vn + 4, PB + 4, OB)
                a(f"ds_read_b128 v[{Vn}:{Vn+3}], v{vreg} offset:{voff}")
            else:
                MF(a, OA, Vc + 4, PA + 4, OA)
                a("s_waitcnt lgkmcnt(0)")
            ex(6); ex(7); cv(2); ex(8); ex(9); cv(3); ex(10); ex(11)
            MF(a, O, Vc, P, O)
            if ph == 0:
                a(f"ds_read_b128 v[{Vn+4}:{Vn+7}], v{vreg} offset:{voff+528}")
            elif tt == 7:
                a("s_and_b32 s71, s71, 7")
            cv(4); ex(12); ex(13); cv(5); ex(14); ex(15)
            if ph == 1 and tt == 7:
                a(f"""s_mul_i32 s70, s71, {8*ST}
                v_mov_b32 v{vK}, v{vKn}
                v_mov_b32 v{vV}, v{vVn}
                v_add_u32 v{vKn}, s70, v{vKl}
                v_add_u32 v{vVn}, s70, v{vVl}""")
            cv(6)
        if tt == 2:
            a("s_cbranch_scc1 a_chk1")
            a.label("a_ret1")
    a("s_cmp_eq_u32 s73, 1\ns_cbranch_scc1 a_it2\ns_cmp_eq_u32 s73, 0\ns_cbranch_scc1 a_done")
    a("s_cmp_eq_u32 s73, 3\ns_cbranch_scc0 a_it1")
    ast(a, 4, False)
    a("s_waitcnt vmcnt(0)")
    lds_add(a, vC, 44, T + 1)
    lds_wait(a, vC, 8, 4, T)
    a("s_branch a_loop")
    a.label("a_chk1")
    lds_wait(a, vC, 4, 4, T)
    a("s_branch a_ret1")
    a.label("a_it1")
    lds_add(a, vC, 12, T + 1)
    a("s_setprio 1\ns_branch a_loop")
    a.label("a_it2")
    OF, WF, C0, C1, AX, YR, GR = 12, 44, 108, 124, 140, 148, 152
    vWr, vRd, vRow, vG, XR, vWo, vY, vWr4, vRd4 = 156, 157, 158, 159, 160, 164, 165, 166, 167
    a(f"""s_and_b32 s66, s3, 1
    s_lshr_b32 s67, s3, 1
    s_lshl_b32 s63, s66, 5
    s_add_u32 s63, s63, s56
    v_and_b32 v{vG}, 31, v1
    v_add_u32 v{vG}, s63, v{vG}
    v_lshlrev_b32 v{vRow}, 3, v3
    v_lshl_add_u32 v{vRow}, v{vG}, 10, v{vRow}
    v_lshlrev_b32 v{vG}, 2, v{vG}
    s_lshl_b32 s69, s67, 5
    s_lshl_b32 s63, s57, 1
    s_add_u32 s69, s69, s63
    buffer_load_dwordx2 v[{XR}:{XR+1}], v{vRow}, s[36:39], s69 offen
    buffer_load_dwordx2 v[{XR+2}:{XR+3}], v{vRow}, s[36:39], s69 offen offset:16
    v_lshl_add_u32 v{vRow}, v3, 3, v{vRow}
    s_cmp_lt_u32 s3, 3
    s_cselect_b32 s63, 0, {OX1 - 3*2304 - OX0}
    s_mul_i32 s64, s3, 2304
    s_add_u32 s63, s63, s64
    s_add_u32 s63, s63, {OX0}
    v_add_u32 v{vWr}, s63, v2
    v_lshl_add_u32 v{vWr4}, v1, 2, s63
    s_xor_b32 s65, s3, 4
    s_cmp_lt_u32 s65, 3
    s_cselect_b32 s63, 0, {OX1 - 3*2304 - OX0}
    s_mul_i32 s64, s65, 2304
    s_add_u32 s63, s63, s64
    s_add_u32 s63, s63, {OX0}
    v_add_u32 v{vRd}, s63, v2
    v_lshl_add_u32 v{vRd4}, v1, 2, s63
    s_lshl_b32 s68, s60, 1
    s_add_u32 s68, s68, s66
    s_lshl_b32 s68, s68, 5
    s_lshl_b32 s63, s67, 3
    s_add_u32 s68, s68, s63
    s_lshl_b32 s68, s68, 10
    s_add_u32 s68, s68, {WS_O}
    s_add_u32 s59, s68, 4096
    s_lshl_b32 s63, s67, 1
    s_and_b32 s63, s63, 4
    s_add_u32 s63, s63, s58
    s_and_b32 s63, s63, 7
    s_mul_i32 s63, s63, {8*ST}
    s_and_b32 s64, s67, 1
    s_lshl_b32 s64, s64, 14
    s_add_u32 s63, s63, s64
    v_bfe_u32 v{vY}, v1, 2, 2
    v_lshrrev_b32 v{vWo}, 1, v{vY}
    v_lshl_add_u32 v{vY}, v3, 2, v{vY}
    v_lshlrev_b32 v{vY}, 7, v{vY}
    v_bfe_u32 v{T}, v1, 4, 1
    v_lshl_add_u32 v{vY}, v{T}, 5, v{vY}
    v_and_b32 v{T}, 3, v1
    v_lshl_add_u32 v{vY}, v{T}, 3, v{vY}
    v_lshl_add_u32 v{vWo}, v{vWo}, 6, v{vY}
    v_add_u32 v{vWo}, s63, v{vWo}
    s_lshl_b32 s63, s67, 11
    s_lshl_b32 s64, s66, 6
    s_add_u32 s63, s63, s64
    s_add_u32 s63, s63, {YT}
    v_add_u32 v{vY}, s63, v{vY}
    s_lshl_b32 s63, s66, 2
    s_add_u32 s63, s63, s58
    s_add_u32 s63, s63, 2
    s_and_b32 s63, s63, 7
    s_mul_i32 s72, s63, {8*ST}
    s_mov_b32 s76, {WS_G}
    s_setprio 0
    s_cmp_lt_u32 s3, 4
    s_cbranch_scc1 a_loop""")
    lds_wait(a, vC, 20, 4, T, 2)
    a("s_branch a_loop")
    a.label("a_done")
    stamp(a, 5)
    a(f"v_cvt_pk_bf16_f32 v{PB+7}, v{SB+14}, v{SB+15}\ns_cmp_ge_u32 s3, 4")
    MF(a, OB, VB + 12, PB + 4, OB)
    a(f"""s_cbranch_scc1 a_red1
    v_lshlrev_b32 v10, 6, v1
    s_lshl_b32 s63, s61, 11
    v_add_u32 v10, s63, v10
    s_lshl_b32 s63, s60, 6
    s_mov_b32 exec_lo, 0
    v_and_b32 v10, 7, v1
    v_lshlrev_b32 v10, 11, v10
    v_add_u32 v10, s63, v10
    s_mov_b32 exec_lo, -1
    s_mov_b32 s73, {WS_FY}
    s_mov_b32 s75, 0x40000
    v_lshrrev_b32 v7, 3, v1
    v_and_b32 v8, 7, v1
    v_lshlrev_b32 v8, 4, v8
    v_lshl_add_u32 v8, v7, 12, v8
    s_lshl_b32 s64, s3, 4
    s_add_u32 s64, s64, s57
    s_lshl_b32 s64, s64, 12
    s_lshl_b32 s63, s56, 1
    s_add_u32 s64, s64, s63
    s_add_u32 s64, s64, {WS_Y}
    s_add_u32 s65, s64, 32768
    s_lshl_b32 s63, s3, 11
    s_add_u32 s63, s63, {YT}
    v_add_u32 v7, s63, v2""")
    a.label("a_ypoll")
    a(f"""buffer_load_dwordx2 v[20:21], v10, s[{WSR}:{WSR+3}], s73 offen sc1
    s_sub_u32 s75, s75, 1
    s_waitcnt vmcnt(0)
    v_cmp_ne_u32 vcc, s{TAG}, v20
    s_cbranch_vccz a_yready
    s_sleep 4
    s_cmp_lg_u32 s75, 0
    s_cbranch_scc1 a_ypoll""")
    a.label("a_yready")
    a(f"""buffer_load_dwordx4 v[12:15], v8, s[{WSR}:{WSR+3}], s64 offen sc1
    buffer_load_dwordx4 v[16:19], v8, s[{WSR}:{WSR+3}], s65 offen sc1
    s_getreg_b32 s63, hwreg(HW_REG_XCC_ID)
    v_cmp_ne_u32 vcc, s63, v21
    s_cmp_eq_u32 vcc_hi, 0
    s_cselect_b32 s63, 1, 0
    v_mov_b32 v11, s63
    ds_write_b32 v{vC}, v11 offset:48
    s_waitcnt vmcnt(1)
    ds_write_b128 v7, v[12:15]
    s_waitcnt vmcnt(0)
    ds_write_b128 v7, v[16:19] offset:1024""")
    for (lbl, W, Kp) in (("", OB, OA), ("a_red1", OA, OB)):
        if lbl: a.label(lbl)
        a(f"""ds_write_b128 v{vWr}, v[{W}:{W+3}]
        ds_write_b128 v{vWr}, v[{W+4}:{W+7}] offset:1024
        ds_write_b32 v{vWr4}, v{W+8} offset:2048
        v_xor_b32 v9, 64, v{vWo}
        s_mov_b32 s75, 0x40000
        s_waitcnt lgkmcnt(0)
        s_barrier
        ds_read_b32 v10, v{vC} offset:48
        ds_read_b32 v{SA+8}, v{vRd4} offset:2048
        ds_read_b128 v[{SA}:{SA+3}], v{vRd}
        ds_read_b128 v[{SA+4}:{SA+7}], v{vRd} offset:1024
        ds_read_b64_tr_b16 v[{YR}:{YR+1}], v{vY}
        ds_read_b64_tr_b16 v[{YR+2}:{YR+3}], v{vY} offset:1024
        s_waitcnt lgkmcnt(4)
        buffer_load_dword v{GR}, v{vG}, s[{WSR}:{WSR+3}], s76 offen sc1
        v_readfirstlane_b32 s63, v10
        v_add_f32 v{Kp+8}, v{Kp+8}, v{SA+8}
        v_rcp_f32 v{T}, v{Kp+8}
        s_waitcnt lgkmcnt(2)""")
        for i in range(8): a(f"v_add_f32 v{Kp+i}, v{Kp+i}, v{SA+i}")
        for i in range(8): a(f"v_mul_f32 v{Kp+i}, v{Kp+i}, v{T}")
        for i in range(4): a(f"v_cvt_pk_bf16_f32 v{4+i}, v{Kp+2*i}, v{Kp+2*i+1}")
        if not lbl: a("s_branch a_p3")
    a.label("a_p3")
    a(f"""s_cmp_eq_u32 s63, {1 if OPT.get("oloc", 1) else 5}
    s_cbranch_scc1 a_olocal
    buffer_store_dwordx4 v[4:7], v2, s[{WSR}:{WSR+3}], s62 offen sc1
    s_branch a_ostored""")
    a.label("a_olocal")
    a(f"buffer_store_dwordx4 v[4:7], v2, s[{WSR}:{WSR+3}], s62 offen {('', 'nt', 'sc0')[OPT.get('oflag', 0)]}")
    a.label("a_ostored")
    ast(a, 2, True)
    for e in range(8):
        for mt in range(2):
            r = WF + 8*e + 4*mt
            if e in (3, 5, 7) and mt == 0: a("s_waitcnt lgkmcnt(6)")
            a(f"ds_read_b64_tr_b16 v[{r}:{r+1}], v{(vWo, 9)[mt]} offset:{e*2048}")
            a(f"ds_read_b64_tr_b16 v[{r+2}:{r+3}], v{(vWo, 9)[mt]} offset:{e*2048+1024}")
    if OPT.get("oack"): a("s_waitcnt vmcnt(0)")
    ast(a, 3, True)
    for i in range(8):
        a(f"buffer_load_dwordx4 v[{OF+4*i}:{OF+4*i+3}], v2, s[{WSR}:{WSR+3}], s{68 if i < 4 else 59} offen offset:{1024*(i&3)} sc1")
    a(f"s_waitcnt vmcnt({8 if OPT.get('oack') else 9})\nv_sub_f32 v{GR+1}, 1.0, v{GR}")
    for aa in range(2):
        x0, x1, y0, y1, t = XR + 2*aa, XR + 2*aa + 1, YR + 2*aa, YR + 2*aa + 1, AX + 4*aa
        a(f"""v_lshlrev_b32 v{t}, 16, v{x0}
        v_and_b32 v{t+1}, 0xffff0000, v{x0}
        v_lshlrev_b32 v{t+2}, 16, v{x1}
        v_and_b32 v{t+3}, 0xffff0000, v{x1}
        v_lshlrev_b32 v154, 16, v{y0}
        v_and_b32 v155, 0xffff0000, v{y0}
        v_lshlrev_b32 v156, 16, v{y1}
        v_and_b32 v157, 0xffff0000, v{y1}""")
        for e in range(4): a(f"v_mul_f32 v{t+e}, v{t+e}, v{154+e}")
        for e in range(4): a(f"v_mul_f32 v{t+e}, v{t+e}, v{GR}")
    a(f"""s_lshl_b32 s63, s67, 11
    s_add_u32 s63, s63, s72
    v_add_u32 v8, s63, v2
    s_lshl_b32 s63, s67, 13
    s_add_u32 s63, s63, s72
    v_add_u32 v11, s63, v2
    s_waitcnt lgkmcnt(0)""")
    for e in range(8):
        r = OF + 4*e
        a(f"s_waitcnt vmcnt({7-e})")
        a.label(f"a_ochk{e}")
        a(f"""v_max3_u32 v10, v{r}, v{r+1}, v{r+2}
        v_max_u32 v10, v10, v{r+3}
        v_cmp_eq_u32 vcc, -1, v10
        s_cbranch_vccnz a_oretry{e}""")
        a.label(f"a_ogo{e}")
        MF(a, C0, WF + 8*e, r, None if e == 0 else C0)
        MF(a, C1, WF + 8*e + 4, r, None if e == 0 else C1)
    stamp(a, 6)
    for ow in range(4):
        a(f"ds_write_b128 v8, v[{C0+8*ow}:{C0+8*ow+3}] offset:{8192*ow}")
        a(f"ds_write_b128 v8, v[{C0+8*ow+4}:{C0+8*ow+7}] offset:{8192*ow+1024}")
    a("s_waitcnt lgkmcnt(0)\ns_barrier")
    for sr in range(4):
        a(f"ds_read_b128 v[{OF+8*sr}:{OF+8*sr+3}], v11 offset:{2048*sr}")
        a(f"ds_read_b128 v[{OF+8*sr+4}:{OF+8*sr+7}], v11 offset:{2048*sr+1024}")
    a("s_waitcnt lgkmcnt(4)")
    for i in range(8): a(f"v_add_f32 v{OF+i}, v{OF+i}, v{OF+8+i}")
    a("s_waitcnt lgkmcnt(0)")
    for i in range(8): a(f"v_add_f32 v{OF+16+i}, v{OF+16+i}, v{OF+24+i}")
    for i in range(8): a(f"v_add_f32 v{OF+i}, v{OF+i}, v{OF+16+i}")
    for i in range(8): a(f"v_fmac_f32 v{AX+i}, v{OF+i}, v{GR+1}")
    for i in range(4): a(f"v_cvt_pk_bf16_f32 v{OF+i}, v{AX+2*i}, v{AX+2*i+1}")
    a(f"""v_permlane32_swap_b32 v{OF}, v{OF+2}
    v_permlane32_swap_b32 v{OF+1}, v{OF+3}
    buffer_store_dwordx4 v[{OF}:{OF+3}], v{vRow}, s[40:43], s69 offen {('', 'nt', 'sc1', 'sc0 sc1')[OPT.get('outflag', 0)]}""")
    fin(a)
    for e in range(8):
        a.label(f"a_oretry{e}")
        a("s_waitcnt vmcnt(0)")
        for i in range(e, 8):
            a(f"buffer_load_dwordx4 v[{OF+4*i}:{OF+4*i+3}], v2, s[{WSR}:{WSR+3}], s{68 if i < 4 else 59} offen offset:{1024*(i&3)} sc1")
        a(f"""s_sub_u32 s75, s75, 1
        s_waitcnt vmcnt({7-e})
        s_cmp_lg_u32 s75, 0
        s_cbranch_scc1 a_ochk{e}
        s_branch a_ogo{e}""")
    a.label("k_end")
    a("s_endpgm")
    return a.finish()

def build():
    hdr = open("cdna_kernels/" + NAME + ".s.ref").read().split("; Override launch")[0]
    out = hdr + f"; @launch grid=(256,1,1) block=(768,1,1) lds={LEND}\n"
    out += f'.amdgcn_target "amdgcn-amd-amdhsa--gfx950"\n.text\n.globl {KN}\n.p2align 8\n.type {KN},@function\n' + kernel() + "code_end:\n"
    out += f""".section .rodata,"a"
.p2align 6
.amdhsa_kernel {KN}
  .amdhsa_next_free_vgpr 168
  .amdhsa_next_free_sgpr {100 if DIAG else 80}
  .amdhsa_accum_offset 168
  .amdhsa_group_segment_fixed_size 0
  .amdhsa_kernarg_size 120
  .amdhsa_user_sgpr_count 2
  .amdhsa_user_sgpr_kernarg_segment_ptr 1
  .amdhsa_system_sgpr_workgroup_id_x 1
.end_amdhsa_kernel
"""
    return out

if __name__ == "__main__":
    for x in list(sys.argv):
        if "=" in x:
            kk, vv = x.split("="); OPT[kk] = int(vv); sys.argv.remove(x)
    if "-l" in sys.argv:
        DIAG = True; LIGHT = True; sys.argv.remove("-l")
    if "-d" in sys.argv:
        DIAG = True; sys.argv.remove("-d")
    dst = sys.argv[1] if len(sys.argv) > 1 else "cdna_kernels/" + NAME + ".s"
    open(dst, "w").write(build())
    print("wrote", dst)
```

```python
import sys, math, struct
from asmlib import Asm

NAME = "gated_mix__ssm_conv_h3__grouped_kv_mqa__prompt"
KN = NAME + "_kernel"
WS_KV, WS_KMAX, WS_G = 0x000000, 0x024000, 0x025000
WS_FKV, WS_FX, WS_FY = 0x028000, 0x02c000, 0x030000
WS_XREV, WS_O, WS_Y = 0x100000, 0x300000, 0x500000
WS_SIZE = 0x700000
ST = 2080
KVBYTES = 64 * ST
CSCALE = 0.25 * math.log2(math.e)
def f32(x): return "0x%08x" % struct.unpack("<I", struct.pack("<f", x))[0]

XT, WT, WKV = 0, 65536, 131072
QX = 149824
YT = KVBYTES
XE0, XESZ, XOOFF = KVBYTES, 8320, 4160
CNT = 149760
LEND = 163840
OX0, OX1 = 141312, 149824

DIAG = False
LIGHT = False
OPT = {"oack": 0, "oflag": 1, "cpf": 0, "dsplit": 1, "obulk": 1, "early": 1, "wqpf": 0}
WS_DIAG = 0x1000000
def ast(a, idx, tail):
    if bool(OPT.get("tail2")) == tail: stamp(a, idx)
def hst(a, idx, tail):
    if bool(OPT.get("tailst")) == tail: stamp(a, idx)
def stamp(a, idx, real=False):
    if not DIAG: return
    if LIGHT and idx < 8: return
    if OPT.get("dbg"): real = True
    a(f"{'s_memrealtime' if real else 's_memtime'} s[{80+2*idx}:{81+2*idx}]\ns_waitcnt lgkmcnt(0)")
def fin(a):
    if OPT.get("dbg"):
        _n[0] += 1; l = f"fin{_n[0]}"
        a(f"""s_waitcnt vmcnt(0)
        s_memrealtime s[94:95]
        s_load_dwordx2 s[68:69], s[0:1], 104
        s_waitcnt lgkmcnt(0)
        s_cmp_lg_u32 s2, 77
        s_cbranch_scc1 {l}
        s_cmp_eq_u32 s3, {OPT["dbg"]}
        s_cselect_b32 s67, 0, 32
        s_cbranch_scc1 {l}_go
        s_cmp_lg_u32 s3, 8
        s_cbranch_scc1 {l}""")
        a.label(l + "_go")
        a("s_mov_b32 s70, 256\ns_mov_b32 s71, 0x20000\ns_mov_b64 exec, 1\nv_mov_b32 v0, 0")
        for i in range(1, 8):
            a(f"s_sub_u32 s66, s{80+2*i}, s80\nv_mov_b32 v{i}, s66\nbuffer_store_dword v{i}, v0, s[68:71], s67 offen offset:{4*(i-1)}")
        a.label(l)
        a("s_endpgm")
        return
    if DIAG:
        a("s_waitcnt vmcnt(0)")
        stamp(a, 7); stamp(a, 9, True)
        a(f"""s_add_u32 s68, s30, {WS_DIAG}
        s_addc_u32 s69, s31, 0
        s_mov_b32 s70, 0x40000
        s_mov_b32 s71, 0x20000
        s_lshl_b32 s67, s2, 4
        s_add_u32 s67, s67, s3
        s_lshl_b32 s67, s67, 6
        s_mov_b64 exec, 1
        v_mov_b32 v0, 0""")
        for i in range(10):
            a(f"v_mov_b32 v1, s{80+2*i}\nbuffer_store_dword v1, v0, s[68:71], s67 offen offset:{4*i}")
    a("s_endpgm")

def srd(a, d, lo, size):
    a(f"s_mov_b32 s{d}, s{lo}\ns_mov_b32 s{d+1}, s{lo+1}\ns_mov_b32 s{d+2}, {size}\ns_mov_b32 s{d+3}, 0x20000")
def srd_off(a, d, lo, off, size):
    a(f"s_add_u32 s{d}, s{lo}, {off}\ns_addc_u32 s{d+1}, s{lo+1}, 0\ns_mov_b32 s{d+2}, {size}\ns_mov_b32 s{d+3}, 0x20000")
def dma(a, voff, srdn, soff, m0, flags=""):
    a(f"s_mov_b32 m0, {m0}")
    a(f"buffer_load_dwordx4 v{voff}, s[{srdn}:{srdn+3}], {soff} offen {flags} lds")
PX, PK, PV, PSH, PH, PD, PWQ, PWK, PWV, PWO, PGW, POUT, PWS = 4, 6, 8, 10, 12, 14, 18, 20, 22, 24, 26, 28, 30
WSR = 32
TAG = 77
_n = [0]
def lds_wait(a, vaddr, off, val, vt, sleep=1):
    sleep = sleep * OPT.get("slmul", 1)
    _n[0] += 1; l = f"lw{_n[0]}"
    a("s_mov_b32 s75, 0x100000")
    a.label(l)
    a(f"""ds_read_b32 v{vt}, v{vaddr} offset:{off}
    s_sub_u32 s75, s75, 1
    s_waitcnt lgkmcnt(0)
    v_readfirstlane_b32 s74, v{vt}
    s_cmp_ge_u32 s74, {val}
    s_cbranch_scc1 {l}_ok
    s_sleep {sleep}
    s_cmp_lg_u32 s75, 0
    s_cbranch_scc1 {l}""")
    a.label(l + "_ok")
def lds_add(a, vaddr, off, vone):
    a(f"s_mov_b64 exec, 1\nds_add_u32 v{vaddr}, v{vone} offset:{off}\ns_mov_b64 exec, -1")
def publish(a, vaddr, off, vone, vt, sflag, nwaves, xcc=False):
    _n[0] += 1; l = f"pb{_n[0]}"
    a(f"""s_mov_b64 exec, 1
    ds_add_rtn_u32 v{vt}, v{vaddr}, v{vone} offset:{off}
    s_waitcnt lgkmcnt(0)
    v_readfirstlane_b32 s74, v{vt}
    s_cmp_lg_u32 s74, {nwaves-1}
    s_cbranch_scc1 {l}
    v_mov_b32 v{vt}, s{TAG}
    v_mov_b32 v{vt+2}, 0""")
    if xcc:
        a(f"""s_getreg_b32 s74, hwreg(HW_REG_XCC_ID)
        v_mov_b32 v{vt+1}, s74
        buffer_store_dwordx2 v[{vt}:{vt+1}], v{vt+2}, s[{WSR}:{WSR+3}], s{sflag} offen sc1""")
    else:
        a(f"buffer_store_dword v{vt}, v{vt+2}, s[{WSR}:{WSR+3}], s{sflag} offen sc1")
    a.label(l)
    a("s_mov_b64 exec, -1")
def poll32(a, sbase, vt, word, rowgrp=False):
    _n[0] += 1; l = f"pl{_n[0]}"
    a(f"s_cmp_lg_u32 s66, 0\ns_cbranch_scc1 {l}_lds")
    a(f"v_lshlrev_b32 v{vt}, 6, v1")
    if rowgrp:
        a(f"""s_lshl_b32 s74, s61, 11
        v_add_u32 v{vt}, s74, v{vt}
        s_lshl_b32 s74, s60, 6
        s_mov_b32 exec_lo, 0
        v_and_b32 v{vt}, 7, v1
        v_lshlrev_b32 v{vt}, 11, v{vt}
        v_add_u32 v{vt}, s74, v{vt}
        s_mov_b32 exec_lo, -1""")
    a(f"s_mov_b32 exec_hi, {0xff if rowgrp else 0}\ns_mov_b32 s75, 0x40000")
    a.label(l)
    a(f"""buffer_load_dword v{vt+1}, v{vt}, s[{WSR}:{WSR+3}], s{sbase} offen sc1
    s_sub_u32 s75, s75, 1
    s_waitcnt vmcnt(0)
    v_cmp_ne_u32 vcc, s{TAG}, v{vt+1}
    s_cbranch_vccz {l}_ok
    s_mov_b64 exec, vcc
    s_sleep 4
    s_cmp_lg_u32 s75, 0
    s_cbranch_scc1 {l}""")
    a.label(l + "_ok")
    a(f"s_mov_b64 exec, -1\nds_write_b32 v3, v14 offset:{word}\ns_branch {l}_done")
    a.label(l + "_lds")
    lds_wait(a, 3, word, 1, vt, 2)
    a.label(l + "_done")

def w_src(a, v, t0, t1):
    a(f"""v_lshrrev_b32 v{t0}, 3, v1
    v_lshlrev_b32 v{t1}, 1, v{t0}
    v_and_b32 v{t1}, 4, v{t1}
    v_and_b32 v{v}, 7, v1
    v_xor_b32 v{v}, v{v}, v{t1}
    v_lshlrev_b32 v{v}, 4, v{v}
    v_lshl_add_u32 v{v}, v{t0}, 10, v{v}
    s_lshl_b32 s63, s57, 1
    v_add_u32 v{v}, s63, v{v}""")

MF = lambda a, d, A, B, C: a(f"v_mfma_f32_32x32x16_bf16 v[{d}:{d+15}], v[{A}:{A+3}], v[{B}:{B+3}], " + ("0" if C is None else f"v[{C}:{C+15}]"))

def kv_unit_step(a, step):
    a(f"""s_cmp_ge_u32 s59, 130
    s_cselect_b32 s63, 130, 0
    s_sub_u32 s59, s59, s63
    s_lshl_b32 s63, s59, 10
    s_add_u32 s59, s59, {step}""")

def kernel():
    a = Asm()
    a.label(KN)
    a("s_cmp_ge_u32 s2, 256\ns_cbranch_scc1 k_end")
    if OPT.get("scramble"):
        a("s_lshr_b32 s60, s2, 5\ns_and_b32 s2, s2, 31\ns_lshl_b32 s2, s2, 3\ns_or_b32 s2, s2, s60")
    stamp(a, 8, True); stamp(a, 0)
    a("""s_load_dwordx2 s[30:31], s[0:1], 112
    s_load_dwordx16 s[4:19], s[0:1], 0
    s_load_dwordx8 s[20:27], s[0:1], 64
    s_load_dwordx2 s[28:29], s[0:1], 96
    v_lshrrev_b32 v2, 6, v0
    v_and_b32 v1, 63, v0
    v_readfirstlane_b32 s3, v2
    s_and_b32 s60, s2, 7
    s_lshl_b32 s60, s60, 2
    s_lshr_b32 s61, s2, 3
    s_and_b32 s62, s61, 3
    s_add_u32 s60, s60, s62
    s_lshr_b32 s61, s61, 2
    s_lshl_b32 s56, s60, 6
    s_lshl_b32 s57, s61, 6
    s_add_u32 s59, s61, s62
    s_add_u32 s59, s59, s2
    s_and_b32 s59, s59, 3
    s_lshr_b32 s76, s61, 1
    s_lshl_b32 s58, s62, 1
    v_lshlrev_b32 v2, 4, v1
    s_cmp_lt_u32 s3, 8
    s_cbranch_scc1 k_att""")
    a("s_sub_u32 s66, s3, 8\nv_lshrrev_b32 v9, 4, v1\nv_and_b32 v10, 15, v1")
    for q in range(4):
        a(f"""v_add_u32 v11, {4*q}, v9
        v_xor_b32 v12, v11, v10
        v_lshlrev_b32 v12, 4, v12
        v_lshl_add_u32 v{4+q}, v11, 10, v12""")
    a("""s_add_u32 s63, s59, s66
    s_and_b32 s63, s63, 3
    s_lshl_b32 s64, s76, 4
    s_add_u32 s64, s64, s56
    s_lshl_b32 s64, s64, 10
    s_lshl_b32 s65, s63, 8
    s_add_u32 s64, s64, s65
    s_lshl_b32 s65, s63, 12
    s_lshl_b32 s67, s66, 14
    s_lshl_b32 s68, s76, 12
    s_add_u32 s67, s67, s68
    s_lshl_b32 s68, s66, 12
    s_and_b32 s69, s61, 1
    s_cmp_eq_u32 s69, 0
    s_waitcnt lgkmcnt(0)""")
    a(f"""s_cselect_b32 s40, s{PWK}, s{PWV}
    s_cselect_b32 s41, s{PWK+1}, s{PWV+1}
    s_mov_b32 s42, 0x4000
    s_mov_b32 s43, 0x20000""")
    srd(a, 36, PX, 0x200000)
    for q in range(4):
        a(f"s_add_u32 s63, s67, {XT + q*1024}")
        dma(a, 4 + q, 36, "s64", "s63")
        a(f"s_add_u32 s63, s68, {WKV + q*1024}")
        dma(a, 2, 40, "s65", "s63")
        if q < 3: a("s_add_u32 s65, s65, 1024")
    srd(a, 44, PWQ, 0x80000)
    srd(a, WSR, PWS, WS_SIZE)
    a(f"s_add_u32 s78, s30, {WS_FY}\ns_addc_u32 s79, s31, 0\ns_load_dword s{TAG}, s[78:79], 0")
    w_src(a, 8, 9, 10)
    a(f"""s_lshl_b32 s63, s66, 2
    v_lshrrev_b32 v9, 4, v1
    v_add_u32 v11, s63, v9
    v_and_b32 v10, 15, v1
    v_xor_b32 v12, v11, v10
    v_lshlrev_b32 v12, 4, v12
    v_lshl_add_u32 v13, v11, 10, v12
    v_mov_b32 v3, {CNT}""")
    def stage1(slot):
        a(f"""s_add_u32 s63, s59, {slot}
        s_and_b32 s63, s63, 3
        s_lshl_b32 s67, s63, 17
        s_lshl_b32 s64, s66, 15
        s_add_u32 s67, s67, s64
        s_lshl_b32 s65, s63, 8
        s_lshl_b32 s64, s56, 10
        s_add_u32 s65, s65, s64
        s_lshl_b32 s69, s66, 10""")
        for q in range(4):
            a(f"s_add_u32 s63, s68, {WT + slot*16384 + q*1024}")
            dma(a, 8, 44, "s67", "s63")
            if q < 3:
                a(f"""s_add_u32 s67, s67, 8192
                s_add_u32 s63, s76, {q+1}
                s_and_b32 s63, s63, 3
                s_lshl_b32 s64, s63, 14
                s_add_u32 s64, s64, s65
                s_lshl_b32 s63, s63, 12
                s_add_u32 s63, s63, s69
                s_add_u32 s63, s63, {XT + slot*16384}""")
                dma(a, 13, 36, "s64", "s63")
    if OPT.get("early"): stage1(0)
    a("""v_lshl_add_u32 v14, v1, 2, v3
    v_mov_b32 v15, 0
    s_mov_b64 exec, 0xffff
    ds_write_b32 v14, v15
    s_mov_b64 exec, -1
    v_mov_b32 v14, 1""")
    a(f"s_waitcnt vmcnt({7 if OPT.get('early') else 0}) lgkmcnt(0)\ns_barrier")
    a(f"s_mul_i32 s{TAG}, s{TAG}, 0x9e3779b1\ns_add_u32 s{TAG}, s{TAG}, 0x7f4a7c15")
    if not OPT.get('early'): stage1(0)
    stage1(1); stage1(2); stage1(3)
    if OPT.get("qcnt"):
        a("s_waitcnt vmcnt(14)")
        lds_add(a, 3, 48, 14)
        a("s_waitcnt vmcnt(0)")
        lds_add(a, 3, 60, 14)
    else:
        a("s_waitcnt vmcnt(14)\ns_barrier\ns_waitcnt vmcnt(0)\ns_barrier")
    a(f"""s_setprio 3
    s_lshr_b32 s67, s66, 1
    s_and_b32 s68, s66, 1
    s_lshl_b32 s69, s60, 1
    s_add_u32 s69, s69, s57
    s_add_u32 s69, s69, s67
    s_lshl_b32 s70, s69, 12""")
    srd(a, 36, PK, 0x200000)
    srd(a, 40, PV, 0x200000)
    srd(a, 44, PSH, 4096)
    srd_off(a, 48, PH, "s70", 4096)
    srd(a, 52, PD, 1024)
    def first_batch(n):
        for j in range(n):
            kv_unit_step(a, 4)
            dma(a, 2, WSR, "s63", "s63", "sc1")
    a(f"""s_lshl_b32 s63, s67, 2
    s_add_u32 s63, s63, s58
    s_and_b32 s63, s63, 7
    s_mul_i32 s59, s63, 65
    s_lshr_b32 s59, s59, 2
    s_add_u32 s59, s59, s68
    s_add_u32 s59, s59, 12""")
    def bulk(n, lbl):
        a(f"s_mov_b32 s72, {n}")
        a.label(lbl)
        kv_unit_step(a, 2)
        dma(a, 2, WSR, "s63", "s63", "sc1")
        a(f"s_sub_u32 s72, s72, 1\ns_cmp_lg_u32 s72, 0\ns_cbranch_scc1 {lbl}")
    H = 160 - 16
    vA, vB0, vB1 = 34, 35, 33
    AF, BF, B2F, ACC0, ACC1 = 48, 80, 112, 128, 144
    a(f"""v_lshrrev_b32 v5, 3, v1
    v_and_b32 v6, 7, v1
    v_lshlrev_b32 v6, 4, v6
    v_lshl_add_u32 v6, v5, 10, v6
    s_lshl_b32 s63, s57, 1
    v_add_u32 v6, s63, v6
    s_lshl_b32 s63, s66, 4
    s_add_u32 s63, s63, s57
    v_and_b32 v7, 15, v1
    v_add_u32 v7, s63, v7
    v_lshlrev_b32 v18, 3, v7
    s_lshl_b32 s64, s56, 10
    s_sub_u32 s64, s64, 3072
    v_lshrrev_b32 v17, 4, v1
    v_lshlrev_b32 v19, 14, v17
    v_lshl_add_u32 v19, v7, 1, v19
    v_add_u32 v19, s64, v19
    s_lshl_b32 s63, s69, 1
    v_mov_b32 v20, s63
    v_bfe_u32 v16, v1, 2, 2
    v_lshlrev_b32 v16, 7, v16
    v_lshl_add_u32 v16, v17, 12, v16
    v_lshlrev_b32 v24, 5, v17
    v_and_b32 v17, 3, v1
    v_lshl_add_u32 v16, v17, 3, v16
    s_lshl_b32 s63, s66, 5
    s_add_u32 s63, s63, {XE0}
    v_add_u32 v16, s63, v16
    v_lshrrev_b32 v26, 2, v1
    v_mul_u32_u24 v32, {XOOFF}, v26
    v_mul_u32_u24 v26, 144, v26
    v_lshlrev_b32 v17, 4, v17
    v_sub_u32 v26, v17, v26
    s_lshl_b32 s63, s67, 6
    s_add_u32 s63, s63, {LEND - 144 - 3*2304}
    v_add_u32 v26, s63, v26
    v_and_b32 v21, 0x1f7, v7
    v_lshlrev_b32 v21, 12, v21
    v_sub_u32 v21, v21, v24
    v_and_b32 v9, 8, v1
    v_lshl_add_u32 v21, v9, 1, v21
    v_add_u32 v21, 96, v21
    s_mul_i32 s71, s67, {XESZ}
    s_add_u32 s71, s71, {XE0}
    v_add_u32 v27, s71, v2
    v_add_u32 v32, v32, v17
    s_add_u32 s63, s71, 4096
    v_add_u32 v32, s63, v32
    v_and_b32 v4, 31, v1
    v_lshrrev_b32 v5, 5, v1
    v_or_b32 v9, 1, v4
    v_lshlrev_b32 v17, 3, v5
    v_sub_u32 v9, v17, v9
    s_cmp_eq_u32 s68, 0
    s_cselect_b32 s63, 1055, 31
    s_sub_u32 s63, s63, 256
    v_add_u32 v9, s63, v9
    v_lshlrev_b32 v9, 1, v9
    v_and_b32 v17, 1, v4
    v_xor_b32 v17, 1, v17
    v_mul_u32_u24 v17, {XOOFF}, v17
    v_add3_u32 v{vA}, v9, v17, s71
    v_mul_u32_u24 v9, 144, v4
    v_lshlrev_b32 v17, 4, v5
    v_sub_u32 v9, v17, v9
    s_lshl_b32 s63, s67, 6
    s_add_u32 s63, s63, {LEND + 144*23 + 1152}
    v_add_u32 v{vB0}, s63, v9
    v_mov_b32 v28, 0
    v_mov_b32 v29, 0
    v_mov_b32 v30, 0
    v_mov_b32 v31, 0
    s_lshl_b32 s63, s68, 11
    v_lshlrev_b32 v22, 6, v4
    v_lshl_add_u32 v22, v5, 3, v22
    v_add_u32 v22, s63, v22
    s_add_u32 s63, s71, {4088 - 48}
    v_sub_u32 v22, s63, v22
    v_and_b32 v23, 27, v4
    v_lshlrev_b32 v23, 6, v23
    v_lshl_add_u32 v23, v5, 4, v23
    v_and_b32 v9, 4, v4
    v_lshl_add_u32 v23, v9, 3, v23
    s_lshl_b32 s63, s68, 11
    v_add_u32 v23, s63, v23""")
    for i in range(16): a(f"v_mov_b32 v{ACC0+i}, 0")
    w_src(a, 8, 9, 10)
    a(f"""s_lshl_b32 s64, s66, 4
    s_add_u32 s64, s64, s56
    s_lshl_b32 s64, s64, 10
    s_add_u32 s65, s64, 8192
    s_lshl_b32 s73, s66, 12
    s_add_u32 s73, s73, {XE0}
    s_barrier
    s_barrier""")
    hst(a, 1, False)
    bulk(5, "h_bulk1")
    a("s_waitcnt vmcnt(0)")
    lds_add(a, 3, 4, 14)
    if OPT.get("abl") == 1:
        bulk(15, "h_bulk3"); a("s_waitcnt vmcnt(0)"); lds_add(a, 3, 8, 14); fin(a)
    dma(a, 6, 36, "s64", "s73")
    a("s_add_u32 s63, s73, 1024"); dma(a, 6, 36, "s65", "s63")
    a("s_add_u32 s63, s73, 2048"); dma(a, 6, 40, "s64", "s63")
    a("s_add_u32 s63, s73, 3072"); dma(a, 6, 40, "s65", "s63")
    a(f"""buffer_load_dwordx2 v[10:11], v18, s[44:47], 0 offen
    buffer_load_ushort v12, v19, s[36:39], 0 offen
    buffer_load_ushort v13, v19, s[36:39], 0 offen offset:1024
    buffer_load_ushort v15, v19, s[36:39], 0 offen offset:2048""")
    bulk(13, "h_bulk2")
    a("s_waitcnt vmcnt(4)")
    lds_add(a, 3, 8, 14)
    if OPT.get("abl") == 2:
        a("s_waitcnt vmcnt(0)"); lds_add(a, 3, 8, 14); fin(a)
    lds_add(a, 3, 40, 14)
    lds_wait(a, 3, 40, 4, 9)
    hst(a, 2, False)
    KR, VR, KF, VF = 36, 44, 52, 72
    for i in range(4): a(f"ds_read_b64_tr_b16 v[{KR+2*i}:{KR+2*i+1}], v16 offset:{i*512}")
    for i in range(4): a(f"ds_read_b64_tr_b16 v[{VR+2*i}:{VR+2*i+1}], v16 offset:{2048 + i*512}")
    a(f"""v_lshlrev_b32 v88, 16, v10
    v_and_b32 v89, 0xffff0000, v10
    v_lshlrev_b32 v90, 16, v11
    v_and_b32 v91, 0xffff0000, v11
    v_lshlrev_b32 v{KF}, 16, v12
    v_lshlrev_b32 v{KF+1}, 16, v13
    v_lshlrev_b32 v{KF+2}, 16, v15
    s_waitcnt lgkmcnt(4)""")
    for i in range(0 if OPT.get("nokv") else 8):
        a(f"v_lshlrev_b32 v{KF+3+2*i}, 16, v{KR+i}\nv_and_b32 v{KF+4+2*i}, 0xffff0000, v{KR+i}")
    a("s_waitcnt lgkmcnt(0)")
    for i in range(0 if OPT.get("nokv") else 8):
        a(f"v_lshlrev_b32 v{VF+2*i}, 16, v{VR+i}\nv_and_b32 v{VF+1+2*i}, 0xffff0000, v{VR+i}")
    if OPT.get("noconv"): fin(a)
    for s in range(0 if OPT.get("nokv") else 16):
        t = 36 + (s % 8)
        a(f"""v_mul_f32 v{t}, v{KF+s}, v91
        v_fmac_f32 v{t}, v{KF+s+1}, v90
        v_fmac_f32 v{t}, v{KF+s+2}, v89
        v_fmac_f32 v{t}, v{KF+s+3}, v88
        v_mul_f32 v{VF+s}, v{t}, v{VF+s}""")
    for q in range(8):
        a(f"v_cvt_pk_bf16_f32 v{44+q}, v{VF+15-2*q}, v{VF+14-2*q}")
    for i in range(4):
        a(f"v_mov_b32 v{52+i}, v{44+i}")
    for i in range(4):
        a(f"v_mov_b32_dpp v{44+i}, v{48+i} row_ror:8 row_mask:0xf bank_mask:0xc")
        a(f"v_mov_b32_dpp v{48+i}, v{52+i} row_ror:8 row_mask:0xf bank_mask:0x3")
    a(f"""s_lshl_b32 s64, s56, 1
    s_sub_u32 s64, {WS_XREV + 4064 - 96}, s64
    s_add_u32 s63, s64, 32768
    buffer_store_dwordx4 v[44:47], v21, s[{WSR}:{WSR+3}], s64 offen sc1
    buffer_store_dwordx4 v[48:51], v21, s[{WSR}:{WSR+3}], s63 offen sc1
    s_lshl_b32 s72, s61, 11
    s_lshl_b32 s65, s60, 6
    s_add_u32 s65, s65, s72
    s_add_u32 s64, s72, {WS_FX}
    s_add_u32 s73, s65, {WS_FX}""")
    bulk(9, "h_bulk3b")
    for i in range(4):
        a(f"buffer_load_dwordx4 v[{H+4*i}:{H+4*i+3}], v2, s[48:51], 0 offen offset:{1024*i}")
    a("buffer_load_ushort v25, v20, s[52:55], 0 offen\ns_waitcnt vmcnt(14)")
    publish(a, 3, 16, 14, 16, 73, 4)
    a("s_waitcnt vmcnt(5)")
    lds_add(a, 3, 60, 14)
    a("s_waitcnt vmcnt(0)")
    for i in range(4): a(f"ds_write_b128 v26, v[{H+4*i}:{H+4*i+3}] offset:{2304*(3-i)}")
    hst(a, 3, False)
    a(f"s_add_u32 s63, s70, {WS_XREV}")
    srd_off(a, 40, PWS, "s63", 4096)
    a(f"s_add_u32 s63, s70, {WS_Y}")
    srd_off(a, 44, PWS, "s63", 4096)
    poll32(a, 64, 16, 52)
    hst(a, 4, False)
    if OPT.get("abl") == 3: fin(a)
    X = 52
    for i in range(4):
        a(f"buffer_load_dwordx4 v[{X+6*i}:{X+6*i+3}], v2, s[40:43], 0 offen offset:{1024*i} sc1")
        a(f"buffer_load_dword v{X+6*i+4}, v2, s[40:43], 0 offen offset:{1024*i+16} sc1")
    srd(a, 36, PWO, 0x80000)
    a("s_lshr_b32 s63, s2, 3\ns_lshl_b32 s63, s63, 14\ns_lshl_b32 s74, s66, 12\ns_add_u32 s63, s63, s74")
    for i in range(4):
        a(f"buffer_load_dwordx4 v[160:163], v2, s[36:39], s63 offen offset:{1024*i}")
    a("s_mov_b64 exec, 0xff\nds_write_b128 v32, v[28:31]\ns_mov_b64 exec, -1")
    for i in range(4):
        x = X + 6*i
        a(f"s_waitcnt vmcnt({10-2*i})")
        a(f"ds_write_b128 v27, v[{x}:{x+3}] offset:{1024*i}")
        for j in range(4): a(f"v_alignbit_b32 v{36+4*(i&1)+j}, v{x+j+1}, v{x+j}, 16")
        a(f"ds_write_b128 v27, v[{36+4*(i&1)}:{39+4*(i&1)}] offset:{XOOFF+1024*i}")
    a("s_waitcnt lgkmcnt(0)")
    a_ref = [a]
    def creads(t, dual):
        a = a_ref[0]
        b = t % 4; b2 = t % 2
        if OPT.get("noreads"): return
        if t == 0:
            a(f"v_add_u32 v{vA}, 512, v{vA}\nv_subrev_u32 v{vB0}, 1152, v{vB0}")
            if dual: a(f"v_subrev_u32 v{vB1}, 1152, v{vB1}")
        for u in range(2):
            o = (2*t + u) * 8
            r = AF + 8*b + 4*u
            a(f"ds_read2_b32 v[{r}:{r+1}], v{vA} offset0:{o} offset1:{o+1}")
            a(f"ds_read2_b32 v[{r+2}:{r+3}], v{vA} offset0:{o+2} offset1:{o+3}")
        for u in range(2):
            r = BF + 8*b + 4*u
            a(f"ds_read_b128 v[{r}:{r+3}], v{vB0} offset:{144*(7-t) + 32*u}")
        if dual:
            for u in range(2):
                r = B2F + 8*b2 + 4*u
                a(f"ds_read_b128 v[{r}:{r+3}], v{vB1} offset:{144*(7-t) + 32*u}")
    if OPT.get("abl") == 4: fin(a)
    a("s_cmp_eq_u32 s68, 0\ns_cselect_b32 s72, 2, 6")
    a(f"s_setprio {OPT.get('cprio', 3)}")
    PF = OPT.get("cpf", 2)
    for t in range(PF): creads(t, False)
    a.label("h_conv1")
    for t in range(8):
        b = t % 4
        if PF == 0: creads(t, False)
        a(f"s_waitcnt lgkmcnt({6 if PF == 2 else 0})")
        if OPT.get("cspace"):
            sub = Asm(); save = a_ref[0]; a_ref[0] = sub
            creads((t + PF) % 8, False); a_ref[0] = save
            L = sub.lines; h = len(L) - 3
            MF(a, ACC0, AF + 8*b, BF + 8*b, ACC0)
            for x in L[:h]: a(x)
            MF(a, ACC0, AF + 8*b + 4, BF + 8*b + 4, ACC0)
            for x in L[h:]: a(x)
            continue
        for u in range(0 if OPT.get("nomfma") else 2): MF(a, ACC0, AF + 8*b + 4*u, BF + 8*b + 4*u, ACC0)
        if PF: creads((t + PF) % 8, False)
    a("s_sub_u32 s72, s72, 1\ns_cmp_lg_u32 s72, 0\ns_cbranch_scc1 h_conv1")
    a("s_cmp_lg_u32 s68, 0\ns_cbranch_scc1 h_convb")
    if PF: a(f"v_subrev_u32 v{vA}, 512, v{vA}\nv_add_u32 v{vB0}, 1152, v{vB0}")
    a(f"""s_waitcnt lgkmcnt(0)
    v_subrev_u32 v{vB1}, {144*32}, v{vB0}
    s_mov_b32 s72, 2""")
    for i in range(16): a(f"v_mov_b32 v{ACC1+i}, 0")
    if PF == 2: creads(0, True)
    a.label("h_conv2")
    for t in range(8):
        b = t % 4; b2 = t % 2
        if OPT.get("dsplit"):
            sub = Asm(); save = a_ref[0]; a_ref[0] = sub
            creads(t, True); a_ref[0] = save
            L = sub.lines; pre = L[:len(L)-8]; R = L[len(L)-8:]
            for x in pre: a(x)
            for u in range(2):
                for x in (R[2*u], R[2*u+1], R[4+u], R[6+u]): a(x)
                a("s_waitcnt lgkmcnt(0)")
                MF(a, ACC0, AF + 8*b + 4*u, BF + 8*b + 4*u, ACC0)
                MF(a, ACC1, AF + 8*b + 4*u, B2F + 8*b2 + 4*u, ACC1)
            continue
        if PF < 2: creads(t, True)
        a("s_waitcnt lgkmcnt(0)")
        if PF == 2: creads((t + 1) % 8, True)
        for u in range(0 if OPT.get("nomfma") else 2):
            MF(a, ACC0, AF + 8*b + 4*u, BF + 8*b + 4*u, ACC0)
            MF(a, ACC1, AF + 8*b + 4*u, B2F + 8*b2 + 4*u, ACC1)
    a("s_sub_u32 s72, s72, 1\ns_cmp_lg_u32 s72, 0\ns_cbranch_scc1 h_conv2")
    a(f"s_lshl_b32 s63, s67, 2\nv_add_u32 v9, s63, v3\ns_waitcnt lgkmcnt(0)")
    lds_wait(a, 9, 32, 1, 16)
    for i in range(4): a(f"ds_write_b128 v27, v[{ACC1+4*i}:{ACC1+4*i+3}] offset:{XOOFF + 1024*i}")
    a("s_waitcnt lgkmcnt(0)")
    lds_add(a, 9, 24, 14)
    a("s_branch h_cepi")
    a.label("h_convb")
    a(f"s_lshl_b32 s63, s67, 2\nv_add_u32 v9, s63, v3\ns_waitcnt lgkmcnt(0)")
    lds_add(a, 9, 32, 14)
    lds_wait(a, 9, 24, 1, 16)
    for i in range(4): a(f"ds_read_b128 v[{ACC1+4*i}:{ACC1+4*i+3}], v27 offset:{XOOFF + 1024*i}")
    a("s_waitcnt lgkmcnt(0)")
    for i in range(8): a(f"v_pk_add_f32 v[{ACC0+2*i}:{ACC0+2*i+1}], v[{ACC0+2*i}:{ACC0+2*i+1}], v[{ACC1+2*i}:{ACC1+2*i+1}]")
    a.label("h_cepi")
    if OPT.get("abl") == 5: fin(a)
    a("s_setprio 3")
    hst(a, 1, True)
    hst(a, 5, False)
    for aa in range(4):
        a(f"ds_read_b64 v[{48+2*aa}:{49+2*aa}], v22 offset:{48 - 16*aa}")
    a("v_lshlrev_b32 v25, 16, v25\ns_waitcnt lgkmcnt(0)")
    for aa in range(4):
        d0, d1 = 48 + 2*aa, 49 + 2*aa
        a(f"""v_and_b32 v36, 0xffff0000, v{d1}
        v_lshlrev_b32 v37, 16, v{d1}
        v_and_b32 v38, 0xffff0000, v{d0}
        v_lshlrev_b32 v39, 16, v{d0}
        v_fmac_f32 v{ACC0+4*aa}, v36, v25
        v_fmac_f32 v{ACC0+4*aa+1}, v37, v25
        v_fmac_f32 v{ACC0+4*aa+2}, v38, v25
        v_fmac_f32 v{ACC0+4*aa+3}, v39, v25
        v_cvt_pk_bf16_f32 v{40+2*aa}, v{ACC0+4*aa}, v{ACC0+4*aa+1}
        v_cvt_pk_bf16_f32 v{41+2*aa}, v{ACC0+4*aa+2}, v{ACC0+4*aa+3}""")
    for p in range(2):
        r = 40 + 4*p
        a(f"v_permlane32_swap_b32 v{r}, v{r+2}\nv_permlane32_swap_b32 v{r+1}, v{r+3}")
    for i in range(4): a(f"v_mov_b32 v{56+i}, v{40+i}")
    for i in range(4):
        a(f"v_mov_b32_dpp v{40+i}, v{44+i} row_shr:4 row_mask:0xf bank_mask:0xa")
        a(f"v_mov_b32_dpp v{44+i}, v{56+i} row_shl:4 row_mask:0xf bank_mask:0x5")
    for p in range(2):
        a(f"buffer_store_dwordx4 v[{40+4*p}:{43+4*p}], v23, s[44:47], 0 offen offset:{256*p} sc1")
    a(f"s_add_u32 s73, s65, {WS_FY}")
    lds_wait(a, 3, 44, 8, 16)
    a("s_waitcnt vmcnt(0)")
    publish(a, 3, 20, 14, 16, 73, 4, True)
    hst(a, 2, True)
    lds_wait(a, 3, 12, 8, 16, 4)
    hst(a, 3, True)
    a(f"""s_mul_i32 s72, s58, {8*ST}
    s_add_u32 s63, s58, 4
    s_and_b32 s63, s63, 7
    s_mul_i32 s73, s63, {8*ST}
    s_lshl_b32 s63, s66, 12
    s_add_u32 s72, s72, s63
    s_add_u32 s73, s73, s63
    s_lshl_b32 s67, s66, 15""")
    for sl in range(4):
        for q in range(4):
            a(f"s_add_u32 s63, s{72 + (sl>>1)}, {(sl&1)*16384 + q*1024}")
            dma(a, 8, 36, "s67", "s63")
            a(f"s_add_u32 s67, s67, {8192 if q < 3 else 131072 - 3*8192}")
    hst(a, 6, False)
    a("s_waitcnt vmcnt(0)")
    fin(a)

    a.label("k_att")
    QA, QB, NMA, NMB, SA, SB, PA, PB, OA, OB, KB, VB = 4, 8, 12, 28, 44, 60, 76, 84, 92, 108, 124, 132
    vK, vV, vKn, vVn, vKl, vVl, vC, T = 148, 149, 150, 151, 2, 152, 153, 154
    a(f"""s_lshr_b32 s63, s3, 2
    s_lshl_b32 s62, s60, 1
    s_add_u32 s62, s62, s63
    s_lshl_b32 s62, s62, 5
    s_lshl_b32 s63, s61, 2
    s_add_u32 s62, s62, s63
    s_and_b32 s63, s3, 3
    s_add_u32 s62, s62, s63
    s_lshl_b32 s62, s62, 10
    s_add_u32 s62, s62, {WS_O}
    v_mov_b32 v{vC}, {CNT}
    s_waitcnt lgkmcnt(0)""")
    srd(a, WSR, PWS, WS_SIZE)
    a(f"""s_add_u32 s78, s30, {WS_FY}
    s_addc_u32 s79, s31, 0
    s_load_dword s{TAG}, s[78:79], 0
    s_cmp_lt_u32 s3, 4
    s_cbranch_scc1 a_gemm
    s_cmp_lg_u32 s3, 4
    s_cbranch_scc1 a_idle""")
    GW = 64
    a(f"""s_and_b32 s68, s61, 1
    v_lshrrev_b32 v8, 4, v1
    v_lshlrev_b32 v8, 4, v8
    s_lshr_b32 s64, s76, 1
    s_lshl_b32 s65, s60, 1
    s_add_u32 s64, s64, s65
    s_mul_i32 s64, s64, {ST}
    s_and_b32 s65, s76, 1
    v_and_b32 v17, 15, v1
    v_lshrrev_b32 v18, 4, v1
    v_xor_b32 v19, v17, v18
    v_lshlrev_b32 v19, 4, v19
    v_lshl_add_u32 v19, v17, 8, v19
    s_lshl_b32 s63, s76, 12
    v_add_u32 v20, s63, v19
    v_xor_b32 v21, 64, v20
    v_xor_b32 v22, 128, v20
    v_xor_b32 v23, 192, v20
    v_bfe_u32 v19, v1, 2, 2
    v_lshl_add_u32 v19, v18, 3, v19
    v_lshlrev_b32 v19, 5, v19
    v_and_b32 v24, 3, v1
    v_lshl_add_u32 v24, v24, 3, v19
    v_add_u32 v24, {WKV}, v24
    v_lshlrev_b32 v17, 4, v17
    v_lshrrev_b32 v18, 5, v1
    v_lshl_add_u32 v17, v18, 3, v17
    v_bfe_u32 v18, v1, 4, 1
    v_mov_b32 v9, 0
    s_lshr_b32 s69, s2, 2
    s_lshl_b32 s69, s69, {OPT.get("fsh", 6)}
    s_and_b32 s63, s2, 3
    s_lshl_b32 s63, s63, 2
    s_add_u32 s69, s69, s63
    s_add_u32 s69, s69, {WS_FKV}
    s_cmp_lg_u32 s68, 0
    s_cbranch_scc1 a_vjob""")
    JD, JG, JX, JW = 28, 4, 32, 48
    def job(ktype):
        def reads(n):
            kc, e = n >> 2, n & 3
            a(f"ds_read_b128 v[{JX+4*e}:{JX+4*e+3}], v{20+e} offset:{kc*16384}")
            a(f"ds_read_b64_tr_b16 v[{JW+4*e}:{JW+4*e+1}], v24 offset:{kc*4096 + e*1024}")
            a(f"ds_read_b64_tr_b16 v[{JW+4*e+2}:{JW+4*e+3}], v24 offset:{kc*4096 + e*1024 + 128}")
        for n in range(4): reads(n)
        for n in range(16):
            e = n & 3
            a(f"s_waitcnt lgkmcnt({3*min(3, 15-n)})")
            x, w = f"v[{JX+4*e}:{JX+4*e+3}]", f"v[{JW+4*e}:{JW+4*e+3}]"
            c = "0" if n == 0 else f"v[{JD}:{JD+3}]"
            if ktype:
                a(f"v_mfma_f32_16x16x32_bf16 v[{JD}:{JD+3}], {w}, {x}, {c}")
            else:
                a(f"v_mfma_f32_16x16x32_bf16 v[{JD}:{JD+3}], {x}, {w}, {c}")
            if n + 4 < 16: reads(n + 4)
    a(f"""s_lshl_b32 s65, s65, 8
    s_add_u32 s64, s64, s65
    v_lshl_add_u32 v17, v18, 9, v17
    s_lshl_b32 s65, s60, 2
    s_add_u32 s65, s65, s76
    s_lshl_b32 s65, s65, 2
    s_add_u32 s65, s65, {WS_KMAX}
    s_waitcnt lgkmcnt(0)
    s_mul_i32 s{TAG}, s{TAG}, 0x9e3779b1
    s_add_u32 s{TAG}, s{TAG}, 0x7f4a7c15
    s_barrier""")
    job(True)
    a(f"s_mov_b32 s63, {f32(CSCALE)}")
    for e in range(4): a(f"v_mul_f32 v{JD+e}, s63, v{JD+e}")
    a(f"""v_cvt_pk_bf16_f32 v36, v{JD}, v{JD+1}
    v_cvt_pk_bf16_f32 v37, v{JD+2}, v{JD+3}
    buffer_store_dwordx2 v[36:37], v17, s[{WSR}:{WSR+3}], s64 offen sc1
    v_mul_f32 v38, v{JD}, v{JD}
    v_fmac_f32 v38, v{JD+1}, v{JD+1}
    v_fmac_f32 v38, v{JD+2}, v{JD+2}
    v_fmac_f32 v38, v{JD+3}, v{JD+3}
    v_mov_b32 v39, v38
    v_permlane32_swap_b32 v38, v39
    v_add_f32 v38, v38, v39
    v_mov_b32 v39, v38
    v_permlane16_swap_b32 v38, v39
    v_add_f32 v38, v38, v39
    v_max_f32_dpp v38, v38, v38 row_ror:8 row_mask:0xf bank_mask:0xf
    v_max_f32_dpp v38, v38, v38 row_ror:4 row_mask:0xf bank_mask:0xf
    v_max_f32_dpp v38, v38, v38 row_ror:2 row_mask:0xf bank_mask:0xf
    v_max_f32_dpp v38, v38, v38 row_ror:1 row_mask:0xf bank_mask:0xf
    s_mov_b64 exec, 1
    buffer_store_dword v38, v9, s[{WSR}:{WSR+3}], s65 offen sc1
    s_branch a_jobdone""")
    a.label("a_vjob")
    a(f"""s_mul_i32 s65, s65, 528
    s_add_u32 s64, s64, s65
    v_mov_b32 v12, 0x3f803f80
    v_mov_b32 v13, 0x3f803f80
    v_mov_b32 v14, 0x3f803f80
    v_mov_b32 v15, 0x3f803f80
    s_mov_b64 exec, 1
    buffer_store_dwordx4 v[12:15], v9, s[{WSR}:{WSR+3}], s64 offen offset:1536 sc1
    s_mov_b64 exec, -1
    v_lshl_add_u32 v17, v18, 8, v17
    s_waitcnt lgkmcnt(0)
    s_mul_i32 s{TAG}, s{TAG}, 0x9e3779b1
    s_add_u32 s{TAG}, s{TAG}, 0x7f4a7c15
    s_barrier""")
    job(False)
    a(f"""v_cvt_pk_bf16_f32 v36, v{JD}, v{JD+1}
    v_cvt_pk_bf16_f32 v37, v{JD+2}, v{JD+3}
    buffer_store_dwordx2 v[36:37], v17, s[{WSR}:{WSR+3}], s64 offen offset:1024 sc1
    s_mov_b64 exec, 1""")
    a.label("a_jobdone")
    ast(a, 1, False)
    a(f"""v_mov_b32 v10, s{TAG}
    s_waitcnt vmcnt(0)
    buffer_store_dword v10, v9, s[{WSR}:{WSR+3}], s69 offen sc1
    s_mov_b64 exec, -1
    s_branch a_fetch""")
    a.label("a_idle")
    a("s_getpc_b64 s[48:49]")
    a.label("a_pc")
    a(f"""s_sub_u32 s48, s48, a_pc-{KN}
    s_subb_u32 s49, s49, 0
    s_mov_b32 s50, code_end-{KN}
    s_mov_b32 s51, 0x20000
    s_lshr_b32 s63, s2, 3
    s_lshl_b32 s63, s63, 10
    s_cmp_lg_u32 s3, 5
    s_cbranch_scc1 a_wqpf
    buffer_load_dwordx4 v[12:15], v2, s[48:51], s63 offen
    s_and_b32 s68, s61, 1
    s_cmp_lg_u32 s68, 0
    s_cbranch_scc1 a_bj
    v_lshrrev_b32 v8, 4, v1
    v_lshlrev_b32 v8, 4, v8""")
    srd(a, 52, PGW, 1024)
    for p in range(4):
        a(f"s_add_u32 s63, s59, {p}\ns_and_b32 s63, s63, 3\ns_lshl_b32 s63, s63, 8")
        for e in range(4):
            r = GW + 16*p + 4*e
            a(f"buffer_load_dwordx4 v[{r}:{r+3}], v8, s[52:55], s63 offen offset:{64*e}")
    a(f"""v_and_b32 v17, 15, v1
    v_lshrrev_b32 v18, 4, v1
    v_xor_b32 v19, v17, v18
    v_lshlrev_b32 v19, 4, v19
    v_lshl_add_u32 v19, v17, 8, v19
    s_lshl_b32 s63, s76, 12
    v_add_u32 v20, s63, v19
    v_xor_b32 v21, 64, v20
    v_xor_b32 v22, 128, v20
    v_xor_b32 v23, 192, v20
    s_lshl_b32 s65, s60, 2
    s_add_u32 s65, s65, s76
    s_lshl_b32 s67, s65, 6
    s_add_u32 s67, s67, {WS_G}
    v_lshlrev_b32 v25, 2, v1
    s_waitcnt lgkmcnt(0)
    s_mul_i32 s{TAG}, s{TAG}, 0x9e3779b1
    s_add_u32 s{TAG}, s{TAG}, 0x7f4a7c15
    s_barrier""")
    for n in range(8): a(f"ds_read_b128 v[{32+4*n}:{35+4*n}], v{20+(n&3)} offset:{(n>>2)*16384}")
    a("s_waitcnt vmcnt(0)")
    for n in range(16):
        a(f"s_waitcnt lgkmcnt({min(7, 15-n)})")
        r = 32 + 4*(n & 7)
        a(f"v_mfma_f32_16x16x32_bf16 v[{JG}:{JG+3}], v[{GW+4*n}:{GW+4*n+3}], v[{r}:{r+3}], " + ("0" if n == 0 else f"v[{JG}:{JG+3}]"))
        if n + 8 < 16: a(f"ds_read_b128 v[{r}:{r+3}], v{20+(n&3)} offset:{((n+8)>>2)*16384}")
    a(f"""s_mov_b32 s63, {f32(-math.log2(math.e))}
    v_mul_f32 v10, s63, v{JG}
    v_exp_f32 v10, v10
    v_add_f32 v10, 1.0, v10
    v_rcp_f32 v10, v10
    s_mov_b64 exec, 0xffff
    buffer_store_dword v10, v25, s[{WSR}:{WSR+3}], s67 offen sc1
    s_mov_b64 exec, -1
    s_branch a_fetch""")
    a.label("a_wqpf")
    srd(a, 48, PWQ, 0x80000)
    a("""s_lshl_b32 s63, s63, 4
    s_and_b32 s64, s3, 1
    s_lshl_b32 s64, s64, 13
    s_add_u32 s63, s63, s64
    s_add_u32 s64, s63, 4096""")
    for i in range(8 if OPT.get("wqpf", 1) else 0):
        a(f"buffer_load_dwordx4 v[{8+4*i}:{11+4*i}], v2, s[48:51], s{63 + (i>>2)} offen offset:{1024*(i&3)}")
    a.label("a_bj")
    a(f"""s_waitcnt lgkmcnt(0)
    s_mul_i32 s{TAG}, s{TAG}, 0x9e3779b1
    s_add_u32 s{TAG}, s{TAG}, 0x7f4a7c15
    s_barrier""")
    a.label("a_fetch")
    ast(a, 2, False)
    if not OPT.get("qcnt"): a("s_barrier\ns_barrier")
    a("s_waitcnt vmcnt(0)\ns_barrier\ns_branch a_common")
    a.label("a_gemm")
    vB, vAg, ACC, FA, FB = 16, 24, 32, 48, 80
    a(f"""s_lshr_b32 s63, s3, 1
    s_lshl_b32 s63, s63, 13
    v_and_b32 v8, 31, v1
    v_lshrrev_b32 v9, 5, v1
    v_and_b32 v10, 15, v1
    v_xor_b32 v10, v10, v9
    v_lshlrev_b32 v10, 4, v10
    v_lshl_add_u32 v10, v8, 8, v10
    v_add_u32 v{vB}, s63, v10""")
    for e in range(1, 8): a(f"v_xor_b32 v{vB+e}, {e*32}, v{vB}")
    a(f"""s_and_b32 s63, s3, 1
    v_bfe_u32 v8, v1, 2, 2
    v_lshrrev_b32 v10, 1, v8
    v_xor_b32 v10, s63, v10
    v_lshlrev_b32 v10, 6, v10
    v_lshl_add_u32 v8, v9, 3, v8
    v_lshl_add_u32 v10, v8, 7, v10
    v_bfe_u32 v8, v1, 4, 1
    v_lshl_add_u32 v10, v8, 5, v10
    v_and_b32 v8, 3, v1
    v_lshl_add_u32 v10, v8, 3, v10
    v_add_u32 v{vAg}, {WT}, v10
    s_lshl_b32 s63, s63, 12
    s_lshr_b32 s64, s3, 1
    s_lshl_b32 s64, s64, 10
    s_add_u32 s63, s63, s64
    s_add_u32 s63, s63, {QX}
    v_add_u32 v25, s63, v2
    s_waitcnt lgkmcnt(0)
    s_mul_i32 s{TAG}, s{TAG}, 0x9e3779b1
    s_add_u32 s{TAG}, s{TAG}, 0x7f4a7c15
    s_barrier""")
    def gemm_half(h):
        def reads(n):
            kc, e = n >> 3, n & 7
            a(f"ds_read_b128 v[{FB+4*e}:{FB+4*e+3}], v{vB+e} offset:{kc*16384}")
            a(f"ds_read_b64_tr_b16 v[{FA+4*e}:{FA+4*e+1}], v{vAg} offset:{kc*16384 + e*2048}")
            a(f"ds_read_b64_tr_b16 v[{FA+4*e+2}:{FA+4*e+3}], v{vAg} offset:{kc*16384 + e*2048 + 512}")
        n0 = 16*h
        for n in range(5): reads(n0 + n)
        for n in range(16):
            e = n & 7
            a(f"s_waitcnt lgkmcnt({3*min(4, 15-n)})")
            MF(a, ACC, FA + 4*e, FB + 4*e, None if (h == 0 and n == 0) else ACC)
            if n + 5 < 16: reads(n0 + n + 5)
    if OPT.get("qcnt"):
        lds_wait(a, vC, 48, 4, 8); ast(a, 1, False); gemm_half(0)
        lds_wait(a, vC, 60, 4, 8); gemm_half(1)
    else:
        a("s_barrier"); ast(a, 1, False); gemm_half(0)
        a("s_barrier"); gemm_half(1)
    for i in range(8): a(f"v_cvt_pk_bf16_f32 v{FA+i}, v{ACC+2*i}, v{ACC+2*i+1}")
    a(f"""ds_write_b128 v25, v[{FA}:{FA+3}]
    ds_write_b128 v25, v[{FA+4}:{FA+7}] offset:2048""")
    ast(a, 2, False)
    a("s_waitcnt lgkmcnt(0)\ns_barrier")
    a.label("a_common")
    srd(a, 36, PX, 0x200000)
    srd(a, 40, POUT, 0x200000)
    K2, NA, NB_ = T + 2, T + 6, T + 10
    a(f"""s_mov_b32 s67, {WS_FKV}
    v_lshlrev_b32 v{T}, {OPT.get("fsh", 6)}, v1
    s_cmp_lg_u32 s3, 7
    s_cbranch_scc1 a_nopoll
    buffer_load_dwordx4 v[{SA}:{SA+3}], v{T}, s[{WSR}:{WSR+3}], s67 offen sc1""")
    a.label("a_nopoll")
    a(f"""s_and_b32 s63, s3, 3
    s_lshl_b32 s63, s63, 11
    s_add_u32 s63, s63, {QX}
    v_add_u32 v{T+3}, s63, v2
    ds_read_b128 v[{QA}:{QA+3}], v{T+3}
    ds_read_b128 v[{QB}:{QB+3}], v{T+3} offset:1024
    s_and_b32 s64, s3, 4
    s_add_u32 s71, s58, s64
    s_and_b32 s71, s71, 7
    v_and_b32 v{T+3}, 31, v1
    v_lshrrev_b32 v3, 5, v1
    v_and_b32 v{T+4}, 15, v1
    v_lshlrev_b32 v{T+4}, 4, v{T+4}
    v_lshl_add_u32 v{T+4}, v3, 8, v{T+4}
    v_add_u32 v{T+4}, 1024, v{T+4}
    v_mov_b32 v{vVl}, 0x100000
    v_and_b32 v{T+5}, 27, v{T+3}
    v_cmp_eq_u32 vcc, 16, v{T+5}
    v_mov_b32 v{T+5}, 1536
    v_cndmask_b32 v{vVl}, v{vVl}, v{T+5}, vcc
    v_cmp_gt_u32 vcc, 16, v{T+3}
    s_mul_i32 s70, s71, {8*ST}
    v_cndmask_b32 v{vVl}, v{vVl}, v{T+4}, vcc
    v_add_u32 v{vK}, s70, v{vKl}
    v_add_u32 v{vV}, s70, v{vVl}
    s_add_u32 s71, s71, 1
    s_and_b32 s71, s71, 7
    s_mul_i32 s70, s71, {8*ST}
    v_add_u32 v{vKn}, s70, v{vKl}
    v_add_u32 v{vVn}, s70, v{vVl}""")
    for r in list(range(PB, PB + 8)) + list(range(OA, OA + 32)) + list(range(VB + 8, VB + 16)):
        a(f"v_mov_b32 v{r}, 0")
    a("s_waitcnt lgkmcnt(0)")
    for i in range(4): a(f"v_dot2_f32_bf16 v{NA+i}, v{QA+i}, v{QA+i}, 0")
    for i in range(4): a(f"v_dot2_f32_bf16 v{NB_+i}, v{QB+i}, v{QB+i}, 0")
    a(f"""v_mov_b32 v{SB+14}, 0
    v_mov_b32 v{SB+15}, 0
    v_add_f32 v{NA}, v{NA}, v{NA+1}
    v_add_f32 v{NA+2}, v{NA+2}, v{NA+3}
    v_add_f32 v{NB_}, v{NB_}, v{NB_+1}
    v_add_f32 v{NB_+2}, v{NB_+2}, v{NB_+3}
    v_add_f32 v{NA}, v{NA}, v{NA+2}
    v_add_f32 v{NB_}, v{NB_}, v{NB_+2}
    v_mov_b32 v{NA+1}, v{NA}
    v_mov_b32 v{NB_+1}, v{NB_}
    v_permlane32_swap_b32 v{NA}, v{NA+1}
    v_permlane32_swap_b32 v{NB_}, v{NB_+1}
    v_add_f32 v{NA}, v{NA}, v{NA+1}
    v_add_f32 v{NB_}, v{NB_}, v{NB_+1}
    s_and_b32 s63, s3, 4
    s_add_u32 s63, s63, s58
    s_and_b32 s63, s63, 7
    s_mul_i32 s59, s63, 65
    s_lshr_b32 s59, s59, 2
    s_and_b32 s64, s3, 3
    s_add_u32 s59, s59, s64
    v_lshlrev_b32 v{T+1}, 3, v1
    s_mov_b32 s65, {WS_KMAX}
    s_cmp_lg_u32 s3, 7
    s_cbranch_scc1 a_wait_go
    s_mov_b32 s75, 0x40000""")
    a.label("a_pollkv")
    a(f"""s_sub_u32 s75, s75, 1
    s_waitcnt vmcnt(0)
    v_xor_b32 v{SA}, s{TAG}, v{SA}
    v_xor_b32 v{SA+1}, s{TAG}, v{SA+1}
    v_xor_b32 v{SA+2}, s{TAG}, v{SA+2}
    v_xor_b32 v{SA+3}, s{TAG}, v{SA+3}
    v_or3_b32 v{SA}, v{SA}, v{SA+1}, v{SA+2}
    v_or_b32 v{SA}, v{SA}, v{SA+3}
    v_cmp_ne_u32 vcc, 0, v{SA}
    s_cbranch_vccz a_kvready
    s_mov_b64 exec, vcc
    buffer_load_dwordx4 v[{SA}:{SA+3}], v{T}, s[{WSR}:{WSR+3}], s67 offen sc1
    s_cmp_lg_u32 s75, 0
    s_cbranch_scc1 a_pollkv""")
    a.label("a_kvready")
    a(f"s_waitcnt vmcnt(0)\ns_mov_b64 exec, -1\nv_mov_b32 v{T}, 1\nds_write_b32 v{vC}, v{T}\ns_branch a_go")
    a.label("a_wait_go")
    lds_wait(a, vC, 0, 1, T)
    a.label("a_go")
    if DIAG:
        a("s_cmp_lt_u32 s3, 5\ns_cbranch_scc1 a_nost")
        ast(a, 1, False)
        a.label("a_nost")
    a(f"buffer_load_dwordx2 v[{K2}:{K2+1}], v{T+1}, s[{WSR}:{WSR+3}], s65 offen sc1")
    first_batch(3)
    a(f"""s_waitcnt vmcnt(3)
    v_max_f32 v{K2}, v{K2}, v{K2+1}
    v_max_f32_dpp v{K2}, v{K2}, v{K2} row_ror:8 row_mask:0xf bank_mask:0xf
    v_max_f32_dpp v{K2}, v{K2}, v{K2} row_ror:4 row_mask:0xf bank_mask:0xf
    v_max_f32_dpp v{K2}, v{K2}, v{K2} row_ror:2 row_mask:0xf bank_mask:0xf
    v_max_f32_dpp v{K2}, v{K2}, v{K2} row_ror:1 row_mask:0xf bank_mask:0xf
    v_mov_b32 v{K2+1}, v{K2}
    v_permlane32_swap_b32 v{K2}, v{K2+1}
    v_max_f32 v{K2}, v{K2}, v{K2+1}
    v_mov_b32 v{K2+1}, v{K2}
    v_permlane16_swap_b32 v{K2}, v{K2+1}
    v_max_f32 v{K2}, v{K2}, v{K2+1}
    v_mul_f32 v{NA}, v{NA}, v{K2}
    v_mul_f32 v{NB_}, v{NB_}, v{K2}
    s_mov_b32 s72, {f32(1600.0)}
    v_cmp_nle_f32 vcc, v{NA}, s72
    v_cmp_nle_f32 s[74:75], v{NB_}, s72
    v_sqrt_f32 v{NA}, v{NA}
    v_sqrt_f32 v{NB_}, v{NB_}
    s_or_b64 vcc, vcc, s[74:75]
    v_mov_b32 v{T+1}, 1
    s_waitcnt vmcnt(0)
    s_barrier""")
    a("s_cbranch_vccz a_fast")
    lds_wait(a, vC, 60, 4, T)
    a(f"""v_mov_b32 v{NA}, 0xff800000
    v_mov_b32 v{NB_}, 0xff800000
    v_mov_b32 v{T}, v{vKl}
    s_mov_b32 s74, 64""")
    a.label("a_maxloop")
    a(f"ds_read_b128 v[{KB}:{KB+3}], v{T}\nv_add_u32 v{T}, {ST}, v{T}\ns_waitcnt lgkmcnt(0)")
    MF(a, SA, KB, QA, None); MF(a, NMA, KB, QB, None)
    for i in range(8): a(f"v_max3_f32 v{NA}, v{NA}, v{SA+2*i}, v{SA+2*i+1}")
    for i in range(8): a(f"v_max3_f32 v{NB_}, v{NB_}, v{NMA+2*i}, v{NMA+2*i+1}")
    a(f"""s_sub_u32 s74, s74, 1
    s_cmp_lg_u32 s74, 0
    s_cbranch_scc1 a_maxloop
    v_mov_b32 v{NA+1}, v{NA}
    v_mov_b32 v{NB_+1}, v{NB_}
    v_permlane32_swap_b32 v{NA}, v{NA+1}
    v_permlane32_swap_b32 v{NB_}, v{NB_+1}
    v_max_f32 v{NA}, v{NA}, v{NA+1}
    v_max_f32 v{NB_}, v{NB_}, v{NB_+1}""")
    a.label("a_fast")
    ast(a, 3, False)
    a(f"""ds_read_b128 v[{KB}:{KB+3}], v{vK}
    ds_read_b128 v[{KB+4}:{KB+7}], v{vK} offset:{ST}
    ds_read_b128 v[{VB}:{VB+3}], v{vV}
    ds_read_b128 v[{VB+4}:{VB+7}], v{vV} offset:528""")
    for i in range(4): a(f"v_mov_b32 v{PA+i}, -1")
    a(f"buffer_store_dwordx4 v[{PA}:{PA+3}], v2, s[{WSR}:{WSR+3}], s62 offen sc1")
    for i in range(16): a(f"v_sub_f32 v{NMA+i}, 0, v{NA}")
    for i in range(16): a(f"v_sub_f32 v{NMB+i}, 0, v{NB_}")
    a("s_waitcnt lgkmcnt(0)")
    MF(a, SA, KB, QA, NMA)
    a("s_mov_b32 s73, 4\ns_setprio 2\ns_nop 9")
    a(".p2align 6")
    a.label("a_loop")
    for tt in range(8):
        cur = tt & 1; nxt = cur ^ 1
        Kc, Kn = KB + 4*cur, KB + 4*nxt
        Vc, Vn = VB + 8*cur, VB + 8*nxt
        kreg, koff = (vK, (tt + 2) * ST) if tt < 6 else (vKn, (tt - 6) * ST)
        vreg, voff = (vV, (tt + 1) * ST) if tt < 7 else (vVn, 0)
        for ph in range(2):
            S, P, Po, So, O = (SA, PA, PB, SB, OA) if ph == 0 else (SB, PB, PA, SA, OB)
            ex = lambda i: a(f"v_exp_f32 v{S+i}, v{S+i}")
            cv = lambda j: a(f"v_cvt_pk_bf16_f32 v{P+j}, v{S+2*j}, v{S+2*j+1}")
            ex(0)
            a(f"v_cvt_pk_bf16_f32 v{Po+7}, v{So+14}, v{So+15}")
            ex(1)
            if ph == 0:
                MF(a, SB, Kc, QB, NMB)
                a(f"ds_read_b128 v[{Kc}:{Kc+3}], v{kreg} offset:{koff}")
            else:
                MF(a, SA, Kn, QA, NMA)
                if tt == 7: a("s_add_u32 s71, s71, 1")
                if tt == 6: a("s_sub_u32 s73, s73, 1")
                if tt == 2: a("s_cmp_eq_u32 s73, 4")
            ex(2); ex(3); cv(0); ex(4); ex(5); cv(1)
            if ph == 0:
                MF(a, OB, Vn + 4, PB + 4, OB)
                a(f"ds_read_b128 v[{Vn}:{Vn+3}], v{vreg} offset:{voff}")
            else:
                MF(a, OA, Vc + 4, PA + 4, OA)
                a("s_waitcnt lgkmcnt(0)")
            ex(6); ex(7); cv(2); ex(8); ex(9); cv(3); ex(10); ex(11)
            MF(a, O, Vc, P, O)
            if ph == 0:
                a(f"ds_read_b128 v[{Vn+4}:{Vn+7}], v{vreg} offset:{voff+528}")
            elif tt == 7:
                a("s_and_b32 s71, s71, 7")
            cv(4); ex(12); ex(13); cv(5); ex(14); ex(15)
            if ph == 1 and tt == 7:
                a(f"""s_mul_i32 s70, s71, {8*ST}
                v_mov_b32 v{vK}, v{vKn}
                v_mov_b32 v{vV}, v{vVn}
                v_add_u32 v{vKn}, s70, v{vKl}
                v_add_u32 v{vVn}, s70, v{vVl}""")
            cv(6)
        if tt == 2:
            a("s_cbranch_scc1 a_chk1")
            a.label("a_ret1")
    a("s_cmp_eq_u32 s73, 1\ns_cbranch_scc1 a_it2\ns_cmp_eq_u32 s73, 0\ns_cbranch_scc1 a_done")
    a("s_cmp_eq_u32 s73, 3\ns_cbranch_scc0 a_it1")
    ast(a, 4, False)
    a("s_waitcnt vmcnt(0)")
    lds_add(a, vC, 44, T + 1)
    lds_wait(a, vC, 8, 4, T)
    a("s_branch a_loop")
    a.label("a_chk1")
    lds_wait(a, vC, 4, 4, T)
    a("s_branch a_ret1")
    a.label("a_it1")
    lds_add(a, vC, 12, T + 1)
    lds_wait(a, vC, 60, 4, T)
    a("s_setprio 1\ns_branch a_loop")
    a.label("a_it2")
    OF, WF, C0, C1, AX, YR, GR = 12, 44, 108, 124, 140, 148, 152
    vWr, vRd, vRow, vG, XR, vWo, vY, vWr4, vRd4 = 156, 157, 158, 159, 160, 164, 165, 166, 167
    a(f"""s_and_b32 s66, s3, 1
    s_lshr_b32 s67, s3, 1
    s_lshl_b32 s63, s66, 5
    s_add_u32 s63, s63, s56
    v_and_b32 v{vG}, 31, v1
    v_add_u32 v{vG}, s63, v{vG}
    v_lshlrev_b32 v{vRow}, 3, v3
    v_lshl_add_u32 v{vRow}, v{vG}, 10, v{vRow}
    v_lshlrev_b32 v{vG}, 2, v{vG}
    s_lshl_b32 s69, s67, 5
    s_lshl_b32 s63, s57, 1
    s_add_u32 s69, s69, s63
    buffer_load_dwordx2 v[{XR}:{XR+1}], v{vRow}, s[36:39], s69 offen
    buffer_load_dwordx2 v[{XR+2}:{XR+3}], v{vRow}, s[36:39], s69 offen offset:16
    v_lshl_add_u32 v{vRow}, v3, 3, v{vRow}
    s_cmp_lt_u32 s3, 3
    s_cselect_b32 s63, 0, {OX1 - 3*2304 - OX0}
    s_mul_i32 s64, s3, 2304
    s_add_u32 s63, s63, s64
    s_add_u32 s63, s63, {OX0}
    v_add_u32 v{vWr}, s63, v2
    v_lshl_add_u32 v{vWr4}, v1, 2, s63
    s_xor_b32 s65, s3, 4
    s_cmp_lt_u32 s65, 3
    s_cselect_b32 s63, 0, {OX1 - 3*2304 - OX0}
    s_mul_i32 s64, s65, 2304
    s_add_u32 s63, s63, s64
    s_add_u32 s63, s63, {OX0}
    v_add_u32 v{vRd}, s63, v2
    v_lshl_add_u32 v{vRd4}, v1, 2, s63
    s_lshl_b32 s68, s60, 1
    s_add_u32 s68, s68, s66
    s_lshl_b32 s68, s68, 5
    s_lshl_b32 s63, s67, 3
    s_add_u32 s68, s68, s63
    s_lshl_b32 s68, s68, 10
    s_add_u32 s68, s68, {WS_O}
    s_add_u32 s59, s68, 4096
    s_lshl_b32 s63, s67, 1
    s_and_b32 s63, s63, 4
    s_add_u32 s63, s63, s58
    s_and_b32 s63, s63, 7
    s_mul_i32 s63, s63, {8*ST}
    s_and_b32 s64, s67, 1
    s_lshl_b32 s64, s64, 14
    s_add_u32 s63, s63, s64
    v_bfe_u32 v{vY}, v1, 2, 2
    v_lshrrev_b32 v{vWo}, 1, v{vY}
    v_lshl_add_u32 v{vY}, v3, 2, v{vY}
    v_lshlrev_b32 v{vY}, 7, v{vY}
    v_bfe_u32 v{T}, v1, 4, 1
    v_lshl_add_u32 v{vY}, v{T}, 5, v{vY}
    v_and_b32 v{T}, 3, v1
    v_lshl_add_u32 v{vY}, v{T}, 3, v{vY}
    v_lshl_add_u32 v{vWo}, v{vWo}, 6, v{vY}
    v_add_u32 v{vWo}, s63, v{vWo}
    s_lshl_b32 s63, s67, 11
    s_lshl_b32 s64, s66, 6
    s_add_u32 s63, s63, s64
    s_add_u32 s63, s63, {YT}
    v_add_u32 v{vY}, s63, v{vY}
    s_lshl_b32 s63, s66, 2
    s_add_u32 s63, s63, s58
    s_add_u32 s63, s63, 2
    s_and_b32 s63, s63, 7
    s_mul_i32 s72, s63, {8*ST}
    s_mov_b32 s76, {WS_G}
    s_setprio 0
    s_cmp_lt_u32 s3, 4
    s_cbranch_scc1 a_loop""")
    if not OPT.get("abl"): lds_wait(a, vC, 20, 4, T, 2)
    a("s_branch a_loop")
    a.label("a_done")
    stamp(a, 5)
    a(f"v_cvt_pk_bf16_f32 v{PB+7}, v{SB+14}, v{SB+15}\ns_cmp_ge_u32 s3, 4")
    MF(a, OB, VB + 12, PB + 4, OB)
    a(f"""s_cbranch_scc1 a_red1
    v_lshlrev_b32 v10, 6, v1
    s_lshl_b32 s63, s61, 11
    v_add_u32 v10, s63, v10
    s_lshl_b32 s63, s60, 6
    s_mov_b32 exec_lo, 0
    v_and_b32 v10, 7, v1
    v_lshlrev_b32 v10, 11, v10
    v_add_u32 v10, s63, v10
    s_mov_b32 exec_lo, -1
    s_mov_b32 s73, {WS_FY}
    s_mov_b32 s75, {1 if OPT.get("abl") else 0x40000}
    v_lshrrev_b32 v7, 3, v1
    v_and_b32 v8, 7, v1
    v_lshlrev_b32 v8, 4, v8
    v_lshl_add_u32 v8, v7, 12, v8
    s_lshl_b32 s64, s3, 4
    s_add_u32 s64, s64, s57
    s_lshl_b32 s64, s64, 12
    s_lshl_b32 s63, s56, 1
    s_add_u32 s64, s64, s63
    s_add_u32 s64, s64, {WS_Y}
    s_add_u32 s65, s64, 32768
    s_lshl_b32 s63, s3, 11
    s_add_u32 s63, s63, {YT}
    v_add_u32 v7, s63, v2""")
    a.label("a_ypoll")
    a(f"""buffer_load_dwordx2 v[20:21], v10, s[{WSR}:{WSR+3}], s73 offen sc1
    s_sub_u32 s75, s75, 1
    s_waitcnt vmcnt(0)
    v_cmp_ne_u32 vcc, s{TAG}, v20
    s_cbranch_vccz a_yready
    s_sleep 4
    s_cmp_lg_u32 s75, 0
    s_cbranch_scc1 a_ypoll""")
    a.label("a_yready")
    a(f"""buffer_load_dwordx4 v[12:15], v8, s[{WSR}:{WSR+3}], s64 offen sc1
    buffer_load_dwordx4 v[16:19], v8, s[{WSR}:{WSR+3}], s65 offen sc1
    s_getreg_b32 s63, hwreg(HW_REG_XCC_ID)
    v_cmp_ne_u32 vcc, s63, v21
    s_cmp_eq_u32 vcc_hi, 0
    s_cselect_b32 s63, 1, 0
    v_mov_b32 v11, s63
    ds_write_b32 v{vC}, v11 offset:48
    s_waitcnt vmcnt(1)
    ds_write_b128 v7, v[12:15]
    s_waitcnt vmcnt(0)
    ds_write_b128 v7, v[16:19] offset:1024""")
    for (lbl, W, Kp) in (("", OB, OA), ("a_red1", OA, OB)):
        if lbl: a.label(lbl)
        a(f"""ds_write_b128 v{vWr}, v[{W}:{W+3}]
        ds_write_b128 v{vWr}, v[{W+4}:{W+7}] offset:1024
        ds_write_b32 v{vWr4}, v{W+8} offset:2048
        v_xor_b32 v9, 64, v{vWo}
        s_mov_b32 s75, 0x40000
        s_waitcnt lgkmcnt(0)
        s_barrier
        ds_read_b32 v10, v{vC} offset:48
        ds_read_b32 v{SA+8}, v{vRd4} offset:2048
        ds_read_b128 v[{SA}:{SA+3}], v{vRd}
        ds_read_b128 v[{SA+4}:{SA+7}], v{vRd} offset:1024
        ds_read_b64_tr_b16 v[{YR}:{YR+1}], v{vY}
        ds_read_b64_tr_b16 v[{YR+2}:{YR+3}], v{vY} offset:1024
        s_waitcnt lgkmcnt(4)
        buffer_load_dword v{GR}, v{vG}, s[{WSR}:{WSR+3}], s76 offen sc1
        v_readfirstlane_b32 s63, v10
        v_add_f32 v{Kp+8}, v{Kp+8}, v{SA+8}
        v_rcp_f32 v{T}, v{Kp+8}
        s_waitcnt lgkmcnt(2)""")
        for i in range(8): a(f"v_add_f32 v{Kp+i}, v{Kp+i}, v{SA+i}")
        for i in range(8): a(f"v_mul_f32 v{Kp+i}, v{Kp+i}, v{T}")
        for i in range(4): a(f"v_cvt_pk_bf16_f32 v{4+i}, v{Kp+2*i}, v{Kp+2*i+1}")
        if not lbl: a("s_branch a_p3")
    a.label("a_p3")
    a(f"""s_cmp_eq_u32 s63, {1 if OPT.get("oloc", 1) else 5}
    s_cbranch_scc1 a_olocal
    buffer_store_dwordx4 v[4:7], v2, s[{WSR}:{WSR+3}], s62 offen sc1
    s_branch a_ostored""")
    a.label("a_olocal")
    a(f"buffer_store_dwordx4 v[4:7], v2, s[{WSR}:{WSR+3}], s62 offen {('', 'nt', 'sc0')[OPT.get('oflag', 0)]}")
    a.label("a_ostored")
    ast(a, 2, True)
    for e in range(8):
        for mt in range(2):
            r = WF + 8*e + 4*mt
            if e in (3, 5, 7) and mt == 0: a("s_waitcnt lgkmcnt(6)")
            a(f"ds_read_b64_tr_b16 v[{r}:{r+1}], v{(vWo, 9)[mt]} offset:{e*2048}")
            a(f"ds_read_b64_tr_b16 v[{r+2}:{r+3}], v{(vWo, 9)[mt]} offset:{e*2048+1024}")
    if OPT.get("oack"): a("s_waitcnt vmcnt(0)")
    ast(a, 3, True)
    for i in range(8):
        a(f"buffer_load_dwordx4 v[{OF+4*i}:{OF+4*i+3}], v2, s[{WSR}:{WSR+3}], s{68 if i < 4 else 59} offen offset:{1024*(i&3)} sc1")
    a(f"s_waitcnt vmcnt({8 if OPT.get('oack') else 9})\nv_sub_f32 v{GR+1}, 1.0, v{GR}")
    for aa in range(2):
        x0, x1, y0, y1, t = XR + 2*aa, XR + 2*aa + 1, YR + 2*aa, YR + 2*aa + 1, AX + 4*aa
        a(f"""v_lshlrev_b32 v{t}, 16, v{x0}
        v_and_b32 v{t+1}, 0xffff0000, v{x0}
        v_lshlrev_b32 v{t+2}, 16, v{x1}
        v_and_b32 v{t+3}, 0xffff0000, v{x1}
        v_lshlrev_b32 v154, 16, v{y0}
        v_and_b32 v155, 0xffff0000, v{y0}
        v_lshlrev_b32 v156, 16, v{y1}
        v_and_b32 v157, 0xffff0000, v{y1}""")
        for e in range(4): a(f"v_mul_f32 v{t+e}, v{t+e}, v{154+e}")
        for e in range(4): a(f"v_mul_f32 v{t+e}, v{t+e}, v{GR}")
    a(f"""s_lshl_b32 s63, s67, 11
    s_add_u32 s63, s63, s72
    v_add_u32 v8, s63, v2
    s_lshl_b32 s63, s67, 13
    s_add_u32 s63, s63, s72
    v_add_u32 v11, s63, v2
    s_waitcnt lgkmcnt(0)""")
    for e in range(8):
        r = OF + 4*e
        a(f"s_waitcnt vmcnt({7-e})")
        a.label(f"a_ochk{e}")
        a(f"""v_max3_u32 v10, v{r}, v{r+1}, v{r+2}
        v_max_u32 v10, v10, v{r+3}
        v_cmp_eq_u32 vcc, -1, v10
        s_cbranch_vccnz a_oretry{e}""")
        a.label(f"a_ogo{e}")
        MF(a, C0, WF + 8*e, r, None if e == 0 else C0)
        MF(a, C1, WF + 8*e + 4, r, None if e == 0 else C1)
    stamp(a, 6)
    for ow in range(4):
        a(f"ds_write_b128 v8, v[{C0+8*ow}:{C0+8*ow+3}] offset:{8192*ow}")
        a(f"ds_write_b128 v8, v[{C0+8*ow+4}:{C0+8*ow+7}] offset:{8192*ow+1024}")
    a("s_waitcnt lgkmcnt(0)\ns_barrier")
    for sr in range(4):
        a(f"ds_read_b128 v[{OF+8*sr}:{OF+8*sr+3}], v11 offset:{2048*sr}")
        a(f"ds_read_b128 v[{OF+8*sr+4}:{OF+8*sr+7}], v11 offset:{2048*sr+1024}")
    a("s_waitcnt lgkmcnt(4)")
    for i in range(8): a(f"v_add_f32 v{OF+i}, v{OF+i}, v{OF+8+i}")
    a("s_waitcnt lgkmcnt(0)")
    for i in range(8): a(f"v_add_f32 v{OF+16+i}, v{OF+16+i}, v{OF+24+i}")
    for i in range(8): a(f"v_add_f32 v{OF+i}, v{OF+i}, v{OF+16+i}")
    for i in range(8): a(f"v_fmac_f32 v{AX+i}, v{OF+i}, v{GR+1}")
    for i in range(4): a(f"v_cvt_pk_bf16_f32 v{OF+i}, v{AX+2*i}, v{AX+2*i+1}")
    a(f"""v_permlane32_swap_b32 v{OF}, v{OF+2}
    v_permlane32_swap_b32 v{OF+1}, v{OF+3}
    buffer_store_dwordx4 v[{OF}:{OF+3}], v{vRow}, s[40:43], s69 offen {('', 'nt', 'sc1', 'sc0 sc1')[OPT.get('outflag', 0)]}""")
    fin(a)
    for e in range(8):
        a.label(f"a_oretry{e}")
        a("s_waitcnt vmcnt(0)")
        for i in range(e, 8):
            a(f"buffer_load_dwordx4 v[{OF+4*i}:{OF+4*i+3}], v2, s[{WSR}:{WSR+3}], s{68 if i < 4 else 59} offen offset:{1024*(i&3)} sc1")
        a(f"""s_sub_u32 s75, s75, 1
        s_waitcnt vmcnt({7-e})
        s_cmp_lg_u32 s75, 0
        s_cbranch_scc1 a_ochk{e}
        s_branch a_ogo{e}""")
    a.label("k_end")
    a("s_endpgm")
    return a.finish()

def build():
    hdr = open("cdna_kernels/" + NAME + ".s.ref").read().split("; Override launch")[0]
    out = hdr + f"; @launch grid=(256,1,1) block=(768,1,1) lds={LEND}\n"
    out += f'.amdgcn_target "amdgcn-amd-amdhsa--gfx950"\n.text\n.globl {KN}\n.p2align 8\n.type {KN},@function\n' + kernel() + "code_end:\n"
    out += f""".section .rodata,"a"
.p2align 6
.amdhsa_kernel {KN}
  .amdhsa_next_free_vgpr 168
  .amdhsa_next_free_sgpr {100 if DIAG else 80}
  .amdhsa_accum_offset 168
  .amdhsa_group_segment_fixed_size 0
  .amdhsa_kernarg_size 120
  .amdhsa_user_sgpr_count 2
  .amdhsa_user_sgpr_kernarg_segment_ptr 1
  .amdhsa_system_sgpr_workgroup_id_x 1
.end_amdhsa_kernel
"""
    return out

if __name__ == "__main__":
    for x in list(sys.argv):
        if "=" in x:
            kk, vv = x.split("="); OPT[kk] = int(vv); sys.argv.remove(x)
    if "-l" in sys.argv:
        DIAG = True; LIGHT = True; sys.argv.remove("-l")
    if "-d" in sys.argv:
        DIAG = True; sys.argv.remove("-d")
    dst = sys.argv[1] if len(sys.argv) > 1 else "cdna_kernels/" + NAME + ".s"
    open(dst, "w").write(build())
    print("wrote", dst)
```

```python
import sys, math, struct
from asmlib import Asm

NAME = "gated_mix__ssm_conv_h3__grouped_kv_mqa__prompt"
KN = NAME + "_kernel"
WS_KV, WS_KMAX, WS_G = 0x000000, 0x024000, 0x025000
WS_FKV, WS_FX, WS_FY = 0x028000, 0x02c000, 0x030000
WS_XREV, WS_O, WS_Y = 0x100000, 0x300000, 0x500000
WS_SIZE = 0x700000
ST = 2080
KVBYTES = 64 * ST
CSCALE = 0.25 * math.log2(math.e)
def f32(x): return "0x%08x" % struct.unpack("<I", struct.pack("<f", x))[0]

XT, WT, WKV = 0, 65536, 131072
QX = 149824
YT = KVBYTES
XE0, XESZ, XOOFF = KVBYTES, 8320, 4160
CNT = 149760
LEND = 163840
OX0, OX1 = 141312, 149824

DIAG = False
LIGHT = False
OPT = {"oack": 0, "oflag": 1, "cpf": 0, "dsplit": 1, "obulk": 1, "early": 1, "wqpf": 0}
WS_DIAG = 0x1000000
def ast(a, idx, tail):
    if bool(OPT.get("tail2")) == tail: stamp(a, idx)
def hst(a, idx, tail):
    if bool(OPT.get("tailst")) == tail: stamp(a, idx)
def stamp(a, idx, real=False):
    if not DIAG: return
    if LIGHT and idx < 8: return
    if OPT.get("dbg"): real = True
    a(f"{'s_memrealtime' if real else 's_memtime'} s[{80+2*idx}:{81+2*idx}]\ns_waitcnt lgkmcnt(0)")
def fin(a):
    if OPT.get("dbg"):
        _n[0] += 1; l = f"fin{_n[0]}"
        a(f"""s_waitcnt vmcnt(0)
        s_memrealtime s[94:95]
        s_load_dwordx2 s[68:69], s[0:1], 104
        s_waitcnt lgkmcnt(0)
        s_cmp_lg_u32 s2, 77
        s_cbranch_scc1 {l}
        s_cmp_eq_u32 s3, {OPT["dbg"]}
        s_cselect_b32 s67, 0, 32
        s_cbranch_scc1 {l}_go
        s_cmp_lg_u32 s3, 8
        s_cbranch_scc1 {l}""")
        a.label(l + "_go")
        a("s_mov_b32 s70, 256\ns_mov_b32 s71, 0x20000\ns_mov_b64 exec, 1\nv_mov_b32 v0, 0")
        for i in range(1, 8):
            a(f"s_sub_u32 s66, s{80+2*i}, s80\nv_mov_b32 v{i}, s66\nbuffer_store_dword v{i}, v0, s[68:71], s67 offen offset:{4*(i-1)}")
        a.label(l)
        a("s_endpgm")
        return
    if DIAG:
        a("s_waitcnt vmcnt(0)")
        stamp(a, 7); stamp(a, 9, True)
        a(f"""s_add_u32 s68, s30, {WS_DIAG}
        s_addc_u32 s69, s31, 0
        s_mov_b32 s70, 0x40000
        s_mov_b32 s71, 0x20000
        s_lshl_b32 s67, s2, 4
        s_add_u32 s67, s67, s3
        s_lshl_b32 s67, s67, 6
        s_mov_b64 exec, 1
        v_mov_b32 v0, 0""")
        for i in range(10):
            a(f"v_mov_b32 v1, s{80+2*i}\nbuffer_store_dword v1, v0, s[68:71], s67 offen offset:{4*i}")
    a("s_endpgm")

def srd(a, d, lo, size):
    a(f"s_mov_b32 s{d}, s{lo}\ns_mov_b32 s{d+1}, s{lo+1}\ns_mov_b32 s{d+2}, {size}\ns_mov_b32 s{d+3}, 0x20000")
def srd_off(a, d, lo, off, size):
    a(f"s_add_u32 s{d}, s{lo}, {off}\ns_addc_u32 s{d+1}, s{lo+1}, 0\ns_mov_b32 s{d+2}, {size}\ns_mov_b32 s{d+3}, 0x20000")
def dma(a, voff, srdn, soff, m0, flags=""):
    a(f"s_mov_b32 m0, {m0}")
    a(f"buffer_load_dwordx4 v{voff}, s[{srdn}:{srdn+3}], {soff} offen {flags} lds")
PX, PK, PV, PSH, PH, PD, PWQ, PWK, PWV, PWO, PGW, POUT, PWS = 4, 6, 8, 10, 12, 14, 18, 20, 22, 24, 26, 28, 30
WSR = 32
TAG = 77
_n = [0]
def lds_wait(a, vaddr, off, val, vt, sleep=1):
    sleep = sleep * OPT.get("slmul", 1)
    _n[0] += 1; l = f"lw{_n[0]}"
    a("s_mov_b32 s75, 0x100000")
    a.label(l)
    a(f"""ds_read_b32 v{vt}, v{vaddr} offset:{off}
    s_sub_u32 s75, s75, 1
    s_waitcnt lgkmcnt(0)
    v_readfirstlane_b32 s74, v{vt}
    s_cmp_ge_u32 s74, {val}
    s_cbranch_scc1 {l}_ok
    s_sleep {sleep}
    s_cmp_lg_u32 s75, 0
    s_cbranch_scc1 {l}""")
    a.label(l + "_ok")
def lds_add(a, vaddr, off, vone):
    a(f"s_mov_b64 exec, 1\nds_add_u32 v{vaddr}, v{vone} offset:{off}\ns_mov_b64 exec, -1")
def publish(a, vaddr, off, vone, vt, sflag, nwaves, xcc=False):
    _n[0] += 1; l = f"pb{_n[0]}"
    a(f"""s_mov_b64 exec, 1
    ds_add_rtn_u32 v{vt}, v{vaddr}, v{vone} offset:{off}
    s_waitcnt lgkmcnt(0)
    v_readfirstlane_b32 s74, v{vt}
    s_cmp_lg_u32 s74, {nwaves-1}
    s_cbranch_scc1 {l}
    v_mov_b32 v{vt}, s{TAG}
    v_mov_b32 v{vt+2}, 0""")
    if xcc:
        a(f"""s_getreg_b32 s74, hwreg(HW_REG_XCC_ID)
        v_mov_b32 v{vt+1}, s74
        buffer_store_dwordx2 v[{vt}:{vt+1}], v{vt+2}, s[{WSR}:{WSR+3}], s{sflag} offen sc1""")
    else:
        a(f"buffer_store_dword v{vt}, v{vt+2}, s[{WSR}:{WSR+3}], s{sflag} offen sc1")
    a.label(l)
    a("s_mov_b64 exec, -1")
def poll32(a, sbase, vt, word, rowgrp=False):
    _n[0] += 1; l = f"pl{_n[0]}"
    a(f"s_cmp_lg_u32 s66, 0\ns_cbranch_scc1 {l}_lds")
    a(f"v_lshlrev_b32 v{vt}, 6, v1")
    if rowgrp:
        a(f"""s_lshl_b32 s74, s61, 11
        v_add_u32 v{vt}, s74, v{vt}
        s_lshl_b32 s74, s60, 6
        s_mov_b32 exec_lo, 0
        v_and_b32 v{vt}, 7, v1
        v_lshlrev_b32 v{vt}, 11, v{vt}
        v_add_u32 v{vt}, s74, v{vt}
        s_mov_b32 exec_lo, -1""")
    a(f"s_mov_b32 exec_hi, {0xff if rowgrp else 0}\ns_mov_b32 s75, 0x40000")
    a.label(l)
    a(f"""buffer_load_dword v{vt+1}, v{vt}, s[{WSR}:{WSR+3}], s{sbase} offen sc1
    s_sub_u32 s75, s75, 1
    s_waitcnt vmcnt(0)
    v_cmp_ne_u32 vcc, s{TAG}, v{vt+1}
    s_cbranch_vccz {l}_ok
    s_mov_b64 exec, vcc
    s_sleep 4
    s_cmp_lg_u32 s75, 0
    s_cbranch_scc1 {l}""")
    a.label(l + "_ok")
    a(f"s_mov_b64 exec, -1\nds_write_b32 v3, v14 offset:{word}\ns_branch {l}_done")
    a.label(l + "_lds")
    lds_wait(a, 3, word, 1, vt, 2)
    a.label(l + "_done")

def w_src(a, v, t0, t1):
    a(f"""v_lshrrev_b32 v{t0}, 3, v1
    v_lshlrev_b32 v{t1}, 1, v{t0}
    v_and_b32 v{t1}, 4, v{t1}
    v_and_b32 v{v}, 7, v1
    v_xor_b32 v{v}, v{v}, v{t1}
    v_lshlrev_b32 v{v}, 4, v{v}
    v_lshl_add_u32 v{v}, v{t0}, 10, v{v}
    s_lshl_b32 s63, s57, 1
    v_add_u32 v{v}, s63, v{v}""")

MF = lambda a, d, A, B, C: a(f"v_mfma_f32_32x32x16_bf16 v[{d}:{d+15}], v[{A}:{A+3}], v[{B}:{B+3}], " + ("0" if C is None else f"v[{C}:{C+15}]"))

def kv_unit_step(a, step):
    a(f"""s_cmp_ge_u32 s59, 130
    s_cselect_b32 s63, 130, 0
    s_sub_u32 s59, s59, s63
    s_lshl_b32 s63, s59, 10
    s_add_u32 s59, s59, {step}""")

def kernel():
    a = Asm()
    a.label(KN)
    a("s_cmp_ge_u32 s2, 256\ns_cbranch_scc1 k_end")
    if OPT.get("scramble"):
        a("s_lshr_b32 s60, s2, 5\ns_and_b32 s2, s2, 31\ns_lshl_b32 s2, s2, 3\ns_or_b32 s2, s2, s60")
    stamp(a, 8, True); stamp(a, 0)
    a("""s_load_dwordx2 s[30:31], s[0:1], 112
    s_load_dwordx16 s[4:19], s[0:1], 0
    s_load_dwordx8 s[20:27], s[0:1], 64
    s_load_dwordx2 s[28:29], s[0:1], 96
    v_lshrrev_b32 v2, 6, v0
    v_and_b32 v1, 63, v0
    v_readfirstlane_b32 s3, v2
    s_and_b32 s60, s2, 7
    s_lshl_b32 s60, s60, 2
    s_lshr_b32 s61, s2, 3
    s_and_b32 s62, s61, 3
    s_add_u32 s60, s60, s62
    s_lshr_b32 s61, s61, 2
    s_lshl_b32 s56, s60, 6
    s_lshl_b32 s57, s61, 6
    s_add_u32 s59, s61, s62
    s_add_u32 s59, s59, s2
    s_and_b32 s59, s59, 3
    s_lshr_b32 s76, s61, 1
    s_lshl_b32 s58, s62, 1
    v_lshlrev_b32 v2, 4, v1
    s_cmp_lt_u32 s3, 8
    s_cbranch_scc1 k_att""")
    a("s_sub_u32 s66, s3, 8\nv_lshrrev_b32 v9, 4, v1\nv_and_b32 v10, 15, v1")
    for q in range(4):
        a(f"""v_add_u32 v11, {4*q}, v9
        v_xor_b32 v12, v11, v10
        v_lshlrev_b32 v12, 4, v12
        v_lshl_add_u32 v{4+q}, v11, 10, v12""")
    a("""s_add_u32 s63, s59, s66
    s_and_b32 s63, s63, 3
    s_lshl_b32 s64, s76, 4
    s_add_u32 s64, s64, s56
    s_lshl_b32 s64, s64, 10
    s_lshl_b32 s65, s63, 8
    s_add_u32 s64, s64, s65
    s_lshl_b32 s65, s63, 12
    s_lshl_b32 s67, s66, 14
    s_lshl_b32 s68, s76, 12
    s_add_u32 s67, s67, s68
    s_lshl_b32 s68, s66, 12
    s_and_b32 s69, s61, 1
    s_cmp_eq_u32 s69, 0
    s_waitcnt lgkmcnt(0)""")
    a(f"""s_cselect_b32 s40, s{PWK}, s{PWV}
    s_cselect_b32 s41, s{PWK+1}, s{PWV+1}
    s_mov_b32 s42, 0x4000
    s_mov_b32 s43, 0x20000""")
    srd(a, 36, PX, 0x200000)
    for q in range(4):
        a(f"s_add_u32 s63, s67, {XT + q*1024}")
        dma(a, 4 + q, 36, "s64", "s63")
        a(f"s_add_u32 s63, s68, {WKV + q*1024}")
        dma(a, 2, 40, "s65", "s63")
        if q < 3: a("s_add_u32 s65, s65, 1024")
    srd(a, 44, PWQ, 0x80000)
    srd(a, WSR, PWS, WS_SIZE)
    a(f"s_add_u32 s78, s30, {WS_FY}\ns_addc_u32 s79, s31, 0\ns_load_dword s{TAG}, s[78:79], 0")
    w_src(a, 8, 9, 10)
    a(f"""s_lshl_b32 s63, s66, 2
    v_lshrrev_b32 v9, 4, v1
    v_add_u32 v11, s63, v9
    v_and_b32 v10, 15, v1
    v_xor_b32 v12, v11, v10
    v_lshlrev_b32 v12, 4, v12
    v_lshl_add_u32 v13, v11, 10, v12
    v_mov_b32 v3, {CNT}""")
    def stage1(slot):
        a(f"""s_add_u32 s63, s59, {slot}
        s_and_b32 s63, s63, 3
        s_lshl_b32 s67, s63, 17
        s_lshl_b32 s64, s66, 15
        s_add_u32 s67, s67, s64
        s_lshl_b32 s65, s63, 8
        s_lshl_b32 s64, s56, 10
        s_add_u32 s65, s65, s64
        s_lshl_b32 s69, s66, 10""")
        for q in range(4):
            a(f"s_add_u32 s63, s68, {WT + slot*16384 + q*1024}")
            dma(a, 8, 44, "s67", "s63")
            if q < 3:
                a(f"""s_add_u32 s67, s67, 8192
                s_add_u32 s63, s76, {q+1}
                s_and_b32 s63, s63, 3
                s_lshl_b32 s64, s63, 14
                s_add_u32 s64, s64, s65
                s_lshl_b32 s63, s63, 12
                s_add_u32 s63, s63, s69
                s_add_u32 s63, s63, {XT + slot*16384}""")
                dma(a, 13, 36, "s64", "s63")
    if OPT.get("early"): stage1(0)
    a("""v_lshl_add_u32 v14, v1, 2, v3
    v_mov_b32 v15, 0
    s_mov_b64 exec, 0xffff
    ds_write_b32 v14, v15
    s_mov_b64 exec, -1
    v_mov_b32 v14, 1""")
    H = 160 - 16
    vA, vB0, vB1 = 34, 35, 33
    AF, BF, B2F, ACC0, ACC1 = 48, 80, 112, 128, 144
    a(f"""s_lshr_b32 s16, s66, 1
    s_and_b32 s17, s66, 1
    s_lshl_b32 s62, s60, 1
    s_add_u32 s62, s62, s57
    s_add_u32 s62, s62, s16
    v_lshrrev_b32 v5, 3, v1
    v_and_b32 v6, 7, v1
    v_lshlrev_b32 v6, 4, v6
    v_lshl_add_u32 v6, v5, 10, v6
    s_lshl_b32 s63, s57, 1
    v_add_u32 v6, s63, v6
    s_lshl_b32 s63, s66, 4
    s_add_u32 s63, s63, s57
    v_and_b32 v7, 15, v1
    v_add_u32 v7, s63, v7
    v_lshlrev_b32 v18, 3, v7
    s_lshl_b32 s64, s56, 10
    s_sub_u32 s64, s64, 3072
    v_lshrrev_b32 v17, 4, v1
    v_lshlrev_b32 v19, 14, v17
    v_lshl_add_u32 v19, v7, 1, v19
    v_add_u32 v19, s64, v19
    s_lshl_b32 s63, s62, 1
    v_mov_b32 v20, s63
    v_bfe_u32 v16, v1, 2, 2
    v_lshlrev_b32 v16, 7, v16
    v_lshl_add_u32 v16, v17, 12, v16
    v_lshlrev_b32 v24, 5, v17
    v_and_b32 v17, 3, v1
    v_lshl_add_u32 v16, v17, 3, v16
    s_lshl_b32 s63, s66, 5
    s_add_u32 s63, s63, {XE0}
    v_add_u32 v16, s63, v16
    v_lshrrev_b32 v26, 2, v1
    v_mul_u32_u24 v32, {XOOFF}, v26
    v_mul_u32_u24 v26, 144, v26
    v_lshlrev_b32 v17, 4, v17
    v_sub_u32 v26, v17, v26
    s_lshl_b32 s63, s16, 6
    s_add_u32 s63, s63, {LEND - 144 - 3*2304}
    v_add_u32 v26, s63, v26
    v_and_b32 v21, 0x1f7, v7
    v_lshlrev_b32 v21, 12, v21
    v_sub_u32 v21, v21, v24
    v_and_b32 v9, 8, v1
    v_lshl_add_u32 v21, v9, 1, v21
    v_add_u32 v21, 96, v21
    s_mul_i32 s71, s16, {XESZ}
    s_add_u32 s71, s71, {XE0}
    v_add_u32 v27, s71, v2
    v_add_u32 v32, v32, v17
    s_add_u32 s63, s71, 4096
    v_add_u32 v32, s63, v32
    v_and_b32 v4, 31, v1
    v_lshrrev_b32 v5, 5, v1
    v_or_b32 v9, 1, v4
    v_lshlrev_b32 v17, 3, v5
    v_sub_u32 v9, v17, v9
    s_cmp_eq_u32 s17, 0
    s_cselect_b32 s63, 1055, 31
    s_sub_u32 s63, s63, 256
    v_add_u32 v9, s63, v9
    v_lshlrev_b32 v9, 1, v9
    v_and_b32 v17, 1, v4
    v_xor_b32 v17, 1, v17
    v_mul_u32_u24 v17, {XOOFF}, v17
    v_add3_u32 v{vA}, v9, v17, s71
    v_mul_u32_u24 v9, 144, v4
    v_lshlrev_b32 v17, 4, v5
    v_sub_u32 v9, v17, v9
    s_lshl_b32 s63, s16, 6
    s_add_u32 s63, s63, {LEND + 144*23 + 1152}
    v_add_u32 v{vB0}, s63, v9
    v_mov_b32 v28, 0
    v_mov_b32 v29, 0
    v_mov_b32 v30, 0
    v_mov_b32 v31, 0
    s_lshl_b32 s63, s17, 11
    v_lshlrev_b32 v22, 6, v4
    v_lshl_add_u32 v22, v5, 3, v22
    v_add_u32 v22, s63, v22
    s_add_u32 s63, s71, {4088 - 48}
    v_sub_u32 v22, s63, v22
    v_and_b32 v23, 27, v4
    v_lshlrev_b32 v23, 6, v23
    v_lshl_add_u32 v23, v5, 4, v23
    v_and_b32 v9, 4, v4
    v_lshl_add_u32 v23, v9, 3, v23
    s_lshl_b32 s63, s17, 11
    v_add_u32 v23, s63, v23""")
    for i in range(16): a(f"v_mov_b32 v{ACC0+i}, 0")
    a("v_mov_b32 v93, 0xffff")
    a(f"s_waitcnt vmcnt({7 if OPT.get('early') else 0}) lgkmcnt(0)\ns_barrier")
    a(f"s_mul_i32 s{TAG}, s{TAG}, 0x9e3779b1\ns_add_u32 s{TAG}, s{TAG}, 0x7f4a7c15")
    if not OPT.get('early'): stage1(0)
    H1, H2 = OPT.get("h1", 0), OPT.get("h2", 0)
    if H1: lds_wait(a, 3, 56, 1, 16)
    stage1(1)
    if H2: lds_wait(a, 3, 56, 2, 16)
    stage1(2); stage1(3)
    if OPT.get("qcnt"):
        a("s_waitcnt vmcnt(14)")
        lds_add(a, 3, 48, 14)
        a("s_waitcnt vmcnt(0)")
        lds_add(a, 3, 60, 14)
    else:
        a("s_waitcnt vmcnt(14)\ns_barrier\ns_waitcnt vmcnt(0)\ns_barrier")
    a(f"""s_setprio 3
    s_lshr_b32 s67, s66, 1
    s_and_b32 s68, s66, 1
    s_lshl_b32 s69, s60, 1
    s_add_u32 s69, s69, s57
    s_add_u32 s69, s69, s67
    s_lshl_b32 s70, s69, 12""")
    srd(a, 36, PK, 0x200000)
    srd(a, 40, PV, 0x200000)
    srd(a, 44, PSH, 4096)
    srd_off(a, 48, PH, "s70", 4096)
    srd(a, 52, PD, 1024)
    def first_batch(n):
        for j in range(n):
            kv_unit_step(a, 4)
            dma(a, 2, WSR, "s63", "s63", "sc1")
    a(f"""s_lshl_b32 s63, s67, 2
    s_add_u32 s63, s63, s58
    s_and_b32 s63, s63, 7
    s_mul_i32 s59, s63, 65
    s_lshr_b32 s59, s59, 2
    s_add_u32 s59, s59, s68
    s_add_u32 s59, s59, 12""")
    def bulk(n, lbl):
        a(f"s_mov_b32 s72, {n}")
        a.label(lbl)
        kv_unit_step(a, 2)
        dma(a, 2, WSR, "s63", "s63", "sc1")
        a(f"s_sub_u32 s72, s72, 1\ns_cmp_lg_u32 s72, 0\ns_cbranch_scc1 {lbl}")
    a(f"""s_lshl_b32 s64, s66, 4
    s_add_u32 s64, s64, s56
    s_lshl_b32 s64, s64, 10
    s_add_u32 s65, s64, 8192
    s_lshl_b32 s73, s66, 12
    s_add_u32 s73, s73, {XE0}
    s_mov_b32 s72, {WS_FKV}
    v_lshlrev_b32 v36, 6, v1
    s_cmp_lg_u32 s66, 0
    s_cbranch_scc1 h_nopoll
    s_barrier
    buffer_load_dwordx4 v[40:43], v36, s[{WSR}:{WSR+3}], s72 offen sc1
    s_mov_b32 s75, 0x40000""")
    a.label("h_pollkv")
    a(f"""s_sub_u32 s75, s75, 1
    s_waitcnt vmcnt(0)
    v_xor_b32 v40, s{TAG}, v40
    v_xor_b32 v41, s{TAG}, v41
    v_xor_b32 v42, s{TAG}, v42
    v_xor_b32 v43, s{TAG}, v43
    v_or3_b32 v40, v40, v41, v42
    v_or_b32 v40, v40, v43
    v_cmp_ne_u32 vcc, 0, v40
    s_cbranch_vccz h_kvready
    s_mov_b64 exec, vcc
    buffer_load_dwordx4 v[40:43], v36, s[{WSR}:{WSR+3}], s72 offen sc1
    s_cmp_lg_u32 s75, 0
    s_cbranch_scc1 h_pollkv""")
    a.label("h_kvready")
    a("s_waitcnt vmcnt(0)\ns_mov_b64 exec, -1\nds_write_b32 v3, v14\ns_branch h_b1")
    a.label("h_nopoll")
    a("s_barrier")
    a.label("h_b1")
    a("s_barrier")
    hst(a, 1, False)
    bulk(5, "h_bulk1")
    a("s_waitcnt vmcnt(0)")
    lds_add(a, 3, 4, 14)
    if OPT.get("abl") == 1:
        bulk(15, "h_bulk3"); a("s_waitcnt vmcnt(0)"); lds_add(a, 3, 8, 14); fin(a)
    dma(a, 6, 36, "s64", "s73")
    a("s_add_u32 s63, s73, 1024"); dma(a, 6, 36, "s65", "s63")
    a("s_add_u32 s63, s73, 2048"); dma(a, 6, 40, "s64", "s63")
    a("s_add_u32 s63, s73, 3072"); dma(a, 6, 40, "s65", "s63")
    a(f"""buffer_load_dwordx2 v[10:11], v18, s[44:47], 0 offen
    buffer_load_ushort v12, v19, s[36:39], 0 offen
    buffer_load_ushort v13, v19, s[36:39], 0 offen offset:1024
    buffer_load_ushort v15, v19, s[36:39], 0 offen offset:2048""")
    bulk(13, "h_bulk2")
    a("s_waitcnt vmcnt(4)")
    lds_add(a, 3, 8, 14)
    if OPT.get("abl") == 2:
        a("s_waitcnt vmcnt(0)"); lds_add(a, 3, 8, 14); fin(a)
    lds_add(a, 3, 40, 14)
    lds_wait(a, 3, 40, 4, 9)
    hst(a, 2, False)
    KR, VR, VF = 96, 104, 72
    for i in range(4): a(f"ds_read_b64_tr_b16 v[{KR+2*i}:{KR+2*i+1}], v16 offset:{i*512}")
    for i in range(4): a(f"ds_read_b64_tr_b16 v[{VR+2*i}:{VR+2*i+1}], v16 offset:{2048 + i*512}")
    a(f"""v_alignbit_b32 v88, v11, v11, 16
    v_alignbit_b32 v89, v10, v10, 16
    v_and_b32 v90, 0xffff0000, v11
    v_bfi_b32 v91, v93, v11, v10
    v_and_b32 v92, 0xffff, v10
    v_lshlrev_b32 v{KR-2}, 16, v12
    v_lshl_or_b32 v{KR-1}, v15, 16, v13
    s_waitcnt lgkmcnt(0)""")
    KS = 52
    D2 = lambda d, x, w, c: a(f"v_dot2_f32_bf16 v{d}, v{x}, v{w}, {c}")
    for i in range(8):
        D2(KS + 2*i, KR + i - 2, 90, "0"); D2(KS + 2*i + 1, KR + i - 1, 88, "0")
    for i in range(8):
        D2(KS + 2*i, KR + i - 1, 91, f"v{KS+2*i}"); D2(KS + 2*i + 1, KR + i, 89, f"v{KS+2*i+1}")
    for i in range(8):
        D2(KS + 2*i, KR + i, 92, f"v{KS+2*i}")
        a(f"v_lshlrev_b32 v{VF+2*i}, 16, v{VR+i}\nv_and_b32 v{VF+1+2*i}, 0xffff0000, v{VR+i}")
    for i in range(8):
        a(f"v_pk_mul_f32 v[{VF+2*i}:{VF+2*i+1}], v[{VF+2*i}:{VF+2*i+1}], v[{KS+2*i}:{KS+2*i+1}]")
    for q in range(8):
        a(f"v_cvt_pk_bf16_f32 v{44+q}, v{VF+15-2*q}, v{VF+14-2*q}")
    for i in range(4):
        a(f"v_mov_b32 v{52+i}, v{44+i}")
    for i in range(4):
        a(f"v_mov_b32_dpp v{44+i}, v{48+i} row_ror:8 row_mask:0xf bank_mask:0xc")
        a(f"v_mov_b32_dpp v{48+i}, v{52+i} row_ror:8 row_mask:0xf bank_mask:0x3")
    a(f"""s_lshl_b32 s64, s56, 1
    s_sub_u32 s64, {WS_XREV + 4064 - 96}, s64
    s_add_u32 s63, s64, 32768
    buffer_store_dwordx4 v[44:47], v21, s[{WSR}:{WSR+3}], s64 offen sc1
    buffer_store_dwordx4 v[48:51], v21, s[{WSR}:{WSR+3}], s63 offen sc1
    s_lshl_b32 s72, s61, 11
    s_lshl_b32 s65, s60, 6
    s_add_u32 s65, s65, s72
    s_add_u32 s64, s72, {WS_FX}
    s_add_u32 s73, s65, {WS_FX}""")
    bulk(9, "h_bulk3b")
    for i in range(4):
        a(f"buffer_load_dwordx4 v[{H+4*i}:{H+4*i+3}], v2, s[48:51], 0 offen offset:{1024*i}")
    a("buffer_load_ushort v25, v20, s[52:55], 0 offen\ns_waitcnt vmcnt(14)")
    publish(a, 3, 16, 14, 16, 73, 4)
    a("s_waitcnt vmcnt(5)")
    lds_add(a, 3, 60, 14)
    a("s_waitcnt vmcnt(0)")
    for i in range(4): a(f"ds_write_b128 v26, v[{H+4*i}:{H+4*i+3}] offset:{2304*(3-i)}")
    hst(a, 3, False)
    a(f"s_add_u32 s63, s70, {WS_XREV}")
    srd_off(a, 40, PWS, "s63", 4096)
    a(f"s_add_u32 s63, s70, {WS_Y}")
    srd_off(a, 44, PWS, "s63", 4096)
    poll32(a, 64, 16, 52)
    hst(a, 4, False)
    if OPT.get("abl") == 3: fin(a)
    X = 52
    for i in range(4):
        a(f"buffer_load_dwordx4 v[{X+6*i}:{X+6*i+3}], v2, s[40:43], 0 offen offset:{1024*i} sc1")
        a(f"buffer_load_dword v{X+6*i+4}, v2, s[40:43], 0 offen offset:{1024*i+16} sc1")
    srd(a, 36, PWO, 0x80000)
    a("s_lshr_b32 s63, s2, 3\ns_lshl_b32 s63, s63, 14\ns_lshl_b32 s74, s66, 12\ns_add_u32 s63, s63, s74")
    for i in range(4):
        a(f"buffer_load_dwordx4 v[160:163], v2, s[36:39], s63 offen offset:{1024*i}")
    a("s_mov_b64 exec, 0xff\nds_write_b128 v32, v[28:31]\ns_mov_b64 exec, -1")
    for i in range(4):
        x = X + 6*i
        a(f"s_waitcnt vmcnt({10-2*i})")
        a(f"ds_write_b128 v27, v[{x}:{x+3}] offset:{1024*i}")
        for j in range(4): a(f"v_alignbit_b32 v{36+4*(i&1)+j}, v{x+j+1}, v{x+j}, 16")
        a(f"ds_write_b128 v27, v[{36+4*(i&1)}:{39+4*(i&1)}] offset:{XOOFF+1024*i}")
    a("s_waitcnt lgkmcnt(0)")
    a_ref = [a]
    def creads(t, dual):
        a = a_ref[0]
        b = t % 4; b2 = t % 2
        if OPT.get("noreads"): return
        if t == 0:
            a(f"v_add_u32 v{vA}, 512, v{vA}\nv_subrev_u32 v{vB0}, 1152, v{vB0}")
            if dual: a(f"v_subrev_u32 v{vB1}, 1152, v{vB1}")
        for u in range(2):
            o = (2*t + u) * 8
            r = AF + 8*b + 4*u
            a(f"ds_read2_b32 v[{r}:{r+1}], v{vA} offset0:{o} offset1:{o+1}")
            a(f"ds_read2_b32 v[{r+2}:{r+3}], v{vA} offset0:{o+2} offset1:{o+3}")
        for u in range(2):
            r = BF + 8*b + 4*u
            a(f"ds_read_b128 v[{r}:{r+3}], v{vB0} offset:{144*(7-t) + 32*u}")
        if dual:
            for u in range(2):
                r = B2F + 8*b2 + 4*u
                a(f"ds_read_b128 v[{r}:{r+3}], v{vB1} offset:{144*(7-t) + 32*u}")
    if OPT.get("abl") == 4: fin(a)
    a("s_cmp_eq_u32 s68, 0\ns_cselect_b32 s72, 2, 6")
    a(f"s_setprio {OPT.get('cprio', 3)}")
    PF = OPT.get("cpf", 2)
    for t in range(PF): creads(t, False)
    a.label("h_conv1")
    for t in range(8):
        b = t % 4
        if PF == 0: creads(t, False)
        a(f"s_waitcnt lgkmcnt({6 if PF == 2 else 0})")
        if OPT.get("cspace"):
            sub = Asm(); save = a_ref[0]; a_ref[0] = sub
            creads((t + PF) % 8, False); a_ref[0] = save
            L = sub.lines; h = len(L) - 3
            MF(a, ACC0, AF + 8*b, BF + 8*b, ACC0)
            for x in L[:h]: a(x)
            MF(a, ACC0, AF + 8*b + 4, BF + 8*b + 4, ACC0)
            for x in L[h:]: a(x)
            continue
        for u in range(0 if OPT.get("nomfma") else 2): MF(a, ACC0, AF + 8*b + 4*u, BF + 8*b + 4*u, ACC0)
        if PF: creads((t + PF) % 8, False)
    a("s_sub_u32 s72, s72, 1\ns_cmp_lg_u32 s72, 0\ns_cbranch_scc1 h_conv1")
    a("s_cmp_lg_u32 s68, 0\ns_cbranch_scc1 h_convb")
    if PF: a(f"v_subrev_u32 v{vA}, 512, v{vA}\nv_add_u32 v{vB0}, 1152, v{vB0}")
    a(f"""s_waitcnt lgkmcnt(0)
    v_subrev_u32 v{vB1}, {144*32}, v{vB0}
    s_mov_b32 s72, 2""")
    for i in range(16): a(f"v_mov_b32 v{ACC1+i}, 0")
    if PF == 2: creads(0, True)
    a.label("h_conv2")
    for t in range(8):
        b = t % 4; b2 = t % 2
        if OPT.get("dsplit"):
            sub = Asm(); save = a_ref[0]; a_ref[0] = sub
            creads(t, True); a_ref[0] = save
            L = sub.lines; pre = L[:len(L)-8]; R = L[len(L)-8:]
            for x in pre: a(x)
            for u in range(2):
                for x in (R[2*u], R[2*u+1], R[4+u], R[6+u]): a(x)
                a("s_waitcnt lgkmcnt(0)")
                MF(a, ACC0, AF + 8*b + 4*u, BF + 8*b + 4*u, ACC0)
                MF(a, ACC1, AF + 8*b + 4*u, B2F + 8*b2 + 4*u, ACC1)
            continue
        if PF < 2: creads(t, True)
        a("s_waitcnt lgkmcnt(0)")
        if PF == 2: creads((t + 1) % 8, True)
        for u in range(0 if OPT.get("nomfma") else 2):
            MF(a, ACC0, AF + 8*b + 4*u, BF + 8*b + 4*u, ACC0)
            MF(a, ACC1, AF + 8*b + 4*u, B2F + 8*b2 + 4*u, ACC1)
    a("s_sub_u32 s72, s72, 1\ns_cmp_lg_u32 s72, 0\ns_cbranch_scc1 h_conv2")
    a(f"s_lshl_b32 s63, s67, 2\nv_add_u32 v9, s63, v3\ns_waitcnt lgkmcnt(0)")
    lds_wait(a, 9, 32, 1, 16)
    for i in range(4): a(f"ds_write_b128 v27, v[{ACC1+4*i}:{ACC1+4*i+3}] offset:{XOOFF + 1024*i}")
    a("s_waitcnt lgkmcnt(0)")
    lds_add(a, 9, 24, 14)
    a("s_branch h_cepi")
    a.label("h_convb")
    a(f"s_lshl_b32 s63, s67, 2\nv_add_u32 v9, s63, v3\ns_waitcnt lgkmcnt(0)")
    lds_add(a, 9, 32, 14)
    lds_wait(a, 9, 24, 1, 16)
    for i in range(4): a(f"ds_read_b128 v[{ACC1+4*i}:{ACC1+4*i+3}], v27 offset:{XOOFF + 1024*i}")
    a("s_waitcnt lgkmcnt(0)")
    for i in range(8): a(f"v_pk_add_f32 v[{ACC0+2*i}:{ACC0+2*i+1}], v[{ACC0+2*i}:{ACC0+2*i+1}], v[{ACC1+2*i}:{ACC1+2*i+1}]")
    a.label("h_cepi")
    if OPT.get("abl") == 5: fin(a)
    a("s_setprio 3")
    hst(a, 1, True)
    hst(a, 5, False)
    for aa in range(4):
        a(f"ds_read_b64 v[{48+2*aa}:{49+2*aa}], v22 offset:{48 - 16*aa}")
    a("v_lshlrev_b32 v24, 16, v25\ns_waitcnt lgkmcnt(0)")
    for aa in range(4):
        d0, d1 = 48 + 2*aa, 49 + 2*aa
        a(f"""v_and_b32 v36, 0xffff0000, v{d1}
        v_lshlrev_b32 v37, 16, v{d1}
        v_and_b32 v38, 0xffff0000, v{d0}
        v_lshlrev_b32 v39, 16, v{d0}
        v_pk_fma_f32 v[{ACC0+4*aa}:{ACC0+4*aa+1}], v[36:37], v[24:25], v[{ACC0+4*aa}:{ACC0+4*aa+1}] op_sel_hi:[1,0,1]
        v_pk_fma_f32 v[{ACC0+4*aa+2}:{ACC0+4*aa+3}], v[38:39], v[24:25], v[{ACC0+4*aa+2}:{ACC0+4*aa+3}] op_sel_hi:[1,0,1]
        v_cvt_pk_bf16_f32 v{40+2*aa}, v{ACC0+4*aa}, v{ACC0+4*aa+1}
        v_cvt_pk_bf16_f32 v{41+2*aa}, v{ACC0+4*aa+2}, v{ACC0+4*aa+3}""")
    for p in range(2):
        r = 40 + 4*p
        a(f"v_permlane32_swap_b32 v{r}, v{r+2}\nv_permlane32_swap_b32 v{r+1}, v{r+3}")
    for i in range(4): a(f"v_mov_b32 v{56+i}, v{40+i}")
    for i in range(4):
        a(f"v_mov_b32_dpp v{40+i}, v{44+i} row_shr:4 row_mask:0xf bank_mask:0xa")
        a(f"v_mov_b32_dpp v{44+i}, v{56+i} row_shl:4 row_mask:0xf bank_mask:0x5")
    for p in range(2):
        a(f"buffer_store_dwordx4 v[{40+4*p}:{43+4*p}], v23, s[44:47], 0 offen offset:{256*p} sc1")
    a(f"s_add_u32 s73, s65, {WS_FY}")
    lds_wait(a, 3, 44, 8, 16)
    a("s_waitcnt vmcnt(0)")
    publish(a, 3, 20, 14, 16, 73, 4, True)
    hst(a, 2, True)
    lds_wait(a, 3, 12, 8, 16, 4)
    hst(a, 3, True)
    a(f"""s_mul_i32 s72, s58, {8*ST}
    s_add_u32 s63, s58, 4
    s_and_b32 s63, s63, 7
    s_mul_i32 s73, s63, {8*ST}
    s_lshl_b32 s63, s66, 12
    s_add_u32 s72, s72, s63
    s_add_u32 s73, s73, s63
    s_lshl_b32 s67, s66, 15""")
    for sl in range(4):
        for q in range(4):
            a(f"s_add_u32 s63, s{72 + (sl>>1)}, {(sl&1)*16384 + q*1024}")
            dma(a, 8, 36, "s67", "s63")
            a(f"s_add_u32 s67, s67, {8192 if q < 3 else 131072 - 3*8192}")
    hst(a, 6, False)
    a("s_waitcnt vmcnt(0)")
    fin(a)

    a.label("k_att")
    QA, QB, NMA, NMB, SA, SB, PA, PB, OA, OB, KB, VB = 4, 8, 12, 28, 44, 60, 76, 84, 92, 108, 124, 132
    vK, vV, vKn, vVn, vKl, vVl, vC, T = 148, 149, 150, 151, 2, 152, 153, 154
    K2, NA, NB_ = T + 2, T + 6, T + 10
    def early_setup():
        srd(a, 36, PX, 0x200000)
        srd(a, 40, POUT, 0x200000)
        a(f"""s_and_b32 s64, s3, 4
        s_add_u32 s71, s58, s64
        s_and_b32 s71, s71, 7
        s_mul_i32 s59, s71, 65
        s_lshr_b32 s59, s59, 2
        s_and_b32 s64, s3, 3
        s_add_u32 s59, s59, s64
        s_mov_b32 s65, {WS_KMAX}
        v_and_b32 v{T+3}, 31, v1
        v_lshrrev_b32 v3, 5, v1
        v_and_b32 v{T+4}, 15, v1
        v_lshlrev_b32 v{T+4}, 4, v{T+4}
        v_lshl_add_u32 v{T+4}, v3, 8, v{T+4}
        v_add_u32 v{T+4}, 1024, v{T+4}
        v_mov_b32 v{vVl}, 0x100000
        v_and_b32 v{T+5}, 27, v{T+3}
        v_cmp_eq_u32 vcc, 16, v{T+5}
        v_mov_b32 v{T+5}, 1536
        v_cndmask_b32 v{vVl}, v{vVl}, v{T+5}, vcc
        v_cmp_gt_u32 vcc, 16, v{T+3}
        s_mul_i32 s70, s71, {8*ST}
        v_cndmask_b32 v{vVl}, v{vVl}, v{T+4}, vcc
        v_add_u32 v{vK}, s70, v{vKl}
        v_add_u32 v{vV}, s70, v{vVl}
        s_add_u32 s71, s71, 1
        s_and_b32 s71, s71, 7
        s_mul_i32 s70, s71, {8*ST}
        v_add_u32 v{vKn}, s70, v{vKl}
        v_add_u32 v{vVn}, s70, v{vVl}
        s_lshl_b32 s63, s64, 11
        s_add_u32 s63, s63, {QX}
        v_add_u32 v{T+4}, s63, v2
        v_lshlrev_b32 v{T+1}, 3, v1""")
        for r in list(range(PB, PB + 8, 2)) + list(range(OA, OA + 32, 2)) + list(range(VB + 8, VB + 16, 2)):
            a(f"v_pk_mov_b32 v[{r}:{r+1}], 0, 0")
    a(f"""s_lshr_b32 s63, s3, 2
    s_lshl_b32 s62, s60, 1
    s_add_u32 s62, s62, s63
    s_lshl_b32 s62, s62, 5
    s_lshl_b32 s63, s61, 2
    s_add_u32 s62, s62, s63
    s_and_b32 s63, s3, 3
    s_add_u32 s62, s62, s63
    s_lshl_b32 s62, s62, 10
    s_add_u32 s62, s62, {WS_O}
    v_mov_b32 v{vC}, {CNT}
    s_waitcnt lgkmcnt(0)""")
    srd(a, WSR, PWS, WS_SIZE)
    a(f"""s_add_u32 s78, s30, {WS_FY}
    s_addc_u32 s79, s31, 0
    s_load_dword s{TAG}, s[78:79], 0
    s_mov_b32 s16, s59""")
    early_setup()
    a(f"""s_cmp_lt_u32 s3, 4
    s_cbranch_scc1 a_gemm
    s_cmp_lg_u32 s3, 4
    s_cbranch_scc1 a_idle""")
    GW = 64
    a(f"""s_and_b32 s68, s61, 1
    v_lshrrev_b32 v8, 4, v1
    v_lshlrev_b32 v8, 4, v8
    s_lshr_b32 s64, s76, 1
    s_lshl_b32 s65, s60, 1
    s_add_u32 s64, s64, s65
    s_mul_i32 s64, s64, {ST}
    s_and_b32 s65, s76, 1
    v_and_b32 v17, 15, v1
    v_lshrrev_b32 v18, 4, v1
    v_xor_b32 v19, v17, v18
    v_lshlrev_b32 v19, 4, v19
    v_lshl_add_u32 v19, v17, 8, v19
    s_lshl_b32 s63, s76, 12
    v_add_u32 v20, s63, v19
    v_xor_b32 v21, 64, v20
    v_xor_b32 v22, 128, v20
    v_xor_b32 v23, 192, v20
    v_bfe_u32 v19, v1, 2, 2
    v_lshl_add_u32 v19, v18, 3, v19
    v_lshlrev_b32 v19, 5, v19
    v_and_b32 v24, 3, v1
    v_lshl_add_u32 v24, v24, 3, v19
    v_add_u32 v24, {WKV}, v24
    v_lshlrev_b32 v17, 4, v17
    v_lshrrev_b32 v18, 5, v1
    v_lshl_add_u32 v17, v18, 3, v17
    v_bfe_u32 v18, v1, 4, 1
    v_mov_b32 v9, 0
    s_lshr_b32 s69, s2, 2
    s_lshl_b32 s69, s69, {OPT.get("fsh", 6)}
    s_and_b32 s63, s2, 3
    s_lshl_b32 s63, s63, 2
    s_add_u32 s69, s69, s63
    s_add_u32 s69, s69, {WS_FKV}
    s_cmp_lg_u32 s68, 0
    s_cbranch_scc1 a_vjob""")
    JD, JG, JX, JW = 28, 4, 32, 48
    def job(ktype):
        def reads(n):
            kc, e = n >> 2, n & 3
            a(f"ds_read_b128 v[{JX+4*e}:{JX+4*e+3}], v{20+e} offset:{kc*16384}")
            a(f"ds_read_b64_tr_b16 v[{JW+4*e}:{JW+4*e+1}], v24 offset:{kc*4096 + e*1024}")
            a(f"ds_read_b64_tr_b16 v[{JW+4*e+2}:{JW+4*e+3}], v24 offset:{kc*4096 + e*1024 + 128}")
        for n in range(4): reads(n)
        for n in range(16):
            e = n & 3
            a(f"s_waitcnt lgkmcnt({3*min(3, 15-n)})")
            x, w = f"v[{JX+4*e}:{JX+4*e+3}]", f"v[{JW+4*e}:{JW+4*e+3}]"
            c = "0" if n == 0 else f"v[{JD}:{JD+3}]"
            if ktype:
                a(f"v_mfma_f32_16x16x32_bf16 v[{JD}:{JD+3}], {w}, {x}, {c}")
            else:
                a(f"v_mfma_f32_16x16x32_bf16 v[{JD}:{JD+3}], {x}, {w}, {c}")
            if n + 4 < 16: reads(n + 4)
    a(f"""s_lshl_b32 s65, s65, 8
    s_add_u32 s64, s64, s65
    v_lshl_add_u32 v17, v18, 9, v17
    s_lshl_b32 s65, s60, 2
    s_add_u32 s65, s65, s76
    s_lshl_b32 s65, s65, 2
    s_add_u32 s65, s65, {WS_KMAX}
    s_waitcnt lgkmcnt(0)
    s_mul_i32 s{TAG}, s{TAG}, 0x9e3779b1
    s_add_u32 s{TAG}, s{TAG}, 0x7f4a7c15
    s_barrier""")
    job(True)
    a(f"s_mov_b32 s63, {f32(CSCALE)}")
    for e in range(4): a(f"v_mul_f32 v{JD+e}, s63, v{JD+e}")
    a(f"""v_cvt_pk_bf16_f32 v36, v{JD}, v{JD+1}
    v_cvt_pk_bf16_f32 v37, v{JD+2}, v{JD+3}
    buffer_store_dwordx2 v[36:37], v17, s[{WSR}:{WSR+3}], s64 offen sc1
    v_mul_f32 v38, v{JD}, v{JD}
    v_fmac_f32 v38, v{JD+1}, v{JD+1}
    v_fmac_f32 v38, v{JD+2}, v{JD+2}
    v_fmac_f32 v38, v{JD+3}, v{JD+3}
    v_mov_b32 v39, v38
    v_permlane32_swap_b32 v38, v39
    v_add_f32 v38, v38, v39
    v_mov_b32 v39, v38
    v_permlane16_swap_b32 v38, v39
    v_add_f32 v38, v38, v39
    v_max_f32_dpp v38, v38, v38 row_ror:8 row_mask:0xf bank_mask:0xf
    v_max_f32_dpp v38, v38, v38 row_ror:4 row_mask:0xf bank_mask:0xf
    v_max_f32_dpp v38, v38, v38 row_ror:2 row_mask:0xf bank_mask:0xf
    v_max_f32_dpp v38, v38, v38 row_ror:1 row_mask:0xf bank_mask:0xf
    s_mov_b64 exec, 1
    buffer_store_dword v38, v9, s[{WSR}:{WSR+3}], s65 offen sc1
    s_branch a_jobdone""")
    a.label("a_vjob")
    a(f"""s_mul_i32 s65, s65, 528
    s_add_u32 s64, s64, s65
    v_mov_b32 v12, 0x3f803f80
    v_mov_b32 v13, 0x3f803f80
    v_mov_b32 v14, 0x3f803f80
    v_mov_b32 v15, 0x3f803f80
    s_mov_b64 exec, 1
    buffer_store_dwordx4 v[12:15], v9, s[{WSR}:{WSR+3}], s64 offen offset:1536 sc1
    s_mov_b64 exec, -1
    v_lshl_add_u32 v17, v18, 8, v17
    s_waitcnt lgkmcnt(0)
    s_mul_i32 s{TAG}, s{TAG}, 0x9e3779b1
    s_add_u32 s{TAG}, s{TAG}, 0x7f4a7c15
    s_barrier""")
    job(False)
    a(f"""v_cvt_pk_bf16_f32 v36, v{JD}, v{JD+1}
    v_cvt_pk_bf16_f32 v37, v{JD+2}, v{JD+3}
    buffer_store_dwordx2 v[36:37], v17, s[{WSR}:{WSR+3}], s64 offen offset:1024 sc1
    s_mov_b64 exec, 1""")
    a.label("a_jobdone")
    ast(a, 1, False)
    a(f"""v_mov_b32 v11, 1
    ds_write_b32 v{vC}, v11 offset:56
    v_mov_b32 v10, s{TAG}
    v_mov_b32 v11, 2
    s_waitcnt vmcnt(0)
    buffer_store_dword v10, v9, s[{WSR}:{WSR+3}], s69 offen sc1
    ds_write_b32 v{vC}, v11 offset:56
    s_mov_b64 exec, -1
    s_branch a_fetch""")
    a.label("a_idle")
    a("s_getpc_b64 s[48:49]")
    a.label("a_pc")
    a(f"""s_sub_u32 s48, s48, a_pc-{KN}
    s_subb_u32 s49, s49, 0
    s_mov_b32 s50, code_end-{KN}
    s_mov_b32 s51, 0x20000
    s_lshr_b32 s63, s2, 3
    s_lshl_b32 s63, s63, 10
    s_cmp_lg_u32 s3, 5
    s_cbranch_scc1 a_wqpf
    buffer_load_dwordx4 v[12:15], v2, s[48:51], s63 offen
    s_and_b32 s68, s61, 1
    s_cmp_lg_u32 s68, 0
    s_cbranch_scc1 a_bj
    v_lshrrev_b32 v8, 4, v1
    v_lshlrev_b32 v8, 4, v8""")
    srd(a, 52, PGW, 1024)
    for p in range(4):
        a(f"s_add_u32 s63, s16, {p}\ns_and_b32 s63, s63, 3\ns_lshl_b32 s63, s63, 8")
        for e in range(4):
            r = GW + 16*p + 4*e
            a(f"buffer_load_dwordx4 v[{r}:{r+3}], v8, s[52:55], s63 offen offset:{64*e}")
    a(f"""v_and_b32 v17, 15, v1
    v_lshrrev_b32 v18, 4, v1
    v_xor_b32 v19, v17, v18
    v_lshlrev_b32 v19, 4, v19
    v_lshl_add_u32 v19, v17, 8, v19
    s_lshl_b32 s63, s76, 12
    v_add_u32 v20, s63, v19
    v_xor_b32 v21, 64, v20
    v_xor_b32 v22, 128, v20
    v_xor_b32 v23, 192, v20
    s_lshl_b32 s65, s60, 2
    s_add_u32 s65, s65, s76
    s_lshl_b32 s67, s65, 6
    s_add_u32 s67, s67, {WS_G}
    v_lshlrev_b32 v25, 2, v1
    s_waitcnt lgkmcnt(0)
    s_mul_i32 s{TAG}, s{TAG}, 0x9e3779b1
    s_add_u32 s{TAG}, s{TAG}, 0x7f4a7c15
    s_barrier""")
    for n in range(8): a(f"ds_read_b128 v[{32+4*n}:{35+4*n}], v{20+(n&3)} offset:{(n>>2)*16384}")
    a("s_waitcnt vmcnt(0)")
    for n in range(16):
        a(f"s_waitcnt lgkmcnt({min(7, 15-n)})")
        r = 32 + 4*(n & 7)
        a(f"v_mfma_f32_16x16x32_bf16 v[{JG}:{JG+3}], v[{GW+4*n}:{GW+4*n+3}], v[{r}:{r+3}], " + ("0" if n == 0 else f"v[{JG}:{JG+3}]"))
        if n + 8 < 16: a(f"ds_read_b128 v[{r}:{r+3}], v{20+(n&3)} offset:{((n+8)>>2)*16384}")
    a(f"""s_mov_b32 s63, {f32(-math.log2(math.e))}
    v_mul_f32 v10, s63, v{JG}
    v_exp_f32 v10, v10
    v_add_f32 v10, 1.0, v10
    v_rcp_f32 v10, v10
    s_mov_b64 exec, 0xffff
    buffer_store_dword v10, v25, s[{WSR}:{WSR+3}], s67 offen sc1
    s_mov_b64 exec, -1""")
    for r in list(range(PB, PB + 8, 2)) + list(range(OA, OA + 32, 2)):
        a(f"v_pk_mov_b32 v[{r}:{r+1}], 0, 0")
    a("s_branch a_fetch")
    a.label("a_wqpf")
    srd(a, 48, PWQ, 0x80000)
    a("""s_lshl_b32 s63, s63, 4
    s_and_b32 s64, s3, 1
    s_lshl_b32 s64, s64, 13
    s_add_u32 s63, s63, s64
    s_add_u32 s64, s63, 4096""")
    for i in range(8 if OPT.get("wqpf", 1) else 0):
        a(f"buffer_load_dwordx4 v[{8+4*i}:{11+4*i}], v2, s[48:51], s{63 + (i>>2)} offen offset:{1024*(i&3)}")
    a.label("a_bj")
    a(f"""s_waitcnt lgkmcnt(0)
    s_mul_i32 s{TAG}, s{TAG}, 0x9e3779b1
    s_add_u32 s{TAG}, s{TAG}, 0x7f4a7c15
    s_barrier""")
    a.label("a_fetch")
    ast(a, 2, False)
    a(f"s_mov_b32 s65, {WS_KMAX}\ns_barrier\ns_waitcnt vmcnt(0)\ns_barrier\ns_barrier\ns_branch a_common")
    a.label("a_gemm")
    vB, vAg, ACC, FA, FB = 124, 132, 68, 4, 36
    a(f"""s_lshr_b32 s63, s3, 1
    s_lshl_b32 s63, s63, 13
    v_and_b32 v8, 31, v1
    v_lshrrev_b32 v9, 5, v1
    v_and_b32 v10, 15, v1
    v_xor_b32 v10, v10, v9
    v_lshlrev_b32 v10, 4, v10
    v_lshl_add_u32 v10, v8, 8, v10
    v_add_u32 v{vB}, s63, v10""")
    for e in range(1, 8): a(f"v_xor_b32 v{vB+e}, {e*32}, v{vB}")
    a(f"""s_and_b32 s63, s3, 1
    v_bfe_u32 v8, v1, 2, 2
    v_lshrrev_b32 v10, 1, v8
    v_xor_b32 v10, s63, v10
    v_lshlrev_b32 v10, 6, v10
    v_lshl_add_u32 v8, v9, 3, v8
    v_lshl_add_u32 v10, v8, 7, v10
    v_bfe_u32 v8, v1, 4, 1
    v_lshl_add_u32 v10, v8, 5, v10
    v_and_b32 v8, 3, v1
    v_lshl_add_u32 v10, v8, 3, v10
    v_add_u32 v{vAg}, {WT}, v10
    s_lshl_b32 s63, s63, 12
    s_lshr_b32 s64, s3, 1
    s_lshl_b32 s64, s64, 10
    s_add_u32 s63, s63, s64
    s_add_u32 s63, s63, {QX}
    v_add_u32 v133, s63, v2
    s_waitcnt lgkmcnt(0)
    s_mul_i32 s{TAG}, s{TAG}, 0x9e3779b1
    s_add_u32 s{TAG}, s{TAG}, 0x7f4a7c15
    s_barrier""")
    def gemm_half(h):
        def reads(n):
            kc, e = n >> 3, n & 7
            a(f"ds_read_b128 v[{FB+4*e}:{FB+4*e+3}], v{vB+e} offset:{kc*16384}")
            a(f"ds_read_b64_tr_b16 v[{FA+4*e}:{FA+4*e+1}], v{vAg} offset:{kc*16384 + e*2048}")
            a(f"ds_read_b64_tr_b16 v[{FA+4*e+2}:{FA+4*e+3}], v{vAg} offset:{kc*16384 + e*2048 + 512}")
        n0 = 16*h
        for n in range(5): reads(n0 + n)
        for n in range(16):
            e = n & 7
            a(f"s_waitcnt lgkmcnt({3*min(4, 15-n)})")
            MF(a, ACC, FA + 4*e, FB + 4*e, None if (h == 0 and n == 0) else ACC)
            if n + 5 < 16: reads(n0 + n + 5)
    if OPT.get("qcnt"):
        lds_wait(a, vC, 48, 4, 8); ast(a, 1, False); gemm_half(0)
        lds_wait(a, vC, 60, 4, 8); gemm_half(1)
    else:
        a("s_barrier"); ast(a, 1, False); gemm_half(0)
        a("s_barrier"); gemm_half(1)
    for i in range(8): a(f"v_cvt_pk_bf16_f32 v{FA+i}, v{ACC+2*i}, v{ACC+2*i+1}")
    a(f"""ds_write_b128 v133, v[{FA}:{FA+3}]
    ds_write_b128 v133, v[{FA+4}:{FA+7}] offset:2048""")
    ast(a, 2, False)
    a("s_waitcnt lgkmcnt(0)\ns_barrier")
    a.label("a_common")
    a(f"""ds_read_b128 v[{QA}:{QA+3}], v{T+4}
    ds_read_b128 v[{QB}:{QB+3}], v{T+4} offset:1024""")
    lds_wait(a, vC, 0, 1, T)
    if DIAG:
        a("s_cmp_lt_u32 s3, 5\ns_cbranch_scc1 a_nost")
        ast(a, 1, False)
        a.label("a_nost")
    a(f"buffer_load_dwordx2 v[{K2}:{K2+1}], v{T+1}, s[{WSR}:{WSR+3}], s65 offen sc1")
    first_batch(3)
    for i in range(4): a(f"v_dot2_f32_bf16 v{NA+i}, v{QA+i}, v{QA+i}, 0")
    for i in range(4): a(f"v_dot2_f32_bf16 v{NB_+i}, v{QB+i}, v{QB+i}, 0")
    a(f"""v_mov_b32 v{SB+14}, 0
    v_mov_b32 v{SB+15}, 0
    v_add_f32 v{NA}, v{NA}, v{NA+1}
    v_add_f32 v{NA+2}, v{NA+2}, v{NA+3}
    v_add_f32 v{NB_}, v{NB_}, v{NB_+1}
    v_add_f32 v{NB_+2}, v{NB_+2}, v{NB_+3}
    v_add_f32 v{NA}, v{NA}, v{NA+2}
    v_add_f32 v{NB_}, v{NB_}, v{NB_+2}
    v_mov_b32 v{NA+1}, v{NA}
    v_mov_b32 v{NB_+1}, v{NB_}
    v_permlane32_swap_b32 v{NA}, v{NA+1}
    v_permlane32_swap_b32 v{NB_}, v{NB_+1}
    v_add_f32 v{NA}, v{NA}, v{NA+1}
    v_add_f32 v{NB_}, v{NB_}, v{NB_+1}""")
    a(f"""s_waitcnt vmcnt(3)
    v_max_f32 v{K2}, v{K2}, v{K2+1}
    v_max_f32_dpp v{K2}, v{K2}, v{K2} row_ror:8 row_mask:0xf bank_mask:0xf
    v_max_f32_dpp v{K2}, v{K2}, v{K2} row_ror:4 row_mask:0xf bank_mask:0xf
    v_max_f32_dpp v{K2}, v{K2}, v{K2} row_ror:2 row_mask:0xf bank_mask:0xf
    v_max_f32_dpp v{K2}, v{K2}, v{K2} row_ror:1 row_mask:0xf bank_mask:0xf
    v_mov_b32 v{K2+1}, v{K2}
    v_permlane32_swap_b32 v{K2}, v{K2+1}
    v_max_f32 v{K2}, v{K2}, v{K2+1}
    v_mov_b32 v{K2+1}, v{K2}
    v_permlane16_swap_b32 v{K2}, v{K2+1}
    v_max_f32 v{K2}, v{K2}, v{K2+1}
    v_mul_f32 v{NA}, v{NA}, v{K2}
    v_mul_f32 v{NB_}, v{NB_}, v{K2}
    s_mov_b32 s72, {f32(1600.0)}
    v_cmp_nle_f32 vcc, v{NA}, s72
    v_cmp_nle_f32 s[74:75], v{NB_}, s72
    v_sqrt_f32 v{NA}, v{NA}
    v_sqrt_f32 v{NB_}, v{NB_}
    s_or_b64 vcc, vcc, s[74:75]
    v_mov_b32 v{T+1}, 1
    s_waitcnt vmcnt(0)
    s_barrier""")
    a("s_cbranch_vccz a_fast")
    lds_wait(a, vC, 60, 4, T)
    a(f"""v_mov_b32 v{NA}, 0xff800000
    v_mov_b32 v{NB_}, 0xff800000
    v_mov_b32 v{T}, v{vKl}
    s_mov_b32 s74, 64""")
    a.label("a_maxloop")
    a(f"ds_read_b128 v[{KB}:{KB+3}], v{T}\nv_add_u32 v{T}, {ST}, v{T}\ns_waitcnt lgkmcnt(0)")
    MF(a, SA, KB, QA, None); MF(a, NMA, KB, QB, None)
    for i in range(8): a(f"v_max3_f32 v{NA}, v{NA}, v{SA+2*i}, v{SA+2*i+1}")
    for i in range(8): a(f"v_max3_f32 v{NB_}, v{NB_}, v{NMA+2*i}, v{NMA+2*i+1}")
    a(f"""s_sub_u32 s74, s74, 1
    s_cmp_lg_u32 s74, 0
    s_cbranch_scc1 a_maxloop
    v_mov_b32 v{NA+1}, v{NA}
    v_mov_b32 v{NB_+1}, v{NB_}
    v_permlane32_swap_b32 v{NA}, v{NA+1}
    v_permlane32_swap_b32 v{NB_}, v{NB_+1}
    v_max_f32 v{NA}, v{NA}, v{NA+1}
    v_max_f32 v{NB_}, v{NB_}, v{NB_+1}""")
    a.label("a_fast")
    ast(a, 3, False)
    a(f"""ds_read_b128 v[{KB}:{KB+3}], v{vK}
    ds_read_b128 v[{KB+4}:{KB+7}], v{vK} offset:{ST}
    ds_read_b128 v[{VB}:{VB+3}], v{vV}
    ds_read_b128 v[{VB+4}:{VB+7}], v{vV} offset:528""")
    for i in range(4): a(f"v_mov_b32 v{PA+i}, -1")
    a(f"buffer_store_dwordx4 v[{PA}:{PA+3}], v2, s[{WSR}:{WSR+3}], s62 offen sc1")
    a(f"v_sub_f32 v{NA}, 0, v{NA}\nv_sub_f32 v{NB_}, 0, v{NB_}")
    for i in range(8): a(f"v_pk_mov_b32 v[{NMA+2*i}:{NMA+2*i+1}], v[{NA}:{NA+1}], v[{NA}:{NA+1}] op_sel:[0,0]")
    for i in range(8): a(f"v_pk_mov_b32 v[{NMB+2*i}:{NMB+2*i+1}], v[{NB_}:{NB_+1}], v[{NB_}:{NB_+1}] op_sel:[0,0]")
    a("s_waitcnt lgkmcnt(0)")
    MF(a, SA, KB, QA, NMA)
    a("s_mov_b32 s73, 4\ns_setprio 2\ns_nop 9")
    a(".p2align 6")
    a.label("a_loop")
    for tt in range(8):
        cur = tt & 1; nxt = cur ^ 1
        Kc, Kn = KB + 4*cur, KB + 4*nxt
        Vc, Vn = VB + 8*cur, VB + 8*nxt
        kreg, koff = (vK, (tt + 2) * ST) if tt < 6 else (vKn, (tt - 6) * ST)
        vreg, voff = (vV, (tt + 1) * ST) if tt < 7 else (vVn, 0)
        for ph in range(2):
            S, P, Po, So, O = (SA, PA, PB, SB, OA) if ph == 0 else (SB, PB, PA, SA, OB)
            ex = lambda i: a(f"v_exp_f32 v{S+i}, v{S+i}")
            cv = lambda j: a(f"v_cvt_pk_bf16_f32 v{P+j}, v{S+2*j}, v{S+2*j+1}")
            ex(0)
            a(f"v_cvt_pk_bf16_f32 v{Po+7}, v{So+14}, v{So+15}")
            ex(1)
            if ph == 0:
                MF(a, SB, Kc, QB, NMB)
                a(f"ds_read_b128 v[{Kc}:{Kc+3}], v{kreg} offset:{koff}")
            else:
                MF(a, SA, Kn, QA, NMA)
                if tt == 7: a("s_add_u32 s71, s71, 1")
                if tt == 6: a("s_sub_u32 s73, s73, 1")
                if tt == 2: a("s_cmp_eq_u32 s73, 4")
            ex(2); ex(3); cv(0); ex(4); ex(5); cv(1)
            if ph == 0:
                MF(a, OB, Vn + 4, PB + 4, OB)
                a(f"ds_read_b128 v[{Vn}:{Vn+3}], v{vreg} offset:{voff}")
            else:
                MF(a, OA, Vc + 4, PA + 4, OA)
                a("s_waitcnt lgkmcnt(0)")
            ex(6); ex(7); cv(2); ex(8); ex(9); cv(3); ex(10); ex(11)
            MF(a, O, Vc, P, O)
            if ph == 0:
                a(f"ds_read_b128 v[{Vn+4}:{Vn+7}], v{vreg} offset:{voff+528}")
            elif tt == 7:
                a("s_and_b32 s71, s71, 7")
            cv(4); ex(12); ex(13); cv(5); ex(14); ex(15)
            if ph == 1 and tt == 7:
                a(f"""s_mul_i32 s70, s71, {8*ST}
                v_mov_b32 v{vK}, v{vKn}
                v_mov_b32 v{vV}, v{vVn}
                v_add_u32 v{vKn}, s70, v{vKl}
                v_add_u32 v{vVn}, s70, v{vVl}""")
            cv(6)
        if tt == 2:
            a("s_cbranch_scc1 a_chk1")
            a.label("a_ret1")
    a("s_cmp_eq_u32 s73, 1\ns_cbranch_scc1 a_it2\ns_cmp_eq_u32 s73, 0\ns_cbranch_scc1 a_done")
    a("s_cmp_eq_u32 s73, 3\ns_cbranch_scc0 a_it1")
    ast(a, 4, False)
    a("s_waitcnt vmcnt(0)")
    lds_add(a, vC, 44, T + 1)
    lds_wait(a, vC, 8, 4, T)
    a("s_branch a_loop")
    a.label("a_chk1")
    lds_wait(a, vC, 4, 4, T)
    a("s_branch a_ret1")
    a.label("a_it1")
    lds_add(a, vC, 12, T + 1)
    lds_wait(a, vC, 60, 4, T)
    a("s_setprio 1\ns_branch a_loop")
    a.label("a_it2")
    OF, WF, C0, C1, AX, YR, GR = 12, 44, 108, 124, 140, 148, 152
    vWr, vRd, vRow, vG, XR, vWo, vY, vWr4, vRd4 = 156, 157, 158, 159, 160, 164, 165, 166, 167
    a(f"""s_and_b32 s66, s3, 1
    s_lshr_b32 s67, s3, 1
    s_lshl_b32 s63, s66, 5
    s_add_u32 s63, s63, s56
    v_and_b32 v{vG}, 31, v1
    v_add_u32 v{vG}, s63, v{vG}
    v_lshlrev_b32 v{vRow}, 3, v3
    v_lshl_add_u32 v{vRow}, v{vG}, 10, v{vRow}
    v_lshlrev_b32 v{vG}, 2, v{vG}
    s_lshl_b32 s69, s67, 5
    s_lshl_b32 s63, s57, 1
    s_add_u32 s69, s69, s63
    buffer_load_dwordx2 v[{XR}:{XR+1}], v{vRow}, s[36:39], s69 offen
    buffer_load_dwordx2 v[{XR+2}:{XR+3}], v{vRow}, s[36:39], s69 offen offset:16
    v_lshl_add_u32 v{vRow}, v3, 3, v{vRow}
    s_cmp_lt_u32 s3, 3
    s_cselect_b32 s63, 0, {OX1 - 3*2304 - OX0}
    s_mul_i32 s64, s3, 2304
    s_add_u32 s63, s63, s64
    s_add_u32 s63, s63, {OX0}
    v_add_u32 v{vWr}, s63, v2
    v_lshl_add_u32 v{vWr4}, v1, 2, s63
    s_xor_b32 s65, s3, 4
    s_cmp_lt_u32 s65, 3
    s_cselect_b32 s63, 0, {OX1 - 3*2304 - OX0}
    s_mul_i32 s64, s65, 2304
    s_add_u32 s63, s63, s64
    s_add_u32 s63, s63, {OX0}
    v_add_u32 v{vRd}, s63, v2
    v_lshl_add_u32 v{vRd4}, v1, 2, s63
    s_lshl_b32 s68, s60, 1
    s_add_u32 s68, s68, s66
    s_lshl_b32 s68, s68, 5
    s_lshl_b32 s63, s67, 3
    s_add_u32 s68, s68, s63
    s_lshl_b32 s68, s68, 10
    s_add_u32 s68, s68, {WS_O}
    s_add_u32 s59, s68, 4096
    s_lshl_b32 s63, s67, 1
    s_and_b32 s63, s63, 4
    s_add_u32 s63, s63, s58
    s_and_b32 s63, s63, 7
    s_mul_i32 s63, s63, {8*ST}
    s_and_b32 s64, s67, 1
    s_lshl_b32 s64, s64, 14
    s_add_u32 s63, s63, s64
    v_bfe_u32 v{vY}, v1, 2, 2
    v_lshrrev_b32 v{vWo}, 1, v{vY}
    v_lshl_add_u32 v{vY}, v3, 2, v{vY}
    v_lshlrev_b32 v{vY}, 7, v{vY}
    v_bfe_u32 v{T}, v1, 4, 1
    v_lshl_add_u32 v{vY}, v{T}, 5, v{vY}
    v_and_b32 v{T}, 3, v1
    v_lshl_add_u32 v{vY}, v{T}, 3, v{vY}
    v_lshl_add_u32 v{vWo}, v{vWo}, 6, v{vY}
    v_add_u32 v{vWo}, s63, v{vWo}
    s_lshl_b32 s63, s67, 11
    s_lshl_b32 s64, s66, 6
    s_add_u32 s63, s63, s64
    s_add_u32 s63, s63, {YT}
    v_add_u32 v{vY}, s63, v{vY}
    s_lshl_b32 s63, s66, 2
    s_add_u32 s63, s63, s58
    s_add_u32 s63, s63, 2
    s_and_b32 s63, s63, 7
    s_mul_i32 s72, s63, {8*ST}
    s_mov_b32 s76, {WS_G}
    s_setprio 0
    s_cmp_lt_u32 s3, 4
    s_cbranch_scc1 a_loop""")
    if not OPT.get("abl"): lds_wait(a, vC, 20, 4, T, 2)
    a("s_branch a_loop")
    a.label("a_done")
    stamp(a, 5)
    a(f"v_cvt_pk_bf16_f32 v{PB+7}, v{SB+14}, v{SB+15}\ns_cmp_ge_u32 s3, 4")
    MF(a, OB, VB + 12, PB + 4, OB)
    a(f"""s_cbranch_scc1 a_red1
    v_lshlrev_b32 v10, 6, v1
    s_lshl_b32 s63, s61, 11
    v_add_u32 v10, s63, v10
    s_lshl_b32 s63, s60, 6
    s_mov_b32 exec_lo, 0
    v_and_b32 v10, 7, v1
    v_lshlrev_b32 v10, 11, v10
    v_add_u32 v10, s63, v10
    s_mov_b32 exec_lo, -1
    s_mov_b32 s73, {WS_FY}
    s_mov_b32 s75, {1 if OPT.get("abl") else 0x40000}
    v_lshrrev_b32 v7, 3, v1
    v_and_b32 v8, 7, v1
    v_lshlrev_b32 v8, 4, v8
    v_lshl_add_u32 v8, v7, 12, v8
    s_lshl_b32 s64, s3, 4
    s_add_u32 s64, s64, s57
    s_lshl_b32 s64, s64, 12
    s_lshl_b32 s63, s56, 1
    s_add_u32 s64, s64, s63
    s_add_u32 s64, s64, {WS_Y}
    s_add_u32 s65, s64, 32768
    s_lshl_b32 s63, s3, 11
    s_add_u32 s63, s63, {YT}
    v_add_u32 v7, s63, v2""")
    a.label("a_ypoll")
    a(f"""buffer_load_dwordx2 v[20:21], v10, s[{WSR}:{WSR+3}], s73 offen sc1
    s_sub_u32 s75, s75, 1
    s_waitcnt vmcnt(0)
    v_cmp_ne_u32 vcc, s{TAG}, v20
    s_cbranch_vccz a_yready
    s_sleep 4
    s_cmp_lg_u32 s75, 0
    s_cbranch_scc1 a_ypoll""")
    a.label("a_yready")
    a(f"""buffer_load_dwordx4 v[12:15], v8, s[{WSR}:{WSR+3}], s64 offen sc1
    buffer_load_dwordx4 v[16:19], v8, s[{WSR}:{WSR+3}], s65 offen sc1
    s_getreg_b32 s63, hwreg(HW_REG_XCC_ID)
    v_cmp_ne_u32 vcc, s63, v21
    s_cmp_eq_u32 vcc_hi, 0
    s_cselect_b32 s63, 1, 0
    v_mov_b32 v11, s63
    ds_write_b32 v{vC}, v11 offset:48
    s_waitcnt vmcnt(1)
    ds_write_b128 v7, v[12:15]
    s_waitcnt vmcnt(0)
    ds_write_b128 v7, v[16:19] offset:1024""")
    for (lbl, W, Kp) in (("", OB, OA), ("a_red1", OA, OB)):
        if lbl: a.label(lbl)
        a(f"""ds_write_b128 v{vWr}, v[{W}:{W+3}]
        ds_write_b128 v{vWr}, v[{W+4}:{W+7}] offset:1024
        ds_write_b32 v{vWr4}, v{W+8} offset:2048
        v_xor_b32 v9, 64, v{vWo}
        s_mov_b32 s75, 0x40000
        s_waitcnt lgkmcnt(0)
        s_barrier
        ds_read_b32 v10, v{vC} offset:48
        ds_read_b32 v{SA+8}, v{vRd4} offset:2048
        ds_read_b128 v[{SA}:{SA+3}], v{vRd}
        ds_read_b128 v[{SA+4}:{SA+7}], v{vRd} offset:1024
        ds_read_b64_tr_b16 v[{YR}:{YR+1}], v{vY}
        ds_read_b64_tr_b16 v[{YR+2}:{YR+3}], v{vY} offset:1024
        s_waitcnt lgkmcnt(4)
        buffer_load_dword v{GR}, v{vG}, s[{WSR}:{WSR+3}], s76 offen sc1
        v_readfirstlane_b32 s63, v10
        v_add_f32 v{Kp+8}, v{Kp+8}, v{SA+8}
        v_rcp_f32 v{T}, v{Kp+8}
        s_waitcnt lgkmcnt(2)""")
        for i in range(8): a(f"v_add_f32 v{Kp+i}, v{Kp+i}, v{SA+i}")
        for i in range(8): a(f"v_mul_f32 v{Kp+i}, v{Kp+i}, v{T}")
        for i in range(4): a(f"v_cvt_pk_bf16_f32 v{4+i}, v{Kp+2*i}, v{Kp+2*i+1}")
        if not lbl: a("s_branch a_p3")
    a.label("a_p3")
    a(f"""s_cmp_eq_u32 s63, {1 if OPT.get("oloc", 1) else 5}
    s_cbranch_scc1 a_olocal
    buffer_store_dwordx4 v[4:7], v2, s[{WSR}:{WSR+3}], s62 offen sc1
    s_branch a_ostored""")
    a.label("a_olocal")
    a(f"buffer_store_dwordx4 v[4:7], v2, s[{WSR}:{WSR+3}], s62 offen {('', 'nt', 'sc0')[OPT.get('oflag', 0)]}")
    a.label("a_ostored")
    ast(a, 2, True)
    for e in range(8):
        for mt in range(2):
            r = WF + 8*e + 4*mt
            if e in (3, 5, 7) and mt == 0: a("s_waitcnt lgkmcnt(6)")
            a(f"ds_read_b64_tr_b16 v[{r}:{r+1}], v{(vWo, 9)[mt]} offset:{e*2048}")
            a(f"ds_read_b64_tr_b16 v[{r+2}:{r+3}], v{(vWo, 9)[mt]} offset:{e*2048+1024}")
    if OPT.get("oack"): a("s_waitcnt vmcnt(0)")
    ast(a, 3, True)
    for i in range(8):
        a(f"buffer_load_dwordx4 v[{OF+4*i}:{OF+4*i+3}], v2, s[{WSR}:{WSR+3}], s{68 if i < 4 else 59} offen offset:{1024*(i&3)} sc1")
    a(f"s_waitcnt vmcnt({8 if OPT.get('oack') else 9})\nv_sub_f32 v{GR+1}, 1.0, v{GR}")
    for aa in range(2):
        x0, x1, y0, y1, t = XR + 2*aa, XR + 2*aa + 1, YR + 2*aa, YR + 2*aa + 1, AX + 4*aa
        a(f"""v_lshlrev_b32 v{t}, 16, v{x0}
        v_and_b32 v{t+1}, 0xffff0000, v{x0}
        v_lshlrev_b32 v{t+2}, 16, v{x1}
        v_and_b32 v{t+3}, 0xffff0000, v{x1}
        v_lshlrev_b32 v154, 16, v{y0}
        v_and_b32 v155, 0xffff0000, v{y0}
        v_lshlrev_b32 v156, 16, v{y1}
        v_and_b32 v157, 0xffff0000, v{y1}""")
        for e in range(4): a(f"v_mul_f32 v{t+e}, v{t+e}, v{154+e}")
        for e in range(4): a(f"v_mul_f32 v{t+e}, v{t+e}, v{GR}")
    a(f"""s_lshl_b32 s63, s67, 11
    s_add_u32 s63, s63, s72
    v_add_u32 v8, s63, v2
    s_lshl_b32 s63, s67, 13
    s_add_u32 s63, s63, s72
    v_add_u32 v11, s63, v2
    s_waitcnt lgkmcnt(0)""")
    for e in range(8):
        r = OF + 4*e
        a(f"s_waitcnt vmcnt({7-e})")
        a.label(f"a_ochk{e}")
        a(f"""v_max3_u32 v10, v{r}, v{r+1}, v{r+2}
        v_max_u32 v10, v10, v{r+3}
        v_cmp_eq_u32 vcc, -1, v10
        s_cbranch_vccnz a_oretry{e}""")
        a.label(f"a_ogo{e}")
        MF(a, C0, WF + 8*e, r, None if e == 0 else C0)
        MF(a, C1, WF + 8*e + 4, r, None if e == 0 else C1)
    stamp(a, 6)
    for ow in range(4):
        a(f"ds_write_b128 v8, v[{C0+8*ow}:{C0+8*ow+3}] offset:{8192*ow}")
        a(f"ds_write_b128 v8, v[{C0+8*ow+4}:{C0+8*ow+7}] offset:{8192*ow+1024}")
    a("s_waitcnt lgkmcnt(0)\ns_barrier")
    for sr in range(4):
        a(f"ds_read_b128 v[{OF+8*sr}:{OF+8*sr+3}], v11 offset:{2048*sr}")
        a(f"ds_read_b128 v[{OF+8*sr+4}:{OF+8*sr+7}], v11 offset:{2048*sr+1024}")
    a("s_waitcnt lgkmcnt(4)")
    for i in range(8): a(f"v_add_f32 v{OF+i}, v{OF+i}, v{OF+8+i}")
    a("s_waitcnt lgkmcnt(0)")
    for i in range(8): a(f"v_add_f32 v{OF+16+i}, v{OF+16+i}, v{OF+24+i}")
    for i in range(8): a(f"v_add_f32 v{OF+i}, v{OF+i}, v{OF+16+i}")
    for i in range(8): a(f"v_fmac_f32 v{AX+i}, v{OF+i}, v{GR+1}")
    for i in range(4): a(f"v_cvt_pk_bf16_f32 v{OF+i}, v{AX+2*i}, v{AX+2*i+1}")
    a(f"""v_permlane32_swap_b32 v{OF}, v{OF+2}
    v_permlane32_swap_b32 v{OF+1}, v{OF+3}
    buffer_store_dwordx4 v[{OF}:{OF+3}], v{vRow}, s[40:43], s69 offen {('', 'nt', 'sc1', 'sc0 sc1')[OPT.get('outflag', 0)]}""")
    fin(a)
    for e in range(8):
        a.label(f"a_oretry{e}")
        a("s_waitcnt vmcnt(0)")
        for i in range(e, 8):
            a(f"buffer_load_dwordx4 v[{OF+4*i}:{OF+4*i+3}], v2, s[{WSR}:{WSR+3}], s{68 if i < 4 else 59} offen offset:{1024*(i&3)} sc1")
        a(f"""s_sub_u32 s75, s75, 1
        s_waitcnt vmcnt({7-e})
        s_cmp_lg_u32 s75, 0
        s_cbranch_scc1 a_ochk{e}
        s_branch a_ogo{e}""")
    a.label("k_end")
    a("s_endpgm")
    return a.finish()

def build():
    hdr = open("cdna_kernels/" + NAME + ".s.ref").read().split("; Override launch")[0]
    out = hdr + f"; @launch grid=(256,1,1) block=(768,1,1) lds={LEND}\n"
    out += f'.amdgcn_target "amdgcn-amd-amdhsa--gfx950"\n.text\n.globl {KN}\n.p2align 8\n.type {KN},@function\n' + kernel() + "code_end:\n"
    out += f""".section .rodata,"a"
.p2align 6
.amdhsa_kernel {KN}
  .amdhsa_next_free_vgpr 168
  .amdhsa_next_free_sgpr {100 if DIAG else 80}
  .amdhsa_accum_offset 168
  .amdhsa_group_segment_fixed_size 0
  .amdhsa_kernarg_size 120
  .amdhsa_user_sgpr_count 2
  .amdhsa_user_sgpr_kernarg_segment_ptr 1
  .amdhsa_system_sgpr_workgroup_id_x 1
.end_amdhsa_kernel
"""
    return out

if __name__ == "__main__":
    for x in list(sys.argv):
        if "=" in x:
            kk, vv = x.split("="); OPT[kk] = int(vv); sys.argv.remove(x)
    if "-l" in sys.argv:
        DIAG = True; LIGHT = True; sys.argv.remove("-l")
    if "-d" in sys.argv:
        DIAG = True; sys.argv.remove("-d")
    dst = sys.argv[1] if len(sys.argv) > 1 else "cdna_kernels/" + NAME + ".s"
    open(dst, "w").write(build())
    print("wrote", dst)
```

```python
import sys, math, struct
from asmlib import Asm

NAME = "gated_mix__ssm_conv_h3__grouped_kv_mqa__prompt"
KN = NAME + "_kernel"
WS_KV, WS_KMAX, WS_G = 0x000000, 0x024000, 0x025000
WS_FKV, WS_FX, WS_FY = 0x028000, 0x02c000, 0x030000
WS_XREV, WS_O, WS_Y = 0x100000, 0x300000, 0x500000
WS_SIZE = 0x700000
ST = 2080
KVBYTES = 64 * ST
CSCALE = 0.25 * math.log2(math.e)
def f32(x): return "0x%08x" % struct.unpack("<I", struct.pack("<f", x))[0]

XT, WT, WKV = 0, 65536, 131072
QX = 149824
YT = KVBYTES
XE0, XESZ, XOOFF = KVBYTES, 8320, 4160
CNT = 149760
LEND = 163840
OX0, OX1 = 141312, 149824

DIAG = False
LIGHT = False
OPT = {"oack": 0, "oflag": 1, "cpf": 0, "dsplit": 1, "obulk": 1, "early": 1, "wqpf": 0}
WS_DIAG = 0x1000000
def ast(a, idx, tail):
    if bool(OPT.get("tail2")) == tail: stamp(a, idx)
def hst(a, idx, tail):
    if bool(OPT.get("tailst")) == tail: stamp(a, idx)
def stamp(a, idx, real=False):
    if not DIAG: return
    if LIGHT and idx < 8: return
    if OPT.get("dbg"): real = True
    a(f"{'s_memrealtime' if real else 's_memtime'} s[{80+2*idx}:{81+2*idx}]\ns_waitcnt lgkmcnt(0)")
def fin(a):
    if OPT.get("dbg"):
        _n[0] += 1; l = f"fin{_n[0]}"
        a(f"""s_waitcnt vmcnt(0)
        s_memrealtime s[94:95]
        s_load_dwordx2 s[68:69], s[0:1], 104
        s_waitcnt lgkmcnt(0)
        s_cmp_lg_u32 s2, 77
        s_cbranch_scc1 {l}
        s_cmp_eq_u32 s3, {OPT["dbg"]}
        s_cselect_b32 s67, 0, 32
        s_cbranch_scc1 {l}_go
        s_cmp_lg_u32 s3, 8
        s_cbranch_scc1 {l}""")
        a.label(l + "_go")
        a("s_mov_b32 s70, 256\ns_mov_b32 s71, 0x20000\ns_mov_b64 exec, 1\nv_mov_b32 v0, 0")
        for i in range(1, 8):
            a(f"s_sub_u32 s66, s{80+2*i}, s80\nv_mov_b32 v{i}, s66\nbuffer_store_dword v{i}, v0, s[68:71], s67 offen offset:{4*(i-1)}")
        a.label(l)
        a("s_endpgm")
        return
    if DIAG:
        a("s_waitcnt vmcnt(0)")
        stamp(a, 7); stamp(a, 9, True)
        a(f"""s_add_u32 s68, s30, {WS_DIAG}
        s_addc_u32 s69, s31, 0
        s_mov_b32 s70, 0x40000
        s_mov_b32 s71, 0x20000
        s_lshl_b32 s67, s2, 4
        s_add_u32 s67, s67, s3
        s_lshl_b32 s67, s67, 6
        s_mov_b64 exec, 1
        v_mov_b32 v0, 0""")
        for i in range(10):
            a(f"v_mov_b32 v1, s{80+2*i}\nbuffer_store_dword v1, v0, s[68:71], s67 offen offset:{4*i}")
    a("s_endpgm")

def srd(a, d, lo, size):
    a(f"s_mov_b32 s{d}, s{lo}\ns_mov_b32 s{d+1}, s{lo+1}\ns_mov_b32 s{d+2}, {size}\ns_mov_b32 s{d+3}, 0x20000")
def srd_off(a, d, lo, off, size):
    a(f"s_add_u32 s{d}, s{lo}, {off}\ns_addc_u32 s{d+1}, s{lo+1}, 0\ns_mov_b32 s{d+2}, {size}\ns_mov_b32 s{d+3}, 0x20000")
def dma(a, voff, srdn, soff, m0, flags=""):
    a(f"s_mov_b32 m0, {m0}")
    a(f"buffer_load_dwordx4 v{voff}, s[{srdn}:{srdn+3}], {soff} offen {flags} lds")
PX, PK, PV, PSH, PH, PD, PWQ, PWK, PWV, PWO, PGW, POUT, PWS = 4, 6, 8, 10, 12, 14, 18, 20, 22, 24, 26, 28, 30
WSR = 32
TAG = 77
_n = [0]
def lds_wait(a, vaddr, off, val, vt, sleep=1):
    sleep = sleep * OPT.get("slmul", 1)
    _n[0] += 1; l = f"lw{_n[0]}"
    a("s_mov_b32 s75, 0x100000")
    a.label(l)
    a(f"""ds_read_b32 v{vt}, v{vaddr} offset:{off}
    s_sub_u32 s75, s75, 1
    s_waitcnt lgkmcnt(0)
    v_readfirstlane_b32 s74, v{vt}
    s_cmp_ge_u32 s74, {val}
    s_cbranch_scc1 {l}_ok
    s_sleep {sleep}
    s_cmp_lg_u32 s75, 0
    s_cbranch_scc1 {l}""")
    a.label(l + "_ok")
def lds_add(a, vaddr, off, vone):
    a(f"s_mov_b64 exec, 1\nds_add_u32 v{vaddr}, v{vone} offset:{off}\ns_mov_b64 exec, -1")
def publish(a, vaddr, off, vone, vt, sflag, nwaves, xcc=False):
    _n[0] += 1; l = f"pb{_n[0]}"
    a(f"""s_mov_b64 exec, 1
    ds_add_rtn_u32 v{vt}, v{vaddr}, v{vone} offset:{off}
    s_waitcnt lgkmcnt(0)
    v_readfirstlane_b32 s74, v{vt}
    s_cmp_lg_u32 s74, {nwaves-1}
    s_cbranch_scc1 {l}
    v_mov_b32 v{vt}, s{TAG}
    v_mov_b32 v{vt+2}, 0""")
    if xcc:
        a(f"""s_getreg_b32 s74, hwreg(HW_REG_XCC_ID)
        v_mov_b32 v{vt+1}, s74
        buffer_store_dwordx2 v[{vt}:{vt+1}], v{vt+2}, s[{WSR}:{WSR+3}], s{sflag} offen sc1""")
    else:
        a(f"buffer_store_dword v{vt}, v{vt+2}, s[{WSR}:{WSR+3}], s{sflag} offen sc1")
    a.label(l)
    a("s_mov_b64 exec, -1")
def poll32(a, sbase, vt, word, rowgrp=False):
    _n[0] += 1; l = f"pl{_n[0]}"
    a(f"s_cmp_lg_u32 s66, 0\ns_cbranch_scc1 {l}_lds")
    a(f"v_lshlrev_b32 v{vt}, 6, v1")
    if rowgrp:
        a(f"""s_lshl_b32 s74, s61, 11
        v_add_u32 v{vt}, s74, v{vt}
        s_lshl_b32 s74, s60, 6
        s_mov_b32 exec_lo, 0
        v_and_b32 v{vt}, 7, v1
        v_lshlrev_b32 v{vt}, 11, v{vt}
        v_add_u32 v{vt}, s74, v{vt}
        s_mov_b32 exec_lo, -1""")
    a(f"s_mov_b32 exec_hi, {0xff if rowgrp else 0}\ns_mov_b32 s75, 0x40000")
    a.label(l)
    a(f"""buffer_load_dword v{vt+1}, v{vt}, s[{WSR}:{WSR+3}], s{sbase} offen sc1
    s_sub_u32 s75, s75, 1
    s_waitcnt vmcnt(0)
    v_cmp_ne_u32 vcc, s{TAG}, v{vt+1}
    s_cbranch_vccz {l}_ok
    s_mov_b64 exec, vcc
    s_sleep 4
    s_cmp_lg_u32 s75, 0
    s_cbranch_scc1 {l}""")
    a.label(l + "_ok")
    a(f"s_mov_b64 exec, -1\nds_write_b32 v3, v14 offset:{word}\ns_branch {l}_done")
    a.label(l + "_lds")
    lds_wait(a, 3, word, 1, vt, 2)
    a.label(l + "_done")

def w_src(a, v, t0, t1):
    a(f"""v_lshrrev_b32 v{t0}, 3, v1
    v_lshlrev_b32 v{t1}, 1, v{t0}
    v_and_b32 v{t1}, 4, v{t1}
    v_and_b32 v{v}, 7, v1
    v_xor_b32 v{v}, v{v}, v{t1}
    v_lshlrev_b32 v{v}, 4, v{v}
    v_lshl_add_u32 v{v}, v{t0}, 10, v{v}
    s_lshl_b32 s63, s57, 1
    v_add_u32 v{v}, s63, v{v}""")

MF = lambda a, d, A, B, C: a(f"v_mfma_f32_32x32x16_bf16 v[{d}:{d+15}], v[{A}:{A+3}], v[{B}:{B+3}], " + ("0" if C is None else f"v[{C}:{C+15}]"))

def kv_unit_step(a, step):
    a(f"""s_cmp_ge_u32 s59, 130
    s_cselect_b32 s63, 130, 0
    s_sub_u32 s59, s59, s63
    s_lshl_b32 s63, s59, 10
    s_add_u32 s59, s59, {step}""")

def kernel():
    a = Asm()
    a.label(KN)
    a("s_cmp_ge_u32 s2, 256\ns_cbranch_scc1 k_end")
    if OPT.get("scramble"):
        a("s_lshr_b32 s60, s2, 5\ns_and_b32 s2, s2, 31\ns_lshl_b32 s2, s2, 3\ns_or_b32 s2, s2, s60")
    if OPT.get("delay0"):
        a(f"s_mov_b32 s60, {OPT['delay0']}")
        a.label("dly0")
        a("s_nop 15\ns_nop 15\ns_nop 15\ns_nop 15\ns_sub_u32 s60, s60, 1\ns_cmp_lg_u32 s60, 0\ns_cbranch_scc1 dly0")
    stamp(a, 8, True); stamp(a, 0)
    a("""s_load_dwordx2 s[30:31], s[0:1], 112
    s_load_dwordx16 s[4:19], s[0:1], 0
    s_load_dwordx8 s[20:27], s[0:1], 64
    s_load_dwordx2 s[28:29], s[0:1], 96
    v_lshrrev_b32 v2, 6, v0
    v_and_b32 v1, 63, v0
    v_readfirstlane_b32 s3, v2
    s_and_b32 s60, s2, 7
    s_lshl_b32 s60, s60, 2
    s_lshr_b32 s61, s2, 3
    s_and_b32 s62, s61, 3
    s_add_u32 s60, s60, s62
    s_lshr_b32 s61, s61, 2
    s_lshl_b32 s56, s60, 6
    s_lshl_b32 s57, s61, 6
    s_add_u32 s59, s61, s62
    s_add_u32 s59, s59, s2
    s_and_b32 s59, s59, 3
    s_lshr_b32 s76, s61, 1
    s_lshl_b32 s58, s62, 1
    v_lshlrev_b32 v2, 4, v1
    s_cmp_lt_u32 s3, 8
    s_cbranch_scc1 k_att""")
    a("s_sub_u32 s66, s3, 8\nv_lshrrev_b32 v9, 4, v1\nv_and_b32 v10, 15, v1")
    for q in range(4):
        a(f"""v_add_u32 v11, {4*q}, v9
        v_xor_b32 v12, v11, v10
        v_lshlrev_b32 v12, 4, v12
        v_lshl_add_u32 v{4+q}, v11, 10, v12""")
    a("""s_add_u32 s63, s59, s66
    s_and_b32 s63, s63, 3
    s_lshl_b32 s64, s76, 4
    s_add_u32 s64, s64, s56
    s_lshl_b32 s64, s64, 10
    s_lshl_b32 s65, s63, 8
    s_add_u32 s64, s64, s65
    s_lshl_b32 s65, s63, 12
    s_lshl_b32 s67, s66, 14
    s_lshl_b32 s68, s76, 12
    s_add_u32 s67, s67, s68
    s_lshl_b32 s68, s66, 12
    s_and_b32 s69, s61, 1
    s_cmp_eq_u32 s69, 0
    s_waitcnt lgkmcnt(0)""")
    a(f"""s_cselect_b32 s40, s{PWK}, s{PWV}
    s_cselect_b32 s41, s{PWK+1}, s{PWV+1}
    s_mov_b32 s42, 0x4000
    s_mov_b32 s43, 0x20000""")
    srd(a, 36, PX, 0x200000)
    for q in range(4):
        a(f"s_add_u32 s63, s67, {XT + q*1024}")
        dma(a, 4 + q, 36, "s64", "s63")
        a(f"s_add_u32 s63, s68, {WKV + q*1024}")
        dma(a, 2, 40, "s65", "s63")
        if q < 3: a("s_add_u32 s65, s65, 1024")
    srd(a, 44, PWQ, 0x80000)
    srd(a, WSR, PWS, WS_SIZE)
    a(f"s_add_u32 s78, s30, {WS_FY}\ns_addc_u32 s79, s31, 0\ns_load_dword s{TAG}, s[78:79], 0")
    w_src(a, 8, 9, 10)
    a(f"""s_lshl_b32 s63, s66, 2
    v_lshrrev_b32 v9, 4, v1
    v_add_u32 v11, s63, v9
    v_and_b32 v10, 15, v1
    v_xor_b32 v12, v11, v10
    v_lshlrev_b32 v12, 4, v12
    v_lshl_add_u32 v13, v11, 10, v12
    v_mov_b32 v3, {CNT}""")
    def stage1(slot):
        a(f"""s_add_u32 s63, s59, {slot}
        s_and_b32 s63, s63, 3
        s_lshl_b32 s67, s63, 17
        s_lshl_b32 s64, s66, 15
        s_add_u32 s67, s67, s64
        s_lshl_b32 s65, s63, 8
        s_lshl_b32 s64, s56, 10
        s_add_u32 s65, s65, s64
        s_lshl_b32 s69, s66, 10""")
        for q in range(4):
            a(f"s_add_u32 s63, s68, {WT + slot*16384 + q*1024}")
            dma(a, 8, 44, "s67", "s63")
            if q < 3:
                a(f"""s_add_u32 s67, s67, 8192
                s_add_u32 s63, s76, {q+1}
                s_and_b32 s63, s63, 3
                s_lshl_b32 s64, s63, 14
                s_add_u32 s64, s64, s65
                s_lshl_b32 s63, s63, 12
                s_add_u32 s63, s63, s69
                s_add_u32 s63, s63, {XT + slot*16384}""")
                dma(a, 13, 36, "s64", "s63")
    if OPT.get("early"): stage1(0)
    a("""v_lshl_add_u32 v14, v1, 2, v3
    v_mov_b32 v15, 0
    s_mov_b64 exec, 0xffff
    ds_write_b32 v14, v15
    s_mov_b64 exec, -1
    v_mov_b32 v14, 1""")
    H = 160 - 16
    vA, vB0, vB1 = 34, 35, 33
    AF, BF, B2F, ACC0, ACC1 = 48, 80, 112, 128, 144
    a(f"""s_lshr_b32 s16, s66, 1
    s_and_b32 s17, s66, 1
    s_lshl_b32 s62, s60, 1
    s_add_u32 s62, s62, s57
    s_add_u32 s62, s62, s16
    v_lshrrev_b32 v5, 3, v1
    v_and_b32 v6, 7, v1
    v_lshlrev_b32 v6, 4, v6
    v_lshl_add_u32 v6, v5, 10, v6
    s_lshl_b32 s63, s57, 1
    v_add_u32 v6, s63, v6
    s_lshl_b32 s63, s66, 4
    s_add_u32 s63, s63, s57
    v_and_b32 v7, 15, v1
    v_add_u32 v7, s63, v7
    v_lshlrev_b32 v18, 3, v7
    s_lshl_b32 s64, s56, 10
    s_sub_u32 s64, s64, 3072
    v_lshrrev_b32 v17, 4, v1
    v_lshlrev_b32 v19, 14, v17
    v_lshl_add_u32 v19, v7, 1, v19
    v_add_u32 v19, s64, v19
    s_lshl_b32 s63, s62, 1
    v_mov_b32 v20, s63
    v_bfe_u32 v16, v1, 2, 2
    v_lshlrev_b32 v16, 7, v16
    v_lshl_add_u32 v16, v17, 12, v16
    v_lshlrev_b32 v24, 5, v17
    v_and_b32 v17, 3, v1
    v_lshl_add_u32 v16, v17, 3, v16
    s_lshl_b32 s63, s66, 5
    s_add_u32 s63, s63, {XE0}
    v_add_u32 v16, s63, v16
    v_lshrrev_b32 v26, 2, v1
    v_mul_u32_u24 v32, {XOOFF}, v26
    v_mul_u32_u24 v26, 144, v26
    v_lshlrev_b32 v17, 4, v17
    v_sub_u32 v26, v17, v26
    s_lshl_b32 s63, s16, 6
    s_add_u32 s63, s63, {LEND - 144 - 3*2304}
    v_add_u32 v26, s63, v26
    v_and_b32 v21, 0x1f7, v7
    v_lshlrev_b32 v21, 12, v21
    v_sub_u32 v21, v21, v24
    v_and_b32 v9, 8, v1
    v_lshl_add_u32 v21, v9, 1, v21
    v_add_u32 v21, 96, v21
    s_mul_i32 s71, s16, {XESZ}
    s_add_u32 s71, s71, {XE0}
    v_add_u32 v27, s71, v2
    v_add_u32 v32, v32, v17
    s_add_u32 s63, s71, 4096
    v_add_u32 v32, s63, v32
    v_and_b32 v4, 31, v1
    v_lshrrev_b32 v5, 5, v1
    v_or_b32 v9, 1, v4
    v_lshlrev_b32 v17, 3, v5
    v_sub_u32 v9, v17, v9
    s_cmp_eq_u32 s17, 0
    s_cselect_b32 s63, 1055, 31
    s_sub_u32 s63, s63, 256
    v_add_u32 v9, s63, v9
    v_lshlrev_b32 v9, 1, v9
    v_and_b32 v17, 1, v4
    v_xor_b32 v17, 1, v17
    v_mul_u32_u24 v17, {XOOFF}, v17
    v_add3_u32 v{vA}, v9, v17, s71
    v_mul_u32_u24 v9, 144, v4
    v_lshlrev_b32 v17, 4, v5
    v_sub_u32 v9, v17, v9
    s_lshl_b32 s63, s16, 6
    s_add_u32 s63, s63, {LEND + 144*23 + 1152}
    v_add_u32 v{vB0}, s63, v9
    v_mov_b32 v28, 0
    v_mov_b32 v29, 0
    v_mov_b32 v30, 0
    v_mov_b32 v31, 0
    s_lshl_b32 s63, s17, 11
    v_lshlrev_b32 v22, 6, v4
    v_lshl_add_u32 v22, v5, 3, v22
    v_add_u32 v22, s63, v22
    s_add_u32 s63, s71, {4088 - 48}
    v_sub_u32 v22, s63, v22
    v_and_b32 v23, 27, v4
    v_lshlrev_b32 v23, 6, v23
    v_lshl_add_u32 v23, v5, 4, v23
    v_and_b32 v9, 4, v4
    v_lshl_add_u32 v23, v9, 3, v23
    s_lshl_b32 s63, s17, 11
    v_add_u32 v23, s63, v23""")
    for i in range(16): a(f"v_mov_b32 v{ACC0+i}, 0")
    a("v_mov_b32 v93, 0xffff")
    a(f"s_waitcnt vmcnt({7 if OPT.get('early') else 0}) lgkmcnt(0)\ns_barrier")
    a(f"s_mul_i32 s{TAG}, s{TAG}, 0x9e3779b1\ns_add_u32 s{TAG}, s{TAG}, 0x7f4a7c15")
    if not OPT.get('early'): stage1(0)
    H1, H2 = OPT.get("h1", 0), OPT.get("h2", 0)
    if H1: lds_wait(a, 3, 56, 1, 16)
    stage1(1)
    if H2: lds_wait(a, 3, 56, 2, 16)
    stage1(2); stage1(3)
    if OPT.get("qcnt"):
        a("s_waitcnt vmcnt(14)")
        lds_add(a, 3, 48, 14)
        a("s_waitcnt vmcnt(0)")
        lds_add(a, 3, 60, 14)
    else:
        a("s_waitcnt vmcnt(14)\ns_barrier\ns_waitcnt vmcnt(0)\ns_barrier")
    a(f"""s_setprio 3
    s_lshr_b32 s67, s66, 1
    s_and_b32 s68, s66, 1
    s_lshl_b32 s69, s60, 1
    s_add_u32 s69, s69, s57
    s_add_u32 s69, s69, s67
    s_lshl_b32 s70, s69, 12""")
    srd(a, 36, PK, 0x200000)
    srd(a, 40, PV, 0x200000)
    srd(a, 44, PSH, 4096)
    srd_off(a, 48, PH, "s70", 4096)
    srd(a, 52, PD, 1024)
    def first_batch(n):
        for j in range(n):
            kv_unit_step(a, 4)
            dma(a, 2, WSR, "s63", "s63", "sc1")
    a(f"""s_lshl_b32 s63, s67, 2
    s_add_u32 s63, s63, s58
    s_and_b32 s63, s63, 7
    s_mul_i32 s59, s63, 65
    s_lshr_b32 s59, s59, 2
    s_add_u32 s59, s59, s68
    s_add_u32 s59, s59, 12""")
    def bulk(n, lbl):
        a(f"s_mov_b32 s72, {n}")
        a.label(lbl)
        kv_unit_step(a, 2)
        dma(a, 2, WSR, "s63", "s63", "sc1")
        a(f"s_sub_u32 s72, s72, 1\ns_cmp_lg_u32 s72, 0\ns_cbranch_scc1 {lbl}")
    a(f"""s_lshl_b32 s64, s66, 4
    s_add_u32 s64, s64, s56
    s_lshl_b32 s64, s64, 10
    s_add_u32 s65, s64, 8192
    s_lshl_b32 s73, s66, 12
    s_add_u32 s73, s73, {XE0}
    s_mov_b32 s72, {WS_FKV}
    v_lshlrev_b32 v36, 6, v1
    s_cmp_lg_u32 s66, 0
    s_cbranch_scc1 h_nopoll
    s_barrier
    buffer_load_dwordx4 v[40:43], v36, s[{WSR}:{WSR+3}], s72 offen sc1
    s_mov_b32 s75, 0x40000""")
    a.label("h_pollkv")
    a(f"""s_sub_u32 s75, s75, 1
    s_waitcnt vmcnt(0)
    v_xor_b32 v40, s{TAG}, v40
    v_xor_b32 v41, s{TAG}, v41
    v_xor_b32 v42, s{TAG}, v42
    v_xor_b32 v43, s{TAG}, v43
    v_or3_b32 v40, v40, v41, v42
    v_or_b32 v40, v40, v43
    v_cmp_ne_u32 vcc, 0, v40
    s_cbranch_vccz h_kvready
    s_mov_b64 exec, vcc
    buffer_load_dwordx4 v[40:43], v36, s[{WSR}:{WSR+3}], s72 offen sc1
    s_cmp_lg_u32 s75, 0
    s_cbranch_scc1 h_pollkv""")
    a.label("h_kvready")
    a("s_waitcnt vmcnt(0)\ns_mov_b64 exec, -1\nds_write_b32 v3, v14\ns_branch h_b1")
    a.label("h_nopoll")
    a("s_barrier")
    a.label("h_b1")
    a("s_barrier")
    hst(a, 1, False)
    bulk(5, "h_bulk1")
    a("s_waitcnt vmcnt(0)")
    lds_add(a, 3, 4, 14)
    if OPT.get("abl") == 1:
        bulk(15, "h_bulk3"); a("s_waitcnt vmcnt(0)"); lds_add(a, 3, 8, 14); fin(a)
    dma(a, 6, 36, "s64", "s73")
    a("s_add_u32 s63, s73, 1024"); dma(a, 6, 36, "s65", "s63")
    a("s_add_u32 s63, s73, 2048"); dma(a, 6, 40, "s64", "s63")
    a("s_add_u32 s63, s73, 3072"); dma(a, 6, 40, "s65", "s63")
    a(f"""buffer_load_dwordx2 v[10:11], v18, s[44:47], 0 offen
    buffer_load_ushort v12, v19, s[36:39], 0 offen
    buffer_load_ushort v13, v19, s[36:39], 0 offen offset:1024
    buffer_load_ushort v15, v19, s[36:39], 0 offen offset:2048""")
    bulk(13, "h_bulk2")
    a("s_waitcnt vmcnt(4)")
    lds_add(a, 3, 8, 14)
    if OPT.get("abl") == 2:
        a("s_waitcnt vmcnt(0)"); lds_add(a, 3, 8, 14); fin(a)
    lds_add(a, 3, 40, 14)
    lds_wait(a, 3, 40, 4, 9)
    hst(a, 2, False)
    KR, VR, VF = 96, 104, 72
    for i in range(4): a(f"ds_read_b64_tr_b16 v[{KR+2*i}:{KR+2*i+1}], v16 offset:{i*512}")
    for i in range(4): a(f"ds_read_b64_tr_b16 v[{VR+2*i}:{VR+2*i+1}], v16 offset:{2048 + i*512}")
    a(f"""v_alignbit_b32 v88, v11, v11, 16
    v_alignbit_b32 v89, v10, v10, 16
    v_and_b32 v90, 0xffff0000, v11
    v_bfi_b32 v91, v93, v11, v10
    v_and_b32 v92, 0xffff, v10
    v_lshlrev_b32 v{KR-2}, 16, v12
    v_lshl_or_b32 v{KR-1}, v15, 16, v13
    s_waitcnt lgkmcnt(0)""")
    KS = 52
    D2 = lambda d, x, w, c: a(f"v_dot2_f32_bf16 v{d}, v{x}, v{w}, {c}")
    for i in range(8):
        D2(KS + 2*i, KR + i - 2, 90, "0"); D2(KS + 2*i + 1, KR + i - 1, 88, "0")
    for i in range(8):
        D2(KS + 2*i, KR + i - 1, 91, f"v{KS+2*i}"); D2(KS + 2*i + 1, KR + i, 89, f"v{KS+2*i+1}")
    for i in range(8):
        D2(KS + 2*i, KR + i, 92, f"v{KS+2*i}")
        a(f"v_lshlrev_b32 v{VF+2*i}, 16, v{VR+i}\nv_and_b32 v{VF+1+2*i}, 0xffff0000, v{VR+i}")
    for i in range(8):
        a(f"v_pk_mul_f32 v[{VF+2*i}:{VF+2*i+1}], v[{VF+2*i}:{VF+2*i+1}], v[{KS+2*i}:{KS+2*i+1}]")
    for q in range(8):
        a(f"v_cvt_pk_bf16_f32 v{44+q}, v{VF+15-2*q}, v{VF+14-2*q}")
    for i in range(4):
        a(f"v_mov_b32 v{52+i}, v{44+i}")
    for i in range(4):
        a(f"v_mov_b32_dpp v{44+i}, v{48+i} row_ror:8 row_mask:0xf bank_mask:0xc")
        a(f"v_mov_b32_dpp v{48+i}, v{52+i} row_ror:8 row_mask:0xf bank_mask:0x3")
    a(f"""s_lshl_b32 s64, s56, 1
    s_sub_u32 s64, {WS_XREV + 4064 - 96}, s64
    s_add_u32 s63, s64, 32768
    buffer_store_dwordx4 v[44:47], v21, s[{WSR}:{WSR+3}], s64 offen sc1
    buffer_store_dwordx4 v[48:51], v21, s[{WSR}:{WSR+3}], s63 offen sc1
    s_lshl_b32 s72, s61, 11
    s_lshl_b32 s65, s60, 6
    s_add_u32 s65, s65, s72
    s_add_u32 s64, s72, {WS_FX}
    s_add_u32 s73, s65, {WS_FX}""")
    bulk(9, "h_bulk3b")
    for i in range(4):
        a(f"buffer_load_dwordx4 v[{H+4*i}:{H+4*i+3}], v2, s[48:51], 0 offen offset:{1024*i}")
    a("buffer_load_ushort v25, v20, s[52:55], 0 offen\ns_waitcnt vmcnt(14)")
    publish(a, 3, 16, 14, 16, 73, 4)
    a("s_waitcnt vmcnt(5)")
    lds_add(a, 3, 60, 14)
    a("s_waitcnt vmcnt(0)")
    for i in range(4): a(f"ds_write_b128 v26, v[{H+4*i}:{H+4*i+3}] offset:{2304*(3-i)}")
    hst(a, 3, False)
    a(f"s_add_u32 s63, s70, {WS_XREV}")
    srd_off(a, 40, PWS, "s63", 4096)
    a(f"s_add_u32 s63, s70, {WS_Y}")
    srd_off(a, 44, PWS, "s63", 4096)
    poll32(a, 64, 16, 52)
    hst(a, 4, False)
    if OPT.get("abl") == 3: fin(a)
    X = 52
    for i in range(4):
        a(f"buffer_load_dwordx4 v[{X+6*i}:{X+6*i+3}], v2, s[40:43], 0 offen offset:{1024*i} sc1")
        a(f"buffer_load_dword v{X+6*i+4}, v2, s[40:43], 0 offen offset:{1024*i+16} sc1")
    srd(a, 36, PWO, 0x80000)
    a("s_lshr_b32 s63, s2, 3\ns_lshl_b32 s63, s63, 14\ns_lshl_b32 s74, s66, 12\ns_add_u32 s63, s63, s74")
    for i in range(4):
        a(f"buffer_load_dwordx4 v[160:163], v2, s[36:39], s63 offen offset:{1024*i}")
    a("s_mov_b64 exec, 0xff\nds_write_b128 v32, v[28:31]\ns_mov_b64 exec, -1")
    for i in range(4):
        x = X + 6*i
        a(f"s_waitcnt vmcnt({10-2*i})")
        a(f"ds_write_b128 v27, v[{x}:{x+3}] offset:{1024*i}")
        for j in range(4): a(f"v_alignbit_b32 v{36+4*(i&1)+j}, v{x+j+1}, v{x+j}, 16")
        a(f"ds_write_b128 v27, v[{36+4*(i&1)}:{39+4*(i&1)}] offset:{XOOFF+1024*i}")
    a("s_waitcnt lgkmcnt(0)")
    a_ref = [a]
    def creads(t, dual):
        a = a_ref[0]
        b = t % 4; b2 = t % 2
        if OPT.get("noreads"): return
        if t == 0:
            a(f"v_add_u32 v{vA}, 512, v{vA}\nv_subrev_u32 v{vB0}, 1152, v{vB0}")
            if dual: a(f"v_subrev_u32 v{vB1}, 1152, v{vB1}")
        for u in range(2):
            o = (2*t + u) * 8
            r = AF + 8*b + 4*u
            a(f"ds_read2_b32 v[{r}:{r+1}], v{vA} offset0:{o} offset1:{o+1}")
            a(f"ds_read2_b32 v[{r+2}:{r+3}], v{vA} offset0:{o+2} offset1:{o+3}")
        for u in range(2):
            r = BF + 8*b + 4*u
            a(f"ds_read_b128 v[{r}:{r+3}], v{vB0} offset:{144*(7-t) + 32*u}")
        if dual:
            for u in range(2):
                r = B2F + 8*b2 + 4*u
                a(f"ds_read_b128 v[{r}:{r+3}], v{vB1} offset:{144*(7-t) + 32*u}")
    if OPT.get("abl") == 4: fin(a)
    a("s_cmp_eq_u32 s68, 0\ns_cselect_b32 s72, 2, 6")
    a(f"s_setprio {OPT.get('cprio', 3)}")
    PF = OPT.get("cpf", 2)
    for t in range(PF): creads(t, False)
    a.label("h_conv1")
    for t in range(8):
        b = t % 4
        if PF == 0: creads(t, False)
        a(f"s_waitcnt lgkmcnt({6 if PF == 2 else 0})")
        if OPT.get("cspace"):
            sub = Asm(); save = a_ref[0]; a_ref[0] = sub
            creads((t + PF) % 8, False); a_ref[0] = save
            L = sub.lines; h = len(L) - 3
            MF(a, ACC0, AF + 8*b, BF + 8*b, ACC0)
            for x in L[:h]: a(x)
            MF(a, ACC0, AF + 8*b + 4, BF + 8*b + 4, ACC0)
            for x in L[h:]: a(x)
            continue
        for u in range(0 if OPT.get("nomfma") else 2): MF(a, ACC0, AF + 8*b + 4*u, BF + 8*b + 4*u, ACC0)
        if PF: creads((t + PF) % 8, False)
    a("s_sub_u32 s72, s72, 1\ns_cmp_lg_u32 s72, 0\ns_cbranch_scc1 h_conv1")
    a("s_cmp_lg_u32 s68, 0\ns_cbranch_scc1 h_convb")
    if PF: a(f"v_subrev_u32 v{vA}, 512, v{vA}\nv_add_u32 v{vB0}, 1152, v{vB0}")
    a(f"""s_waitcnt lgkmcnt(0)
    v_subrev_u32 v{vB1}, {144*32}, v{vB0}
    s_mov_b32 s72, 2""")
    for i in range(16): a(f"v_mov_b32 v{ACC1+i}, 0")
    if PF == 2: creads(0, True)
    a.label("h_conv2")
    for t in range(8):
        b = t % 4; b2 = t % 2
        if OPT.get("dsplit"):
            sub = Asm(); save = a_ref[0]; a_ref[0] = sub
            creads(t, True); a_ref[0] = save
            L = sub.lines; pre = L[:len(L)-8]; R = L[len(L)-8:]
            for x in pre: a(x)
            for u in range(2):
                for x in (R[2*u], R[2*u+1], R[4+u], R[6+u]): a(x)
                a("s_waitcnt lgkmcnt(0)")
                MF(a, ACC0, AF + 8*b + 4*u, BF + 8*b + 4*u, ACC0)
                MF(a, ACC1, AF + 8*b + 4*u, B2F + 8*b2 + 4*u, ACC1)
            continue
        if PF < 2: creads(t, True)
        a("s_waitcnt lgkmcnt(0)")
        if PF == 2: creads((t + 1) % 8, True)
        for u in range(0 if OPT.get("nomfma") else 2):
            MF(a, ACC0, AF + 8*b + 4*u, BF + 8*b + 4*u, ACC0)
            MF(a, ACC1, AF + 8*b + 4*u, B2F + 8*b2 + 4*u, ACC1)
    a("s_sub_u32 s72, s72, 1\ns_cmp_lg_u32 s72, 0\ns_cbranch_scc1 h_conv2")
    a(f"s_lshl_b32 s63, s67, 2\nv_add_u32 v9, s63, v3\ns_waitcnt lgkmcnt(0)")
    lds_wait(a, 9, 32, 1, 16)
    for i in range(4): a(f"ds_write_b128 v27, v[{ACC1+4*i}:{ACC1+4*i+3}] offset:{XOOFF + 1024*i}")
    a("s_waitcnt lgkmcnt(0)")
    lds_add(a, 9, 24, 14)
    a("s_branch h_cepi")
    a.label("h_convb")
    a(f"s_lshl_b32 s63, s67, 2\nv_add_u32 v9, s63, v3\ns_waitcnt lgkmcnt(0)")
    lds_add(a, 9, 32, 14)
    lds_wait(a, 9, 24, 1, 16)
    for i in range(4): a(f"ds_read_b128 v[{ACC1+4*i}:{ACC1+4*i+3}], v27 offset:{XOOFF + 1024*i}")
    a("s_waitcnt lgkmcnt(0)")
    for i in range(8): a(f"v_pk_add_f32 v[{ACC0+2*i}:{ACC0+2*i+1}], v[{ACC0+2*i}:{ACC0+2*i+1}], v[{ACC1+2*i}:{ACC1+2*i+1}]")
    a.label("h_cepi")
    if OPT.get("abl") == 5: fin(a)
    a("s_setprio 3")
    hst(a, 1, True)
    hst(a, 5, False)
    for aa in range(4):
        a(f"ds_read_b64 v[{48+2*aa}:{49+2*aa}], v22 offset:{48 - 16*aa}")
    a("v_lshlrev_b32 v24, 16, v25\ns_waitcnt lgkmcnt(0)")
    for aa in range(4):
        d0, d1 = 48 + 2*aa, 49 + 2*aa
        a(f"""v_and_b32 v36, 0xffff0000, v{d1}
        v_lshlrev_b32 v37, 16, v{d1}
        v_and_b32 v38, 0xffff0000, v{d0}
        v_lshlrev_b32 v39, 16, v{d0}
        v_pk_fma_f32 v[{ACC0+4*aa}:{ACC0+4*aa+1}], v[36:37], v[24:25], v[{ACC0+4*aa}:{ACC0+4*aa+1}] op_sel_hi:[1,0,1]
        v_pk_fma_f32 v[{ACC0+4*aa+2}:{ACC0+4*aa+3}], v[38:39], v[24:25], v[{ACC0+4*aa+2}:{ACC0+4*aa+3}] op_sel_hi:[1,0,1]
        v_cvt_pk_bf16_f32 v{40+2*aa}, v{ACC0+4*aa}, v{ACC0+4*aa+1}
        v_cvt_pk_bf16_f32 v{41+2*aa}, v{ACC0+4*aa+2}, v{ACC0+4*aa+3}""")
    for p in range(2):
        r = 40 + 4*p
        a(f"v_permlane32_swap_b32 v{r}, v{r+2}\nv_permlane32_swap_b32 v{r+1}, v{r+3}")
    for i in range(4): a(f"v_mov_b32 v{56+i}, v{40+i}")
    for i in range(4):
        a(f"v_mov_b32_dpp v{40+i}, v{44+i} row_shr:4 row_mask:0xf bank_mask:0xa")
        a(f"v_mov_b32_dpp v{44+i}, v{56+i} row_shl:4 row_mask:0xf bank_mask:0x5")
    for p in range(2):
        a(f"buffer_store_dwordx4 v[{40+4*p}:{43+4*p}], v23, s[44:47], 0 offen offset:{256*p} sc1")
    a(f"s_add_u32 s73, s65, {WS_FY}")
    lds_wait(a, 3, 44, 8, 16)
    a("s_waitcnt vmcnt(0)")
    publish(a, 3, 20, 14, 16, 73, 4, True)
    hst(a, 2, True)
    lds_wait(a, 3, 12, 8, 16, 4)
    hst(a, 3, True)
    a(f"""s_mul_i32 s72, s58, {8*ST}
    s_add_u32 s63, s58, 4
    s_and_b32 s63, s63, 7
    s_mul_i32 s73, s63, {8*ST}
    s_lshl_b32 s63, s66, 12
    s_add_u32 s72, s72, s63
    s_add_u32 s73, s73, s63
    s_lshl_b32 s67, s66, 15""")
    for sl in range(4):
        for q in range(4):
            a(f"s_add_u32 s63, s{72 + (sl>>1)}, {(sl&1)*16384 + q*1024}")
            dma(a, 8, 36, "s67", "s63")
            a(f"s_add_u32 s67, s67, {8192 if q < 3 else 131072 - 3*8192}")
    hst(a, 6, False)
    a("s_waitcnt vmcnt(0)")
    fin(a)

    a.label("k_att")
    QA, QB, NMA, NMB, SA, SB, PA, PB, OA, OB, KB, VB = 4, 8, 12, 28, 44, 60, 76, 84, 92, 108, 124, 132
    vK, vV, vKn, vVn, vKl, vVl, vC, T = 148, 149, 150, 151, 2, 152, 153, 154
    K2, NA, NB_ = T + 2, T + 6, T + 10
    def early_setup():
        srd(a, 36, PX, 0x200000)
        srd(a, 40, POUT, 0x200000)
        a(f"""s_and_b32 s64, s3, 4
        s_add_u32 s71, s58, s64
        s_and_b32 s71, s71, 7
        s_mul_i32 s59, s71, 65
        s_lshr_b32 s59, s59, 2
        s_and_b32 s64, s3, 3
        s_add_u32 s59, s59, s64
        s_mov_b32 s65, {WS_KMAX}
        v_and_b32 v{T+3}, 31, v1
        v_lshrrev_b32 v3, 5, v1
        v_and_b32 v{T+4}, 15, v1
        v_lshlrev_b32 v{T+4}, 4, v{T+4}
        v_lshl_add_u32 v{T+4}, v3, 8, v{T+4}
        v_add_u32 v{T+4}, 1024, v{T+4}
        v_mov_b32 v{vVl}, 0x100000
        v_and_b32 v{T+5}, 27, v{T+3}
        v_cmp_eq_u32 vcc, 16, v{T+5}
        v_mov_b32 v{T+5}, 1536
        v_cndmask_b32 v{vVl}, v{vVl}, v{T+5}, vcc
        v_cmp_gt_u32 vcc, 16, v{T+3}
        s_mul_i32 s70, s71, {8*ST}
        v_cndmask_b32 v{vVl}, v{vVl}, v{T+4}, vcc
        v_add_u32 v{vK}, s70, v{vKl}
        v_add_u32 v{vV}, s70, v{vVl}
        s_add_u32 s71, s71, 1
        s_and_b32 s71, s71, 7
        s_mul_i32 s70, s71, {8*ST}
        v_add_u32 v{vKn}, s70, v{vKl}
        v_add_u32 v{vVn}, s70, v{vVl}
        s_lshl_b32 s63, s64, 11
        s_add_u32 s63, s63, {QX}
        v_add_u32 v{T+4}, s63, v2
        v_lshlrev_b32 v{T+1}, 3, v1""")
        for r in list(range(PB, PB + 8, 2)) + list(range(OA, OA + 32, 2)) + list(range(VB + 8, VB + 16, 2)):
            a(f"v_pk_mov_b32 v[{r}:{r+1}], 0, 0")
    a(f"""s_lshr_b32 s63, s3, 2
    s_lshl_b32 s62, s60, 1
    s_add_u32 s62, s62, s63
    s_lshl_b32 s62, s62, 5
    s_lshl_b32 s63, s61, 2
    s_add_u32 s62, s62, s63
    s_and_b32 s63, s3, 3
    s_add_u32 s62, s62, s63
    s_lshl_b32 s62, s62, 10
    s_add_u32 s62, s62, {WS_O}
    v_mov_b32 v{vC}, {CNT}
    s_waitcnt lgkmcnt(0)""")
    srd(a, WSR, PWS, WS_SIZE)
    a(f"""s_add_u32 s78, s30, {WS_FY}
    s_addc_u32 s79, s31, 0
    s_load_dword s{TAG}, s[78:79], 0
    s_mov_b32 s16, s59""")
    early_setup()
    a(f"""s_cmp_lt_u32 s3, 4
    s_cbranch_scc1 a_gemm
    s_cmp_lg_u32 s3, 4
    s_cbranch_scc1 a_idle""")
    GW = 64
    a(f"""s_and_b32 s68, s61, 1
    v_lshrrev_b32 v8, 4, v1
    v_lshlrev_b32 v8, 4, v8
    s_lshr_b32 s64, s76, 1
    s_lshl_b32 s65, s60, 1
    s_add_u32 s64, s64, s65
    s_mul_i32 s64, s64, {ST}
    s_and_b32 s65, s76, 1
    v_and_b32 v17, 15, v1
    v_lshrrev_b32 v18, 4, v1
    v_xor_b32 v19, v17, v18
    v_lshlrev_b32 v19, 4, v19
    v_lshl_add_u32 v19, v17, 8, v19
    s_lshl_b32 s63, s76, 12
    v_add_u32 v20, s63, v19
    v_xor_b32 v21, 64, v20
    v_xor_b32 v22, 128, v20
    v_xor_b32 v23, 192, v20
    v_bfe_u32 v19, v1, 2, 2
    v_lshl_add_u32 v19, v18, 3, v19
    v_lshlrev_b32 v19, 5, v19
    v_and_b32 v24, 3, v1
    v_lshl_add_u32 v24, v24, 3, v19
    v_add_u32 v24, {WKV}, v24
    v_lshlrev_b32 v17, 4, v17
    v_lshrrev_b32 v18, 5, v1
    v_lshl_add_u32 v17, v18, 3, v17
    v_bfe_u32 v18, v1, 4, 1
    v_mov_b32 v9, 0
    s_lshr_b32 s69, s2, 2
    s_lshl_b32 s69, s69, {OPT.get("fsh", 6)}
    s_and_b32 s63, s2, 3
    s_lshl_b32 s63, s63, 2
    s_add_u32 s69, s69, s63
    s_add_u32 s69, s69, {WS_FKV}
    s_cmp_lg_u32 s68, 0
    s_cbranch_scc1 a_vjob""")
    JD, JG, JX, JW = 28, 4, 32, 48
    def job(ktype):
        def reads(n):
            kc, e = n >> 2, n & 3
            a(f"ds_read_b128 v[{JX+4*e}:{JX+4*e+3}], v{20+e} offset:{kc*16384}")
            a(f"ds_read_b64_tr_b16 v[{JW+4*e}:{JW+4*e+1}], v24 offset:{kc*4096 + e*1024}")
            a(f"ds_read_b64_tr_b16 v[{JW+4*e+2}:{JW+4*e+3}], v24 offset:{kc*4096 + e*1024 + 128}")
        for n in range(4): reads(n)
        for n in range(16):
            e = n & 3
            a(f"s_waitcnt lgkmcnt({3*min(3, 15-n)})")
            x, w = f"v[{JX+4*e}:{JX+4*e+3}]", f"v[{JW+4*e}:{JW+4*e+3}]"
            c = "0" if n == 0 else f"v[{JD}:{JD+3}]"
            if ktype:
                a(f"v_mfma_f32_16x16x32_bf16 v[{JD}:{JD+3}], {w}, {x}, {c}")
            else:
                a(f"v_mfma_f32_16x16x32_bf16 v[{JD}:{JD+3}], {x}, {w}, {c}")
            if n + 4 < 16: reads(n + 4)
    a(f"""s_lshl_b32 s65, s65, 8
    s_add_u32 s64, s64, s65
    v_lshl_add_u32 v17, v18, 9, v17
    s_lshl_b32 s65, s60, 2
    s_add_u32 s65, s65, s76
    s_lshl_b32 s65, s65, 2
    s_add_u32 s65, s65, {WS_KMAX}
    s_waitcnt lgkmcnt(0)
    s_mul_i32 s{TAG}, s{TAG}, 0x9e3779b1
    s_add_u32 s{TAG}, s{TAG}, 0x7f4a7c15
    s_barrier""")
    job(True)
    a(f"s_mov_b32 s63, {f32(CSCALE)}")
    for e in range(4): a(f"v_mul_f32 v{JD+e}, s63, v{JD+e}")
    a(f"""v_cvt_pk_bf16_f32 v36, v{JD}, v{JD+1}
    v_cvt_pk_bf16_f32 v37, v{JD+2}, v{JD+3}
    buffer_store_dwordx2 v[36:37], v17, s[{WSR}:{WSR+3}], s64 offen sc1
    v_mul_f32 v38, v{JD}, v{JD}
    v_fmac_f32 v38, v{JD+1}, v{JD+1}
    v_fmac_f32 v38, v{JD+2}, v{JD+2}
    v_fmac_f32 v38, v{JD+3}, v{JD+3}
    v_mov_b32 v39, v38
    v_permlane32_swap_b32 v38, v39
    v_add_f32 v38, v38, v39
    v_mov_b32 v39, v38
    v_permlane16_swap_b32 v38, v39
    v_add_f32 v38, v38, v39
    v_max_f32_dpp v38, v38, v38 row_ror:8 row_mask:0xf bank_mask:0xf
    v_max_f32_dpp v38, v38, v38 row_ror:4 row_mask:0xf bank_mask:0xf
    v_max_f32_dpp v38, v38, v38 row_ror:2 row_mask:0xf bank_mask:0xf
    v_max_f32_dpp v38, v38, v38 row_ror:1 row_mask:0xf bank_mask:0xf
    s_mov_b64 exec, 1
    buffer_store_dword v38, v9, s[{WSR}:{WSR+3}], s65 offen sc1
    s_branch a_jobdone""")
    a.label("a_vjob")
    a(f"""s_mul_i32 s65, s65, 528
    s_add_u32 s64, s64, s65
    v_mov_b32 v12, 0x3f803f80
    v_mov_b32 v13, 0x3f803f80
    v_mov_b32 v14, 0x3f803f80
    v_mov_b32 v15, 0x3f803f80
    s_mov_b64 exec, 1
    buffer_store_dwordx4 v[12:15], v9, s[{WSR}:{WSR+3}], s64 offen offset:1536 sc1
    s_mov_b64 exec, -1
    v_lshl_add_u32 v17, v18, 8, v17
    s_waitcnt lgkmcnt(0)
    s_mul_i32 s{TAG}, s{TAG}, 0x9e3779b1
    s_add_u32 s{TAG}, s{TAG}, 0x7f4a7c15
    s_barrier""")
    job(False)
    a(f"""v_cvt_pk_bf16_f32 v36, v{JD}, v{JD+1}
    v_cvt_pk_bf16_f32 v37, v{JD+2}, v{JD+3}
    buffer_store_dwordx2 v[36:37], v17, s[{WSR}:{WSR+3}], s64 offen offset:1024 sc1
    s_mov_b64 exec, 1""")
    a.label("a_jobdone")
    ast(a, 1, False)
    a(f"""v_mov_b32 v11, 1
    ds_write_b32 v{vC}, v11 offset:56
    v_mov_b32 v10, s{TAG}
    v_mov_b32 v11, 2
    s_waitcnt vmcnt(0)
    buffer_store_dword v10, v9, s[{WSR}:{WSR+3}], s69 offen sc1
    ds_write_b32 v{vC}, v11 offset:56
    s_mov_b64 exec, -1
    s_branch a_fetch""")
    a.label("a_idle")
    a("s_getpc_b64 s[48:49]")
    a.label("a_pc")
    a(f"""s_sub_u32 s48, s48, a_pc-{KN}
    s_subb_u32 s49, s49, 0
    s_mov_b32 s50, code_end-{KN}
    s_mov_b32 s51, 0x20000
    s_lshr_b32 s63, s2, 3
    s_lshl_b32 s63, s63, 10
    s_cmp_lg_u32 s3, 5
    s_cbranch_scc1 a_wqpf
    buffer_load_dwordx4 v[12:15], v2, s[48:51], s63 offen
    s_and_b32 s68, s61, 1
    s_cmp_lg_u32 s68, 0
    s_cbranch_scc1 a_bj
    v_lshrrev_b32 v8, 4, v1
    v_lshlrev_b32 v8, 4, v8""")
    srd(a, 52, PGW, 1024)
    for p in range(4):
        a(f"s_add_u32 s63, s16, {p}\ns_and_b32 s63, s63, 3\ns_lshl_b32 s63, s63, 8")
        for e in range(4):
            r = GW + 16*p + 4*e
            a(f"buffer_load_dwordx4 v[{r}:{r+3}], v8, s[52:55], s63 offen offset:{64*e}")
    a(f"""v_and_b32 v17, 15, v1
    v_lshrrev_b32 v18, 4, v1
    v_xor_b32 v19, v17, v18
    v_lshlrev_b32 v19, 4, v19
    v_lshl_add_u32 v19, v17, 8, v19
    s_lshl_b32 s63, s76, 12
    v_add_u32 v20, s63, v19
    v_xor_b32 v21, 64, v20
    v_xor_b32 v22, 128, v20
    v_xor_b32 v23, 192, v20
    s_lshl_b32 s65, s60, 2
    s_add_u32 s65, s65, s76
    s_lshl_b32 s67, s65, 6
    s_add_u32 s67, s67, {WS_G}
    v_lshlrev_b32 v25, 2, v1
    s_waitcnt lgkmcnt(0)
    s_mul_i32 s{TAG}, s{TAG}, 0x9e3779b1
    s_add_u32 s{TAG}, s{TAG}, 0x7f4a7c15
    s_barrier""")
    for n in range(8): a(f"ds_read_b128 v[{32+4*n}:{35+4*n}], v{20+(n&3)} offset:{(n>>2)*16384}")
    a("s_waitcnt vmcnt(0)")
    for n in range(16):
        a(f"s_waitcnt lgkmcnt({min(7, 15-n)})")
        r = 32 + 4*(n & 7)
        a(f"v_mfma_f32_16x16x32_bf16 v[{JG}:{JG+3}], v[{GW+4*n}:{GW+4*n+3}], v[{r}:{r+3}], " + ("0" if n == 0 else f"v[{JG}:{JG+3}]"))
        if n + 8 < 16: a(f"ds_read_b128 v[{r}:{r+3}], v{20+(n&3)} offset:{((n+8)>>2)*16384}")
    a(f"""s_mov_b32 s63, {f32(-math.log2(math.e))}
    v_mul_f32 v10, s63, v{JG}
    v_exp_f32 v10, v10
    v_add_f32 v10, 1.0, v10
    v_rcp_f32 v10, v10
    s_mov_b64 exec, 0xffff
    buffer_store_dword v10, v25, s[{WSR}:{WSR+3}], s67 offen sc1
    s_mov_b64 exec, -1""")
    for r in list(range(PB, PB + 8, 2)) + list(range(OA, OA + 32, 2)):
        a(f"v_pk_mov_b32 v[{r}:{r+1}], 0, 0")
    a("s_branch a_fetch")
    a.label("a_wqpf")
    srd(a, 48, PWQ, 0x80000)
    a("""s_lshl_b32 s63, s63, 4
    s_and_b32 s64, s3, 1
    s_lshl_b32 s64, s64, 13
    s_add_u32 s63, s63, s64
    s_add_u32 s64, s63, 4096""")
    for i in range(8 if OPT.get("wqpf", 1) else 0):
        a(f"buffer_load_dwordx4 v[{8+4*i}:{11+4*i}], v2, s[48:51], s{63 + (i>>2)} offen offset:{1024*(i&3)}")
    a.label("a_bj")
    a(f"""s_waitcnt lgkmcnt(0)
    s_mul_i32 s{TAG}, s{TAG}, 0x9e3779b1
    s_add_u32 s{TAG}, s{TAG}, 0x7f4a7c15
    s_barrier""")
    a.label("a_fetch")
    ast(a, 2, False)
    a(f"s_mov_b32 s65, {WS_KMAX}\ns_barrier\ns_waitcnt vmcnt(0)\ns_barrier\ns_barrier\ns_branch a_common")
    a.label("a_gemm")
    vB, vAg, ACC, FA, FB = 124, 132, 68, 4, 36
    a(f"""s_lshr_b32 s63, s3, 1
    s_lshl_b32 s63, s63, 13
    v_and_b32 v8, 31, v1
    v_lshrrev_b32 v9, 5, v1
    v_and_b32 v10, 15, v1
    v_xor_b32 v10, v10, v9
    v_lshlrev_b32 v10, 4, v10
    v_lshl_add_u32 v10, v8, 8, v10
    v_add_u32 v{vB}, s63, v10""")
    for e in range(1, 8): a(f"v_xor_b32 v{vB+e}, {e*32}, v{vB}")
    a(f"""s_and_b32 s63, s3, 1
    v_bfe_u32 v8, v1, 2, 2
    v_lshrrev_b32 v10, 1, v8
    v_xor_b32 v10, s63, v10
    v_lshlrev_b32 v10, 6, v10
    v_lshl_add_u32 v8, v9, 3, v8
    v_lshl_add_u32 v10, v8, 7, v10
    v_bfe_u32 v8, v1, 4, 1
    v_lshl_add_u32 v10, v8, 5, v10
    v_and_b32 v8, 3, v1
    v_lshl_add_u32 v10, v8, 3, v10
    v_add_u32 v{vAg}, {WT}, v10
    s_lshl_b32 s63, s63, 12
    s_lshr_b32 s64, s3, 1
    s_lshl_b32 s64, s64, 10
    s_add_u32 s63, s63, s64
    s_add_u32 s63, s63, {QX}
    v_add_u32 v133, s63, v2
    s_waitcnt lgkmcnt(0)
    s_mul_i32 s{TAG}, s{TAG}, 0x9e3779b1
    s_add_u32 s{TAG}, s{TAG}, 0x7f4a7c15
    s_barrier""")
    def gemm_half(h):
        def reads(n):
            kc, e = n >> 3, n & 7
            a(f"ds_read_b128 v[{FB+4*e}:{FB+4*e+3}], v{vB+e} offset:{kc*16384}")
            a(f"ds_read_b64_tr_b16 v[{FA+4*e}:{FA+4*e+1}], v{vAg} offset:{kc*16384 + e*2048}")
            a(f"ds_read_b64_tr_b16 v[{FA+4*e+2}:{FA+4*e+3}], v{vAg} offset:{kc*16384 + e*2048 + 512}")
        n0 = 16*h
        for n in range(5): reads(n0 + n)
        for n in range(16):
            e = n & 7
            a(f"s_waitcnt lgkmcnt({3*min(4, 15-n)})")
            MF(a, ACC, FA + 4*e, FB + 4*e, None if (h == 0 and n == 0) else ACC)
            if n + 5 < 16: reads(n0 + n + 5)
    if OPT.get("qcnt"):
        lds_wait(a, vC, 48, 4, 8); ast(a, 1, False); gemm_half(0)
        lds_wait(a, vC, 60, 4, 8); gemm_half(1)
    else:
        a("s_barrier"); ast(a, 1, False); gemm_half(0)
        a("s_barrier"); gemm_half(1)
    for i in range(8): a(f"v_cvt_pk_bf16_f32 v{FA+i}, v{ACC+2*i}, v{ACC+2*i+1}")
    a(f"""ds_write_b128 v133, v[{FA}:{FA+3}]
    ds_write_b128 v133, v[{FA+4}:{FA+7}] offset:2048""")
    ast(a, 2, False)
    a("s_waitcnt lgkmcnt(0)\ns_barrier")
    a.label("a_common")
    a(f"""ds_read_b128 v[{QA}:{QA+3}], v{T+4}
    ds_read_b128 v[{QB}:{QB+3}], v{T+4} offset:1024""")
    lds_wait(a, vC, 0, 1, T)
    if DIAG:
        a("s_cmp_lt_u32 s3, 5\ns_cbranch_scc1 a_nost")
        ast(a, 1, False)
        a.label("a_nost")
    a(f"buffer_load_dwordx2 v[{K2}:{K2+1}], v{T+1}, s[{WSR}:{WSR+3}], s65 offen sc1")
    first_batch(3)
    for i in range(4): a(f"v_dot2_f32_bf16 v{NA+i}, v{QA+i}, v{QA+i}, 0")
    for i in range(4): a(f"v_dot2_f32_bf16 v{NB_+i}, v{QB+i}, v{QB+i}, 0")
    a(f"""v_mov_b32 v{SB+14}, 0
    v_mov_b32 v{SB+15}, 0
    v_add_f32 v{NA}, v{NA}, v{NA+1}
    v_add_f32 v{NA+2}, v{NA+2}, v{NA+3}
    v_add_f32 v{NB_}, v{NB_}, v{NB_+1}
    v_add_f32 v{NB_+2}, v{NB_+2}, v{NB_+3}
    v_add_f32 v{NA}, v{NA}, v{NA+2}
    v_add_f32 v{NB_}, v{NB_}, v{NB_+2}
    v_mov_b32 v{NA+1}, v{NA}
    v_mov_b32 v{NB_+1}, v{NB_}
    v_permlane32_swap_b32 v{NA}, v{NA+1}
    v_permlane32_swap_b32 v{NB_}, v{NB_+1}
    v_add_f32 v{NA}, v{NA}, v{NA+1}
    v_add_f32 v{NB_}, v{NB_}, v{NB_+1}""")
    a(f"""s_waitcnt vmcnt(3)
    v_max_f32 v{K2}, v{K2}, v{K2+1}
    v_max_f32_dpp v{K2}, v{K2}, v{K2} row_ror:8 row_mask:0xf bank_mask:0xf
    v_max_f32_dpp v{K2}, v{K2}, v{K2} row_ror:4 row_mask:0xf bank_mask:0xf
    v_max_f32_dpp v{K2}, v{K2}, v{K2} row_ror:2 row_mask:0xf bank_mask:0xf
    v_max_f32_dpp v{K2}, v{K2}, v{K2} row_ror:1 row_mask:0xf bank_mask:0xf
    v_mov_b32 v{K2+1}, v{K2}
    v_permlane32_swap_b32 v{K2}, v{K2+1}
    v_max_f32 v{K2}, v{K2}, v{K2+1}
    v_mov_b32 v{K2+1}, v{K2}
    v_permlane16_swap_b32 v{K2}, v{K2+1}
    v_max_f32 v{K2}, v{K2}, v{K2+1}
    v_mul_f32 v{NA}, v{NA}, v{K2}
    v_mul_f32 v{NB_}, v{NB_}, v{K2}
    s_mov_b32 s72, {f32(1600.0)}
    v_cmp_nle_f32 vcc, v{NA}, s72
    v_cmp_nle_f32 s[74:75], v{NB_}, s72
    v_sqrt_f32 v{NA}, v{NA}
    v_sqrt_f32 v{NB_}, v{NB_}
    s_or_b64 vcc, vcc, s[74:75]
    v_mov_b32 v{T+1}, 1
    s_waitcnt vmcnt(0)
    s_barrier""")
    a("s_cbranch_vccz a_fast")
    lds_wait(a, vC, 60, 4, T)
    a(f"""v_mov_b32 v{NA}, 0xff800000
    v_mov_b32 v{NB_}, 0xff800000
    v_mov_b32 v{T}, v{vKl}
    s_mov_b32 s74, 64""")
    a.label("a_maxloop")
    a(f"ds_read_b128 v[{KB}:{KB+3}], v{T}\nv_add_u32 v{T}, {ST}, v{T}\ns_waitcnt lgkmcnt(0)")
    MF(a, SA, KB, QA, None); MF(a, NMA, KB, QB, None)
    for i in range(8): a(f"v_max3_f32 v{NA}, v{NA}, v{SA+2*i}, v{SA+2*i+1}")
    for i in range(8): a(f"v_max3_f32 v{NB_}, v{NB_}, v{NMA+2*i}, v{NMA+2*i+1}")
    a(f"""s_sub_u32 s74, s74, 1
    s_cmp_lg_u32 s74, 0
    s_cbranch_scc1 a_maxloop
    v_mov_b32 v{NA+1}, v{NA}
    v_mov_b32 v{NB_+1}, v{NB_}
    v_permlane32_swap_b32 v{NA}, v{NA+1}
    v_permlane32_swap_b32 v{NB_}, v{NB_+1}
    v_max_f32 v{NA}, v{NA}, v{NA+1}
    v_max_f32 v{NB_}, v{NB_}, v{NB_+1}""")
    a.label("a_fast")
    ast(a, 3, False)
    a(f"""ds_read_b128 v[{KB}:{KB+3}], v{vK}
    ds_read_b128 v[{KB+4}:{KB+7}], v{vK} offset:{ST}
    ds_read_b128 v[{VB}:{VB+3}], v{vV}
    ds_read_b128 v[{VB+4}:{VB+7}], v{vV} offset:528""")
    for i in range(4): a(f"v_mov_b32 v{PA+i}, -1")
    a(f"buffer_store_dwordx4 v[{PA}:{PA+3}], v2, s[{WSR}:{WSR+3}], s62 offen sc1")
    a(f"v_sub_f32 v{NA}, 0, v{NA}\nv_sub_f32 v{NB_}, 0, v{NB_}")
    for i in range(8): a(f"v_pk_mov_b32 v[{NMA+2*i}:{NMA+2*i+1}], v[{NA}:{NA+1}], v[{NA}:{NA+1}] op_sel:[0,0]")
    for i in range(8): a(f"v_pk_mov_b32 v[{NMB+2*i}:{NMB+2*i+1}], v[{NB_}:{NB_+1}], v[{NB_}:{NB_+1}] op_sel:[0,0]")
    a("s_waitcnt lgkmcnt(0)")
    MF(a, SA, KB, QA, NMA)
    a("s_mov_b32 s73, 4\ns_setprio 2\ns_nop 9")
    a(".p2align 6")
    a.label("a_loop")
    for tt in range(8):
        cur = tt & 1; nxt = cur ^ 1
        Kc, Kn = KB + 4*cur, KB + 4*nxt
        Vc, Vn = VB + 8*cur, VB + 8*nxt
        kreg, koff = (vK, (tt + 2) * ST) if tt < 6 else (vKn, (tt - 6) * ST)
        vreg, voff = (vV, (tt + 1) * ST) if tt < 7 else (vVn, 0)
        for ph in range(2):
            S, P, Po, So, O = (SA, PA, PB, SB, OA) if ph == 0 else (SB, PB, PA, SA, OB)
            ex = lambda i: a(f"v_exp_f32 v{S+i}, v{S+i}")
            cv = lambda j: a(f"v_cvt_pk_bf16_f32 v{P+j}, v{S+2*j}, v{S+2*j+1}")
            ex(0)
            a(f"v_cvt_pk_bf16_f32 v{Po+7}, v{So+14}, v{So+15}")
            ex(1)
            if ph == 0:
                MF(a, SB, Kc, QB, NMB)
                a(f"ds_read_b128 v[{Kc}:{Kc+3}], v{kreg} offset:{koff}")
            else:
                MF(a, SA, Kn, QA, NMA)
                if tt == 7: a("s_add_u32 s71, s71, 1")
                if tt == 6: a("s_sub_u32 s73, s73, 1")
                if tt == 2: a("s_cmp_eq_u32 s73, 4")
            ex(2); ex(3); cv(0); ex(4); ex(5); cv(1)
            if ph == 0:
                MF(a, OB, Vn + 4, PB + 4, OB)
                a(f"ds_read_b128 v[{Vn}:{Vn+3}], v{vreg} offset:{voff}")
            else:
                MF(a, OA, Vc + 4, PA + 4, OA)
                a("s_waitcnt lgkmcnt(0)")
            ex(6); ex(7); cv(2); ex(8); ex(9); cv(3); ex(10); ex(11)
            MF(a, O, Vc, P, O)
            if ph == 0:
                a(f"ds_read_b128 v[{Vn+4}:{Vn+7}], v{vreg} offset:{voff+528}")
            elif tt == 7:
                a("s_and_b32 s71, s71, 7")
            cv(4); ex(12); ex(13); cv(5); ex(14); ex(15)
            if ph == 1 and tt == 7:
                a(f"""s_mul_i32 s70, s71, {8*ST}
                v_mov_b32 v{vK}, v{vKn}
                v_mov_b32 v{vV}, v{vVn}
                v_add_u32 v{vKn}, s70, v{vKl}
                v_add_u32 v{vVn}, s70, v{vVl}""")
            cv(6)
        if tt == 2:
            a("s_cbranch_scc1 a_chk1")
            a.label("a_ret1")
    a("s_cmp_eq_u32 s73, 1\ns_cbranch_scc1 a_it2\ns_cmp_eq_u32 s73, 0\ns_cbranch_scc1 a_done")
    a("s_cmp_eq_u32 s73, 3\ns_cbranch_scc0 a_it1")
    ast(a, 4, False)
    a("s_waitcnt vmcnt(0)")
    lds_add(a, vC, 44, T + 1)
    lds_wait(a, vC, 8, 4, T)
    a("s_branch a_loop")
    a.label("a_chk1")
    lds_wait(a, vC, 4, 4, T)
    a("s_branch a_ret1")
    a.label("a_it1")
    lds_add(a, vC, 12, T + 1)
    lds_wait(a, vC, 60, 4, T)
    a("s_setprio 1\ns_branch a_loop")
    a.label("a_it2")
    OF, WF, C0, C1, AX, YR, GR = 12, 44, 108, 124, 140, 148, 152
    vWr, vRd, vRow, vG, XR, vWo, vY, vWr4, vRd4 = 156, 157, 158, 159, 160, 164, 165, 166, 167
    a(f"""s_and_b32 s66, s3, 1
    s_lshr_b32 s67, s3, 1
    s_lshl_b32 s63, s66, 5
    s_add_u32 s63, s63, s56
    v_and_b32 v{vG}, 31, v1
    v_add_u32 v{vG}, s63, v{vG}
    v_lshlrev_b32 v{vRow}, 3, v3
    v_lshl_add_u32 v{vRow}, v{vG}, 10, v{vRow}
    v_lshlrev_b32 v{vG}, 2, v{vG}
    s_lshl_b32 s69, s67, 5
    s_lshl_b32 s63, s57, 1
    s_add_u32 s69, s69, s63
    buffer_load_dwordx2 v[{XR}:{XR+1}], v{vRow}, s[36:39], s69 offen
    buffer_load_dwordx2 v[{XR+2}:{XR+3}], v{vRow}, s[36:39], s69 offen offset:16
    v_lshl_add_u32 v{vRow}, v3, 3, v{vRow}
    {"buffer_load_dword v%d, v%d, s[40:43], s69 offen" % (T + 1, vRow) if OPT.get("touch") else ""}
    s_cmp_lt_u32 s3, 3
    s_cselect_b32 s63, 0, {OX1 - 3*2304 - OX0}
    s_mul_i32 s64, s3, 2304
    s_add_u32 s63, s63, s64
    s_add_u32 s63, s63, {OX0}
    v_add_u32 v{vWr}, s63, v2
    v_lshl_add_u32 v{vWr4}, v1, 2, s63
    s_xor_b32 s65, s3, 4
    s_cmp_lt_u32 s65, 3
    s_cselect_b32 s63, 0, {OX1 - 3*2304 - OX0}
    s_mul_i32 s64, s65, 2304
    s_add_u32 s63, s63, s64
    s_add_u32 s63, s63, {OX0}
    v_add_u32 v{vRd}, s63, v2
    v_lshl_add_u32 v{vRd4}, v1, 2, s63
    s_lshl_b32 s68, s60, 1
    s_add_u32 s68, s68, s66
    s_lshl_b32 s68, s68, 5
    s_lshl_b32 s63, s67, 3
    s_add_u32 s68, s68, s63
    s_lshl_b32 s68, s68, 10
    s_add_u32 s68, s68, {WS_O}
    s_add_u32 s59, s68, 4096
    s_lshl_b32 s63, s67, 1
    s_and_b32 s63, s63, 4
    s_add_u32 s63, s63, s58
    s_and_b32 s63, s63, 7
    s_mul_i32 s63, s63, {8*ST}
    s_and_b32 s64, s67, 1
    s_lshl_b32 s64, s64, 14
    s_add_u32 s63, s63, s64
    v_bfe_u32 v{vY}, v1, 2, 2
    v_lshrrev_b32 v{vWo}, 1, v{vY}
    v_lshl_add_u32 v{vY}, v3, 2, v{vY}
    v_lshlrev_b32 v{vY}, 7, v{vY}
    v_bfe_u32 v{T}, v1, 4, 1
    v_lshl_add_u32 v{vY}, v{T}, 5, v{vY}
    v_and_b32 v{T}, 3, v1
    v_lshl_add_u32 v{vY}, v{T}, 3, v{vY}
    v_lshl_add_u32 v{vWo}, v{vWo}, 6, v{vY}
    v_add_u32 v{vWo}, s63, v{vWo}
    s_lshl_b32 s63, s67, 11
    s_lshl_b32 s64, s66, 6
    s_add_u32 s63, s63, s64
    s_add_u32 s63, s63, {YT}
    v_add_u32 v{vY}, s63, v{vY}
    s_lshl_b32 s63, s66, 2
    s_add_u32 s63, s63, s58
    s_add_u32 s63, s63, 2
    s_and_b32 s63, s63, 7
    s_mul_i32 s72, s63, {8*ST}
    s_mov_b32 s76, {WS_G}
    s_setprio 0
    s_cmp_lt_u32 s3, 4
    s_cbranch_scc1 a_loop""")
    if not OPT.get("abl"): lds_wait(a, vC, 20, 4, T, 2)
    a("s_branch a_loop")
    a.label("a_done")
    stamp(a, 5)
    a(f"v_cvt_pk_bf16_f32 v{PB+7}, v{SB+14}, v{SB+15}\ns_cmp_ge_u32 s3, 4")
    MF(a, OB, VB + 12, PB + 4, OB)
    a(f"""s_cbranch_scc1 a_red1
    v_lshlrev_b32 v10, 6, v1
    s_lshl_b32 s63, s61, 11
    v_add_u32 v10, s63, v10
    s_lshl_b32 s63, s60, 6
    s_mov_b32 exec_lo, 0
    v_and_b32 v10, 7, v1
    v_lshlrev_b32 v10, 11, v10
    v_add_u32 v10, s63, v10
    s_mov_b32 exec_lo, -1
    s_mov_b32 s73, {WS_FY}
    s_mov_b32 s75, {1 if OPT.get("abl") else 0x40000}
    v_lshrrev_b32 v7, 3, v1
    v_and_b32 v8, 7, v1
    v_lshlrev_b32 v8, 4, v8
    v_lshl_add_u32 v8, v7, 12, v8
    s_lshl_b32 s64, s3, 4
    s_add_u32 s64, s64, s57
    s_lshl_b32 s64, s64, 12
    s_lshl_b32 s63, s56, 1
    s_add_u32 s64, s64, s63
    s_add_u32 s64, s64, {WS_Y}
    s_add_u32 s65, s64, 32768
    s_lshl_b32 s63, s3, 11
    s_add_u32 s63, s63, {YT}
    v_add_u32 v7, s63, v2""")
    a.label("a_ypoll")
    a(f"""buffer_load_dwordx2 v[20:21], v10, s[{WSR}:{WSR+3}], s73 offen sc1
    s_sub_u32 s75, s75, 1
    s_waitcnt vmcnt(0)
    v_cmp_ne_u32 vcc, s{TAG}, v20
    s_cbranch_vccz a_yready
    s_sleep 4
    s_cmp_lg_u32 s75, 0
    s_cbranch_scc1 a_ypoll""")
    a.label("a_yready")
    a(f"""buffer_load_dwordx4 v[12:15], v8, s[{WSR}:{WSR+3}], s64 offen sc1
    buffer_load_dwordx4 v[16:19], v8, s[{WSR}:{WSR+3}], s65 offen sc1
    s_getreg_b32 s63, hwreg(HW_REG_XCC_ID)
    v_cmp_ne_u32 vcc, s63, v21
    s_cmp_eq_u32 vcc_hi, 0
    s_cselect_b32 s63, 1, 0
    v_mov_b32 v11, s63
    ds_write_b32 v{vC}, v11 offset:48
    s_waitcnt vmcnt(1)
    ds_write_b128 v7, v[12:15]
    s_waitcnt vmcnt(0)
    ds_write_b128 v7, v[16:19] offset:1024""")
    for (lbl, W, Kp) in (("", OB, OA), ("a_red1", OA, OB)):
        if lbl: a.label(lbl)
        a(f"""ds_write_b128 v{vWr}, v[{W}:{W+3}]
        ds_write_b128 v{vWr}, v[{W+4}:{W+7}] offset:1024
        ds_write_b32 v{vWr4}, v{W+8} offset:2048
        v_xor_b32 v9, 64, v{vWo}
        s_mov_b32 s75, 0x40000
        s_waitcnt lgkmcnt(0)
        s_barrier
        ds_read_b32 v10, v{vC} offset:48
        ds_read_b32 v{SA+8}, v{vRd4} offset:2048
        ds_read_b128 v[{SA}:{SA+3}], v{vRd}
        ds_read_b128 v[{SA+4}:{SA+7}], v{vRd} offset:1024
        ds_read_b64_tr_b16 v[{YR}:{YR+1}], v{vY}
        ds_read_b64_tr_b16 v[{YR+2}:{YR+3}], v{vY} offset:1024
        s_waitcnt lgkmcnt(4)
        buffer_load_dword v{GR}, v{vG}, s[{WSR}:{WSR+3}], s76 offen sc1
        v_readfirstlane_b32 s63, v10
        v_add_f32 v{Kp+8}, v{Kp+8}, v{SA+8}
        v_rcp_f32 v{T}, v{Kp+8}
        s_waitcnt lgkmcnt(2)""")
        for i in range(8): a(f"v_add_f32 v{Kp+i}, v{Kp+i}, v{SA+i}")
        for i in range(8): a(f"v_mul_f32 v{Kp+i}, v{Kp+i}, v{T}")
        for i in range(4): a(f"v_cvt_pk_bf16_f32 v{4+i}, v{Kp+2*i}, v{Kp+2*i+1}")
        if not lbl: a("s_branch a_p3")
    a.label("a_p3")
    a(f"""s_cmp_eq_u32 s63, {1 if OPT.get("oloc", 1) else 5}
    s_cbranch_scc1 a_olocal
    buffer_store_dwordx4 v[4:7], v2, s[{WSR}:{WSR+3}], s62 offen sc1
    s_branch a_ostored""")
    a.label("a_olocal")
    a(f"buffer_store_dwordx4 v[4:7], v2, s[{WSR}:{WSR+3}], s62 offen {('', 'nt', 'sc0')[OPT.get('oflag', 0)]}")
    a.label("a_ostored")
    ast(a, 2, True)
    for e in range(8):
        for mt in range(2):
            r = WF + 8*e + 4*mt
            if e in (3, 5, 7) and mt == 0: a("s_waitcnt lgkmcnt(6)")
            a(f"ds_read_b64_tr_b16 v[{r}:{r+1}], v{(vWo, 9)[mt]} offset:{e*2048}")
            a(f"ds_read_b64_tr_b16 v[{r+2}:{r+3}], v{(vWo, 9)[mt]} offset:{e*2048+1024}")
    if OPT.get("oack"): a("s_waitcnt vmcnt(0)")
    ast(a, 3, True)
    for i in range(8):
        a(f"buffer_load_dwordx4 v[{OF+4*i}:{OF+4*i+3}], v2, s[{WSR}:{WSR+3}], s{68 if i < 4 else 59} offen offset:{1024*(i&3)} sc1")
    a(f"s_waitcnt vmcnt({8 if OPT.get('oack') else 9})\nv_sub_f32 v{GR+1}, 1.0, v{GR}")
    for aa in range(2):
        x0, x1, y0, y1, t = XR + 2*aa, XR + 2*aa + 1, YR + 2*aa, YR + 2*aa + 1, AX + 4*aa
        a(f"""v_lshlrev_b32 v{t}, 16, v{x0}
        v_and_b32 v{t+1}, 0xffff0000, v{x0}
        v_lshlrev_b32 v{t+2}, 16, v{x1}
        v_and_b32 v{t+3}, 0xffff0000, v{x1}
        v_lshlrev_b32 v154, 16, v{y0}
        v_and_b32 v155, 0xffff0000, v{y0}
        v_lshlrev_b32 v156, 16, v{y1}
        v_and_b32 v157, 0xffff0000, v{y1}""")
        for e in range(4): a(f"v_mul_f32 v{t+e}, v{t+e}, v{154+e}")
        for e in range(4): a(f"v_mul_f32 v{t+e}, v{t+e}, v{GR}")
    a(f"""s_lshl_b32 s63, s67, 11
    s_add_u32 s63, s63, s72
    v_add_u32 v8, s63, v2
    s_lshl_b32 s63, s67, 13
    s_add_u32 s63, s63, s72
    v_add_u32 v11, s63, v2
    s_waitcnt lgkmcnt(0)""")
    for e in range(8):
        r = OF + 4*e
        a(f"s_waitcnt vmcnt({7-e})")
        a.label(f"a_ochk{e}")
        a(f"""v_max3_u32 v10, v{r}, v{r+1}, v{r+2}
        v_max_u32 v10, v10, v{r+3}
        v_cmp_eq_u32 vcc, -1, v10
        s_cbranch_vccnz a_oretry{e}""")
        a.label(f"a_ogo{e}")
        MF(a, C0, WF + 8*e, r, None if e == 0 else C0)
        MF(a, C1, WF + 8*e + 4, r, None if e == 0 else C1)
    stamp(a, 6)
    for ow in range(4):
        a(f"ds_write_b128 v8, v[{C0+8*ow}:{C0+8*ow+3}] offset:{8192*ow}")
        a(f"ds_write_b128 v8, v[{C0+8*ow+4}:{C0+8*ow+7}] offset:{8192*ow+1024}")
    a("s_waitcnt lgkmcnt(0)\ns_barrier")
    for sr in range(4):
        a(f"ds_read_b128 v[{OF+8*sr}:{OF+8*sr+3}], v11 offset:{2048*sr}")
        a(f"ds_read_b128 v[{OF+8*sr+4}:{OF+8*sr+7}], v11 offset:{2048*sr+1024}")
    a("s_waitcnt lgkmcnt(4)")
    for i in range(8): a(f"v_add_f32 v{OF+i}, v{OF+i}, v{OF+8+i}")
    a("s_waitcnt lgkmcnt(0)")
    for i in range(8): a(f"v_add_f32 v{OF+16+i}, v{OF+16+i}, v{OF+24+i}")
    for i in range(8): a(f"v_add_f32 v{OF+i}, v{OF+i}, v{OF+16+i}")
    for i in range(8): a(f"v_fmac_f32 v{AX+i}, v{OF+i}, v{GR+1}")
    for i in range(4): a(f"v_cvt_pk_bf16_f32 v{OF+i}, v{AX+2*i}, v{AX+2*i+1}")
    a(f"""v_permlane32_swap_b32 v{OF}, v{OF+2}
    v_permlane32_swap_b32 v{OF+1}, v{OF+3}
    buffer_store_dwordx4 v[{OF}:{OF+3}], v{vRow}, s[40:43], s69 offen {('', 'nt', 'sc1', 'sc0 sc1')[OPT.get('outflag', 0)]}""")
    if OPT.get("delay1"):
        a(f"s_mov_b32 s60, {OPT['delay1']}")
        a.label("dly1")
        a("s_nop 15\ns_nop 15\ns_nop 15\ns_nop 15\ns_sub_u32 s60, s60, 1\ns_cmp_lg_u32 s60, 0\ns_cbranch_scc1 dly1")
    fin(a)
    for e in range(8):
        a.label(f"a_oretry{e}")
        a("s_waitcnt vmcnt(0)")
        for i in range(e, 8):
            a(f"buffer_load_dwordx4 v[{OF+4*i}:{OF+4*i+3}], v2, s[{WSR}:{WSR+3}], s{68 if i < 4 else 59} offen offset:{1024*(i&3)} sc1")
        a(f"""s_sub_u32 s75, s75, 1
        s_waitcnt vmcnt({7-e})
        s_cmp_lg_u32 s75, 0
        s_cbranch_scc1 a_ochk{e}
        s_branch a_ogo{e}""")
    a.label("k_end")
    a("s_endpgm")
    return a.finish()

def build():
    hdr = open("cdna_kernels/" + NAME + ".s.ref").read().split("; Override launch")[0]
    out = hdr + f"; @launch grid=(256,1,1) block=(768,1,1) lds={LEND}\n"
    out += f'.amdgcn_target "amdgcn-amd-amdhsa--gfx950"\n.text\n.globl {KN}\n.p2align 8\n.type {KN},@function\n' + kernel() + "code_end:\n"
    out += f""".section .rodata,"a"
.p2align 6
.amdhsa_kernel {KN}
  .amdhsa_next_free_vgpr 168
  .amdhsa_next_free_sgpr {100 if DIAG else 80}
  .amdhsa_accum_offset 168
  .amdhsa_group_segment_fixed_size 0
  .amdhsa_kernarg_size 120
  .amdhsa_user_sgpr_count 2
  .amdhsa_user_sgpr_kernarg_segment_ptr 1
  .amdhsa_system_sgpr_workgroup_id_x 1
.end_amdhsa_kernel
"""
    return out

if __name__ == "__main__":
    for x in list(sys.argv):
        if "=" in x:
            kk, vv = x.split("="); OPT[kk] = int(vv); sys.argv.remove(x)
    if "-l" in sys.argv:
        DIAG = True; LIGHT = True; sys.argv.remove("-l")
    if "-d" in sys.argv:
        DIAG = True; sys.argv.remove("-d")
    dst = sys.argv[1] if len(sys.argv) > 1 else "cdna_kernels/" + NAME + ".s"
    open(dst, "w").write(build())
    print("wrote", dst)
```

```python
import sys, math, struct
from asmlib import Asm

NAME = "gated_mix__ssm_conv_h3__grouped_kv_mqa__prompt"
KN = NAME + "_kernel"
WS_KV, WS_KMAX, WS_G = 0x000000, 0x024000, 0x025000
WS_FKV, WS_FX, WS_FY = 0x028000, 0x02c000, 0x030000
WS_XREV, WS_O, WS_Y = 0x100000, 0x300000, 0x500000
WS_SIZE = 0x700000
ST = 2080
KVBYTES = 64 * ST
CSCALE = 0.25 * math.log2(math.e)
def f32(x): return "0x%08x" % struct.unpack("<I", struct.pack("<f", x))[0]

XT, WT, WKV = 0, 65536, 131072
QX = 149824
YT = KVBYTES
XE0, XESZ, XOOFF = KVBYTES, 8320, 4160
CNT = 149760
LEND = 163840
OX0, OX1 = 141312, 149824

DIAG = False
LIGHT = False
OPT = {"oack": 0, "oflag": 1, "cpf": 0, "dsplit": 1, "obulk": 1, "early": 1, "wqpf": 0}
WS_DIAG = 0x1000000
def ast(a, idx, tail):
    if bool(OPT.get("tail2")) == tail: stamp(a, idx)
def hst(a, idx, tail):
    if bool(OPT.get("tailst")) == tail: stamp(a, idx)
def stamp(a, idx, real=False):
    if not DIAG: return
    if LIGHT and idx < 8: return
    if OPT.get("dbg"): real = True
    a(f"{'s_memrealtime' if real else 's_memtime'} s[{80+2*idx}:{81+2*idx}]\ns_waitcnt lgkmcnt(0)")
def fin(a):
    if OPT.get("dbg"):
        _n[0] += 1; l = f"fin{_n[0]}"
        a(f"""s_waitcnt vmcnt(0)
        s_memrealtime s[94:95]
        s_load_dwordx2 s[68:69], s[0:1], 104
        s_waitcnt lgkmcnt(0)
        s_cmp_lg_u32 s2, 77
        s_cbranch_scc1 {l}
        s_cmp_eq_u32 s3, {OPT["dbg"]}
        s_cselect_b32 s67, 0, 32
        s_cbranch_scc1 {l}_go
        s_cmp_lg_u32 s3, 8
        s_cbranch_scc1 {l}""")
        a.label(l + "_go")
        a("s_mov_b32 s70, 256\ns_mov_b32 s71, 0x20000\ns_mov_b64 exec, 1\nv_mov_b32 v0, 0")
        for i in range(1, 8):
            a(f"s_sub_u32 s66, s{80+2*i}, s80\nv_mov_b32 v{i}, s66\nbuffer_store_dword v{i}, v0, s[68:71], s67 offen offset:{4*(i-1)}")
        a.label(l)
        a("s_endpgm")
        return
    if DIAG:
        a("s_waitcnt vmcnt(0)")
        stamp(a, 7); stamp(a, 9, True)
        a(f"""s_add_u32 s68, s30, {WS_DIAG}
        s_addc_u32 s69, s31, 0
        s_mov_b32 s70, 0x40000
        s_mov_b32 s71, 0x20000
        s_lshl_b32 s67, s2, 4
        s_add_u32 s67, s67, s3
        s_lshl_b32 s67, s67, 6
        s_mov_b64 exec, 1
        v_mov_b32 v0, 0""")
        for i in range(10):
            a(f"v_mov_b32 v1, s{80+2*i}\nbuffer_store_dword v1, v0, s[68:71], s67 offen offset:{4*i}")
    a("s_endpgm")

def srd(a, d, lo, size):
    a(f"s_mov_b32 s{d}, s{lo}\ns_mov_b32 s{d+1}, s{lo+1}\ns_mov_b32 s{d+2}, {size}\ns_mov_b32 s{d+3}, 0x20000")
def srd_off(a, d, lo, off, size):
    a(f"s_add_u32 s{d}, s{lo}, {off}\ns_addc_u32 s{d+1}, s{lo+1}, 0\ns_mov_b32 s{d+2}, {size}\ns_mov_b32 s{d+3}, 0x20000")
def dma(a, voff, srdn, soff, m0, flags=""):
    a(f"s_mov_b32 m0, {m0}")
    a(f"buffer_load_dwordx4 v{voff}, s[{srdn}:{srdn+3}], {soff} offen {flags} lds")
PX, PK, PV, PSH, PH, PD, PWQ, PWK, PWV, PWO, PGW, POUT, PWS = 4, 6, 8, 10, 12, 14, 18, 20, 22, 24, 26, 28, 30
WSR = 32
TAG = 77
_n = [0]
def lds_wait(a, vaddr, off, val, vt, sleep=1):
    sleep = sleep * OPT.get("slmul", 1)
    _n[0] += 1; l = f"lw{_n[0]}"
    a("s_mov_b32 s75, 0x100000")
    a.label(l)
    a(f"""ds_read_b32 v{vt}, v{vaddr} offset:{off}
    s_sub_u32 s75, s75, 1
    s_waitcnt lgkmcnt(0)
    v_readfirstlane_b32 s74, v{vt}
    s_cmp_ge_u32 s74, {val}
    s_cbranch_scc1 {l}_ok
    s_sleep {sleep}
    s_cmp_lg_u32 s75, 0
    s_cbranch_scc1 {l}""")
    a.label(l + "_ok")
def lds_add(a, vaddr, off, vone):
    a(f"s_mov_b64 exec, 1\nds_add_u32 v{vaddr}, v{vone} offset:{off}\ns_mov_b64 exec, -1")
def publish(a, vaddr, off, vone, vt, sflag, nwaves, xcc=False):
    _n[0] += 1; l = f"pb{_n[0]}"
    a(f"""s_mov_b64 exec, 1
    ds_add_rtn_u32 v{vt}, v{vaddr}, v{vone} offset:{off}
    s_waitcnt lgkmcnt(0)
    v_readfirstlane_b32 s74, v{vt}
    s_cmp_lg_u32 s74, {nwaves-1}
    s_cbranch_scc1 {l}
    v_mov_b32 v{vt}, s{TAG}
    v_mov_b32 v{vt+2}, 0""")
    if xcc:
        a(f"""s_getreg_b32 s74, hwreg(HW_REG_XCC_ID)
        v_mov_b32 v{vt+1}, s74
        buffer_store_dwordx2 v[{vt}:{vt+1}], v{vt+2}, s[{WSR}:{WSR+3}], s{sflag} offen sc1""")
    else:
        a(f"buffer_store_dword v{vt}, v{vt+2}, s[{WSR}:{WSR+3}], s{sflag} offen sc1")
    a.label(l)
    a("s_mov_b64 exec, -1")
def poll32(a, sbase, vt, word, rowgrp=False):
    _n[0] += 1; l = f"pl{_n[0]}"
    a(f"s_cmp_lg_u32 s66, 0\ns_cbranch_scc1 {l}_lds")
    a(f"v_lshlrev_b32 v{vt}, 6, v1")
    if rowgrp:
        a(f"""s_lshl_b32 s74, s61, 11
        v_add_u32 v{vt}, s74, v{vt}
        s_lshl_b32 s74, s60, 6
        s_mov_b32 exec_lo, 0
        v_and_b32 v{vt}, 7, v1
        v_lshlrev_b32 v{vt}, 11, v{vt}
        v_add_u32 v{vt}, s74, v{vt}
        s_mov_b32 exec_lo, -1""")
    a(f"s_mov_b32 exec_hi, {0xff if rowgrp else 0}\ns_mov_b32 s75, 0x40000")
    a.label(l)
    a(f"""buffer_load_dword v{vt+1}, v{vt}, s[{WSR}:{WSR+3}], s{sbase} offen sc1
    s_sub_u32 s75, s75, 1
    s_waitcnt vmcnt(0)
    v_cmp_ne_u32 vcc, s{TAG}, v{vt+1}
    s_cbranch_vccz {l}_ok
    s_mov_b64 exec, vcc
    s_sleep 4
    s_cmp_lg_u32 s75, 0
    s_cbranch_scc1 {l}""")
    a.label(l + "_ok")
    a(f"s_mov_b64 exec, -1\nds_write_b32 v3, v14 offset:{word}\ns_branch {l}_done")
    a.label(l + "_lds")
    lds_wait(a, 3, word, 1, vt, 2)
    a.label(l + "_done")

def w_src(a, v, t0, t1):
    a(f"""v_lshrrev_b32 v{t0}, 3, v1
    v_lshlrev_b32 v{t1}, 1, v{t0}
    v_and_b32 v{t1}, 4, v{t1}
    v_and_b32 v{v}, 7, v1
    v_xor_b32 v{v}, v{v}, v{t1}
    v_lshlrev_b32 v{v}, 4, v{v}
    v_lshl_add_u32 v{v}, v{t0}, 10, v{v}
    s_lshl_b32 s63, s57, 1
    v_add_u32 v{v}, s63, v{v}""")

MF = lambda a, d, A, B, C: a(f"v_mfma_f32_32x32x16_bf16 v[{d}:{d+15}], v[{A}:{A+3}], v[{B}:{B+3}], " + ("0" if C is None else f"v[{C}:{C+15}]"))

def kv_unit_step(a, step):
    a(f"""s_cmp_ge_u32 s59, 130
    s_cselect_b32 s63, 130, 0
    s_sub_u32 s59, s59, s63
    s_lshl_b32 s63, s59, 10
    s_add_u32 s59, s59, {step}""")

def kernel():
    a = Asm()
    a.label(KN)
    a("s_cmp_ge_u32 s2, 256\ns_cbranch_scc1 k_end")
    if OPT.get("scramble"):
        a("s_lshr_b32 s60, s2, 5\ns_and_b32 s2, s2, 31\ns_lshl_b32 s2, s2, 3\ns_or_b32 s2, s2, s60")
    if OPT.get("delay0"):
        a(f"s_mov_b32 s60, {OPT['delay0']}")
        a.label("dly0")
        a("s_nop 15\ns_nop 15\ns_nop 15\ns_nop 15\ns_sub_u32 s60, s60, 1\ns_cmp_lg_u32 s60, 0\ns_cbranch_scc1 dly0")
    stamp(a, 8, True); stamp(a, 0)
    a("""s_load_dwordx2 s[30:31], s[0:1], 112
    s_load_dwordx16 s[4:19], s[0:1], 0
    s_load_dwordx8 s[20:27], s[0:1], 64
    s_load_dwordx2 s[28:29], s[0:1], 96
    v_lshrrev_b32 v2, 6, v0
    v_and_b32 v1, 63, v0
    v_readfirstlane_b32 s3, v2
    s_and_b32 s60, s2, 7
    s_lshl_b32 s60, s60, 2
    s_lshr_b32 s61, s2, 3
    s_and_b32 s62, s61, 3
    s_add_u32 s60, s60, s62
    s_lshr_b32 s61, s61, 2
    s_lshl_b32 s56, s60, 6
    s_lshl_b32 s57, s61, 6
    s_add_u32 s59, s61, s62
    s_add_u32 s59, s59, s2
    s_and_b32 s59, s59, 3
    s_lshr_b32 s76, s61, 1
    s_lshl_b32 s58, s62, 1
    v_lshlrev_b32 v2, 4, v1
    s_cmp_lt_u32 s3, 8
    s_cbranch_scc1 k_att""")
    a("s_sub_u32 s66, s3, 8\nv_lshrrev_b32 v9, 4, v1\nv_and_b32 v10, 15, v1")
    for q in range(4):
        a(f"""v_add_u32 v11, {4*q}, v9
        v_xor_b32 v12, v11, v10
        v_lshlrev_b32 v12, 4, v12
        v_lshl_add_u32 v{4+q}, v11, 10, v12""")
    a("""s_add_u32 s63, s59, s66
    s_and_b32 s63, s63, 3
    s_lshl_b32 s64, s76, 4
    s_add_u32 s64, s64, s56
    s_lshl_b32 s64, s64, 10
    s_lshl_b32 s65, s63, 8
    s_add_u32 s64, s64, s65
    s_lshl_b32 s65, s63, 12
    s_lshl_b32 s67, s66, 14
    s_lshl_b32 s68, s76, 12
    s_add_u32 s67, s67, s68
    s_lshl_b32 s68, s66, 12
    s_and_b32 s69, s61, 1
    s_cmp_eq_u32 s69, 0
    s_waitcnt lgkmcnt(0)""")
    a(f"""s_cselect_b32 s40, s{PWK}, s{PWV}
    s_cselect_b32 s41, s{PWK+1}, s{PWV+1}
    s_mov_b32 s42, 0x4000
    s_mov_b32 s43, 0x20000""")
    srd(a, 36, PX, 0x200000)
    for q in range(4):
        a(f"s_add_u32 s63, s67, {XT + q*1024}")
        dma(a, 4 + q, 36, "s64", "s63")
        a(f"s_add_u32 s63, s68, {WKV + q*1024}")
        dma(a, 2, 40, "s65", "s63")
        if q < 3: a("s_add_u32 s65, s65, 1024")
    srd(a, 44, PWQ, 0x80000)
    srd(a, WSR, PWS, WS_SIZE)
    a(f"s_add_u32 s78, s30, {WS_FY}\ns_addc_u32 s79, s31, 0\ns_load_dword s{TAG}, s[78:79], 0")
    w_src(a, 8, 9, 10)
    a(f"""s_lshl_b32 s63, s66, 2
    v_lshrrev_b32 v9, 4, v1
    v_add_u32 v11, s63, v9
    v_and_b32 v10, 15, v1
    v_xor_b32 v12, v11, v10
    v_lshlrev_b32 v12, 4, v12
    v_lshl_add_u32 v13, v11, 10, v12
    v_mov_b32 v3, {CNT}""")
    def stage1(slot):
        a(f"""s_add_u32 s63, s59, {slot}
        s_and_b32 s63, s63, 3
        s_lshl_b32 s67, s63, 17
        s_lshl_b32 s64, s66, 15
        s_add_u32 s67, s67, s64
        s_lshl_b32 s65, s63, 8
        s_lshl_b32 s64, s56, 10
        s_add_u32 s65, s65, s64
        s_lshl_b32 s69, s66, 10""")
        for q in range(4):
            a(f"s_add_u32 s63, s68, {WT + slot*16384 + q*1024}")
            dma(a, 8, 44, "s67", "s63")
            if q < 3:
                a(f"""s_add_u32 s67, s67, 8192
                s_add_u32 s63, s76, {q+1}
                s_and_b32 s63, s63, 3
                s_lshl_b32 s64, s63, 14
                s_add_u32 s64, s64, s65
                s_lshl_b32 s63, s63, 12
                s_add_u32 s63, s63, s69
                s_add_u32 s63, s63, {XT + slot*16384}""")
                dma(a, 13, 36, "s64", "s63")
    if OPT.get("early"): stage1(0)
    a("""v_lshl_add_u32 v14, v1, 2, v3
    v_mov_b32 v15, 0
    s_mov_b64 exec, 0xffff
    ds_write_b32 v14, v15
    s_mov_b64 exec, -1
    v_mov_b32 v14, 1""")
    H = 160 - 16
    vA, vB0, vB1 = 34, 35, 33
    AF, BF, B2F, ACC0, ACC1 = 48, 80, 112, 128, 144
    a(f"""s_lshr_b32 s16, s66, 1
    s_and_b32 s17, s66, 1
    s_lshl_b32 s62, s60, 1
    s_add_u32 s62, s62, s57
    s_add_u32 s62, s62, s16
    v_lshrrev_b32 v5, 3, v1
    v_and_b32 v6, 7, v1
    v_lshlrev_b32 v6, 4, v6
    v_lshl_add_u32 v6, v5, 10, v6
    s_lshl_b32 s63, s57, 1
    v_add_u32 v6, s63, v6
    s_lshl_b32 s63, s66, 4
    s_add_u32 s63, s63, s57
    v_and_b32 v7, 15, v1
    v_add_u32 v7, s63, v7
    v_lshlrev_b32 v18, 3, v7
    s_lshl_b32 s64, s56, 10
    s_sub_u32 s64, s64, 3072
    v_lshrrev_b32 v17, 4, v1
    v_lshlrev_b32 v19, 14, v17
    v_lshl_add_u32 v19, v7, 1, v19
    v_add_u32 v19, s64, v19
    s_lshl_b32 s63, s62, 1
    v_mov_b32 v20, s63
    v_bfe_u32 v16, v1, 2, 2
    v_lshlrev_b32 v16, 7, v16
    v_lshl_add_u32 v16, v17, 12, v16
    v_lshlrev_b32 v24, 5, v17
    v_and_b32 v17, 3, v1
    v_lshl_add_u32 v16, v17, 3, v16
    s_lshl_b32 s63, s66, 5
    s_add_u32 s63, s63, {XE0}
    v_add_u32 v16, s63, v16
    v_lshrrev_b32 v26, 2, v1
    v_mul_u32_u24 v32, {XOOFF}, v26
    v_mul_u32_u24 v26, 144, v26
    v_lshlrev_b32 v17, 4, v17
    v_sub_u32 v26, v17, v26
    s_lshl_b32 s63, s16, 6
    s_add_u32 s63, s63, {LEND - 144 - 3*2304}
    v_add_u32 v26, s63, v26
    v_and_b32 v21, 0x1f7, v7
    v_lshlrev_b32 v21, 12, v21
    v_sub_u32 v21, v21, v24
    v_and_b32 v9, 8, v1
    v_lshl_add_u32 v21, v9, 1, v21
    v_add_u32 v21, 96, v21
    s_mul_i32 s71, s16, {XESZ}
    s_add_u32 s71, s71, {XE0}
    v_add_u32 v27, s71, v2
    v_add_u32 v32, v32, v17
    s_add_u32 s63, s71, 4096
    v_add_u32 v32, s63, v32
    v_and_b32 v4, 31, v1
    v_lshrrev_b32 v5, 5, v1
    v_or_b32 v9, 1, v4
    v_lshlrev_b32 v17, 3, v5
    v_sub_u32 v9, v17, v9
    s_cmp_eq_u32 s17, 0
    s_cselect_b32 s63, 1055, 31
    s_sub_u32 s63, s63, 256
    v_add_u32 v9, s63, v9
    v_lshlrev_b32 v9, 1, v9
    v_and_b32 v17, 1, v4
    v_xor_b32 v17, 1, v17
    v_mul_u32_u24 v17, {XOOFF}, v17
    v_add3_u32 v{vA}, v9, v17, s71
    v_mul_u32_u24 v9, 144, v4
    v_lshlrev_b32 v17, 4, v5
    v_sub_u32 v9, v17, v9
    s_lshl_b32 s63, s16, 6
    s_add_u32 s63, s63, {LEND + 144*23 + 1152}
    v_add_u32 v{vB0}, s63, v9
    v_mov_b32 v28, 0
    v_mov_b32 v29, 0
    v_mov_b32 v30, 0
    v_mov_b32 v31, 0
    s_lshl_b32 s63, s17, 11
    v_lshlrev_b32 v22, 6, v4
    v_lshl_add_u32 v22, v5, 3, v22
    v_add_u32 v22, s63, v22
    s_add_u32 s63, s71, {4088 - 48}
    v_sub_u32 v22, s63, v22
    v_and_b32 v23, 27, v4
    v_lshlrev_b32 v23, 6, v23
    v_lshl_add_u32 v23, v5, 4, v23
    v_and_b32 v9, 4, v4
    v_lshl_add_u32 v23, v9, 3, v23
    s_lshl_b32 s63, s17, 11
    v_add_u32 v23, s63, v23""")
    for i in range(16): a(f"v_mov_b32 v{ACC0+i}, 0")
    a("v_mov_b32 v93, 0xffff")
    a(f"s_waitcnt vmcnt({7 if OPT.get('early') else 0}) lgkmcnt(0)\ns_barrier")
    a(f"s_mul_i32 s{TAG}, s{TAG}, 0x9e3779b1\ns_add_u32 s{TAG}, s{TAG}, 0x7f4a7c15")
    if not OPT.get('early'): stage1(0)
    H1, H2 = OPT.get("h1", 0), OPT.get("h2", 0)
    if H1: lds_wait(a, 3, 56, 1, 16)
    stage1(1)
    if H2: lds_wait(a, 3, 56, 2, 16)
    stage1(2); stage1(3)
    if OPT.get("qcnt"):
        a("s_waitcnt vmcnt(14)")
        lds_add(a, 3, 48, 14)
        a("s_waitcnt vmcnt(0)")
        lds_add(a, 3, 60, 14)
    else:
        a("s_waitcnt vmcnt(14)\ns_barrier\ns_waitcnt vmcnt(0)\ns_barrier")
    a(f"""s_setprio 3
    s_lshr_b32 s67, s66, 1
    s_and_b32 s68, s66, 1
    s_lshl_b32 s69, s60, 1
    s_add_u32 s69, s69, s57
    s_add_u32 s69, s69, s67
    s_lshl_b32 s70, s69, 12""")
    srd(a, 36, PK, 0x200000)
    srd(a, 40, PV, 0x200000)
    srd(a, 44, PSH, 4096)
    srd_off(a, 48, PH, "s70", 4096)
    srd(a, 52, PD, 1024)
    def first_batch(n):
        for j in range(n):
            kv_unit_step(a, 4)
            dma(a, 2, WSR, "s63", "s63", "sc1")
    a(f"""s_lshl_b32 s63, s67, 2
    s_add_u32 s63, s63, s58
    s_and_b32 s63, s63, 7
    s_mul_i32 s59, s63, 65
    s_lshr_b32 s59, s59, 2
    s_add_u32 s59, s59, s68
    s_add_u32 s59, s59, 12""")
    def bulk(n, lbl):
        a(f"s_mov_b32 s72, {n}")
        a.label(lbl)
        kv_unit_step(a, 2)
        dma(a, 2, WSR, "s63", "s63", "sc1")
        a(f"s_sub_u32 s72, s72, 1\ns_cmp_lg_u32 s72, 0\ns_cbranch_scc1 {lbl}")
    a(f"""s_lshl_b32 s64, s66, 4
    s_add_u32 s64, s64, s56
    s_lshl_b32 s64, s64, 10
    s_add_u32 s65, s64, 8192
    s_lshl_b32 s73, s66, 12
    s_add_u32 s73, s73, {XE0}
    s_mov_b32 s72, {WS_FKV}
    v_lshlrev_b32 v36, 6, v1
    s_cmp_lg_u32 s66, 0
    s_cbranch_scc1 h_nopoll
    s_barrier
    buffer_load_dwordx4 v[40:43], v36, s[{WSR}:{WSR+3}], s72 offen sc1
    s_mov_b32 s75, 0x40000""")
    a.label("h_pollkv")
    a(f"""s_sub_u32 s75, s75, 1
    s_waitcnt vmcnt(0)
    v_xor_b32 v40, s{TAG}, v40
    v_xor_b32 v41, s{TAG}, v41
    v_xor_b32 v42, s{TAG}, v42
    v_xor_b32 v43, s{TAG}, v43
    v_or3_b32 v40, v40, v41, v42
    v_or_b32 v40, v40, v43
    v_cmp_ne_u32 vcc, 0, v40
    s_cbranch_vccz h_kvready
    s_mov_b64 exec, vcc
    buffer_load_dwordx4 v[40:43], v36, s[{WSR}:{WSR+3}], s72 offen sc1
    s_cmp_lg_u32 s75, 0
    s_cbranch_scc1 h_pollkv""")
    a.label("h_kvready")
    a("s_waitcnt vmcnt(0)\ns_mov_b64 exec, -1\nds_write_b32 v3, v14\ns_branch h_b1")
    a.label("h_nopoll")
    a("s_barrier")
    a.label("h_b1")
    a("s_barrier")
    hst(a, 1, False)
    bulk(5, "h_bulk1")
    a("s_waitcnt vmcnt(0)")
    lds_add(a, 3, 4, 14)
    if OPT.get("abl") == 1:
        bulk(15, "h_bulk3"); a("s_waitcnt vmcnt(0)"); lds_add(a, 3, 8, 14); fin(a)
    dma(a, 6, 36, "s64", "s73")
    a("s_add_u32 s63, s73, 1024"); dma(a, 6, 36, "s65", "s63")
    a("s_add_u32 s63, s73, 2048"); dma(a, 6, 40, "s64", "s63")
    a("s_add_u32 s63, s73, 3072"); dma(a, 6, 40, "s65", "s63")
    a(f"""buffer_load_dwordx2 v[10:11], v18, s[44:47], 0 offen
    buffer_load_ushort v12, v19, s[36:39], 0 offen
    buffer_load_ushort v13, v19, s[36:39], 0 offen offset:1024
    buffer_load_ushort v15, v19, s[36:39], 0 offen offset:2048""")
    bulk(13, "h_bulk2")
    a("s_waitcnt vmcnt(4)")
    lds_add(a, 3, 8, 14)
    if OPT.get("abl") == 2:
        a("s_waitcnt vmcnt(0)"); lds_add(a, 3, 8, 14); fin(a)
    lds_add(a, 3, 40, 14)
    lds_wait(a, 3, 40, 4, 9)
    hst(a, 2, False)
    KR, VR, VF = 96, 104, 72
    for i in range(4): a(f"ds_read_b64_tr_b16 v[{KR+2*i}:{KR+2*i+1}], v16 offset:{i*512}")
    for i in range(4): a(f"ds_read_b64_tr_b16 v[{VR+2*i}:{VR+2*i+1}], v16 offset:{2048 + i*512}")
    a(f"""v_alignbit_b32 v88, v11, v11, 16
    v_alignbit_b32 v89, v10, v10, 16
    v_and_b32 v90, 0xffff0000, v11
    v_bfi_b32 v91, v93, v11, v10
    v_and_b32 v92, 0xffff, v10
    v_lshlrev_b32 v{KR-2}, 16, v12
    v_lshl_or_b32 v{KR-1}, v15, 16, v13
    s_waitcnt lgkmcnt(0)""")
    KS = 52
    D2 = lambda d, x, w, c: a(f"v_dot2_f32_bf16 v{d}, v{x}, v{w}, {c}")
    for i in range(8):
        D2(KS + 2*i, KR + i - 2, 90, "0"); D2(KS + 2*i + 1, KR + i - 1, 88, "0")
    for i in range(8):
        D2(KS + 2*i, KR + i - 1, 91, f"v{KS+2*i}"); D2(KS + 2*i + 1, KR + i, 89, f"v{KS+2*i+1}")
    for i in range(8):
        D2(KS + 2*i, KR + i, 92, f"v{KS+2*i}")
        a(f"v_lshlrev_b32 v{VF+2*i}, 16, v{VR+i}\nv_and_b32 v{VF+1+2*i}, 0xffff0000, v{VR+i}")
    for i in range(8):
        a(f"v_pk_mul_f32 v[{VF+2*i}:{VF+2*i+1}], v[{VF+2*i}:{VF+2*i+1}], v[{KS+2*i}:{KS+2*i+1}]")
    for q in range(8):
        a(f"v_cvt_pk_bf16_f32 v{44+q}, v{VF+15-2*q}, v{VF+14-2*q}")
    for i in range(4):
        a(f"v_mov_b32 v{52+i}, v{44+i}")
    for i in range(4):
        a(f"v_mov_b32_dpp v{44+i}, v{48+i} row_ror:8 row_mask:0xf bank_mask:0xc")
        a(f"v_mov_b32_dpp v{48+i}, v{52+i} row_ror:8 row_mask:0xf bank_mask:0x3")
    a(f"""s_lshl_b32 s64, s56, 1
    s_sub_u32 s64, {WS_XREV + 4064 - 96}, s64
    s_add_u32 s63, s64, 32768
    buffer_store_dwordx4 v[44:47], v21, s[{WSR}:{WSR+3}], s64 offen sc1
    buffer_store_dwordx4 v[48:51], v21, s[{WSR}:{WSR+3}], s63 offen sc1
    s_lshl_b32 s72, s61, 11
    s_lshl_b32 s65, s60, 6
    s_add_u32 s65, s65, s72
    s_add_u32 s64, s72, {WS_FX}
    s_add_u32 s73, s65, {WS_FX}""")
    bulk(9, "h_bulk3b")
    for i in range(4):
        a(f"buffer_load_dwordx4 v[{H+4*i}:{H+4*i+3}], v2, s[48:51], 0 offen offset:{1024*i}")
    a("buffer_load_ushort v25, v20, s[52:55], 0 offen\ns_waitcnt vmcnt(14)")
    publish(a, 3, 16, 14, 16, 73, 4)
    a("s_waitcnt vmcnt(5)")
    lds_add(a, 3, 60, 14)
    a("s_waitcnt vmcnt(0)")
    for i in range(4): a(f"ds_write_b128 v26, v[{H+4*i}:{H+4*i+3}] offset:{2304*(3-i)}")
    hst(a, 3, False)
    a(f"s_add_u32 s63, s70, {WS_XREV}")
    srd_off(a, 40, PWS, "s63", 4096)
    a(f"s_add_u32 s63, s70, {WS_Y}")
    srd_off(a, 44, PWS, "s63", 4096)
    poll32(a, 64, 16, 52)
    hst(a, 4, False)
    if OPT.get("abl") == 3: fin(a)
    X = 52
    for i in range(4):
        a(f"buffer_load_dwordx4 v[{X+6*i}:{X+6*i+3}], v2, s[40:43], 0 offen offset:{1024*i} sc1")
        a(f"buffer_load_dword v{X+6*i+4}, v2, s[40:43], 0 offen offset:{1024*i+16} sc1")
    srd(a, 36, PWO, 0x80000)
    a("s_lshr_b32 s63, s2, 3\ns_lshl_b32 s63, s63, 14\ns_lshl_b32 s74, s66, 12\ns_add_u32 s63, s63, s74")
    for i in range(4):
        a(f"buffer_load_dwordx4 v[160:163], v2, s[36:39], s63 offen offset:{1024*i}")
    a("s_mov_b64 exec, 0xff\nds_write_b128 v32, v[28:31]\ns_mov_b64 exec, -1")
    for i in range(4):
        x = X + 6*i
        a(f"s_waitcnt vmcnt({10-2*i})")
        a(f"ds_write_b128 v27, v[{x}:{x+3}] offset:{1024*i}")
        for j in range(4): a(f"v_alignbit_b32 v{36+4*(i&1)+j}, v{x+j+1}, v{x+j}, 16")
        a(f"ds_write_b128 v27, v[{36+4*(i&1)}:{39+4*(i&1)}] offset:{XOOFF+1024*i}")
    a("s_waitcnt lgkmcnt(0)")
    a_ref = [a]
    def creads(t, dual):
        a = a_ref[0]
        b = t % 4; b2 = t % 2
        if OPT.get("noreads"): return
        if t == 0:
            a(f"v_add_u32 v{vA}, 512, v{vA}\nv_subrev_u32 v{vB0}, 1152, v{vB0}")
            if dual: a(f"v_subrev_u32 v{vB1}, 1152, v{vB1}")
        for u in range(2):
            o = (2*t + u) * 8
            r = AF + 8*b + 4*u
            a(f"ds_read2_b32 v[{r}:{r+1}], v{vA} offset0:{o} offset1:{o+1}")
            a(f"ds_read2_b32 v[{r+2}:{r+3}], v{vA} offset0:{o+2} offset1:{o+3}")
        for u in range(2):
            r = BF + 8*b + 4*u
            a(f"ds_read_b128 v[{r}:{r+3}], v{vB0} offset:{144*(7-t) + 32*u}")
        if dual:
            for u in range(2):
                r = B2F + 8*b2 + 4*u
                a(f"ds_read_b128 v[{r}:{r+3}], v{vB1} offset:{144*(7-t) + 32*u}")
    if OPT.get("abl") == 4: fin(a)
    a("s_cmp_eq_u32 s68, 0\ns_cselect_b32 s72, 2, 6")
    a(f"s_setprio {OPT.get('cprio', 3)}")
    PF = OPT.get("cpf", 2)
    for t in range(PF): creads(t, False)
    a.label("h_conv1")
    for t in range(8):
        b = t % 4
        if PF == 0: creads(t, False)
        a(f"s_waitcnt lgkmcnt({6 if PF == 2 else 0})")
        if OPT.get("cspace"):
            sub = Asm(); save = a_ref[0]; a_ref[0] = sub
            creads((t + PF) % 8, False); a_ref[0] = save
            L = sub.lines; h = len(L) - 3
            MF(a, ACC0, AF + 8*b, BF + 8*b, ACC0)
            for x in L[:h]: a(x)
            MF(a, ACC0, AF + 8*b + 4, BF + 8*b + 4, ACC0)
            for x in L[h:]: a(x)
            continue
        for u in range(0 if OPT.get("nomfma") else 2): MF(a, ACC0, AF + 8*b + 4*u, BF + 8*b + 4*u, ACC0)
        if PF: creads((t + PF) % 8, False)
    a("s_sub_u32 s72, s72, 1\ns_cmp_lg_u32 s72, 0\ns_cbranch_scc1 h_conv1")
    a("s_cmp_lg_u32 s68, 0\ns_cbranch_scc1 h_convb")
    if PF: a(f"v_subrev_u32 v{vA}, 512, v{vA}\nv_add_u32 v{vB0}, 1152, v{vB0}")
    a(f"""s_waitcnt lgkmcnt(0)
    v_subrev_u32 v{vB1}, {144*32}, v{vB0}
    s_mov_b32 s72, 2""")
    for i in range(16): a(f"v_mov_b32 v{ACC1+i}, 0")
    if PF == 2: creads(0, True)
    a.label("h_conv2")
    for t in range(8):
        b = t % 4; b2 = t % 2
        if OPT.get("dsplit"):
            sub = Asm(); save = a_ref[0]; a_ref[0] = sub
            creads(t, True); a_ref[0] = save
            L = sub.lines; pre = L[:len(L)-8]; R = L[len(L)-8:]
            for x in pre: a(x)
            for u in range(2):
                for x in (R[2*u], R[2*u+1], R[4+u], R[6+u]): a(x)
                a("s_waitcnt lgkmcnt(0)")
                MF(a, ACC0, AF + 8*b + 4*u, BF + 8*b + 4*u, ACC0)
                MF(a, ACC1, AF + 8*b + 4*u, B2F + 8*b2 + 4*u, ACC1)
            continue
        if PF < 2: creads(t, True)
        a("s_waitcnt lgkmcnt(0)")
        if PF == 2: creads((t + 1) % 8, True)
        for u in range(0 if OPT.get("nomfma") else 2):
            MF(a, ACC0, AF + 8*b + 4*u, BF + 8*b + 4*u, ACC0)
            MF(a, ACC1, AF + 8*b + 4*u, B2F + 8*b2 + 4*u, ACC1)
    a("s_sub_u32 s72, s72, 1\ns_cmp_lg_u32 s72, 0\ns_cbranch_scc1 h_conv2")
    a(f"s_lshl_b32 s63, s67, 2\nv_add_u32 v9, s63, v3\ns_waitcnt lgkmcnt(0)")
    lds_wait(a, 9, 32, 1, 16)
    for i in range(4): a(f"ds_write_b128 v27, v[{ACC1+4*i}:{ACC1+4*i+3}] offset:{XOOFF + 1024*i}")
    a("s_waitcnt lgkmcnt(0)")
    lds_add(a, 9, 24, 14)
    a("s_branch h_cepi")
    a.label("h_convb")
    a(f"s_lshl_b32 s63, s67, 2\nv_add_u32 v9, s63, v3\ns_waitcnt lgkmcnt(0)")
    lds_add(a, 9, 32, 14)
    lds_wait(a, 9, 24, 1, 16)
    for i in range(4): a(f"ds_read_b128 v[{ACC1+4*i}:{ACC1+4*i+3}], v27 offset:{XOOFF + 1024*i}")
    a("s_waitcnt lgkmcnt(0)")
    for i in range(8): a(f"v_pk_add_f32 v[{ACC0+2*i}:{ACC0+2*i+1}], v[{ACC0+2*i}:{ACC0+2*i+1}], v[{ACC1+2*i}:{ACC1+2*i+1}]")
    a.label("h_cepi")
    if OPT.get("abl") == 5: fin(a)
    a("s_setprio 3")
    hst(a, 1, True)
    hst(a, 5, False)
    for aa in range(4):
        a(f"ds_read_b64 v[{48+2*aa}:{49+2*aa}], v22 offset:{48 - 16*aa}")
    a("v_lshlrev_b32 v24, 16, v25\ns_waitcnt lgkmcnt(0)")
    for aa in range(4):
        d0, d1 = 48 + 2*aa, 49 + 2*aa
        a(f"""v_and_b32 v36, 0xffff0000, v{d1}
        v_lshlrev_b32 v37, 16, v{d1}
        v_and_b32 v38, 0xffff0000, v{d0}
        v_lshlrev_b32 v39, 16, v{d0}
        v_pk_fma_f32 v[{ACC0+4*aa}:{ACC0+4*aa+1}], v[36:37], v[24:25], v[{ACC0+4*aa}:{ACC0+4*aa+1}] op_sel_hi:[1,0,1]
        v_pk_fma_f32 v[{ACC0+4*aa+2}:{ACC0+4*aa+3}], v[38:39], v[24:25], v[{ACC0+4*aa+2}:{ACC0+4*aa+3}] op_sel_hi:[1,0,1]
        v_cvt_pk_bf16_f32 v{40+2*aa}, v{ACC0+4*aa}, v{ACC0+4*aa+1}
        v_cvt_pk_bf16_f32 v{41+2*aa}, v{ACC0+4*aa+2}, v{ACC0+4*aa+3}""")
    for p in range(2):
        r = 40 + 4*p
        a(f"v_permlane32_swap_b32 v{r}, v{r+2}\nv_permlane32_swap_b32 v{r+1}, v{r+3}")
    for i in range(4): a(f"v_mov_b32 v{56+i}, v{40+i}")
    for i in range(4):
        a(f"v_mov_b32_dpp v{40+i}, v{44+i} row_shr:4 row_mask:0xf bank_mask:0xa")
        a(f"v_mov_b32_dpp v{44+i}, v{56+i} row_shl:4 row_mask:0xf bank_mask:0x5")
    for p in range(2):
        a(f"buffer_store_dwordx4 v[{40+4*p}:{43+4*p}], v23, s[44:47], 0 offen offset:{256*p} sc1")
    a(f"s_add_u32 s73, s65, {WS_FY}")
    lds_wait(a, 3, 44, 8, 16)
    a("s_waitcnt vmcnt(0)")
    publish(a, 3, 20, 14, 16, 73, 4, True)
    hst(a, 2, True)
    lds_wait(a, 3, 12, 8, 16, 4)
    hst(a, 3, True)
    a(f"""s_mul_i32 s72, s58, {8*ST}
    s_add_u32 s63, s58, 4
    s_and_b32 s63, s63, 7
    s_mul_i32 s73, s63, {8*ST}
    s_lshl_b32 s63, s66, 12
    s_add_u32 s72, s72, s63
    s_add_u32 s73, s73, s63
    s_lshl_b32 s67, s66, 15""")
    for sl in range(4):
        for q in range(4):
            a(f"s_add_u32 s63, s{72 + (sl>>1)}, {(sl&1)*16384 + q*1024}")
            dma(a, 8, 36, "s67", "s63")
            a(f"s_add_u32 s67, s67, {8192 if q < 3 else 131072 - 3*8192}")
    hst(a, 6, False)
    a("s_waitcnt vmcnt(0)")
    fin(a)

    a.label("k_att")
    QA, QB, NMA, NMB, SA, SB, PA, PB, OA, OB, KB, VB = 4, 8, 12, 28, 44, 60, 76, 84, 92, 108, 124, 132
    vK, vV, vKn, vVn, vKl, vVl, vC, T = 148, 149, 150, 151, 2, 152, 153, 154
    K2, NA, NB_ = T + 2, T + 6, T + 10
    def early_setup():
        srd(a, 36, PX, 0x200000)
        srd(a, 40, POUT, 0x200000)
        a(f"""s_and_b32 s64, s3, 4
        s_add_u32 s71, s58, s64
        s_and_b32 s71, s71, 7
        s_mul_i32 s59, s71, 65
        s_lshr_b32 s59, s59, 2
        s_and_b32 s64, s3, 3
        s_add_u32 s59, s59, s64
        s_mov_b32 s65, {WS_KMAX}
        v_and_b32 v{T+3}, 31, v1
        v_lshrrev_b32 v3, 5, v1
        v_and_b32 v{T+4}, 15, v1
        v_lshlrev_b32 v{T+4}, 4, v{T+4}
        v_lshl_add_u32 v{T+4}, v3, 8, v{T+4}
        v_add_u32 v{T+4}, 1024, v{T+4}
        v_mov_b32 v{vVl}, 0x100000
        v_and_b32 v{T+5}, 27, v{T+3}
        v_cmp_eq_u32 vcc, 16, v{T+5}
        v_mov_b32 v{T+5}, 1536
        v_cndmask_b32 v{vVl}, v{vVl}, v{T+5}, vcc
        v_cmp_gt_u32 vcc, 16, v{T+3}
        s_mul_i32 s70, s71, {8*ST}
        v_cndmask_b32 v{vVl}, v{vVl}, v{T+4}, vcc
        v_add_u32 v{vK}, s70, v{vKl}
        v_add_u32 v{vV}, s70, v{vVl}
        s_add_u32 s71, s71, 1
        s_and_b32 s71, s71, 7
        s_mul_i32 s70, s71, {8*ST}
        v_add_u32 v{vKn}, s70, v{vKl}
        v_add_u32 v{vVn}, s70, v{vVl}
        s_lshl_b32 s63, s64, 11
        s_add_u32 s63, s63, {QX}
        v_add_u32 v{T+4}, s63, v2
        v_lshlrev_b32 v{T+1}, 3, v1""")
        for r in list(range(PB, PB + 8, 2)) + list(range(OA, OA + 32, 2)) + list(range(VB + 8, VB + 16, 2)):
            a(f"v_pk_mov_b32 v[{r}:{r+1}], 0, 0")
    a(f"""s_lshr_b32 s63, s3, 2
    s_lshl_b32 s62, s60, 1
    s_add_u32 s62, s62, s63
    s_lshl_b32 s62, s62, 5
    s_lshl_b32 s63, s61, 2
    s_add_u32 s62, s62, s63
    s_and_b32 s63, s3, 3
    s_add_u32 s62, s62, s63
    s_lshl_b32 s62, s62, 10
    s_add_u32 s62, s62, {WS_O}
    v_mov_b32 v{vC}, {CNT}
    s_waitcnt lgkmcnt(0)""")
    srd(a, WSR, PWS, WS_SIZE)
    a(f"""s_add_u32 s78, s30, {WS_FY}
    s_addc_u32 s79, s31, 0
    s_load_dword s{TAG}, s[78:79], 0
    s_mov_b32 s16, s59""")
    early_setup()
    a(f"""s_cmp_lt_u32 s3, 4
    s_cbranch_scc1 a_gemm
    s_cmp_lg_u32 s3, 4
    s_cbranch_scc1 a_idle""")
    GW = 64
    a(f"""s_and_b32 s68, s61, 1
    v_lshrrev_b32 v8, 4, v1
    v_lshlrev_b32 v8, 4, v8
    s_lshr_b32 s64, s76, 1
    s_lshl_b32 s65, s60, 1
    s_add_u32 s64, s64, s65
    s_mul_i32 s64, s64, {ST}
    s_and_b32 s65, s76, 1
    v_and_b32 v17, 15, v1
    v_lshrrev_b32 v18, 4, v1
    v_xor_b32 v19, v17, v18
    v_lshlrev_b32 v19, 4, v19
    v_lshl_add_u32 v19, v17, 8, v19
    s_lshl_b32 s63, s76, 12
    v_add_u32 v20, s63, v19
    v_xor_b32 v21, 64, v20
    v_xor_b32 v22, 128, v20
    v_xor_b32 v23, 192, v20
    v_bfe_u32 v19, v1, 2, 2
    v_lshl_add_u32 v19, v18, 3, v19
    v_lshlrev_b32 v19, 5, v19
    v_and_b32 v24, 3, v1
    v_lshl_add_u32 v24, v24, 3, v19
    v_add_u32 v24, {WKV}, v24
    v_lshlrev_b32 v17, 4, v17
    v_lshrrev_b32 v18, 5, v1
    v_lshl_add_u32 v17, v18, 3, v17
    v_bfe_u32 v18, v1, 4, 1
    v_mov_b32 v9, 0
    s_lshr_b32 s69, s2, 2
    s_lshl_b32 s69, s69, {OPT.get("fsh", 6)}
    s_and_b32 s63, s2, 3
    s_lshl_b32 s63, s63, 2
    s_add_u32 s69, s69, s63
    s_add_u32 s69, s69, {WS_FKV}
    s_cmp_lg_u32 s68, 0
    s_cbranch_scc1 a_vjob""")
    JD, JG, JX, JW = 28, 4, 32, 48
    def job(ktype):
        def reads(n):
            kc, e = n >> 2, n & 3
            a(f"ds_read_b128 v[{JX+4*e}:{JX+4*e+3}], v{20+e} offset:{kc*16384}")
            a(f"ds_read_b64_tr_b16 v[{JW+4*e}:{JW+4*e+1}], v24 offset:{kc*4096 + e*1024}")
            a(f"ds_read_b64_tr_b16 v[{JW+4*e+2}:{JW+4*e+3}], v24 offset:{kc*4096 + e*1024 + 128}")
        for n in range(4): reads(n)
        for n in range(16):
            e = n & 3
            a(f"s_waitcnt lgkmcnt({3*min(3, 15-n)})")
            x, w = f"v[{JX+4*e}:{JX+4*e+3}]", f"v[{JW+4*e}:{JW+4*e+3}]"
            c = "0" if n == 0 else f"v[{JD}:{JD+3}]"
            if ktype:
                a(f"v_mfma_f32_16x16x32_bf16 v[{JD}:{JD+3}], {w}, {x}, {c}")
            else:
                a(f"v_mfma_f32_16x16x32_bf16 v[{JD}:{JD+3}], {x}, {w}, {c}")
            if n + 4 < 16: reads(n + 4)
    a(f"""s_lshl_b32 s65, s65, 8
    s_add_u32 s64, s64, s65
    v_lshl_add_u32 v17, v18, 9, v17
    s_lshl_b32 s65, s60, 2
    s_add_u32 s65, s65, s76
    s_lshl_b32 s65, s65, 2
    s_add_u32 s65, s65, {WS_KMAX}
    s_waitcnt lgkmcnt(0)
    s_mul_i32 s{TAG}, s{TAG}, 0x9e3779b1
    s_add_u32 s{TAG}, s{TAG}, 0x7f4a7c15
    s_barrier""")
    job(True)
    a(f"s_mov_b32 s63, {f32(CSCALE)}")
    for e in range(4): a(f"v_mul_f32 v{JD+e}, s63, v{JD+e}")
    a(f"""v_cvt_pk_bf16_f32 v36, v{JD}, v{JD+1}
    v_cvt_pk_bf16_f32 v37, v{JD+2}, v{JD+3}
    buffer_store_dwordx2 v[36:37], v17, s[{WSR}:{WSR+3}], s64 offen sc1
    v_mul_f32 v38, v{JD}, v{JD}
    v_fmac_f32 v38, v{JD+1}, v{JD+1}
    v_fmac_f32 v38, v{JD+2}, v{JD+2}
    v_fmac_f32 v38, v{JD+3}, v{JD+3}
    v_mov_b32 v39, v38
    v_permlane32_swap_b32 v38, v39
    v_add_f32 v38, v38, v39
    v_mov_b32 v39, v38
    v_permlane16_swap_b32 v38, v39
    v_add_f32 v38, v38, v39
    v_max_f32_dpp v38, v38, v38 row_ror:8 row_mask:0xf bank_mask:0xf
    v_max_f32_dpp v38, v38, v38 row_ror:4 row_mask:0xf bank_mask:0xf
    v_max_f32_dpp v38, v38, v38 row_ror:2 row_mask:0xf bank_mask:0xf
    v_max_f32_dpp v38, v38, v38 row_ror:1 row_mask:0xf bank_mask:0xf
    s_mov_b64 exec, 1
    buffer_store_dword v38, v9, s[{WSR}:{WSR+3}], s65 offen sc1
    s_branch a_jobdone""")
    a.label("a_vjob")
    a(f"""s_mul_i32 s65, s65, 528
    s_add_u32 s64, s64, s65
    v_mov_b32 v12, 0x3f803f80
    v_mov_b32 v13, 0x3f803f80
    v_mov_b32 v14, 0x3f803f80
    v_mov_b32 v15, 0x3f803f80
    s_mov_b64 exec, 1
    buffer_store_dwordx4 v[12:15], v9, s[{WSR}:{WSR+3}], s64 offen offset:1536 sc1
    s_mov_b64 exec, -1
    v_lshl_add_u32 v17, v18, 8, v17
    s_waitcnt lgkmcnt(0)
    s_mul_i32 s{TAG}, s{TAG}, 0x9e3779b1
    s_add_u32 s{TAG}, s{TAG}, 0x7f4a7c15
    s_barrier""")
    job(False)
    a(f"""v_cvt_pk_bf16_f32 v36, v{JD}, v{JD+1}
    v_cvt_pk_bf16_f32 v37, v{JD+2}, v{JD+3}
    buffer_store_dwordx2 v[36:37], v17, s[{WSR}:{WSR+3}], s64 offen offset:1024 sc1
    s_mov_b64 exec, 1""")
    a.label("a_jobdone")
    ast(a, 1, False)
    a(f"""v_mov_b32 v11, 1
    ds_write_b32 v{vC}, v11 offset:56
    v_mov_b32 v10, s{TAG}
    v_mov_b32 v11, 2
    s_waitcnt vmcnt(0)
    buffer_store_dword v10, v9, s[{WSR}:{WSR+3}], s69 offen sc1
    ds_write_b32 v{vC}, v11 offset:56
    s_mov_b64 exec, -1
    s_branch a_fetch""")
    a.label("a_idle")
    a("s_getpc_b64 s[48:49]")
    a.label("a_pc")
    a(f"""s_sub_u32 s48, s48, a_pc-{KN}
    s_subb_u32 s49, s49, 0
    s_mov_b32 s50, code_end-{KN}
    s_mov_b32 s51, 0x20000
    s_lshr_b32 s63, s2, 3
    s_lshl_b32 s63, s63, 10
    s_cmp_lg_u32 s3, 5
    s_cbranch_scc1 a_wqpf
    buffer_load_dwordx4 v[12:15], v2, s[48:51], s63 offen
    s_and_b32 s68, s61, 1
    s_cmp_lg_u32 s68, 0
    s_cbranch_scc1 a_bj
    v_lshrrev_b32 v8, 4, v1
    v_lshlrev_b32 v8, 4, v8""")
    srd(a, 52, PGW, 1024)
    for p in range(4):
        a(f"s_add_u32 s63, s16, {p}\ns_and_b32 s63, s63, 3\ns_lshl_b32 s63, s63, 8")
        for e in range(4):
            r = GW + 16*p + 4*e
            a(f"buffer_load_dwordx4 v[{r}:{r+3}], v8, s[52:55], s63 offen offset:{64*e}")
    a(f"""v_and_b32 v17, 15, v1
    v_lshrrev_b32 v18, 4, v1
    v_xor_b32 v19, v17, v18
    v_lshlrev_b32 v19, 4, v19
    v_lshl_add_u32 v19, v17, 8, v19
    s_lshl_b32 s63, s76, 12
    v_add_u32 v20, s63, v19
    v_xor_b32 v21, 64, v20
    v_xor_b32 v22, 128, v20
    v_xor_b32 v23, 192, v20
    s_lshl_b32 s65, s60, 2
    s_add_u32 s65, s65, s76
    s_lshl_b32 s67, s65, 6
    s_add_u32 s67, s67, {WS_G}
    v_lshlrev_b32 v25, 2, v1
    s_waitcnt lgkmcnt(0)
    s_mul_i32 s{TAG}, s{TAG}, 0x9e3779b1
    s_add_u32 s{TAG}, s{TAG}, 0x7f4a7c15
    s_barrier""")
    for n in range(8): a(f"ds_read_b128 v[{32+4*n}:{35+4*n}], v{20+(n&3)} offset:{(n>>2)*16384}")
    a("s_waitcnt vmcnt(0)")
    for n in range(16):
        a(f"s_waitcnt lgkmcnt({min(7, 15-n)})")
        r = 32 + 4*(n & 7)
        a(f"v_mfma_f32_16x16x32_bf16 v[{JG}:{JG+3}], v[{GW+4*n}:{GW+4*n+3}], v[{r}:{r+3}], " + ("0" if n == 0 else f"v[{JG}:{JG+3}]"))
        if n + 8 < 16: a(f"ds_read_b128 v[{r}:{r+3}], v{20+(n&3)} offset:{((n+8)>>2)*16384}")
    a(f"""s_mov_b32 s63, {f32(-math.log2(math.e))}
    v_mul_f32 v10, s63, v{JG}
    v_exp_f32 v10, v10
    v_add_f32 v10, 1.0, v10
    v_rcp_f32 v10, v10
    s_mov_b64 exec, 0xffff
    buffer_store_dword v10, v25, s[{WSR}:{WSR+3}], s67 offen sc1
    s_mov_b64 exec, -1""")
    for r in list(range(PB, PB + 8, 2)) + list(range(OA, OA + 32, 2)):
        a(f"v_pk_mov_b32 v[{r}:{r+1}], 0, 0")
    a("s_branch a_fetch")
    a.label("a_wqpf")
    srd(a, 48, PWQ, 0x80000)
    a("""s_lshl_b32 s63, s63, 4
    s_and_b32 s64, s3, 1
    s_lshl_b32 s64, s64, 13
    s_add_u32 s63, s63, s64
    s_add_u32 s64, s63, 4096""")
    for i in range(8 if OPT.get("wqpf", 1) else 0):
        a(f"buffer_load_dwordx4 v[{8+4*i}:{11+4*i}], v2, s[48:51], s{63 + (i>>2)} offen offset:{1024*(i&3)}")
    if OPT.get("dbj"):
        a(f"s_mov_b32 s17, {OPT['dbj']}\ns_cmp_lg_u32 s3, 6\ns_cbranch_scc1 a_bj")
        a.label("dly2")
        a("s_nop 15\ns_nop 15\ns_nop 15\ns_nop 15\ns_sub_u32 s17, s17, 1\ns_cmp_lg_u32 s17, 0\ns_cbranch_scc1 dly2")
    a.label("a_bj")
    a(f"""s_waitcnt lgkmcnt(0)
    s_mul_i32 s{TAG}, s{TAG}, 0x9e3779b1
    s_add_u32 s{TAG}, s{TAG}, 0x7f4a7c15
    s_barrier""")
    a.label("a_fetch")
    ast(a, 2, False)
    a(f"s_mov_b32 s65, {WS_KMAX}\ns_barrier\ns_waitcnt vmcnt(0)\ns_barrier\ns_barrier\ns_branch a_common")
    a.label("a_gemm")
    vB, vAg, ACC, FA, FB = 124, 132, 68, 4, 36
    a(f"""s_lshr_b32 s63, s3, 1
    s_lshl_b32 s63, s63, 13
    v_and_b32 v8, 31, v1
    v_lshrrev_b32 v9, 5, v1
    v_and_b32 v10, 15, v1
    v_xor_b32 v10, v10, v9
    v_lshlrev_b32 v10, 4, v10
    v_lshl_add_u32 v10, v8, 8, v10
    v_add_u32 v{vB}, s63, v10""")
    for e in range(1, 8): a(f"v_xor_b32 v{vB+e}, {e*32}, v{vB}")
    a(f"""s_and_b32 s63, s3, 1
    v_bfe_u32 v8, v1, 2, 2
    v_lshrrev_b32 v10, 1, v8
    v_xor_b32 v10, s63, v10
    v_lshlrev_b32 v10, 6, v10
    v_lshl_add_u32 v8, v9, 3, v8
    v_lshl_add_u32 v10, v8, 7, v10
    v_bfe_u32 v8, v1, 4, 1
    v_lshl_add_u32 v10, v8, 5, v10
    v_and_b32 v8, 3, v1
    v_lshl_add_u32 v10, v8, 3, v10
    v_add_u32 v{vAg}, {WT}, v10
    s_lshl_b32 s63, s63, 12
    s_lshr_b32 s64, s3, 1
    s_lshl_b32 s64, s64, 10
    s_add_u32 s63, s63, s64
    s_add_u32 s63, s63, {QX}
    v_add_u32 v133, s63, v2
    s_waitcnt lgkmcnt(0)
    s_mul_i32 s{TAG}, s{TAG}, 0x9e3779b1
    s_add_u32 s{TAG}, s{TAG}, 0x7f4a7c15
    s_barrier""")
    def gemm_half(h):
        def reads(n):
            kc, e = n >> 3, n & 7
            a(f"ds_read_b128 v[{FB+4*e}:{FB+4*e+3}], v{vB+e} offset:{kc*16384}")
            a(f"ds_read_b64_tr_b16 v[{FA+4*e}:{FA+4*e+1}], v{vAg} offset:{kc*16384 + e*2048}")
            a(f"ds_read_b64_tr_b16 v[{FA+4*e+2}:{FA+4*e+3}], v{vAg} offset:{kc*16384 + e*2048 + 512}")
        n0 = 16*h
        for n in range(5): reads(n0 + n)
        for n in range(16):
            e = n & 7
            a(f"s_waitcnt lgkmcnt({3*min(4, 15-n)})")
            MF(a, ACC, FA + 4*e, FB + 4*e, None if (h == 0 and n == 0) else ACC)
            if n + 5 < 16: reads(n0 + n + 5)
    if OPT.get("qcnt"):
        lds_wait(a, vC, 48, 4, 8); ast(a, 1, False); gemm_half(0)
        lds_wait(a, vC, 60, 4, 8); gemm_half(1)
    else:
        a("s_barrier"); ast(a, 1, False); gemm_half(0)
        a("s_barrier"); gemm_half(1)
    for i in range(8): a(f"v_cvt_pk_bf16_f32 v{FA+i}, v{ACC+2*i}, v{ACC+2*i+1}")
    a(f"""ds_write_b128 v133, v[{FA}:{FA+3}]
    ds_write_b128 v133, v[{FA+4}:{FA+7}] offset:2048""")
    ast(a, 2, False)
    a("s_waitcnt lgkmcnt(0)\ns_barrier")
    a.label("a_common")
    a(f"""ds_read_b128 v[{QA}:{QA+3}], v{T+4}
    ds_read_b128 v[{QB}:{QB+3}], v{T+4} offset:1024""")
    lds_wait(a, vC, 0, 1, T)
    if DIAG:
        a("s_cmp_lt_u32 s3, 5\ns_cbranch_scc1 a_nost")
        ast(a, 1, False)
        a.label("a_nost")
    a(f"buffer_load_dwordx2 v[{K2}:{K2+1}], v{T+1}, s[{WSR}:{WSR+3}], s65 offen sc1")
    first_batch(3)
    for i in range(4): a(f"v_dot2_f32_bf16 v{NA+i}, v{QA+i}, v{QA+i}, 0")
    for i in range(4): a(f"v_dot2_f32_bf16 v{NB_+i}, v{QB+i}, v{QB+i}, 0")
    a(f"""v_mov_b32 v{SB+14}, 0
    v_mov_b32 v{SB+15}, 0
    v_add_f32 v{NA}, v{NA}, v{NA+1}
    v_add_f32 v{NA+2}, v{NA+2}, v{NA+3}
    v_add_f32 v{NB_}, v{NB_}, v{NB_+1}
    v_add_f32 v{NB_+2}, v{NB_+2}, v{NB_+3}
    v_add_f32 v{NA}, v{NA}, v{NA+2}
    v_add_f32 v{NB_}, v{NB_}, v{NB_+2}
    v_mov_b32 v{NA+1}, v{NA}
    v_mov_b32 v{NB_+1}, v{NB_}
    v_permlane32_swap_b32 v{NA}, v{NA+1}
    v_permlane32_swap_b32 v{NB_}, v{NB_+1}
    v_add_f32 v{NA}, v{NA}, v{NA+1}
    v_add_f32 v{NB_}, v{NB_}, v{NB_+1}""")
    a(f"""s_waitcnt vmcnt(3)
    v_max_f32 v{K2}, v{K2}, v{K2+1}
    v_max_f32_dpp v{K2}, v{K2}, v{K2} row_ror:8 row_mask:0xf bank_mask:0xf
    v_max_f32_dpp v{K2}, v{K2}, v{K2} row_ror:4 row_mask:0xf bank_mask:0xf
    v_max_f32_dpp v{K2}, v{K2}, v{K2} row_ror:2 row_mask:0xf bank_mask:0xf
    v_max_f32_dpp v{K2}, v{K2}, v{K2} row_ror:1 row_mask:0xf bank_mask:0xf
    v_mov_b32 v{K2+1}, v{K2}
    v_permlane32_swap_b32 v{K2}, v{K2+1}
    v_max_f32 v{K2}, v{K2}, v{K2+1}
    v_mov_b32 v{K2+1}, v{K2}
    v_permlane16_swap_b32 v{K2}, v{K2+1}
    v_max_f32 v{K2}, v{K2}, v{K2+1}
    v_mul_f32 v{NA}, v{NA}, v{K2}
    v_mul_f32 v{NB_}, v{NB_}, v{K2}
    s_mov_b32 s72, {f32(1600.0)}
    v_cmp_nle_f32 vcc, v{NA}, s72
    v_cmp_nle_f32 s[74:75], v{NB_}, s72
    v_sqrt_f32 v{NA}, v{NA}
    v_sqrt_f32 v{NB_}, v{NB_}
    s_or_b64 vcc, vcc, s[74:75]
    v_mov_b32 v{T+1}, 1
    s_waitcnt vmcnt(0)
    s_barrier""")
    a("s_cbranch_vccz a_fast")
    lds_wait(a, vC, 60, 4, T)
    a(f"""v_mov_b32 v{NA}, 0xff800000
    v_mov_b32 v{NB_}, 0xff800000
    v_mov_b32 v{T}, v{vKl}
    s_mov_b32 s74, 64""")
    a.label("a_maxloop")
    a(f"ds_read_b128 v[{KB}:{KB+3}], v{T}\nv_add_u32 v{T}, {ST}, v{T}\ns_waitcnt lgkmcnt(0)")
    MF(a, SA, KB, QA, None); MF(a, NMA, KB, QB, None)
    for i in range(8): a(f"v_max3_f32 v{NA}, v{NA}, v{SA+2*i}, v{SA+2*i+1}")
    for i in range(8): a(f"v_max3_f32 v{NB_}, v{NB_}, v{NMA+2*i}, v{NMA+2*i+1}")
    a(f"""s_sub_u32 s74, s74, 1
    s_cmp_lg_u32 s74, 0
    s_cbranch_scc1 a_maxloop
    v_mov_b32 v{NA+1}, v{NA}
    v_mov_b32 v{NB_+1}, v{NB_}
    v_permlane32_swap_b32 v{NA}, v{NA+1}
    v_permlane32_swap_b32 v{NB_}, v{NB_+1}
    v_max_f32 v{NA}, v{NA}, v{NA+1}
    v_max_f32 v{NB_}, v{NB_}, v{NB_+1}""")
    a.label("a_fast")
    ast(a, 3, False)
    a(f"""ds_read_b128 v[{KB}:{KB+3}], v{vK}
    ds_read_b128 v[{KB+4}:{KB+7}], v{vK} offset:{ST}
    ds_read_b128 v[{VB}:{VB+3}], v{vV}
    ds_read_b128 v[{VB+4}:{VB+7}], v{vV} offset:528""")
    for i in range(4): a(f"v_mov_b32 v{PA+i}, -1")
    a(f"buffer_store_dwordx4 v[{PA}:{PA+3}], v2, s[{WSR}:{WSR+3}], s62 offen sc1")
    a(f"v_sub_f32 v{NA}, 0, v{NA}\nv_sub_f32 v{NB_}, 0, v{NB_}")
    for i in range(8): a(f"v_pk_mov_b32 v[{NMA+2*i}:{NMA+2*i+1}], v[{NA}:{NA+1}], v[{NA}:{NA+1}] op_sel:[0,0]")
    for i in range(8): a(f"v_pk_mov_b32 v[{NMB+2*i}:{NMB+2*i+1}], v[{NB_}:{NB_+1}], v[{NB_}:{NB_+1}] op_sel:[0,0]")
    a("s_waitcnt lgkmcnt(0)")
    MF(a, SA, KB, QA, NMA)
    a("s_mov_b32 s73, 4\ns_setprio 2\ns_nop 9")
    a(".p2align 6")
    a.label("a_loop")
    for tt in range(8):
        cur = tt & 1; nxt = cur ^ 1
        Kc, Kn = KB + 4*cur, KB + 4*nxt
        Vc, Vn = VB + 8*cur, VB + 8*nxt
        kreg, koff = (vK, (tt + 2) * ST) if tt < 6 else (vKn, (tt - 6) * ST)
        vreg, voff = (vV, (tt + 1) * ST) if tt < 7 else (vVn, 0)
        for ph in range(2):
            S, P, Po, So, O = (SA, PA, PB, SB, OA) if ph == 0 else (SB, PB, PA, SA, OB)
            ex = lambda i: a(f"v_exp_f32 v{S+i}, v{S+i}")
            cv = lambda j: a(f"v_cvt_pk_bf16_f32 v{P+j}, v{S+2*j}, v{S+2*j+1}")
            ex(0)
            a(f"v_cvt_pk_bf16_f32 v{Po+7}, v{So+14}, v{So+15}")
            ex(1)
            if ph == 0:
                MF(a, SB, Kc, QB, NMB)
                a(f"ds_read_b128 v[{Kc}:{Kc+3}], v{kreg} offset:{koff}")
            else:
                MF(a, SA, Kn, QA, NMA)
                if tt == 7: a("s_add_u32 s71, s71, 1")
                if tt == 6: a("s_sub_u32 s73, s73, 1")
                if tt == 2: a("s_cmp_eq_u32 s73, 4")
            ex(2); ex(3); cv(0); ex(4); ex(5); cv(1)
            if ph == 0:
                MF(a, OB, Vn + 4, PB + 4, OB)
                a(f"ds_read_b128 v[{Vn}:{Vn+3}], v{vreg} offset:{voff}")
            else:
                MF(a, OA, Vc + 4, PA + 4, OA)
                a("s_waitcnt lgkmcnt(0)")
            ex(6); ex(7); cv(2); ex(8); ex(9); cv(3); ex(10); ex(11)
            MF(a, O, Vc, P, O)
            if ph == 0:
                a(f"ds_read_b128 v[{Vn+4}:{Vn+7}], v{vreg} offset:{voff+528}")
            elif tt == 7:
                a("s_and_b32 s71, s71, 7")
            cv(4); ex(12); ex(13); cv(5); ex(14); ex(15)
            if ph == 1 and tt == 7:
                a(f"""s_mul_i32 s70, s71, {8*ST}
                v_mov_b32 v{vK}, v{vKn}
                v_mov_b32 v{vV}, v{vVn}
                v_add_u32 v{vKn}, s70, v{vKl}
                v_add_u32 v{vVn}, s70, v{vVl}""")
            cv(6)
        if tt == 2:
            a("s_cbranch_scc1 a_chk1")
            a.label("a_ret1")
    a("s_cmp_eq_u32 s73, 1\ns_cbranch_scc1 a_it2\ns_cmp_eq_u32 s73, 0\ns_cbranch_scc1 a_done")
    a("s_cmp_eq_u32 s73, 3\ns_cbranch_scc0 a_it1")
    ast(a, 4, False)
    a("s_waitcnt vmcnt(0)")
    lds_add(a, vC, 44, T + 1)
    lds_wait(a, vC, 8, 4, T)
    a("s_branch a_loop")
    a.label("a_chk1")
    lds_wait(a, vC, 4, 4, T)
    a("s_branch a_ret1")
    a.label("a_it1")
    lds_add(a, vC, 12, T + 1)
    lds_wait(a, vC, 60, 4, T)
    a("s_setprio 1\ns_branch a_loop")
    a.label("a_it2")
    OF, WF, C0, C1, AX, YR, GR = 12, 44, 108, 124, 140, 148, 152
    vWr, vRd, vRow, vG, XR, vWo, vY, vWr4, vRd4 = 156, 157, 158, 159, 160, 164, 165, 166, 167
    a(f"""s_and_b32 s66, s3, 1
    s_lshr_b32 s67, s3, 1
    s_lshl_b32 s63, s66, 5
    s_add_u32 s63, s63, s56
    v_and_b32 v{vG}, 31, v1
    v_add_u32 v{vG}, s63, v{vG}
    v_lshlrev_b32 v{vRow}, 3, v3
    v_lshl_add_u32 v{vRow}, v{vG}, 10, v{vRow}
    v_lshlrev_b32 v{vG}, 2, v{vG}
    s_lshl_b32 s69, s67, 5
    s_lshl_b32 s63, s57, 1
    s_add_u32 s69, s69, s63
    buffer_load_dwordx2 v[{XR}:{XR+1}], v{vRow}, s[36:39], s69 offen
    buffer_load_dwordx2 v[{XR+2}:{XR+3}], v{vRow}, s[36:39], s69 offen offset:16
    v_lshl_add_u32 v{vRow}, v3, 3, v{vRow}
    {"buffer_load_dword v%d, v%d, s[40:43], s69 offen" % (T + 1, vRow) if OPT.get("touch") else ""}
    s_cmp_lt_u32 s3, 3
    s_cselect_b32 s63, 0, {OX1 - 3*2304 - OX0}
    s_mul_i32 s64, s3, 2304
    s_add_u32 s63, s63, s64
    s_add_u32 s63, s63, {OX0}
    v_add_u32 v{vWr}, s63, v2
    v_lshl_add_u32 v{vWr4}, v1, 2, s63
    s_xor_b32 s65, s3, 4
    s_cmp_lt_u32 s65, 3
    s_cselect_b32 s63, 0, {OX1 - 3*2304 - OX0}
    s_mul_i32 s64, s65, 2304
    s_add_u32 s63, s63, s64
    s_add_u32 s63, s63, {OX0}
    v_add_u32 v{vRd}, s63, v2
    v_lshl_add_u32 v{vRd4}, v1, 2, s63
    s_lshl_b32 s68, s60, 1
    s_add_u32 s68, s68, s66
    s_lshl_b32 s68, s68, 5
    s_lshl_b32 s63, s67, 3
    s_add_u32 s68, s68, s63
    s_lshl_b32 s68, s68, 10
    s_add_u32 s68, s68, {WS_O}
    s_add_u32 s59, s68, 4096
    s_lshl_b32 s63, s67, 1
    s_and_b32 s63, s63, 4
    s_add_u32 s63, s63, s58
    s_and_b32 s63, s63, 7
    s_mul_i32 s63, s63, {8*ST}
    s_and_b32 s64, s67, 1
    s_lshl_b32 s64, s64, 14
    s_add_u32 s63, s63, s64
    v_bfe_u32 v{vY}, v1, 2, 2
    v_lshrrev_b32 v{vWo}, 1, v{vY}
    v_lshl_add_u32 v{vY}, v3, 2, v{vY}
    v_lshlrev_b32 v{vY}, 7, v{vY}
    v_bfe_u32 v{T}, v1, 4, 1
    v_lshl_add_u32 v{vY}, v{T}, 5, v{vY}
    v_and_b32 v{T}, 3, v1
    v_lshl_add_u32 v{vY}, v{T}, 3, v{vY}
    v_lshl_add_u32 v{vWo}, v{vWo}, 6, v{vY}
    v_add_u32 v{vWo}, s63, v{vWo}
    s_lshl_b32 s63, s67, 11
    s_lshl_b32 s64, s66, 6
    s_add_u32 s63, s63, s64
    s_add_u32 s63, s63, {YT}
    v_add_u32 v{vY}, s63, v{vY}
    s_lshl_b32 s63, s66, 2
    s_add_u32 s63, s63, s58
    s_add_u32 s63, s63, 2
    s_and_b32 s63, s63, 7
    s_mul_i32 s72, s63, {8*ST}
    s_mov_b32 s76, {WS_G}
    s_setprio 0
    s_cmp_lt_u32 s3, 4
    s_cbranch_scc1 a_loop""")
    if not OPT.get("abl"): lds_wait(a, vC, 20, 4, T, 2)
    a("s_branch a_loop")
    a.label("a_done")
    stamp(a, 5)
    a(f"v_cvt_pk_bf16_f32 v{PB+7}, v{SB+14}, v{SB+15}\ns_cmp_ge_u32 s3, 4")
    MF(a, OB, VB + 12, PB + 4, OB)
    a(f"""s_cbranch_scc1 a_red1
    v_lshlrev_b32 v10, 6, v1
    s_lshl_b32 s63, s61, 11
    v_add_u32 v10, s63, v10
    s_lshl_b32 s63, s60, 6
    s_mov_b32 exec_lo, 0
    v_and_b32 v10, 7, v1
    v_lshlrev_b32 v10, 11, v10
    v_add_u32 v10, s63, v10
    s_mov_b32 exec_lo, -1
    s_mov_b32 s73, {WS_FY}
    s_mov_b32 s75, {1 if OPT.get("abl") else 0x40000}
    v_lshrrev_b32 v7, 3, v1
    v_and_b32 v8, 7, v1
    v_lshlrev_b32 v8, 4, v8
    v_lshl_add_u32 v8, v7, 12, v8
    s_lshl_b32 s64, s3, 4
    s_add_u32 s64, s64, s57
    s_lshl_b32 s64, s64, 12
    s_lshl_b32 s63, s56, 1
    s_add_u32 s64, s64, s63
    s_add_u32 s64, s64, {WS_Y}
    s_add_u32 s65, s64, 32768
    s_lshl_b32 s63, s3, 11
    s_add_u32 s63, s63, {YT}
    v_add_u32 v7, s63, v2""")
    a.label("a_ypoll")
    a(f"""buffer_load_dwordx2 v[20:21], v10, s[{WSR}:{WSR+3}], s73 offen sc1
    s_sub_u32 s75, s75, 1
    s_waitcnt vmcnt(0)
    v_cmp_ne_u32 vcc, s{TAG}, v20
    s_cbranch_vccz a_yready
    s_sleep 4
    s_cmp_lg_u32 s75, 0
    s_cbranch_scc1 a_ypoll""")
    a.label("a_yready")
    a(f"""buffer_load_dwordx4 v[12:15], v8, s[{WSR}:{WSR+3}], s64 offen sc1
    buffer_load_dwordx4 v[16:19], v8, s[{WSR}:{WSR+3}], s65 offen sc1
    s_getreg_b32 s63, hwreg(HW_REG_XCC_ID)
    v_cmp_ne_u32 vcc, s63, v21
    s_cmp_eq_u32 vcc_hi, 0
    s_cselect_b32 s63, 1, 0
    v_mov_b32 v11, s63
    ds_write_b32 v{vC}, v11 offset:48
    s_waitcnt vmcnt(1)
    ds_write_b128 v7, v[12:15]
    s_waitcnt vmcnt(0)
    ds_write_b128 v7, v[16:19] offset:1024""")
    for (lbl, W, Kp) in (("", OB, OA), ("a_red1", OA, OB)):
        if lbl: a.label(lbl)
        a(f"""ds_write_b128 v{vWr}, v[{W}:{W+3}]
        ds_write_b128 v{vWr}, v[{W+4}:{W+7}] offset:1024
        ds_write_b32 v{vWr4}, v{W+8} offset:2048
        v_xor_b32 v9, 64, v{vWo}
        s_mov_b32 s75, 0x40000
        s_waitcnt lgkmcnt(0)
        s_barrier
        ds_read_b32 v10, v{vC} offset:48
        ds_read_b32 v{SA+8}, v{vRd4} offset:2048
        ds_read_b128 v[{SA}:{SA+3}], v{vRd}
        ds_read_b128 v[{SA+4}:{SA+7}], v{vRd} offset:1024
        ds_read_b64_tr_b16 v[{YR}:{YR+1}], v{vY}
        ds_read_b64_tr_b16 v[{YR+2}:{YR+3}], v{vY} offset:1024
        s_waitcnt lgkmcnt(4)
        buffer_load_dword v{GR}, v{vG}, s[{WSR}:{WSR+3}], s76 offen sc1
        v_readfirstlane_b32 s63, v10
        v_add_f32 v{Kp+8}, v{Kp+8}, v{SA+8}
        v_rcp_f32 v{T}, v{Kp+8}
        s_waitcnt lgkmcnt(2)""")
        for i in range(8): a(f"v_add_f32 v{Kp+i}, v{Kp+i}, v{SA+i}")
        for i in range(8): a(f"v_mul_f32 v{Kp+i}, v{Kp+i}, v{T}")
        for i in range(4): a(f"v_cvt_pk_bf16_f32 v{4+i}, v{Kp+2*i}, v{Kp+2*i+1}")
        if not lbl: a("s_branch a_p3")
    a.label("a_p3")
    a(f"""s_cmp_eq_u32 s63, {1 if OPT.get("oloc", 1) else 5}
    s_cbranch_scc1 a_olocal
    buffer_store_dwordx4 v[4:7], v2, s[{WSR}:{WSR+3}], s62 offen sc1
    s_branch a_ostored""")
    a.label("a_olocal")
    a(f"buffer_store_dwordx4 v[4:7], v2, s[{WSR}:{WSR+3}], s62 offen {('', 'nt', 'sc0')[OPT.get('oflag', 0)]}")
    a.label("a_ostored")
    ast(a, 2, True)
    for e in range(8):
        for mt in range(2):
            r = WF + 8*e + 4*mt
            if e in (3, 5, 7) and mt == 0: a("s_waitcnt lgkmcnt(6)")
            a(f"ds_read_b64_tr_b16 v[{r}:{r+1}], v{(vWo, 9)[mt]} offset:{e*2048}")
            a(f"ds_read_b64_tr_b16 v[{r+2}:{r+3}], v{(vWo, 9)[mt]} offset:{e*2048+1024}")
    if OPT.get("oack"): a("s_waitcnt vmcnt(0)")
    ast(a, 3, True)
    for i in range(8):
        a(f"buffer_load_dwordx4 v[{OF+4*i}:{OF+4*i+3}], v2, s[{WSR}:{WSR+3}], s{68 if i < 4 else 59} offen offset:{1024*(i&3)} sc1")
    a(f"s_waitcnt vmcnt({8 if OPT.get('oack') else 9})\nv_sub_f32 v{GR+1}, 1.0, v{GR}")
    for aa in range(2):
        x0, x1, y0, y1, t = XR + 2*aa, XR + 2*aa + 1, YR + 2*aa, YR + 2*aa + 1, AX + 4*aa
        a(f"""v_lshlrev_b32 v{t}, 16, v{x0}
        v_and_b32 v{t+1}, 0xffff0000, v{x0}
        v_lshlrev_b32 v{t+2}, 16, v{x1}
        v_and_b32 v{t+3}, 0xffff0000, v{x1}
        v_lshlrev_b32 v154, 16, v{y0}
        v_and_b32 v155, 0xffff0000, v{y0}
        v_lshlrev_b32 v156, 16, v{y1}
        v_and_b32 v157, 0xffff0000, v{y1}""")
        for e in range(4): a(f"v_mul_f32 v{t+e}, v{t+e}, v{154+e}")
        for e in range(4): a(f"v_mul_f32 v{t+e}, v{t+e}, v{GR}")
    a(f"""s_lshl_b32 s63, s67, 11
    s_add_u32 s63, s63, s72
    v_add_u32 v8, s63, v2
    s_lshl_b32 s63, s67, 13
    s_add_u32 s63, s63, s72
    v_add_u32 v11, s63, v2
    s_waitcnt lgkmcnt(0)""")
    for e in range(8):
        r = OF + 4*e
        a(f"s_waitcnt vmcnt({7-e})")
        a.label(f"a_ochk{e}")
        a(f"""v_max3_u32 v10, v{r}, v{r+1}, v{r+2}
        v_max_u32 v10, v10, v{r+3}
        v_cmp_eq_u32 vcc, -1, v10
        s_cbranch_vccnz a_oretry{e}""")
        a.label(f"a_ogo{e}")
        MF(a, C0, WF + 8*e, r, None if e == 0 else C0)
        MF(a, C1, WF + 8*e + 4, r, None if e == 0 else C1)
    stamp(a, 6)
    for ow in range(4):
        a(f"ds_write_b128 v8, v[{C0+8*ow}:{C0+8*ow+3}] offset:{8192*ow}")
        a(f"ds_write_b128 v8, v[{C0+8*ow+4}:{C0+8*ow+7}] offset:{8192*ow+1024}")
    a("s_waitcnt lgkmcnt(0)\ns_barrier")
    for sr in range(4):
        a(f"ds_read_b128 v[{OF+8*sr}:{OF+8*sr+3}], v11 offset:{2048*sr}")
        a(f"ds_read_b128 v[{OF+8*sr+4}:{OF+8*sr+7}], v11 offset:{2048*sr+1024}")
    a("s_waitcnt lgkmcnt(4)")
    for i in range(8): a(f"v_add_f32 v{OF+i}, v{OF+i}, v{OF+8+i}")
    a("s_waitcnt lgkmcnt(0)")
    for i in range(8): a(f"v_add_f32 v{OF+16+i}, v{OF+16+i}, v{OF+24+i}")
    for i in range(8): a(f"v_add_f32 v{OF+i}, v{OF+i}, v{OF+16+i}")
    for i in range(8): a(f"v_fmac_f32 v{AX+i}, v{OF+i}, v{GR+1}")
    for i in range(4): a(f"v_cvt_pk_bf16_f32 v{OF+i}, v{AX+2*i}, v{AX+2*i+1}")
    a(f"""v_permlane32_swap_b32 v{OF}, v{OF+2}
    v_permlane32_swap_b32 v{OF+1}, v{OF+3}
    buffer_store_dwordx4 v[{OF}:{OF+3}], v{vRow}, s[40:43], s69 offen {('', 'nt', 'sc1', 'sc0 sc1')[OPT.get('outflag', 0)]}""")
    if OPT.get("delay1"):
        a(f"s_mov_b32 s60, {OPT['delay1']}")
        a.label("dly1")
        a("s_nop 15\ns_nop 15\ns_nop 15\ns_nop 15\ns_sub_u32 s60, s60, 1\ns_cmp_lg_u32 s60, 0\ns_cbranch_scc1 dly1")
    fin(a)
    for e in range(8):
        a.label(f"a_oretry{e}")
        a("s_waitcnt vmcnt(0)")
        for i in range(e, 8):
            a(f"buffer_load_dwordx4 v[{OF+4*i}:{OF+4*i+3}], v2, s[{WSR}:{WSR+3}], s{68 if i < 4 else 59} offen offset:{1024*(i&3)} sc1")
        a(f"""s_sub_u32 s75, s75, 1
        s_waitcnt vmcnt({7-e})
        s_cmp_lg_u32 s75, 0
        s_cbranch_scc1 a_ochk{e}
        s_branch a_ogo{e}""")
    a.label("k_end")
    a("s_endpgm")
    return a.finish()

def build():
    hdr = open("cdna_kernels/" + NAME + ".s.ref").read().split("; Override launch")[0]
    out = hdr + f"; @launch grid=(256,1,1) block=(768,1,1) lds={LEND}\n"
    out += f'.amdgcn_target "amdgcn-amd-amdhsa--gfx950"\n.text\n.globl {KN}\n.p2align 8\n.type {KN},@function\n' + kernel() + "code_end:\n"
    out += f""".section .rodata,"a"
.p2align 6
.amdhsa_kernel {KN}
  .amdhsa_next_free_vgpr 168
  .amdhsa_next_free_sgpr {100 if DIAG else 80}
  .amdhsa_accum_offset 168
  .amdhsa_group_segment_fixed_size 0
  .amdhsa_kernarg_size 120
  .amdhsa_user_sgpr_count 2
  .amdhsa_user_sgpr_kernarg_segment_ptr 1
  .amdhsa_system_sgpr_workgroup_id_x 1
.end_amdhsa_kernel
"""
    return out

if __name__ == "__main__":
    for x in list(sys.argv):
        if "=" in x:
            kk, vv = x.split("="); OPT[kk] = int(vv); sys.argv.remove(x)
    if "-l" in sys.argv:
        DIAG = True; LIGHT = True; sys.argv.remove("-l")
    if "-d" in sys.argv:
        DIAG = True; sys.argv.remove("-d")
    dst = sys.argv[1] if len(sys.argv) > 1 else "cdna_kernels/" + NAME + ".s"
    open(dst, "w").write(build())
    print("wrote", dst)
```

```python
import sys, math, struct
from asmlib import Asm

NAME = "gated_mix__ssm_conv_h3__grouped_kv_mqa__prompt"
KN = NAME + "_kernel"
WS_KV, WS_KMAX, WS_G = 0x000000, 0x024000, 0x025000
WS_FKV, WS_FX, WS_FY = 0x028000, 0x02c000, 0x030000
WS_XREV, WS_O, WS_Y = 0x100000, 0x300000, 0x500000
WS_SIZE = 0x700000
ST = 2080
KVBYTES = 64 * ST
CSCALE = 0.25 * math.log2(math.e)
def f32(x): return "0x%08x" % struct.unpack("<I", struct.pack("<f", x))[0]

XT, WT, WKV = 0, 65536, 131072
QX = 149824
YT = KVBYTES
XE0, XESZ, XOOFF = KVBYTES, 8320, 4160
CNT = 149760
LEND = 163840
OX0, OX1 = 141312, 149824

DIAG = False
LIGHT = False
OPT = {"oack": 0, "oflag": 1, "cpf": 0, "dsplit": 1, "obulk": 1, "early": 1, "wqpf": 0}
WS_DIAG = 0x1000000
def ast(a, idx, tail):
    if bool(OPT.get("tail2")) == tail: stamp(a, idx)
def hst(a, idx, tail):
    if OPT.get("headst"): return
    if bool(OPT.get("tailst")) == tail: stamp(a, idx)
def hd(a, idx):
    if OPT.get("headst"): stamp(a, idx)
def stamp(a, idx, real=False):
    if not DIAG: return
    if LIGHT and idx < 8: return
    if OPT.get("dbg"): real = True
    a(f"{'s_memrealtime' if real else 's_memtime'} s[{80+2*idx}:{81+2*idx}]\ns_waitcnt lgkmcnt(0)")
def fin(a):
    if OPT.get("dbg"):
        _n[0] += 1; l = f"fin{_n[0]}"
        a(f"""s_waitcnt vmcnt(0)
        s_memrealtime s[94:95]
        s_load_dwordx2 s[68:69], s[0:1], 104
        s_waitcnt lgkmcnt(0)
        s_cmp_lg_u32 s2, 77
        s_cbranch_scc1 {l}
        s_cmp_eq_u32 s3, {OPT["dbg"]}
        s_cselect_b32 s67, 0, 32
        s_cbranch_scc1 {l}_go
        s_cmp_lg_u32 s3, 8
        s_cbranch_scc1 {l}""")
        a.label(l + "_go")
        a("s_mov_b32 s70, 256\ns_mov_b32 s71, 0x20000\ns_mov_b64 exec, 1\nv_mov_b32 v0, 0")
        for i in range(1, 8):
            a(f"s_sub_u32 s66, s{80+2*i}, s80\nv_mov_b32 v{i}, s66\nbuffer_store_dword v{i}, v0, s[68:71], s67 offen offset:{4*(i-1)}")
        a.label(l)
        a("s_endpgm")
        return
    if DIAG:
        a("s_waitcnt vmcnt(0)")
        stamp(a, 7); stamp(a, 9, True)
        a(f"""s_add_u32 s68, s32, {WS_DIAG}
        s_addc_u32 s69, s33, 0
        s_mov_b32 s70, 0x40000
        s_mov_b32 s71, 0x20000
        s_lshl_b32 s67, s2, 4
        s_add_u32 s67, s67, s3
        s_lshl_b32 s67, s67, 6
        s_mov_b64 exec, 1
        v_mov_b32 v0, 0""")
        for i in range(10):
            a(f"v_mov_b32 v1, s{80+2*i}\nbuffer_store_dword v1, v0, s[68:71], s67 offen offset:{4*i}")
    a("s_endpgm")

def srd(a, d, lo, size):
    a(f"s_mov_b32 s{d}, s{lo}\ns_mov_b32 s{d+1}, s{lo+1}\ns_mov_b32 s{d+2}, {size}\ns_mov_b32 s{d+3}, 0x20000")
def ws_srd(a):
    a(f"s_mov_b32 s32, s34\ns_mov_b32 s33, s35\ns_mov_b32 s34, {WS_SIZE}\ns_mov_b32 s35, 0x20000")
def srd_off(a, d, lo, off, size):
    a(f"s_add_u32 s{d}, s{lo}, {off}\ns_addc_u32 s{d+1}, s{lo+1}, 0\ns_mov_b32 s{d+2}, {size}\ns_mov_b32 s{d+3}, 0x20000")
def dma(a, voff, srdn, soff, m0, flags=""):
    a(f"s_mov_b32 m0, {m0}")
    a(f"buffer_load_dwordx4 v{voff}, s[{srdn}:{srdn+3}], {soff} offen {flags} lds")
PX, PK, PV, PSH, PH, PD, PWQ, PWK, PWV, PWO, PGW, POUT, PWS = 4, 6, 8, 10, 12, 14, 18, 22, 24, 26, 28, 30, 32
WSR = 32
TAG = 77
_n = [0]
def lds_wait(a, vaddr, off, val, vt, sleep=1):
    sleep = sleep * OPT.get("slmul", 1)
    _n[0] += 1; l = f"lw{_n[0]}"
    a("s_mov_b32 s75, 0x100000")
    a.label(l)
    a(f"""ds_read_b32 v{vt}, v{vaddr} offset:{off}
    s_sub_u32 s75, s75, 1
    s_waitcnt lgkmcnt(0)
    v_readfirstlane_b32 s74, v{vt}
    s_cmp_ge_u32 s74, {val}
    s_cbranch_scc1 {l}_ok
    s_sleep {sleep}
    s_cmp_lg_u32 s75, 0
    s_cbranch_scc1 {l}""")
    a.label(l + "_ok")
def lds_add(a, vaddr, off, vone):
    a(f"s_mov_b64 exec, 1\nds_add_u32 v{vaddr}, v{vone} offset:{off}\ns_mov_b64 exec, -1")
def publish(a, vaddr, off, vone, vt, sflag, nwaves, xcc=False):
    _n[0] += 1; l = f"pb{_n[0]}"
    a(f"""s_mov_b64 exec, 1
    ds_add_rtn_u32 v{vt}, v{vaddr}, v{vone} offset:{off}
    s_waitcnt lgkmcnt(0)
    v_readfirstlane_b32 s74, v{vt}
    s_cmp_lg_u32 s74, {nwaves-1}
    s_cbranch_scc1 {l}
    v_mov_b32 v{vt}, s{TAG}
    v_mov_b32 v{vt+2}, 0""")
    if xcc:
        a(f"""s_getreg_b32 s74, hwreg(HW_REG_XCC_ID)
        v_mov_b32 v{vt+1}, s74
        buffer_store_dwordx2 v[{vt}:{vt+1}], v{vt+2}, s[{WSR}:{WSR+3}], s{sflag} offen sc1""")
    else:
        a(f"buffer_store_dword v{vt}, v{vt+2}, s[{WSR}:{WSR+3}], s{sflag} offen sc1")
    a.label(l)
    a("s_mov_b64 exec, -1")
def poll32(a, sbase, vt, word, rowgrp=False):
    _n[0] += 1; l = f"pl{_n[0]}"
    a(f"s_cmp_lg_u32 s66, 0\ns_cbranch_scc1 {l}_lds")
    a(f"v_lshlrev_b32 v{vt}, 6, v1")
    if rowgrp:
        a(f"""s_lshl_b32 s74, s61, 11
        v_add_u32 v{vt}, s74, v{vt}
        s_lshl_b32 s74, s60, 6
        s_mov_b32 exec_lo, 0
        v_and_b32 v{vt}, 7, v1
        v_lshlrev_b32 v{vt}, 11, v{vt}
        v_add_u32 v{vt}, s74, v{vt}
        s_mov_b32 exec_lo, -1""")
    a(f"s_mov_b32 exec_hi, {0xff if rowgrp else 0}\ns_mov_b32 s75, 0x40000")
    a.label(l)
    a(f"""buffer_load_dword v{vt+1}, v{vt}, s[{WSR}:{WSR+3}], s{sbase} offen sc1
    s_sub_u32 s75, s75, 1
    s_waitcnt vmcnt(0)
    v_cmp_ne_u32 vcc, s{TAG}, v{vt+1}
    s_cbranch_vccz {l}_ok
    s_mov_b64 exec, vcc
    s_sleep 4
    s_cmp_lg_u32 s75, 0
    s_cbranch_scc1 {l}""")
    a.label(l + "_ok")
    a(f"s_mov_b64 exec, -1\nds_write_b32 v3, v14 offset:{word}\ns_branch {l}_done")
    a.label(l + "_lds")
    lds_wait(a, 3, word, 1, vt, 2)
    a.label(l + "_done")

def w_src(a, v, t0, t1):
    a(f"""v_lshrrev_b32 v{t0}, 3, v1
    v_lshlrev_b32 v{t1}, 1, v{t0}
    v_and_b32 v{t1}, 4, v{t1}
    v_and_b32 v{v}, 7, v1
    v_xor_b32 v{v}, v{v}, v{t1}
    v_lshlrev_b32 v{v}, 4, v{v}
    v_lshl_add_u32 v{v}, v{t0}, 10, v{v}
    s_lshl_b32 s63, s57, 1
    v_add_u32 v{v}, s63, v{v}""")

MF = lambda a, d, A, B, C: a(f"v_mfma_f32_32x32x16_bf16 v[{d}:{d+15}], v[{A}:{A+3}], v[{B}:{B+3}], " + ("0" if C is None else f"v[{C}:{C+15}]"))

def kv_unit_step(a, step):
    a(f"""s_cmp_ge_u32 s59, 130
    s_cselect_b32 s63, 130, 0
    s_sub_u32 s59, s59, s63
    s_lshl_b32 s63, s59, 10
    s_add_u32 s59, s59, {step}""")

def kernel():
    a = Asm()
    a.label(KN)
    a(f"""s_getpc_b64 s[36:37]
    s_load_dwordx16 s[4:19], s[0:1], 0
    s_load_dwordx16 s[20:35], s[0:1], 56
    v_lshlrev_b32 v1, 7, v0
    v_min_u32 v1, code_end-{KN}-8, v1
    global_load_dword v167, v1, s[36:37]
    s_cmp_ge_u32 s2, 256
    s_cbranch_scc1 k_end""")
    if OPT.get("scramble"):
        a("s_lshr_b32 s60, s2, 5\ns_and_b32 s2, s2, 31\ns_lshl_b32 s2, s2, 3\ns_or_b32 s2, s2, s60")
    if OPT.get("delay0"):
        a(f"s_mov_b32 s60, {OPT['delay0']}")
        a.label("dly0")
        a("s_nop 15\ns_nop 15\ns_nop 15\ns_nop 15\ns_sub_u32 s60, s60, 1\ns_cmp_lg_u32 s60, 0\ns_cbranch_scc1 dly0")
    stamp(a, 8, True); stamp(a, 0)
    a("""v_lshrrev_b32 v2, 6, v0
    v_and_b32 v1, 63, v0
    v_readfirstlane_b32 s3, v2
    s_and_b32 s60, s2, 7
    s_lshl_b32 s60, s60, 2
    s_lshr_b32 s61, s2, 3
    s_and_b32 s62, s61, 3
    s_add_u32 s60, s60, s62
    s_lshr_b32 s61, s61, 2
    s_lshl_b32 s56, s60, 6
    s_lshl_b32 s57, s61, 6
    s_add_u32 s59, s61, s62
    s_add_u32 s59, s59, s2
    s_and_b32 s59, s59, 3
    s_lshr_b32 s76, s61, 1
    s_lshl_b32 s58, s62, 1
    v_lshlrev_b32 v2, 4, v1
    s_cmp_lt_u32 s3, 8
    s_cbranch_scc1 e_att""")
    a(f"""s_sub_u32 s66, s3, 8
    v_lshrrev_b32 v9, 4, v1
    v_and_b32 v10, 15, v1
    v_xor_b32 v10, v10, v9
    v_lshlrev_b32 v10, 4, v10
    v_lshl_add_u32 v4, v9, 10, v10
    v_xor_b32 v5, 64, v4
    v_xor_b32 v6, 0x80, v4
    v_xor_b32 v7, 0xc0, v4
    v_add_u32 v5, 3072, v5
    v_add_u32 v6, 6144, v6
    v_add_u32 v7, 9216, v7
    s_add_u32 s63, s59, s66
    s_and_b32 s63, s63, 3
    s_lshl_b32 s64, s76, 4
    s_add_u32 s64, s64, s56
    s_lshl_b32 s64, s64, 10
    s_lshl_b32 s65, s63, 8
    s_add_u32 s64, s64, s65
    s_lshl_b32 s65, s63, 12
    s_lshl_b32 s67, s66, 14
    s_lshl_b32 s68, s76, 12
    s_add_u32 m0, s67, s68
    s_lshl_b32 s68, s66, 12
    s_add_u32 s67, s68, {WKV}
    s_mov_b32 s38, 0x200000
    s_mov_b32 s39, 0x20000
    s_mov_b32 s42, 0x4000
    s_mov_b32 s43, 0x20000
    s_bitcmp0_b32 s61, 0
    s_waitcnt lgkmcnt(0)""")
    hd(a, 1)
    a(f"s_mov_b32 s36, s{PX}\ns_mov_b32 s37, s{PX+1}")
    for q in range(4): a(f"buffer_load_dwordx4 v{4+q}, s[36:39], s64 offen offset:{1024*q} lds")
    a(f"s_cselect_b32 s40, s{PWK}, s{PWV}\ns_cselect_b32 s41, s{PWK+1}, s{PWV+1}\ns_mov_b32 m0, s67")
    for q in range(4): a(f"buffer_load_dwordx4 v2, s[40:43], s65 offen offset:{1024*q} lds")
    hd(a, 2)
    srd(a, 44, PWQ, 0x80000)
    if OPT.get("spf", 0):
        a("""v_lshlrev_b32 v15, 7, v1
        s_lshr_b32 s63, s2, 3
        s_lshl_b32 s63, s63, 14
        s_add_u32 s63, s63, s68
        s_mov_b32 exec_hi, 0
        buffer_load_dword v15, v15, s[44:47], s63 offen
        s_mov_b32 exec_hi, -1""")
    w_src(a, 8, 9, 10)
    a(f"""v_add_u32 v9, 7168, v8
    v_add_u32 v10, 14336, v8
    v_add_u32 v11, 21504, v8
    s_lshl_b32 s63, s66, 6
    v_xor_b32 v13, s63, v4
    s_lshl_b32 s63, s66, 12
    v_add_u32 v13, s63, v13
    s_lshl_b32 s69, s66, 15
    s_lshl_b32 s64, s56, 10
    s_lshl_b32 s65, s66, 10""")
    for t in range(3):
        a(f"""s_add_u32 s63, s76, {t+1}
        s_and_b32 s63, s63, 3
        s_lshl_b32 s{48+t}, s63, 14
        s_add_u32 s{48+t}, s{48+t}, s64
        s_lshl_b32 s{52+t}, s63, 12
        s_add_u32 s{52+t}, s{52+t}, s65""")
    def stage1(slot):
        a(f"""s_add_u32 s63, s59, {slot}
        s_and_b32 s63, s63, 3
        s_lshl_b32 s67, s63, 17
        s_add_u32 s67, s67, s69
        s_lshl_b32 s65, s63, 8
        s_add_u32 m0, s68, {WT + slot*16384}""")
        for q in range(4): a(f"buffer_load_dwordx4 v{8+q}, s[44:47], s67 offen offset:{1024*q} lds")
        for t in range(3):
            a(f"""s_add_u32 m0, s{52+t}, {XT + slot*16384}
            s_add_u32 s64, s{48+t}, s65
            buffer_load_dwordx4 v13, s[36:39], s64 offen lds""")
    stage1(0)
    hd(a, 3)
    a(f"""v_mov_b32 v3, {CNT}
    v_lshl_add_u32 v14, v1, 2, v3
    v_mov_b32 v12, 0
    s_mov_b64 exec, 0xffff
    ds_write_b32 v14, v12
    s_mov_b64 exec, -1
    v_mov_b32 v14, 1""")
    hd(a, 4)
    a(f"s_waitcnt vmcnt({8 if OPT.get('spf', 0) else 7}) lgkmcnt(0)")
    hd(a, 5)
    a("s_barrier")
    hd(a, 6)
    stage1(1); stage1(2); stage1(3)
    a("s_branch h_rest")
    ENTRY_ATT = len(a.lines)
    a.label("h_rest")
    ws_srd(a)
    a("s_waitcnt vmcnt(14)\ns_barrier")
    H = 160 - 16
    vA, vB0, vB1 = 34, 35, 33
    AF, BF, B2F, ACC0, ACC1 = 48, 80, 112, 128, 144
    a(f"""s_lshr_b32 s16, s66, 1
    s_and_b32 s17, s66, 1
    s_lshl_b32 s62, s60, 1
    s_add_u32 s62, s62, s57
    s_add_u32 s62, s62, s16
    v_lshrrev_b32 v5, 3, v1
    v_and_b32 v6, 7, v1
    v_lshlrev_b32 v6, 4, v6
    v_lshl_add_u32 v6, v5, 10, v6
    s_lshl_b32 s63, s57, 1
    v_add_u32 v6, s63, v6
    s_lshl_b32 s63, s66, 4
    s_add_u32 s63, s63, s57
    v_and_b32 v7, 15, v1
    v_add_u32 v7, s63, v7
    v_lshlrev_b32 v18, 3, v7
    s_lshl_b32 s64, s56, 10
    s_sub_u32 s64, s64, 3072
    v_lshrrev_b32 v17, 4, v1
    v_lshlrev_b32 v19, 14, v17
    v_lshl_add_u32 v19, v7, 1, v19
    v_add_u32 v19, s64, v19
    s_lshl_b32 s63, s62, 1
    v_mov_b32 v20, s63
    v_bfe_u32 v16, v1, 2, 2
    v_lshlrev_b32 v16, 7, v16
    v_lshl_add_u32 v16, v17, 12, v16
    v_lshlrev_b32 v24, 5, v17
    v_and_b32 v17, 3, v1
    v_lshl_add_u32 v16, v17, 3, v16
    s_lshl_b32 s63, s66, 5
    s_add_u32 s63, s63, {XE0}
    v_add_u32 v16, s63, v16
    v_lshrrev_b32 v26, 2, v1
    v_mul_u32_u24 v32, {XOOFF}, v26
    v_mul_u32_u24 v26, 144, v26
    v_lshlrev_b32 v17, 4, v17
    v_sub_u32 v26, v17, v26
    s_lshl_b32 s63, s16, 6
    s_add_u32 s63, s63, {LEND - 144 - 3*2304}
    v_add_u32 v26, s63, v26
    v_and_b32 v21, 0x1f7, v7
    v_lshlrev_b32 v21, 12, v21
    v_sub_u32 v21, v21, v24
    v_and_b32 v9, 8, v1
    v_lshl_add_u32 v21, v9, 1, v21
    v_add_u32 v21, 96, v21
    s_mul_i32 s71, s16, {XESZ}
    s_add_u32 s71, s71, {XE0}
    v_add_u32 v27, s71, v2
    v_add_u32 v32, v32, v17
    s_add_u32 s63, s71, 4096
    v_add_u32 v32, s63, v32
    v_and_b32 v4, 31, v1
    v_lshrrev_b32 v5, 5, v1
    v_or_b32 v9, 1, v4
    v_lshlrev_b32 v17, 3, v5
    v_sub_u32 v9, v17, v9
    s_cmp_eq_u32 s17, 0
    s_cselect_b32 s63, 1055, 31
    s_sub_u32 s63, s63, 256
    v_add_u32 v9, s63, v9
    v_lshlrev_b32 v9, 1, v9
    v_and_b32 v17, 1, v4
    v_xor_b32 v17, 1, v17
    v_mul_u32_u24 v17, {XOOFF}, v17
    v_add3_u32 v{vA}, v9, v17, s71
    v_mul_u32_u24 v9, 144, v4
    v_lshlrev_b32 v17, 4, v5
    v_sub_u32 v9, v17, v9
    s_lshl_b32 s63, s16, 6
    s_add_u32 s63, s63, {LEND + 144*23 + 1152}
    v_add_u32 v{vB0}, s63, v9
    v_mov_b32 v28, 0
    v_mov_b32 v29, 0
    v_mov_b32 v30, 0
    v_mov_b32 v31, 0
    s_lshl_b32 s63, s17, 11
    v_lshlrev_b32 v22, 6, v4
    v_lshl_add_u32 v22, v5, 3, v22
    v_add_u32 v22, s63, v22
    s_add_u32 s63, s71, {4088 - 48}
    v_sub_u32 v22, s63, v22
    v_and_b32 v23, 27, v4
    v_lshlrev_b32 v23, 6, v23
    v_lshl_add_u32 v23, v5, 4, v23
    v_and_b32 v9, 4, v4
    v_lshl_add_u32 v23, v9, 3, v23
    s_lshl_b32 s63, s17, 11
    v_add_u32 v23, s63, v23""")
    for i in range(16): a(f"v_mov_b32 v{ACC0+i}, 0")
    a("v_mov_b32 v93, 0xffff")
    a(f"""ds_read_b32 v36, v3 offset:56
    s_waitcnt vmcnt(0) lgkmcnt(0)
    v_readfirstlane_b32 s{TAG}, v36
    s_barrier""")
    a(f"""s_setprio 3
    s_lshr_b32 s67, s66, 1
    s_and_b32 s68, s66, 1
    s_lshl_b32 s69, s60, 1
    s_add_u32 s69, s69, s57
    s_add_u32 s69, s69, s67
    s_lshl_b32 s70, s69, 12""")
    srd(a, 36, PK, 0x200000)
    srd(a, 40, PV, 0x200000)
    srd(a, 44, PSH, 4096)
    srd_off(a, 48, PH, "s70", 4096)
    srd(a, 52, PD, 1024)
    def first_batch(n):
        for j in range(n):
            kv_unit_step(a, 4)
            dma(a, 2, WSR, "s63", "s63", "sc1")
    a(f"""s_lshl_b32 s63, s67, 2
    s_add_u32 s63, s63, s58
    s_and_b32 s63, s63, 7
    s_mul_i32 s59, s63, 65
    s_lshr_b32 s59, s59, 2
    s_add_u32 s59, s59, s68
    s_add_u32 s59, s59, 12""")
    def bulk(n, lbl):
        a(f"s_mov_b32 s72, {n}")
        a.label(lbl)
        kv_unit_step(a, 2)
        dma(a, 2, WSR, "s63", "s63", "sc1")
        a(f"s_sub_u32 s72, s72, 1\ns_cmp_lg_u32 s72, 0\ns_cbranch_scc1 {lbl}")
    a(f"""s_lshl_b32 s64, s66, 4
    s_add_u32 s64, s64, s56
    s_lshl_b32 s64, s64, 10
    s_add_u32 s65, s64, 8192
    s_lshl_b32 s73, s66, 12
    s_add_u32 s73, s73, {XE0}
    s_mov_b32 s72, {WS_FKV}
    v_lshlrev_b32 v36, 6, v1
    s_cmp_lg_u32 s66, 0
    s_cbranch_scc1 h_nopoll
    s_barrier
    buffer_load_dwordx4 v[40:43], v36, s[{WSR}:{WSR+3}], s72 offen sc1
    s_mov_b32 s75, 0x40000""")
    a.label("h_pollkv")
    a(f"""s_sub_u32 s75, s75, 1
    s_waitcnt vmcnt(0)
    v_xor_b32 v40, s{TAG}, v40
    v_xor_b32 v41, s{TAG}, v41
    v_xor_b32 v42, s{TAG}, v42
    v_xor_b32 v43, s{TAG}, v43
    v_or3_b32 v40, v40, v41, v42
    v_or_b32 v40, v40, v43
    v_cmp_ne_u32 vcc, 0, v40
    s_cbranch_vccz h_kvready
    s_mov_b64 exec, vcc
    buffer_load_dwordx4 v[40:43], v36, s[{WSR}:{WSR+3}], s72 offen sc1
    s_cmp_lg_u32 s75, 0
    s_cbranch_scc1 h_pollkv""")
    a.label("h_kvready")
    a("s_waitcnt vmcnt(0)\ns_mov_b64 exec, -1\nds_write_b32 v3, v14\ns_branch h_b1")
    a.label("h_nopoll")
    a("s_barrier")
    a.label("h_b1")
    a("s_barrier")
    hst(a, 1, False)
    bulk(5, "h_bulk1")
    a("s_waitcnt vmcnt(0)")
    lds_add(a, 3, 4, 14)
    if OPT.get("abl") == 1:
        bulk(15, "h_bulk3"); a("s_waitcnt vmcnt(0)"); lds_add(a, 3, 8, 14); fin(a)
    dma(a, 6, 36, "s64", "s73")
    a("s_add_u32 s63, s73, 1024"); dma(a, 6, 36, "s65", "s63")
    a("s_add_u32 s63, s73, 2048"); dma(a, 6, 40, "s64", "s63")
    a("s_add_u32 s63, s73, 3072"); dma(a, 6, 40, "s65", "s63")
    a(f"""buffer_load_dwordx2 v[10:11], v18, s[44:47], 0 offen
    buffer_load_ushort v12, v19, s[36:39], 0 offen
    buffer_load_ushort v13, v19, s[36:39], 0 offen offset:1024
    buffer_load_ushort v15, v19, s[36:39], 0 offen offset:2048""")
    bulk(13, "h_bulk2")
    a("s_waitcnt vmcnt(4)")
    lds_add(a, 3, 8, 14)
    if OPT.get("abl") == 2:
        a("s_waitcnt vmcnt(0)"); lds_add(a, 3, 8, 14); fin(a)
    lds_add(a, 3, 40, 14)
    lds_wait(a, 3, 40, 4, 9)
    hst(a, 2, False)
    KR, VR, VF = 96, 104, 72
    for i in range(4): a(f"ds_read_b64_tr_b16 v[{KR+2*i}:{KR+2*i+1}], v16 offset:{i*512}")
    for i in range(4): a(f"ds_read_b64_tr_b16 v[{VR+2*i}:{VR+2*i+1}], v16 offset:{2048 + i*512}")
    a(f"""v_alignbit_b32 v88, v11, v11, 16
    v_alignbit_b32 v89, v10, v10, 16
    v_and_b32 v90, 0xffff0000, v11
    v_bfi_b32 v91, v93, v11, v10
    v_and_b32 v92, 0xffff, v10
    v_lshlrev_b32 v{KR-2}, 16, v12
    v_lshl_or_b32 v{KR-1}, v15, 16, v13
    s_waitcnt lgkmcnt(0)""")
    KS = 52
    D2 = lambda d, x, w, c: a(f"v_dot2_f32_bf16 v{d}, v{x}, v{w}, {c}")
    for i in range(8):
        D2(KS + 2*i, KR + i - 2, 90, "0"); D2(KS + 2*i + 1, KR + i - 1, 88, "0")
    for i in range(8):
        D2(KS + 2*i, KR + i - 1, 91, f"v{KS+2*i}"); D2(KS + 2*i + 1, KR + i, 89, f"v{KS+2*i+1}")
    for i in range(8):
        D2(KS + 2*i, KR + i, 92, f"v{KS+2*i}")
        a(f"v_lshlrev_b32 v{VF+2*i}, 16, v{VR+i}\nv_and_b32 v{VF+1+2*i}, 0xffff0000, v{VR+i}")
    for i in range(8):
        a(f"v_pk_mul_f32 v[{VF+2*i}:{VF+2*i+1}], v[{VF+2*i}:{VF+2*i+1}], v[{KS+2*i}:{KS+2*i+1}]")
    for q in range(8):
        a(f"v_cvt_pk_bf16_f32 v{44+q}, v{VF+15-2*q}, v{VF+14-2*q}")
    for i in range(4):
        a(f"v_mov_b32 v{52+i}, v{44+i}")
    for i in range(4):
        a(f"v_mov_b32_dpp v{44+i}, v{48+i} row_ror:8 row_mask:0xf bank_mask:0xc")
        a(f"v_mov_b32_dpp v{48+i}, v{52+i} row_ror:8 row_mask:0xf bank_mask:0x3")
    a(f"""s_lshl_b32 s64, s56, 1
    s_sub_u32 s64, {WS_XREV + 4064 - 96}, s64
    s_add_u32 s63, s64, 32768
    buffer_store_dwordx4 v[44:47], v21, s[{WSR}:{WSR+3}], s64 offen sc1
    buffer_store_dwordx4 v[48:51], v21, s[{WSR}:{WSR+3}], s63 offen sc1
    s_lshl_b32 s72, s61, 11
    s_lshl_b32 s65, s60, 6
    s_add_u32 s65, s65, s72
    s_add_u32 s64, s72, {WS_FX}
    s_add_u32 s73, s65, {WS_FX}""")
    bulk(9, "h_bulk3b")
    for i in range(4):
        a(f"buffer_load_dwordx4 v[{H+4*i}:{H+4*i+3}], v2, s[48:51], 0 offen offset:{1024*i}")
    a("buffer_load_ushort v25, v20, s[52:55], 0 offen\ns_waitcnt vmcnt(14)")
    publish(a, 3, 16, 14, 16, 73, 4)
    a("s_waitcnt vmcnt(5)")
    lds_add(a, 3, 60, 14)
    a("s_waitcnt vmcnt(0)")
    for i in range(4): a(f"ds_write_b128 v26, v[{H+4*i}:{H+4*i+3}] offset:{2304*(3-i)}")
    hst(a, 3, False)
    a(f"s_add_u32 s63, s70, {WS_XREV}")
    srd_off(a, 40, PWS, "s63", 4096)
    a(f"s_add_u32 s63, s70, {WS_Y}")
    srd_off(a, 44, PWS, "s63", 4096)
    poll32(a, 64, 16, 52)
    hst(a, 4, False)
    if OPT.get("abl") == 3: fin(a)
    X = 52
    for i in range(4):
        a(f"buffer_load_dwordx4 v[{X+6*i}:{X+6*i+3}], v2, s[40:43], 0 offen offset:{1024*i} sc1")
        a(f"buffer_load_dword v{X+6*i+4}, v2, s[40:43], 0 offen offset:{1024*i+16} sc1")
    srd(a, 36, PWO, 0x80000)
    a("s_lshr_b32 s63, s2, 3\ns_lshl_b32 s63, s63, 14\ns_lshl_b32 s74, s66, 12\ns_add_u32 s63, s63, s74")
    for i in range(4):
        a(f"buffer_load_dwordx4 v[160:163], v2, s[36:39], s63 offen offset:{1024*i}")
    a("s_mov_b64 exec, 0xff\nds_write_b128 v32, v[28:31]\ns_mov_b64 exec, -1")
    for i in range(4):
        x = X + 6*i
        a(f"s_waitcnt vmcnt({10-2*i})")
        a(f"ds_write_b128 v27, v[{x}:{x+3}] offset:{1024*i}")
        for j in range(4): a(f"v_alignbit_b32 v{36+4*(i&1)+j}, v{x+j+1}, v{x+j}, 16")
        a(f"ds_write_b128 v27, v[{36+4*(i&1)}:{39+4*(i&1)}] offset:{XOOFF+1024*i}")
    a("s_waitcnt lgkmcnt(0)")
    a_ref = [a]
    def creads(t, dual):
        a = a_ref[0]
        b = t % 4; b2 = t % 2
        if OPT.get("noreads"): return
        if t == 0:
            a(f"v_add_u32 v{vA}, 512, v{vA}\nv_subrev_u32 v{vB0}, 1152, v{vB0}")
            if dual: a(f"v_subrev_u32 v{vB1}, 1152, v{vB1}")
        for u in range(2):
            o = (2*t + u) * 8
            r = AF + 8*b + 4*u
            a(f"ds_read2_b32 v[{r}:{r+1}], v{vA} offset0:{o} offset1:{o+1}")
            a(f"ds_read2_b32 v[{r+2}:{r+3}], v{vA} offset0:{o+2} offset1:{o+3}")
        for u in range(2):
            r = BF + 8*b + 4*u
            a(f"ds_read_b128 v[{r}:{r+3}], v{vB0} offset:{144*(7-t) + 32*u}")
        if dual:
            for u in range(2):
                r = B2F + 8*b2 + 4*u
                a(f"ds_read_b128 v[{r}:{r+3}], v{vB1} offset:{144*(7-t) + 32*u}")
    if OPT.get("abl") == 4: fin(a)
    a("s_cmp_eq_u32 s68, 0\ns_cselect_b32 s72, 2, 6")
    a(f"s_setprio {OPT.get('cprio', 3)}")
    PF = OPT.get("cpf", 2)
    for t in range(PF): creads(t, False)
    a.label("h_conv1")
    for t in range(8):
        b = t % 4
        if PF == 0: creads(t, False)
        a(f"s_waitcnt lgkmcnt({6 if PF == 2 else 0})")
        if OPT.get("cspace"):
            sub = Asm(); save = a_ref[0]; a_ref[0] = sub
            creads((t + PF) % 8, False); a_ref[0] = save
            L = sub.lines; h = len(L) - 3
            MF(a, ACC0, AF + 8*b, BF + 8*b, ACC0)
            for x in L[:h]: a(x)
            MF(a, ACC0, AF + 8*b + 4, BF + 8*b + 4, ACC0)
            for x in L[h:]: a(x)
            continue
        for u in range(0 if OPT.get("nomfma") else 2): MF(a, ACC0, AF + 8*b + 4*u, BF + 8*b + 4*u, ACC0)
        if PF: creads((t + PF) % 8, False)
    a("s_sub_u32 s72, s72, 1\ns_cmp_lg_u32 s72, 0\ns_cbranch_scc1 h_conv1")
    a("s_cmp_lg_u32 s68, 0\ns_cbranch_scc1 h_convb")
    if PF: a(f"v_subrev_u32 v{vA}, 512, v{vA}\nv_add_u32 v{vB0}, 1152, v{vB0}")
    a(f"""s_waitcnt lgkmcnt(0)
    v_subrev_u32 v{vB1}, {144*32}, v{vB0}
    s_mov_b32 s72, 2""")
    for i in range(16): a(f"v_mov_b32 v{ACC1+i}, 0")
    if PF == 2: creads(0, True)
    a.label("h_conv2")
    for t in range(8):
        b = t % 4; b2 = t % 2
        if OPT.get("dsplit"):
            sub = Asm(); save = a_ref[0]; a_ref[0] = sub
            creads(t, True); a_ref[0] = save
            L = sub.lines; pre = L[:len(L)-8]; R = L[len(L)-8:]
            for x in pre: a(x)
            for u in range(2):
                for x in (R[2*u], R[2*u+1], R[4+u], R[6+u]): a(x)
                a("s_waitcnt lgkmcnt(0)")
                MF(a, ACC0, AF + 8*b + 4*u, BF + 8*b + 4*u, ACC0)
                MF(a, ACC1, AF + 8*b + 4*u, B2F + 8*b2 + 4*u, ACC1)
            continue
        if PF < 2: creads(t, True)
        a("s_waitcnt lgkmcnt(0)")
        if PF == 2: creads((t + 1) % 8, True)
        for u in range(0 if OPT.get("nomfma") else 2):
            MF(a, ACC0, AF + 8*b + 4*u, BF + 8*b + 4*u, ACC0)
            MF(a, ACC1, AF + 8*b + 4*u, B2F + 8*b2 + 4*u, ACC1)
    a("s_sub_u32 s72, s72, 1\ns_cmp_lg_u32 s72, 0\ns_cbranch_scc1 h_conv2")
    a(f"s_lshl_b32 s63, s67, 2\nv_add_u32 v9, s63, v3\ns_waitcnt lgkmcnt(0)")
    lds_wait(a, 9, 32, 1, 16)
    for i in range(4): a(f"ds_write_b128 v27, v[{ACC1+4*i}:{ACC1+4*i+3}] offset:{XOOFF + 1024*i}")
    a("s_waitcnt lgkmcnt(0)")
    lds_add(a, 9, 24, 14)
    a("s_branch h_cepi")
    a.label("h_convb")
    a(f"s_lshl_b32 s63, s67, 2\nv_add_u32 v9, s63, v3\ns_waitcnt lgkmcnt(0)")
    lds_add(a, 9, 32, 14)
    lds_wait(a, 9, 24, 1, 16)
    for i in range(4): a(f"ds_read_b128 v[{ACC1+4*i}:{ACC1+4*i+3}], v27 offset:{XOOFF + 1024*i}")
    a("s_waitcnt lgkmcnt(0)")
    for i in range(8): a(f"v_pk_add_f32 v[{ACC0+2*i}:{ACC0+2*i+1}], v[{ACC0+2*i}:{ACC0+2*i+1}], v[{ACC1+2*i}:{ACC1+2*i+1}]")
    a.label("h_cepi")
    if OPT.get("abl") == 5: fin(a)
    a("s_setprio 3")
    hst(a, 1, True)
    hst(a, 5, False)
    for aa in range(4):
        a(f"ds_read_b64 v[{48+2*aa}:{49+2*aa}], v22 offset:{48 - 16*aa}")
    a("v_lshlrev_b32 v24, 16, v25\ns_waitcnt lgkmcnt(0)")
    for aa in range(4):
        d0, d1 = 48 + 2*aa, 49 + 2*aa
        a(f"""v_and_b32 v36, 0xffff0000, v{d1}
        v_lshlrev_b32 v37, 16, v{d1}
        v_and_b32 v38, 0xffff0000, v{d0}
        v_lshlrev_b32 v39, 16, v{d0}
        v_pk_fma_f32 v[{ACC0+4*aa}:{ACC0+4*aa+1}], v[36:37], v[24:25], v[{ACC0+4*aa}:{ACC0+4*aa+1}] op_sel_hi:[1,0,1]
        v_pk_fma_f32 v[{ACC0+4*aa+2}:{ACC0+4*aa+3}], v[38:39], v[24:25], v[{ACC0+4*aa+2}:{ACC0+4*aa+3}] op_sel_hi:[1,0,1]
        v_cvt_pk_bf16_f32 v{40+2*aa}, v{ACC0+4*aa}, v{ACC0+4*aa+1}
        v_cvt_pk_bf16_f32 v{41+2*aa}, v{ACC0+4*aa+2}, v{ACC0+4*aa+3}""")
    for p in range(2):
        r = 40 + 4*p
        a(f"v_permlane32_swap_b32 v{r}, v{r+2}\nv_permlane32_swap_b32 v{r+1}, v{r+3}")
    for i in range(4): a(f"v_mov_b32 v{56+i}, v{40+i}")
    for i in range(4):
        a(f"v_mov_b32_dpp v{40+i}, v{44+i} row_shr:4 row_mask:0xf bank_mask:0xa")
        a(f"v_mov_b32_dpp v{44+i}, v{56+i} row_shl:4 row_mask:0xf bank_mask:0x5")
    for p in range(2):
        a(f"buffer_store_dwordx4 v[{40+4*p}:{43+4*p}], v23, s[44:47], 0 offen offset:{256*p} sc1")
    a(f"s_add_u32 s73, s65, {WS_FY}")
    lds_wait(a, 3, 44, 8, 16)
    a("s_waitcnt vmcnt(0)")
    publish(a, 3, 20, 14, 16, 73, 4, True)
    hst(a, 2, True)
    lds_wait(a, 3, 12, 8, 16, 4)
    hst(a, 3, True)
    a(f"""s_mul_i32 s72, s58, {8*ST}
    s_add_u32 s63, s58, 4
    s_and_b32 s63, s63, 7
    s_mul_i32 s73, s63, {8*ST}
    s_lshl_b32 s63, s66, 12
    s_add_u32 s72, s72, s63
    s_add_u32 s73, s73, s63
    s_lshl_b32 s67, s66, 15""")
    for sl in range(4):
        for q in range(4):
            a(f"s_add_u32 s63, s{72 + (sl>>1)}, {(sl&1)*16384 + q*1024}")
            dma(a, 8, 36, "s67", "s63")
            a(f"s_add_u32 s67, s67, {8192 if q < 3 else 131072 - 3*8192}")
    hst(a, 6, False)
    a("s_waitcnt vmcnt(0)")
    fin(a)

    QA, QB, NMA, NMB, SA, SB, PA, PB, OA, OB, KB, VB = 4, 8, 12, 28, 44, 60, 76, 84, 92, 108, 124, 132
    vK, vV, vKn, vVn, vKl, vVl, vC, T = 148, 149, 150, 151, 2, 152, 153, 154
    K2, NA, NB_ = T + 2, T + 6, T + 10
    def early_setup():
        srd(a, 36, PX, 0x200000)
        srd(a, 40, POUT, 0x200000)
        a(f"""s_and_b32 s64, s3, 4
        s_add_u32 s71, s58, s64
        s_and_b32 s71, s71, 7
        s_mul_i32 s59, s71, 65
        s_lshr_b32 s59, s59, 2
        s_and_b32 s64, s3, 3
        s_add_u32 s59, s59, s64
        s_mov_b32 s65, {WS_KMAX}
        v_and_b32 v{T+3}, 31, v1
        v_lshrrev_b32 v3, 5, v1
        v_and_b32 v{T+4}, 15, v1
        v_lshlrev_b32 v{T+4}, 4, v{T+4}
        v_lshl_add_u32 v{T+4}, v3, 8, v{T+4}
        v_add_u32 v{T+4}, 1024, v{T+4}
        v_mov_b32 v{vVl}, 0x100000
        v_and_b32 v{T+5}, 27, v{T+3}
        v_cmp_eq_u32 vcc, 16, v{T+5}
        v_mov_b32 v{T+5}, 1536
        v_cndmask_b32 v{vVl}, v{vVl}, v{T+5}, vcc
        v_cmp_gt_u32 vcc, 16, v{T+3}
        s_mul_i32 s70, s71, {8*ST}
        v_cndmask_b32 v{vVl}, v{vVl}, v{T+4}, vcc
        v_add_u32 v{vK}, s70, v{vKl}
        v_add_u32 v{vV}, s70, v{vVl}
        s_add_u32 s71, s71, 1
        s_and_b32 s71, s71, 7
        s_mul_i32 s70, s71, {8*ST}
        v_add_u32 v{vKn}, s70, v{vKl}
        v_add_u32 v{vVn}, s70, v{vVl}
        s_lshl_b32 s63, s64, 11
        s_add_u32 s63, s63, {QX}
        v_add_u32 v{T+4}, s63, v2
        v_lshlrev_b32 v{T+1}, 3, v1""")
        for r in list(range(PB, PB + 8, 2)) + list(range(OA, OA + 32, 2)) + list(range(VB + 8, VB + 16, 2)):
            a(f"v_pk_mov_b32 v[{r}:{r+1}], 0, 0")
    def att_init():
        a(f"""s_lshr_b32 s63, s3, 2
        s_lshl_b32 s62, s60, 1
        s_add_u32 s62, s62, s63
        s_lshl_b32 s62, s62, 5
        s_lshl_b32 s63, s61, 2
        s_add_u32 s62, s62, s63
        s_and_b32 s63, s3, 3
        s_add_u32 s62, s62, s63
        s_lshl_b32 s62, s62, 10
        s_add_u32 s62, s62, {WS_O}
        v_mov_b32 v{vC}, {CNT}""")
        early_setup()
    main = a
    a = Asm()
    a.label("e_att")
    a("""s_cmp_eq_u32 s3, 4
    s_cbranch_scc1 a_job
    """)
    a("""s_and_b32 s68, s61, 1
    s_lshl_b32 s63, s68, 4
    s_or_b32 s63, s63, s3
    s_cmp_eq_u32 s63, 5
    s_cbranch_scc1 a_gate
    s_barrier
    s_waitcnt vmcnt(0) lgkmcnt(0)
    s_mov_b32 s17, 0""")
    ws_srd(a)
    a("s_branch a_late")
    a.label("a_job")
    a("s_setprio 3")
    GW = 64
    a(f"""s_and_b32 s68, s61, 1
    v_lshrrev_b32 v8, 4, v1
    v_lshlrev_b32 v8, 4, v8
    s_lshr_b32 s64, s76, 1
    s_lshl_b32 s65, s60, 1
    s_add_u32 s64, s64, s65
    s_mul_i32 s64, s64, {ST}
    s_and_b32 s65, s76, 1
    v_and_b32 v17, 15, v1
    v_lshrrev_b32 v18, 4, v1
    v_xor_b32 v19, v17, v18
    v_lshlrev_b32 v19, 4, v19
    v_lshl_add_u32 v19, v17, 8, v19
    s_lshl_b32 s63, s76, 12
    v_add_u32 v20, s63, v19
    v_xor_b32 v21, 64, v20
    v_xor_b32 v22, 128, v20
    v_xor_b32 v23, 192, v20
    v_bfe_u32 v19, v1, 2, 2
    v_lshl_add_u32 v19, v18, 3, v19
    v_lshlrev_b32 v19, 5, v19
    v_and_b32 v24, 3, v1
    v_lshl_add_u32 v24, v24, 3, v19
    v_add_u32 v24, {WKV}, v24
    v_lshlrev_b32 v17, 4, v17
    v_lshrrev_b32 v18, 5, v1
    v_lshl_add_u32 v17, v18, 3, v17
    v_bfe_u32 v18, v1, 4, 1
    v_mov_b32 v9, 0
    v_mov_b32 v26, {CNT}
    s_mov_b32 s67, {WS_FY}
    s_lshr_b32 s69, s2, 2
    s_lshl_b32 s69, s69, {OPT.get("fsh", 6)}
    s_and_b32 s63, s2, 3
    s_lshl_b32 s63, s63, 2
    s_add_u32 s69, s69, s63
    s_add_u32 s69, s69, {WS_FKV}
    s_waitcnt lgkmcnt(0)""")
    ws_srd(a)
    a(f"""buffer_load_dword v10, v9, s[{WSR}:{WSR+3}], s67 offen sc1
    s_cmp_lg_u32 s68, 0
    s_cbranch_scc1 a_vjob""")
    JD, JG, JX, JW = 28, 4, 32, 48
    def job(ktype):
        def reads(n):
            kc, e = n >> 2, n & 3
            a(f"ds_read_b128 v[{JX+4*e}:{JX+4*e+3}], v{20+e} offset:{kc*16384}")
            a(f"ds_read_b64_tr_b16 v[{JW+4*e}:{JW+4*e+1}], v24 offset:{kc*4096 + e*1024}")
            a(f"ds_read_b64_tr_b16 v[{JW+4*e+2}:{JW+4*e+3}], v24 offset:{kc*4096 + e*1024 + 128}")
        for n in range(4): reads(n)
        for n in range(16):
            e = n & 3
            a(f"s_waitcnt lgkmcnt({3*min(3, 15-n)})")
            x, w = f"v[{JX+4*e}:{JX+4*e+3}]", f"v[{JW+4*e}:{JW+4*e+3}]"
            c = "0" if n == 0 else f"v[{JD}:{JD+3}]"
            if ktype:
                a(f"v_mfma_f32_16x16x32_bf16 v[{JD}:{JD+3}], {w}, {x}, {c}")
            else:
                a(f"v_mfma_f32_16x16x32_bf16 v[{JD}:{JD+3}], {x}, {w}, {c}")
            if n + 4 < 16: reads(n + 4)
    a(f"""s_lshl_b32 s65, s65, 8
    s_add_u32 s64, s64, s65
    v_lshl_add_u32 v17, v18, 9, v17
    s_lshl_b32 s65, s60, 2
    s_add_u32 s65, s65, s76
    s_lshl_b32 s65, s65, 2
    s_add_u32 s65, s65, {WS_KMAX}
    s_mov_b32 s17, {0 if OPT.get("dry", 0) else 1}
    s_branch a_kbody{"" if OPT.get("dry", 0) else "0"}""")
    a.label("a_kbody0")
    a("s_barrier")
    a.label("a_kbody")
    job(True)
    a("s_xor_b32 s17, s17, 1\ns_cbranch_scc1 a_kbody0")
    a(f"s_mov_b32 s63, {f32(CSCALE)}")
    for e in range(4): a(f"v_mul_f32 v{JD+e}, s63, v{JD+e}")
    a(f"""v_cvt_pk_bf16_f32 v36, v{JD}, v{JD+1}
    v_cvt_pk_bf16_f32 v37, v{JD+2}, v{JD+3}
    buffer_store_dwordx2 v[36:37], v17, s[{WSR}:{WSR+3}], s64 offen sc1
    v_mul_f32 v38, v{JD}, v{JD}
    v_fmac_f32 v38, v{JD+1}, v{JD+1}
    v_fmac_f32 v38, v{JD+2}, v{JD+2}
    v_fmac_f32 v38, v{JD+3}, v{JD+3}
    v_mov_b32 v39, v38
    v_permlane32_swap_b32 v38, v39
    v_add_f32 v38, v38, v39
    v_mov_b32 v39, v38
    v_permlane16_swap_b32 v38, v39
    v_add_f32 v38, v38, v39
    v_max_f32_dpp v38, v38, v38 row_ror:8 row_mask:0xf bank_mask:0xf
    v_max_f32_dpp v38, v38, v38 row_ror:4 row_mask:0xf bank_mask:0xf
    v_max_f32_dpp v38, v38, v38 row_ror:2 row_mask:0xf bank_mask:0xf
    v_max_f32_dpp v38, v38, v38 row_ror:1 row_mask:0xf bank_mask:0xf
    s_mov_b64 exec, 1
    buffer_store_dword v38, v9, s[{WSR}:{WSR+3}], s65 offen sc1
    s_branch a_jobdone""")
    a.label("a_vjob")
    a(f"""s_mul_i32 s65, s65, 528
    s_add_u32 s64, s64, s65
    v_mov_b32 v12, 0x3f803f80
    v_mov_b32 v13, 0x3f803f80
    v_mov_b32 v14, 0x3f803f80
    v_mov_b32 v15, 0x3f803f80
    s_mov_b64 exec, 1
    buffer_store_dwordx4 v[12:15], v9, s[{WSR}:{WSR+3}], s64 offen offset:1536 sc1
    s_mov_b64 exec, -1
    v_lshl_add_u32 v17, v18, 8, v17
    s_mov_b32 s17, {0 if OPT.get("dry", 0) else 1}
    s_branch a_vbody{"" if OPT.get("dry", 0) else "0"}""")
    a.label("a_vbody0")
    a("s_barrier")
    a.label("a_vbody")
    job(False)
    a("s_xor_b32 s17, s17, 1\ns_cbranch_scc1 a_vbody0")
    a(f"""v_cvt_pk_bf16_f32 v36, v{JD}, v{JD+1}
    v_cvt_pk_bf16_f32 v37, v{JD+2}, v{JD+3}
    buffer_store_dwordx2 v[36:37], v17, s[{WSR}:{WSR+3}], s64 offen offset:1024 sc1
    s_mov_b64 exec, 1""")
    a.label("a_jobdone")
    ast(a, 1, False)
    a(f"""s_mov_b32 s63, 0x9e3779b1
    s_waitcnt vmcnt(1)
    v_mul_lo_u32 v10, v10, s63
    v_add_u32 v10, 0x7f4a7c15, v10
    s_waitcnt vmcnt(0)
    buffer_store_dword v10, v9, s[{WSR}:{WSR+3}], s69 offen sc1
    ds_write_b32 v26, v10 offset:56
    s_mov_b64 exec, -1
    s_setprio 0
    s_branch a_late2""")
    ATT_HEAD = a
    a = main
    a.lines[ENTRY_ATT:ENTRY_ATT] = ATT_HEAD.lines
    a.label("a_gate")
    a("v_lshrrev_b32 v8, 4, v1\nv_lshlrev_b32 v8, 4, v8\ns_waitcnt lgkmcnt(0)")
    ws_srd(a)
    srd(a, 52, PGW, 1024)
    for p in range(4):
        a(f"s_add_u32 s63, s59, {p}\ns_and_b32 s63, s63, 3\ns_lshl_b32 s63, s63, 8")
        for e in range(4):
            r = GW + 16*p + 4*e
            a(f"buffer_load_dwordx4 v[{r}:{r+3}], v8, s[52:55], s63 offen offset:{64*e}")
    a(f"""v_and_b32 v17, 15, v1
    v_lshrrev_b32 v18, 4, v1
    v_xor_b32 v19, v17, v18
    v_lshlrev_b32 v19, 4, v19
    v_lshl_add_u32 v19, v17, 8, v19
    s_lshl_b32 s63, s76, 12
    v_add_u32 v20, s63, v19
    v_xor_b32 v21, 64, v20
    v_xor_b32 v22, 128, v20
    v_xor_b32 v23, 192, v20
    s_lshl_b32 s65, s60, 2
    s_add_u32 s65, s65, s76
    s_lshl_b32 s67, s65, 6
    s_add_u32 s67, s67, {WS_G}
    v_lshlrev_b32 v25, 2, v1
    s_barrier""")
    for n in range(8): a(f"ds_read_b128 v[{32+4*n}:{35+4*n}], v{20+(n&3)} offset:{(n>>2)*16384}")
    a("s_waitcnt vmcnt(0)")
    for n in range(16):
        a(f"s_waitcnt lgkmcnt({min(7, 15-n)})")
        r = 32 + 4*(n & 7)
        a(f"v_mfma_f32_16x16x32_bf16 v[{JG}:{JG+3}], v[{GW+4*n}:{GW+4*n+3}], v[{r}:{r+3}], " + ("0" if n == 0 else f"v[{JG}:{JG+3}]"))
        if n + 8 < 16: a(f"ds_read_b128 v[{r}:{r+3}], v{20+(n&3)} offset:{((n+8)>>2)*16384}")
    a(f"""s_mov_b32 s63, {f32(-math.log2(math.e))}
    v_mul_f32 v10, s63, v{JG}
    v_exp_f32 v10, v10
    v_add_f32 v10, 1.0, v10
    v_rcp_f32 v10, v10
    s_mov_b64 exec, 0xffff
    buffer_store_dword v10, v25, s[{WSR}:{WSR+3}], s67 offen sc1
    s_mov_b64 exec, -1""")
    a.label("a_late2")
    ast(a, 2, False)
    a("s_mov_b32 s17, 1\ns_waitcnt lgkmcnt(0)\ns_barrier")
    a.label("a_late")
    a("s_waitcnt vmcnt(0)" if False else "s_nop 0")
    att_init()
    a("""s_cmp_lt_u32 s3, 4
    s_cbranch_scc1 a_gemm
    s_cmp_eq_u32 s17, 1
    s_cbranch_scc1 a_late3
    s_barrier""")
    a.label("a_late3")
    a("""s_waitcnt vmcnt(0)
    s_barrier
    s_barrier
    s_branch a_common""")
    a.label("a_gemm")
    vB, vAg, ACC, FA, FB = 124, 132, 68, 4, 36
    a(f"""s_lshr_b32 s63, s3, 1
    s_lshl_b32 s63, s63, 13
    v_and_b32 v8, 31, v1
    v_lshrrev_b32 v9, 5, v1
    v_and_b32 v10, 15, v1
    v_xor_b32 v10, v10, v9
    v_lshlrev_b32 v10, 4, v10
    v_lshl_add_u32 v10, v8, 8, v10
    v_add_u32 v{vB}, s63, v10""")
    for e in range(1, 8): a(f"v_xor_b32 v{vB+e}, {e*32}, v{vB}")
    a(f"""s_and_b32 s63, s3, 1
    v_bfe_u32 v8, v1, 2, 2
    v_lshrrev_b32 v10, 1, v8
    v_xor_b32 v10, s63, v10
    v_lshlrev_b32 v10, 6, v10
    v_lshl_add_u32 v8, v9, 3, v8
    v_lshl_add_u32 v10, v8, 7, v10
    v_bfe_u32 v8, v1, 4, 1
    v_lshl_add_u32 v10, v8, 5, v10
    v_and_b32 v8, 3, v1
    v_lshl_add_u32 v10, v8, 3, v10
    v_add_u32 v{vAg}, {WT}, v10
    s_lshl_b32 s63, s63, 12
    s_lshr_b32 s64, s3, 1
    s_lshl_b32 s64, s64, 10
    s_add_u32 s63, s63, s64
    s_add_u32 s63, s63, {QX}
    v_add_u32 v133, s63, v2""")
    def gemm_half(h):
        def reads(n):
            kc, e = n >> 3, n & 7
            a(f"ds_read_b128 v[{FB+4*e}:{FB+4*e+3}], v{vB+e} offset:{kc*16384}")
            a(f"ds_read_b64_tr_b16 v[{FA+4*e}:{FA+4*e+1}], v{vAg} offset:{kc*16384 + e*2048}")
            a(f"ds_read_b64_tr_b16 v[{FA+4*e+2}:{FA+4*e+3}], v{vAg} offset:{kc*16384 + e*2048 + 512}")
        n0 = 16*h
        for n in range(5): reads(n0 + n)
        for n in range(16):
            e = n & 7
            a(f"s_waitcnt lgkmcnt({3*min(4, 15-n)})")
            MF(a, ACC, FA + 4*e, FB + 4*e, None if (h == 0 and n == 0) else ACC)
            if n + 5 < 16: reads(n0 + n + 5)
    if OPT.get("qcnt"):
        lds_wait(a, vC, 48, 4, 8); ast(a, 1, False); gemm_half(0)
        lds_wait(a, vC, 60, 4, 8); gemm_half(1)
    else:
        a("s_barrier"); ast(a, 1, False); gemm_half(0)
        a("s_barrier"); gemm_half(1)
    for i in range(8): a(f"v_cvt_pk_bf16_f32 v{FA+i}, v{ACC+2*i}, v{ACC+2*i+1}")
    a(f"""ds_write_b128 v133, v[{FA}:{FA+3}]
    ds_write_b128 v133, v[{FA+4}:{FA+7}] offset:2048""")
    ast(a, 2, False)
    a("s_waitcnt lgkmcnt(0)\ns_barrier")
    a.label("a_common")
    a(f"""ds_read_b128 v[{QA}:{QA+3}], v{T+4}
    ds_read_b128 v[{QB}:{QB+3}], v{T+4} offset:1024""")
    lds_wait(a, vC, 0, 1, T)
    if DIAG:
        a("s_cmp_lt_u32 s3, 5\ns_cbranch_scc1 a_nost")
        ast(a, 1, False)
        a.label("a_nost")
    a(f"buffer_load_dwordx2 v[{K2}:{K2+1}], v{T+1}, s[{WSR}:{WSR+3}], s65 offen sc1")
    first_batch(3)
    for i in range(4): a(f"v_dot2_f32_bf16 v{NA+i}, v{QA+i}, v{QA+i}, 0")
    for i in range(4): a(f"v_dot2_f32_bf16 v{NB_+i}, v{QB+i}, v{QB+i}, 0")
    a(f"""v_mov_b32 v{SB+14}, 0
    v_mov_b32 v{SB+15}, 0
    v_add_f32 v{NA}, v{NA}, v{NA+1}
    v_add_f32 v{NA+2}, v{NA+2}, v{NA+3}
    v_add_f32 v{NB_}, v{NB_}, v{NB_+1}
    v_add_f32 v{NB_+2}, v{NB_+2}, v{NB_+3}
    v_add_f32 v{NA}, v{NA}, v{NA+2}
    v_add_f32 v{NB_}, v{NB_}, v{NB_+2}
    v_mov_b32 v{NA+1}, v{NA}
    v_mov_b32 v{NB_+1}, v{NB_}
    v_permlane32_swap_b32 v{NA}, v{NA+1}
    v_permlane32_swap_b32 v{NB_}, v{NB_+1}
    v_add_f32 v{NA}, v{NA}, v{NA+1}
    v_add_f32 v{NB_}, v{NB_}, v{NB_+1}""")
    a(f"""s_waitcnt vmcnt(3)
    v_max_f32 v{K2}, v{K2}, v{K2+1}
    v_max_f32_dpp v{K2}, v{K2}, v{K2} row_ror:8 row_mask:0xf bank_mask:0xf
    v_max_f32_dpp v{K2}, v{K2}, v{K2} row_ror:4 row_mask:0xf bank_mask:0xf
    v_max_f32_dpp v{K2}, v{K2}, v{K2} row_ror:2 row_mask:0xf bank_mask:0xf
    v_max_f32_dpp v{K2}, v{K2}, v{K2} row_ror:1 row_mask:0xf bank_mask:0xf
    v_mov_b32 v{K2+1}, v{K2}
    v_permlane32_swap_b32 v{K2}, v{K2+1}
    v_max_f32 v{K2}, v{K2}, v{K2+1}
    v_mov_b32 v{K2+1}, v{K2}
    v_permlane16_swap_b32 v{K2}, v{K2+1}
    v_max_f32 v{K2}, v{K2}, v{K2+1}
    v_mul_f32 v{NA}, v{NA}, v{K2}
    v_mul_f32 v{NB_}, v{NB_}, v{K2}
    s_mov_b32 s72, {f32(1600.0)}
    v_cmp_nle_f32 vcc, v{NA}, s72
    v_cmp_nle_f32 s[74:75], v{NB_}, s72
    v_sqrt_f32 v{NA}, v{NA}
    v_sqrt_f32 v{NB_}, v{NB_}
    s_or_b64 vcc, vcc, s[74:75]
    v_mov_b32 v{T+1}, 1
    s_waitcnt vmcnt(0)
    s_barrier""")
    a("s_cbranch_vccz a_fast")
    lds_wait(a, vC, 60, 4, T)
    a(f"""v_mov_b32 v{NA}, 0xff800000
    v_mov_b32 v{NB_}, 0xff800000
    v_mov_b32 v{T}, v{vKl}
    s_mov_b32 s74, 64""")
    a.label("a_maxloop")
    a(f"ds_read_b128 v[{KB}:{KB+3}], v{T}\nv_add_u32 v{T}, {ST}, v{T}\ns_waitcnt lgkmcnt(0)")
    MF(a, SA, KB, QA, None); MF(a, NMA, KB, QB, None)
    for i in range(8): a(f"v_max3_f32 v{NA}, v{NA}, v{SA+2*i}, v{SA+2*i+1}")
    for i in range(8): a(f"v_max3_f32 v{NB_}, v{NB_}, v{NMA+2*i}, v{NMA+2*i+1}")
    a(f"""s_sub_u32 s74, s74, 1
    s_cmp_lg_u32 s74, 0
    s_cbranch_scc1 a_maxloop
    v_mov_b32 v{NA+1}, v{NA}
    v_mov_b32 v{NB_+1}, v{NB_}
    v_permlane32_swap_b32 v{NA}, v{NA+1}
    v_permlane32_swap_b32 v{NB_}, v{NB_+1}
    v_max_f32 v{NA}, v{NA}, v{NA+1}
    v_max_f32 v{NB_}, v{NB_}, v{NB_+1}""")
    a.label("a_fast")
    ast(a, 3, False)
    a(f"""ds_read_b128 v[{KB}:{KB+3}], v{vK}
    ds_read_b128 v[{KB+4}:{KB+7}], v{vK} offset:{ST}
    ds_read_b128 v[{VB}:{VB+3}], v{vV}
    ds_read_b128 v[{VB+4}:{VB+7}], v{vV} offset:528""")
    for i in range(4): a(f"v_mov_b32 v{PA+i}, -1")
    a(f"buffer_store_dwordx4 v[{PA}:{PA+3}], v2, s[{WSR}:{WSR+3}], s62 offen sc1")
    a(f"v_sub_f32 v{NA}, 0, v{NA}\nv_sub_f32 v{NB_}, 0, v{NB_}")
    for i in range(8): a(f"v_pk_mov_b32 v[{NMA+2*i}:{NMA+2*i+1}], v[{NA}:{NA+1}], v[{NA}:{NA+1}] op_sel:[0,0]")
    for i in range(8): a(f"v_pk_mov_b32 v[{NMB+2*i}:{NMB+2*i+1}], v[{NB_}:{NB_+1}], v[{NB_}:{NB_+1}] op_sel:[0,0]")
    a("s_waitcnt lgkmcnt(0)")
    MF(a, SA, KB, QA, NMA)
    a("s_mov_b32 s73, 4\ns_setprio 2\ns_nop 9")
    a(".p2align 6")
    a.label("a_loop")
    for tt in range(8):
        cur = tt & 1; nxt = cur ^ 1
        Kc, Kn = KB + 4*cur, KB + 4*nxt
        Vc, Vn = VB + 8*cur, VB + 8*nxt
        kreg, koff = (vK, (tt + 2) * ST) if tt < 6 else (vKn, (tt - 6) * ST)
        vreg, voff = (vV, (tt + 1) * ST) if tt < 7 else (vVn, 0)
        for ph in range(2):
            S, P, Po, So, O = (SA, PA, PB, SB, OA) if ph == 0 else (SB, PB, PA, SA, OB)
            ex = lambda i: a(f"v_exp_f32 v{S+i}, v{S+i}")
            cv = lambda j: a(f"v_cvt_pk_bf16_f32 v{P+j}, v{S+2*j}, v{S+2*j+1}")
            ex(0)
            a(f"v_cvt_pk_bf16_f32 v{Po+7}, v{So+14}, v{So+15}")
            ex(1)
            if ph == 0:
                MF(a, SB, Kc, QB, NMB)
                a(f"ds_read_b128 v[{Kc}:{Kc+3}], v{kreg} offset:{koff}")
            else:
                MF(a, SA, Kn, QA, NMA)
                if tt == 7: a("s_add_u32 s71, s71, 1")
                if tt == 6: a("s_sub_u32 s73, s73, 1")
                if tt == 2: a("s_cmp_eq_u32 s73, 4")
            ex(2); ex(3); cv(0); ex(4); ex(5); cv(1)
            if ph == 0:
                MF(a, OB, Vn + 4, PB + 4, OB)
                a(f"ds_read_b128 v[{Vn}:{Vn+3}], v{vreg} offset:{voff}")
            else:
                MF(a, OA, Vc + 4, PA + 4, OA)
                a("s_waitcnt lgkmcnt(0)")
            ex(6); ex(7); cv(2); ex(8); ex(9); cv(3); ex(10); ex(11)
            MF(a, O, Vc, P, O)
            if ph == 0:
                a(f"ds_read_b128 v[{Vn+4}:{Vn+7}], v{vreg} offset:{voff+528}")
            elif tt == 7:
                a("s_and_b32 s71, s71, 7")
            cv(4); ex(12); ex(13); cv(5); ex(14); ex(15)
            if ph == 1 and tt == 7:
                a(f"""s_mul_i32 s70, s71, {8*ST}
                v_mov_b32 v{vK}, v{vKn}
                v_mov_b32 v{vV}, v{vVn}
                v_add_u32 v{vKn}, s70, v{vKl}
                v_add_u32 v{vVn}, s70, v{vVl}""")
            cv(6)
        if tt == 2:
            a("s_cbranch_scc1 a_chk1")
            a.label("a_ret1")
    a("s_cmp_eq_u32 s73, 1\ns_cbranch_scc1 a_it2\ns_cmp_eq_u32 s73, 0\ns_cbranch_scc1 a_done")
    a("s_cmp_eq_u32 s73, 3\ns_cbranch_scc0 a_it1")
    ast(a, 4, False)
    a("s_waitcnt vmcnt(0)")
    lds_add(a, vC, 44, T + 1)
    lds_wait(a, vC, 8, 4, T)
    a("s_branch a_loop")
    a.label("a_chk1")
    lds_wait(a, vC, 4, 4, T)
    a("s_branch a_ret1")
    a.label("a_it1")
    lds_add(a, vC, 12, T + 1)
    lds_wait(a, vC, 60, 4, T)
    a("s_setprio 1\ns_branch a_loop")
    a.label("a_it2")
    OF, WF, C0, C1, AX, YR, GR = 12, 44, 108, 124, 140, 148, 152
    vWr, vRd, vRow, vG, XR, vWo, vY, vWr4, vRd4 = 156, 157, 158, 159, 160, 164, 165, 166, 167
    a(f"""s_and_b32 s66, s3, 1
    s_lshr_b32 s67, s3, 1
    s_lshl_b32 s63, s66, 5
    s_add_u32 s63, s63, s56
    v_and_b32 v{vG}, 31, v1
    v_add_u32 v{vG}, s63, v{vG}
    v_lshlrev_b32 v{vRow}, 3, v3
    v_lshl_add_u32 v{vRow}, v{vG}, 10, v{vRow}
    v_lshlrev_b32 v{vG}, 2, v{vG}
    s_lshl_b32 s69, s67, 5
    s_lshl_b32 s63, s57, 1
    s_add_u32 s69, s69, s63
    buffer_load_dwordx2 v[{XR}:{XR+1}], v{vRow}, s[36:39], s69 offen
    buffer_load_dwordx2 v[{XR+2}:{XR+3}], v{vRow}, s[36:39], s69 offen offset:16
    v_lshl_add_u32 v{vRow}, v3, 3, v{vRow}
    {"buffer_load_dword v%d, v%d, s[40:43], s69 offen" % (T + 1, vRow) if OPT.get("touch") else ""}
    s_cmp_lt_u32 s3, 3
    s_cselect_b32 s63, 0, {OX1 - 3*2304 - OX0}
    s_mul_i32 s64, s3, 2304
    s_add_u32 s63, s63, s64
    s_add_u32 s63, s63, {OX0}
    v_add_u32 v{vWr}, s63, v2
    v_lshl_add_u32 v{vWr4}, v1, 2, s63
    s_xor_b32 s65, s3, 4
    s_cmp_lt_u32 s65, 3
    s_cselect_b32 s63, 0, {OX1 - 3*2304 - OX0}
    s_mul_i32 s64, s65, 2304
    s_add_u32 s63, s63, s64
    s_add_u32 s63, s63, {OX0}
    v_add_u32 v{vRd}, s63, v2
    v_lshl_add_u32 v{vRd4}, v1, 2, s63
    s_lshl_b32 s68, s60, 1
    s_add_u32 s68, s68, s66
    s_lshl_b32 s68, s68, 5
    s_lshl_b32 s63, s67, 3
    s_add_u32 s68, s68, s63
    s_lshl_b32 s68, s68, 10
    s_add_u32 s68, s68, {WS_O}
    s_add_u32 s59, s68, 4096
    s_lshl_b32 s63, s67, 1
    s_and_b32 s63, s63, 4
    s_add_u32 s63, s63, s58
    s_and_b32 s63, s63, 7
    s_mul_i32 s63, s63, {8*ST}
    s_and_b32 s64, s67, 1
    s_lshl_b32 s64, s64, 14
    s_add_u32 s63, s63, s64
    v_bfe_u32 v{vY}, v1, 2, 2
    v_lshrrev_b32 v{vWo}, 1, v{vY}
    v_lshl_add_u32 v{vY}, v3, 2, v{vY}
    v_lshlrev_b32 v{vY}, 7, v{vY}
    v_bfe_u32 v{T}, v1, 4, 1
    v_lshl_add_u32 v{vY}, v{T}, 5, v{vY}
    v_and_b32 v{T}, 3, v1
    v_lshl_add_u32 v{vY}, v{T}, 3, v{vY}
    v_lshl_add_u32 v{vWo}, v{vWo}, 6, v{vY}
    v_add_u32 v{vWo}, s63, v{vWo}
    s_lshl_b32 s63, s67, 11
    s_lshl_b32 s64, s66, 6
    s_add_u32 s63, s63, s64
    s_add_u32 s63, s63, {YT}
    v_add_u32 v{vY}, s63, v{vY}
    s_lshl_b32 s63, s66, 2
    s_add_u32 s63, s63, s58
    s_add_u32 s63, s63, 2
    s_and_b32 s63, s63, 7
    s_mul_i32 s72, s63, {8*ST}
    s_mov_b32 s76, {WS_G}
    ds_read_b32 v{T}, v{vC} offset:56
    s_waitcnt lgkmcnt(0)
    v_readfirstlane_b32 s{TAG}, v{T}
    s_setprio 0
    s_cmp_lt_u32 s3, 4
    s_cbranch_scc1 a_loop""")
    if not OPT.get("abl"): lds_wait(a, vC, 20, 4, T, 2)
    a("s_branch a_loop")
    a.label("a_done")
    stamp(a, 5)
    a(f"v_cvt_pk_bf16_f32 v{PB+7}, v{SB+14}, v{SB+15}\ns_cmp_ge_u32 s3, 4")
    MF(a, OB, VB + 12, PB + 4, OB)
    a(f"""s_cbranch_scc1 a_red1
    v_lshlrev_b32 v10, 6, v1
    s_lshl_b32 s63, s61, 11
    v_add_u32 v10, s63, v10
    s_lshl_b32 s63, s60, 6
    s_mov_b32 exec_lo, 0
    v_and_b32 v10, 7, v1
    v_lshlrev_b32 v10, 11, v10
    v_add_u32 v10, s63, v10
    s_mov_b32 exec_lo, -1
    s_mov_b32 s73, {WS_FY}
    s_mov_b32 s75, {1 if OPT.get("abl") else 0x40000}
    v_lshrrev_b32 v7, 3, v1
    v_and_b32 v8, 7, v1
    v_lshlrev_b32 v8, 4, v8
    v_lshl_add_u32 v8, v7, 12, v8
    s_lshl_b32 s64, s3, 4
    s_add_u32 s64, s64, s57
    s_lshl_b32 s64, s64, 12
    s_lshl_b32 s63, s56, 1
    s_add_u32 s64, s64, s63
    s_add_u32 s64, s64, {WS_Y}
    s_add_u32 s65, s64, 32768
    s_lshl_b32 s63, s3, 11
    s_add_u32 s63, s63, {YT}
    v_add_u32 v7, s63, v2""")
    a.label("a_ypoll")
    a(f"""buffer_load_dwordx2 v[20:21], v10, s[{WSR}:{WSR+3}], s73 offen sc1
    s_sub_u32 s75, s75, 1
    s_waitcnt vmcnt(0)
    v_cmp_ne_u32 vcc, s{TAG}, v20
    s_cbranch_vccz a_yready
    s_sleep 4
    s_cmp_lg_u32 s75, 0
    s_cbranch_scc1 a_ypoll""")
    a.label("a_yready")
    a(f"""buffer_load_dwordx4 v[12:15], v8, s[{WSR}:{WSR+3}], s64 offen sc1
    buffer_load_dwordx4 v[16:19], v8, s[{WSR}:{WSR+3}], s65 offen sc1
    s_getreg_b32 s63, hwreg(HW_REG_XCC_ID)
    v_cmp_ne_u32 vcc, s63, v21
    s_cmp_eq_u32 vcc_hi, 0
    s_cselect_b32 s63, 1, 0
    v_mov_b32 v11, s63
    ds_write_b32 v{vC}, v11 offset:48
    s_waitcnt vmcnt(1)
    ds_write_b128 v7, v[12:15]
    s_waitcnt vmcnt(0)
    ds_write_b128 v7, v[16:19] offset:1024""")
    for (lbl, W, Kp) in (("", OB, OA), ("a_red1", OA, OB)):
        if lbl: a.label(lbl)
        a(f"""ds_write_b128 v{vWr}, v[{W}:{W+3}]
        ds_write_b128 v{vWr}, v[{W+4}:{W+7}] offset:1024
        ds_write_b32 v{vWr4}, v{W+8} offset:2048
        v_xor_b32 v9, 64, v{vWo}
        s_mov_b32 s75, 0x40000
        s_waitcnt lgkmcnt(0)
        s_barrier
        ds_read_b32 v10, v{vC} offset:48
        ds_read_b32 v{SA+8}, v{vRd4} offset:2048
        ds_read_b128 v[{SA}:{SA+3}], v{vRd}
        ds_read_b128 v[{SA+4}:{SA+7}], v{vRd} offset:1024
        ds_read_b64_tr_b16 v[{YR}:{YR+1}], v{vY}
        ds_read_b64_tr_b16 v[{YR+2}:{YR+3}], v{vY} offset:1024
        s_waitcnt lgkmcnt(4)
        buffer_load_dword v{GR}, v{vG}, s[{WSR}:{WSR+3}], s76 offen sc1
        v_readfirstlane_b32 s63, v10
        v_add_f32 v{Kp+8}, v{Kp+8}, v{SA+8}
        v_rcp_f32 v{T}, v{Kp+8}
        s_waitcnt lgkmcnt(2)""")
        for i in range(8): a(f"v_add_f32 v{Kp+i}, v{Kp+i}, v{SA+i}")
        for i in range(8): a(f"v_mul_f32 v{Kp+i}, v{Kp+i}, v{T}")
        for i in range(4): a(f"v_cvt_pk_bf16_f32 v{4+i}, v{Kp+2*i}, v{Kp+2*i+1}")
        if not lbl: a("s_branch a_p3")
    a.label("a_p3")
    a(f"""s_cmp_eq_u32 s63, {1 if OPT.get("oloc", 1) else 5}
    s_cbranch_scc1 a_olocal
    buffer_store_dwordx4 v[4:7], v2, s[{WSR}:{WSR+3}], s62 offen sc1
    s_branch a_ostored""")
    a.label("a_olocal")
    a(f"buffer_store_dwordx4 v[4:7], v2, s[{WSR}:{WSR+3}], s62 offen {('', 'nt', 'sc0')[OPT.get('oflag', 0)]}")
    a.label("a_ostored")
    ast(a, 2, True)
    for e in range(8):
        for mt in range(2):
            r = WF + 8*e + 4*mt
            if e in (3, 5, 7) and mt == 0: a("s_waitcnt lgkmcnt(6)")
            a(f"ds_read_b64_tr_b16 v[{r}:{r+1}], v{(vWo, 9)[mt]} offset:{e*2048}")
            a(f"ds_read_b64_tr_b16 v[{r+2}:{r+3}], v{(vWo, 9)[mt]} offset:{e*2048+1024}")
    if OPT.get("oack"): a("s_waitcnt vmcnt(0)")
    ast(a, 3, True)
    for i in range(8):
        a(f"buffer_load_dwordx4 v[{OF+4*i}:{OF+4*i+3}], v2, s[{WSR}:{WSR+3}], s{68 if i < 4 else 59} offen offset:{1024*(i&3)} sc1")
    a(f"s_waitcnt vmcnt({8 if OPT.get('oack') else 9})\nv_sub_f32 v{GR+1}, 1.0, v{GR}")
    for aa in range(2):
        x0, x1, y0, y1, t = XR + 2*aa, XR + 2*aa + 1, YR + 2*aa, YR + 2*aa + 1, AX + 4*aa
        a(f"""v_lshlrev_b32 v{t}, 16, v{x0}
        v_and_b32 v{t+1}, 0xffff0000, v{x0}
        v_lshlrev_b32 v{t+2}, 16, v{x1}
        v_and_b32 v{t+3}, 0xffff0000, v{x1}
        v_lshlrev_b32 v154, 16, v{y0}
        v_and_b32 v155, 0xffff0000, v{y0}
        v_lshlrev_b32 v156, 16, v{y1}
        v_and_b32 v157, 0xffff0000, v{y1}""")
        for e in range(4): a(f"v_mul_f32 v{t+e}, v{t+e}, v{154+e}")
        for e in range(4): a(f"v_mul_f32 v{t+e}, v{t+e}, v{GR}")
    a(f"""s_lshl_b32 s63, s67, 11
    s_add_u32 s63, s63, s72
    v_add_u32 v8, s63, v2
    s_lshl_b32 s63, s67, 13
    s_add_u32 s63, s63, s72
    v_add_u32 v11, s63, v2
    s_waitcnt lgkmcnt(0)""")
    for e in range(8):
        r = OF + 4*e
        a(f"s_waitcnt vmcnt({7-e})")
        a.label(f"a_ochk{e}")
        a(f"""v_max3_u32 v10, v{r}, v{r+1}, v{r+2}
        v_max_u32 v10, v10, v{r+3}
        v_cmp_eq_u32 vcc, -1, v10
        s_cbranch_vccnz a_oretry{e}""")
        a.label(f"a_ogo{e}")
        MF(a, C0, WF + 8*e, r, None if e == 0 else C0)
        MF(a, C1, WF + 8*e + 4, r, None if e == 0 else C1)
    stamp(a, 6)
    for ow in range(4):
        a(f"ds_write_b128 v8, v[{C0+8*ow}:{C0+8*ow+3}] offset:{8192*ow}")
        a(f"ds_write_b128 v8, v[{C0+8*ow+4}:{C0+8*ow+7}] offset:{8192*ow+1024}")
    a("s_waitcnt lgkmcnt(0)\ns_barrier")
    for sr in range(4):
        a(f"ds_read_b128 v[{OF+8*sr}:{OF+8*sr+3}], v11 offset:{2048*sr}")
        a(f"ds_read_b128 v[{OF+8*sr+4}:{OF+8*sr+7}], v11 offset:{2048*sr+1024}")
    a("s_waitcnt lgkmcnt(4)")
    for i in range(8): a(f"v_add_f32 v{OF+i}, v{OF+i}, v{OF+8+i}")
    a("s_waitcnt lgkmcnt(0)")
    for i in range(8): a(f"v_add_f32 v{OF+16+i}, v{OF+16+i}, v{OF+24+i}")
    for i in range(8): a(f"v_add_f32 v{OF+i}, v{OF+i}, v{OF+16+i}")
    for i in range(8): a(f"v_fmac_f32 v{AX+i}, v{OF+i}, v{GR+1}")
    for i in range(4): a(f"v_cvt_pk_bf16_f32 v{OF+i}, v{AX+2*i}, v{AX+2*i+1}")
    a(f"""v_permlane32_swap_b32 v{OF}, v{OF+2}
    v_permlane32_swap_b32 v{OF+1}, v{OF+3}
    buffer_store_dwordx4 v[{OF}:{OF+3}], v{vRow}, s[40:43], s69 offen {('', 'nt', 'sc1', 'sc0 sc1')[OPT.get('outflag', 0)]}""")
    if OPT.get("delay1"):
        a(f"s_mov_b32 s60, {OPT['delay1']}")
        a.label("dly1")
        a("s_nop 15\ns_nop 15\ns_nop 15\ns_nop 15\ns_sub_u32 s60, s60, 1\ns_cmp_lg_u32 s60, 0\ns_cbranch_scc1 dly1")
    fin(a)
    for e in range(8):
        a.label(f"a_oretry{e}")
        a("s_waitcnt vmcnt(0)")
        for i in range(e, 8):
            a(f"buffer_load_dwordx4 v[{OF+4*i}:{OF+4*i+3}], v2, s[{WSR}:{WSR+3}], s{68 if i < 4 else 59} offen offset:{1024*(i&3)} sc1")
        a(f"""s_sub_u32 s75, s75, 1
        s_waitcnt vmcnt({7-e})
        s_cmp_lg_u32 s75, 0
        s_cbranch_scc1 a_ochk{e}
        s_branch a_ogo{e}""")
    a.label("k_end")
    a("s_endpgm")
    return a.finish()

def build():
    hdr = open("cdna_kernels/" + NAME + ".s.ref").read().split("; Override launch")[0]
    out = hdr + f"; @launch grid=(256,1,1) block=(768,1,1) lds={LEND}\n"
    out += f'.amdgcn_target "amdgcn-amd-amdhsa--gfx950"\n.text\n.globl {KN}\n.p2align 8\n.type {KN},@function\n' + kernel() + "code_end:\n"
    out += f""".section .rodata,"a"
.p2align 6
.amdhsa_kernel {KN}
  .amdhsa_next_free_vgpr 168
  .amdhsa_next_free_sgpr {100 if DIAG else 80}
  .amdhsa_accum_offset 168
  .amdhsa_group_segment_fixed_size 0
  .amdhsa_kernarg_size 120
  .amdhsa_user_sgpr_count 2
  .amdhsa_user_sgpr_kernarg_segment_ptr 1
  .amdhsa_system_sgpr_workgroup_id_x 1
.end_amdhsa_kernel
"""
    return out

if __name__ == "__main__":
    for x in list(sys.argv):
        if "=" in x:
            kk, vv = x.split("="); OPT[kk] = int(vv); sys.argv.remove(x)
    if "-l" in sys.argv:
        DIAG = True; LIGHT = True; sys.argv.remove("-l")
    if "-d" in sys.argv:
        DIAG = True; sys.argv.remove("-d")
    dst = sys.argv[1] if len(sys.argv) > 1 else "cdna_kernels/" + NAME + ".s"
    open(dst, "w").write(build())
    print("wrote", dst)
```

```python
import sys, math, struct
from asmlib import Asm

NAME = "gated_mix__ssm_conv_h3__grouped_kv_mqa__prompt"
KN = NAME + "_kernel"
WS_KV, WS_KMAX, WS_G = 0x000000, 0x024000, 0x025000
WS_FKV, WS_FX, WS_FY = 0x028000, 0x02c000, 0x030000
WS_XREV, WS_O, WS_Y = 0x100000, 0x300000, 0x500000
WS_SIZE = 0x700000
ST = 2080
KVBYTES = 64 * ST
CSCALE = 0.25 * math.log2(math.e)
def f32(x): return "0x%08x" % struct.unpack("<I", struct.pack("<f", x))[0]

XT, WT, WKV = 0, 65536, 131072
QX = 149824
YT = KVBYTES
XE0, XESZ, XOOFF = KVBYTES, 8320, 4160
CNT = 149760
LEND = 163840
OX0, OX1 = 141312, 149824

DIAG = False
LIGHT = False
OPT = {"oack": 0, "oflag": 1, "cpf": 0, "dsplit": 1, "obulk": 1, "early": 1, "wqpf": 0}
WS_DIAG = 0x1000000
def ast(a, idx, tail):
    if bool(OPT.get("tail2")) == tail: stamp(a, idx)
def hst(a, idx, tail):
    if OPT.get("headst"): return
    if bool(OPT.get("tailst")) == tail: stamp(a, idx)
def hd(a, idx):
    if OPT.get("headst"): stamp(a, idx)
def stamp(a, idx, real=False):
    if not DIAG: return
    if LIGHT and idx < 8: return
    if OPT.get("dbg"): real = True
    a(f"{'s_memrealtime' if real else 's_memtime'} s[{80+2*idx}:{81+2*idx}]\ns_waitcnt lgkmcnt(0)")
def fin(a):
    if OPT.get("dbg"):
        _n[0] += 1; l = f"fin{_n[0]}"
        a(f"""s_waitcnt vmcnt(0)
        s_memrealtime s[94:95]
        s_load_dwordx2 s[68:69], s[0:1], 104
        s_waitcnt lgkmcnt(0)
        s_cmp_lg_u32 s2, 77
        s_cbranch_scc1 {l}
        s_cmp_eq_u32 s3, {OPT["dbg"]}
        s_cselect_b32 s67, 0, 32
        s_cbranch_scc1 {l}_go
        s_cmp_lg_u32 s3, 8
        s_cbranch_scc1 {l}""")
        a.label(l + "_go")
        a("s_mov_b32 s70, 256\ns_mov_b32 s71, 0x20000\ns_mov_b64 exec, 1\nv_mov_b32 v0, 0")
        for i in range(1, 8):
            a(f"s_sub_u32 s66, s{80+2*i}, s80\nv_mov_b32 v{i}, s66\nbuffer_store_dword v{i}, v0, s[68:71], s67 offen offset:{4*(i-1)}")
        a.label(l)
        a("s_endpgm")
        return
    if DIAG:
        a("s_waitcnt vmcnt(0)")
        stamp(a, 7); stamp(a, 9, True)
        a(f"""s_add_u32 s68, s32, {WS_DIAG}
        s_addc_u32 s69, s33, 0
        s_mov_b32 s70, 0x40000
        s_mov_b32 s71, 0x20000
        s_lshl_b32 s67, s2, 4
        s_add_u32 s67, s67, s3
        s_lshl_b32 s67, s67, 6
        s_mov_b64 exec, 1
        v_mov_b32 v0, 0""")
        for i in range(10):
            a(f"v_mov_b32 v1, s{80+2*i}\nbuffer_store_dword v1, v0, s[68:71], s67 offen offset:{4*i}")
    a("s_endpgm")

def srd(a, d, lo, size):
    a(f"s_mov_b32 s{d}, s{lo}\ns_mov_b32 s{d+1}, s{lo+1}\ns_mov_b32 s{d+2}, {size}\ns_mov_b32 s{d+3}, 0x20000")
def ws_srd(a):
    a(f"s_mov_b32 s32, s34\ns_mov_b32 s33, s35\ns_mov_b32 s34, {WS_SIZE}\ns_mov_b32 s35, 0x20000")
def srd_off(a, d, lo, off, size):
    a(f"s_add_u32 s{d}, s{lo}, {off}\ns_addc_u32 s{d+1}, s{lo+1}, 0\ns_mov_b32 s{d+2}, {size}\ns_mov_b32 s{d+3}, 0x20000")
def dma(a, voff, srdn, soff, m0, flags=""):
    a(f"s_mov_b32 m0, {m0}")
    a(f"buffer_load_dwordx4 v{voff}, s[{srdn}:{srdn+3}], {soff} offen {flags} lds")
PX, PK, PV, PSH, PH, PD, PWQ, PWK, PWV, PWO, PGW, POUT, PWS = 4, 6, 8, 10, 12, 14, 18, 22, 24, 26, 28, 30, 32
WSR = 32
TAG = 77
_n = [0]
def lds_wait(a, vaddr, off, val, vt, sleep=1):
    sleep = sleep * OPT.get("slmul", 1)
    _n[0] += 1; l = f"lw{_n[0]}"
    a("s_mov_b32 s75, 0x100000")
    a.label(l)
    a(f"""ds_read_b32 v{vt}, v{vaddr} offset:{off}
    s_sub_u32 s75, s75, 1
    s_waitcnt lgkmcnt(0)
    v_readfirstlane_b32 s74, v{vt}
    s_cmp_ge_u32 s74, {val}
    s_cbranch_scc1 {l}_ok
    s_sleep {sleep}
    s_cmp_lg_u32 s75, 0
    s_cbranch_scc1 {l}""")
    a.label(l + "_ok")
def lds_add(a, vaddr, off, vone):
    a(f"s_mov_b64 exec, 1\nds_add_u32 v{vaddr}, v{vone} offset:{off}\ns_mov_b64 exec, -1")
def publish(a, vaddr, off, vone, vt, sflag, nwaves, xcc=False):
    _n[0] += 1; l = f"pb{_n[0]}"
    a(f"""s_mov_b64 exec, 1
    ds_add_rtn_u32 v{vt}, v{vaddr}, v{vone} offset:{off}
    s_waitcnt lgkmcnt(0)
    v_readfirstlane_b32 s74, v{vt}
    s_cmp_lg_u32 s74, {nwaves-1}
    s_cbranch_scc1 {l}
    v_mov_b32 v{vt}, s{TAG}
    v_mov_b32 v{vt+2}, 0""")
    if xcc:
        a(f"""s_getreg_b32 s74, hwreg(HW_REG_XCC_ID)
        v_mov_b32 v{vt+1}, s74
        buffer_store_dwordx2 v[{vt}:{vt+1}], v{vt+2}, s[{WSR}:{WSR+3}], s{sflag} offen sc1""")
    else:
        a(f"buffer_store_dword v{vt}, v{vt+2}, s[{WSR}:{WSR+3}], s{sflag} offen sc1")
    a.label(l)
    a("s_mov_b64 exec, -1")
def poll32(a, sbase, vt, word, rowgrp=False):
    _n[0] += 1; l = f"pl{_n[0]}"
    a(f"s_cmp_lg_u32 s66, 0\ns_cbranch_scc1 {l}_lds")
    a(f"v_lshlrev_b32 v{vt}, 6, v1")
    if rowgrp:
        a(f"""s_lshl_b32 s74, s61, 11
        v_add_u32 v{vt}, s74, v{vt}
        s_lshl_b32 s74, s60, 6
        s_mov_b32 exec_lo, 0
        v_and_b32 v{vt}, 7, v1
        v_lshlrev_b32 v{vt}, 11, v{vt}
        v_add_u32 v{vt}, s74, v{vt}
        s_mov_b32 exec_lo, -1""")
    a(f"s_mov_b32 exec_hi, {0xff if rowgrp else 0}\ns_mov_b32 s75, 0x40000")
    a.label(l)
    a(f"""buffer_load_dword v{vt+1}, v{vt}, s[{WSR}:{WSR+3}], s{sbase} offen sc1
    s_sub_u32 s75, s75, 1
    s_waitcnt vmcnt(0)
    v_cmp_ne_u32 vcc, s{TAG}, v{vt+1}
    s_cbranch_vccz {l}_ok
    s_mov_b64 exec, vcc
    s_sleep 4
    s_cmp_lg_u32 s75, 0
    s_cbranch_scc1 {l}""")
    a.label(l + "_ok")
    a(f"s_mov_b64 exec, -1\nds_write_b32 v3, v14 offset:{word}\ns_branch {l}_done")
    a.label(l + "_lds")
    lds_wait(a, 3, word, 1, vt, 2)
    a.label(l + "_done")

def w_src(a, v, t0, t1):
    a(f"""v_lshrrev_b32 v{t0}, 3, v1
    v_lshlrev_b32 v{t1}, 1, v{t0}
    v_and_b32 v{t1}, 4, v{t1}
    v_and_b32 v{v}, 7, v1
    v_xor_b32 v{v}, v{v}, v{t1}
    v_lshlrev_b32 v{v}, 4, v{v}
    v_lshl_add_u32 v{v}, v{t0}, 10, v{v}
    s_lshl_b32 s63, s57, 1
    v_add_u32 v{v}, s63, v{v}""")

MF = lambda a, d, A, B, C: a(f"v_mfma_f32_32x32x16_bf16 v[{d}:{d+15}], v[{A}:{A+3}], v[{B}:{B+3}], " + ("0" if C is None else f"v[{C}:{C+15}]"))

def kv_unit_step(a, step):
    a(f"""s_cmp_ge_u32 s59, 130
    s_cselect_b32 s63, 130, 0
    s_sub_u32 s59, s59, s63
    s_lshl_b32 s63, s59, 10
    s_add_u32 s59, s59, {step}""")

def kernel():
    a = Asm()
    a.label(KN)
    a(f"""s_getpc_b64 s[36:37]
    s_load_dwordx16 s[4:19], s[0:1], 0
    s_load_dwordx16 s[20:35], s[0:1], 56
    v_lshlrev_b32 v1, 7, v0
    v_min_u32 v1, code_end-{KN}-8, v1
    global_load_dword v167, v1, s[36:37]
    s_cmp_ge_u32 s2, 256
    s_cbranch_scc1 k_end""")
    if OPT.get("scramble"):
        a("s_lshr_b32 s60, s2, 5\ns_and_b32 s2, s2, 31\ns_lshl_b32 s2, s2, 3\ns_or_b32 s2, s2, s60")
    if OPT.get("delay0"):
        a(f"s_mov_b32 s60, {OPT['delay0']}")
        a.label("dly0")
        a("s_nop 15\ns_nop 15\ns_nop 15\ns_nop 15\ns_sub_u32 s60, s60, 1\ns_cmp_lg_u32 s60, 0\ns_cbranch_scc1 dly0")
    if OPT.get("pb1"): a("s_memtime s[78:79]")
    stamp(a, 8, True); stamp(a, 0)
    a("""v_lshrrev_b32 v2, 6, v0
    v_and_b32 v1, 63, v0
    v_readfirstlane_b32 s3, v2
    s_and_b32 s60, s2, 7
    s_lshl_b32 s60, s60, 2
    s_lshr_b32 s61, s2, 3
    s_and_b32 s62, s61, 3
    s_add_u32 s60, s60, s62
    s_lshr_b32 s61, s61, 2
    s_lshl_b32 s56, s60, 6
    s_lshl_b32 s57, s61, 6
    s_add_u32 s59, s61, s62
    s_add_u32 s59, s59, s2
    s_and_b32 s59, s59, 3
    s_lshr_b32 s76, s61, 1
    s_lshl_b32 s58, s62, 1
    v_lshlrev_b32 v2, 4, v1
    s_cmp_lt_u32 s3, 8
    s_cbranch_scc1 e_att""")
    a(f"""s_sub_u32 s66, s3, 8
    v_lshrrev_b32 v9, 4, v1
    v_and_b32 v10, 15, v1
    v_xor_b32 v10, v10, v9
    v_lshlrev_b32 v10, 4, v10
    v_lshl_add_u32 v4, v9, 10, v10
    v_xor_b32 v5, 64, v4
    v_xor_b32 v6, 0x80, v4
    v_xor_b32 v7, 0xc0, v4
    v_add_u32 v5, 3072, v5
    v_add_u32 v6, 6144, v6
    v_add_u32 v7, 9216, v7
    s_add_u32 s63, s59, s66
    s_and_b32 s63, s63, 3
    s_lshl_b32 s64, s76, 4
    s_add_u32 s64, s64, s56
    s_lshl_b32 s64, s64, 10
    s_lshl_b32 s65, s63, 8
    s_add_u32 s64, s64, s65
    s_lshl_b32 s65, s63, 12
    s_lshl_b32 s67, s66, 14
    s_lshl_b32 s68, s76, 12
    s_add_u32 m0, s67, s68
    s_lshl_b32 s68, s66, 12
    s_add_u32 s67, s68, {WKV}
    s_mov_b32 s38, 0x200000
    s_mov_b32 s39, 0x20000
    s_mov_b32 s42, 0x4000
    s_mov_b32 s43, 0x20000
    s_bitcmp0_b32 s61, 0
    s_waitcnt lgkmcnt(0)""")
    hd(a, 1)
    a(f"s_mov_b32 s36, s{PX}\ns_mov_b32 s37, s{PX+1}")
    for q in range(4): a(f"buffer_load_dwordx4 v{4+q}, s[36:39], s64 offen offset:{1024*q} lds")
    a(f"s_cselect_b32 s40, s{PWK}, s{PWV}\ns_cselect_b32 s41, s{PWK+1}, s{PWV+1}\ns_mov_b32 m0, s67")
    for q in range(4): a(f"buffer_load_dwordx4 v2, s[40:43], s65 offen offset:{1024*q} lds")
    hd(a, 2)
    srd(a, 44, PWQ, 0x80000)
    if OPT.get("spf", 0):
        a("""v_lshlrev_b32 v15, 7, v1
        s_lshr_b32 s63, s2, 3
        s_lshl_b32 s63, s63, 14
        s_add_u32 s63, s63, s68
        s_mov_b32 exec_hi, 0
        buffer_load_dword v15, v15, s[44:47], s63 offen
        s_mov_b32 exec_hi, -1""")
    w_src(a, 8, 9, 10)
    a(f"""v_add_u32 v9, 7168, v8
    v_add_u32 v10, 14336, v8
    v_add_u32 v11, 21504, v8
    s_lshl_b32 s63, s66, 6
    v_xor_b32 v13, s63, v4
    s_lshl_b32 s63, s66, 12
    v_add_u32 v13, s63, v13
    s_lshl_b32 s69, s66, 15
    s_lshl_b32 s64, s56, 10
    s_lshl_b32 s65, s66, 10""")
    for t in range(3):
        a(f"""s_add_u32 s63, s76, {t+1}
        s_and_b32 s63, s63, 3
        s_lshl_b32 s{48+t}, s63, 14
        s_add_u32 s{48+t}, s{48+t}, s64
        s_lshl_b32 s{52+t}, s63, 12
        s_add_u32 s{52+t}, s{52+t}, s65""")
    def stage1(slot):
        a(f"""s_add_u32 s63, s59, {slot}
        s_and_b32 s63, s63, 3
        s_lshl_b32 s67, s63, 17
        s_add_u32 s67, s67, s69
        s_lshl_b32 s65, s63, 8
        s_add_u32 m0, s68, {WT + slot*16384}""")
        for q in range(4): a(f"buffer_load_dwordx4 v{8+q}, s[44:47], s67 offen offset:{1024*q} lds")
        for t in range(3):
            a(f"""s_add_u32 m0, s{52+t}, {XT + slot*16384}
            s_add_u32 s64, s{48+t}, s65
            buffer_load_dwordx4 v13, s[36:39], s64 offen lds""")
    stage1(0)
    hd(a, 3)
    a(f"""v_mov_b32 v3, {CNT}
    v_lshl_add_u32 v14, v1, 2, v3
    v_mov_b32 v12, 0
    s_mov_b64 exec, 0xffff
    ds_write_b32 v14, v12
    s_mov_b64 exec, -1
    v_mov_b32 v14, 1""")
    hd(a, 4)
    a(f"s_waitcnt vmcnt({8 if OPT.get('spf', 0) else 7}) lgkmcnt(0)")
    hd(a, 5)
    a("s_barrier")
    hd(a, 6)
    stage1(1); stage1(2); stage1(3)
    a("s_branch h_rest")
    ENTRY_ATT = len(a.lines)
    a.label("h_rest")
    ws_srd(a)
    a("s_waitcnt vmcnt(14)\ns_barrier")
    H = 160 - 16
    vA, vB0, vB1 = 34, 35, 33
    AF, BF, B2F, ACC0, ACC1 = 48, 80, 112, 128, 144
    a(f"""s_lshr_b32 s16, s66, 1
    s_and_b32 s17, s66, 1
    s_lshl_b32 s62, s60, 1
    s_add_u32 s62, s62, s57
    s_add_u32 s62, s62, s16
    v_lshrrev_b32 v5, 3, v1
    v_and_b32 v6, 7, v1
    v_lshlrev_b32 v6, 4, v6
    v_lshl_add_u32 v6, v5, 10, v6
    s_lshl_b32 s63, s57, 1
    v_add_u32 v6, s63, v6
    s_lshl_b32 s63, s66, 4
    s_add_u32 s63, s63, s57
    v_and_b32 v7, 15, v1
    v_add_u32 v7, s63, v7
    v_lshlrev_b32 v18, 3, v7
    s_lshl_b32 s64, s56, 10
    s_sub_u32 s64, s64, 3072
    v_lshrrev_b32 v17, 4, v1
    v_lshlrev_b32 v19, 14, v17
    v_lshl_add_u32 v19, v7, 1, v19
    v_add_u32 v19, s64, v19
    s_lshl_b32 s63, s62, 1
    v_mov_b32 v20, s63
    v_bfe_u32 v16, v1, 2, 2
    v_lshlrev_b32 v16, 7, v16
    v_lshl_add_u32 v16, v17, 12, v16
    v_lshlrev_b32 v24, 5, v17
    v_and_b32 v17, 3, v1
    v_lshl_add_u32 v16, v17, 3, v16
    s_lshl_b32 s63, s66, 5
    s_add_u32 s63, s63, {XE0}
    v_add_u32 v16, s63, v16
    v_lshrrev_b32 v26, 2, v1
    v_mul_u32_u24 v32, {XOOFF}, v26
    v_mul_u32_u24 v26, 144, v26
    v_lshlrev_b32 v17, 4, v17
    v_sub_u32 v26, v17, v26
    s_lshl_b32 s63, s16, 6
    s_add_u32 s63, s63, {LEND - 144 - 3*2304}
    v_add_u32 v26, s63, v26
    v_and_b32 v21, 0x1f7, v7
    v_lshlrev_b32 v21, 12, v21
    v_sub_u32 v21, v21, v24
    v_and_b32 v9, 8, v1
    v_lshl_add_u32 v21, v9, 1, v21
    v_add_u32 v21, 96, v21
    s_mul_i32 s71, s16, {XESZ}
    s_add_u32 s71, s71, {XE0}
    v_add_u32 v27, s71, v2
    v_add_u32 v32, v32, v17
    s_add_u32 s63, s71, 4096
    v_add_u32 v32, s63, v32
    v_and_b32 v4, 31, v1
    v_lshrrev_b32 v5, 5, v1
    v_or_b32 v9, 1, v4
    v_lshlrev_b32 v17, 3, v5
    v_sub_u32 v9, v17, v9
    s_cmp_eq_u32 s17, 0
    s_cselect_b32 s63, 1055, 31
    s_sub_u32 s63, s63, 256
    v_add_u32 v9, s63, v9
    v_lshlrev_b32 v9, 1, v9
    v_and_b32 v17, 1, v4
    v_xor_b32 v17, 1, v17
    v_mul_u32_u24 v17, {XOOFF}, v17
    v_add3_u32 v{vA}, v9, v17, s71
    v_mul_u32_u24 v9, 144, v4
    v_lshlrev_b32 v17, 4, v5
    v_sub_u32 v9, v17, v9
    s_lshl_b32 s63, s16, 6
    s_add_u32 s63, s63, {LEND + 144*23 + 1152}
    v_add_u32 v{vB0}, s63, v9
    v_mov_b32 v28, 0
    v_mov_b32 v29, 0
    v_mov_b32 v30, 0
    v_mov_b32 v31, 0
    s_lshl_b32 s63, s17, 11
    v_lshlrev_b32 v22, 6, v4
    v_lshl_add_u32 v22, v5, 3, v22
    v_add_u32 v22, s63, v22
    s_add_u32 s63, s71, {4088 - 48}
    v_sub_u32 v22, s63, v22
    v_and_b32 v23, 27, v4
    v_lshlrev_b32 v23, 6, v23
    v_lshl_add_u32 v23, v5, 4, v23
    v_and_b32 v9, 4, v4
    v_lshl_add_u32 v23, v9, 3, v23
    s_lshl_b32 s63, s17, 11
    v_add_u32 v23, s63, v23""")
    for i in range(16): a(f"v_mov_b32 v{ACC0+i}, 0")
    a("v_mov_b32 v93, 0xffff")
    a(f"""ds_read_b32 v36, v3 offset:56
    s_waitcnt vmcnt(0) lgkmcnt(0)
    v_readfirstlane_b32 s{TAG}, v36
    s_barrier""")
    a(f"""s_setprio 3
    s_lshr_b32 s67, s66, 1
    s_and_b32 s68, s66, 1
    s_lshl_b32 s69, s60, 1
    s_add_u32 s69, s69, s57
    s_add_u32 s69, s69, s67
    s_lshl_b32 s70, s69, 12""")
    srd(a, 36, PK, 0x200000)
    srd(a, 40, PV, 0x200000)
    srd(a, 44, PSH, 4096)
    srd_off(a, 48, PH, "s70", 4096)
    srd(a, 52, PD, 1024)
    def first_batch(n):
        for j in range(n):
            kv_unit_step(a, 4)
            dma(a, 2, WSR, "s63", "s63", "sc1")
    a(f"""s_lshl_b32 s63, s67, 2
    s_add_u32 s63, s63, s58
    s_and_b32 s63, s63, 7
    s_mul_i32 s59, s63, 65
    s_lshr_b32 s59, s59, 2
    s_add_u32 s59, s59, s68
    s_add_u32 s59, s59, 12""")
    def bulk(n, lbl):
        a(f"s_mov_b32 s72, {n}")
        a.label(lbl)
        kv_unit_step(a, 2)
        dma(a, 2, WSR, "s63", "s63", "sc1")
        a(f"s_sub_u32 s72, s72, 1\ns_cmp_lg_u32 s72, 0\ns_cbranch_scc1 {lbl}")
    a(f"""s_lshl_b32 s64, s66, 4
    s_add_u32 s64, s64, s56
    s_lshl_b32 s64, s64, 10
    s_add_u32 s65, s64, 8192
    s_lshl_b32 s73, s66, 12
    s_add_u32 s73, s73, {XE0}
    s_mov_b32 s72, {WS_FKV}
    v_lshlrev_b32 v36, 6, v1
    s_cmp_lg_u32 s66, 0
    s_cbranch_scc1 h_nopoll
    s_barrier
    buffer_load_dwordx4 v[40:43], v36, s[{WSR}:{WSR+3}], s72 offen sc1
    s_mov_b32 s75, 0x40000""")
    a.label("h_pollkv")
    a(f"""s_sub_u32 s75, s75, 1
    s_waitcnt vmcnt(0)
    v_xor_b32 v40, s{TAG}, v40
    v_xor_b32 v41, s{TAG}, v41
    v_xor_b32 v42, s{TAG}, v42
    v_xor_b32 v43, s{TAG}, v43
    v_or3_b32 v40, v40, v41, v42
    v_or_b32 v40, v40, v43
    v_cmp_ne_u32 vcc, 0, v40
    s_cbranch_vccz h_kvready
    s_mov_b64 exec, vcc
    buffer_load_dwordx4 v[40:43], v36, s[{WSR}:{WSR+3}], s72 offen sc1
    s_cmp_lg_u32 s75, 0
    s_cbranch_scc1 h_pollkv""")
    a.label("h_kvready")
    a("s_waitcnt vmcnt(0)\ns_mov_b64 exec, -1\nds_write_b32 v3, v14\ns_branch h_b1")
    a.label("h_nopoll")
    a("s_barrier")
    a.label("h_b1")
    if OPT.get("pb1"):
        a("s_cmp_lg_u32 s3, 11\ns_cbranch_scc1 pb_done")
        a.label("pb_spin")
        a(f"s_memtime s[74:75]\ns_waitcnt lgkmcnt(0)\ns_sub_u32 s74, s74, s78\ns_cmp_lt_u32 s74, {OPT['pb1']}\ns_cbranch_scc1 pb_spin")
        a.label("pb_done")
    a("s_barrier")
    hst(a, 1, False)
    bulk(5, "h_bulk1")
    a("s_waitcnt vmcnt(0)")
    lds_add(a, 3, 4, 14)
    if OPT.get("abl") == 1:
        bulk(15, "h_bulk3"); a("s_waitcnt vmcnt(0)"); lds_add(a, 3, 8, 14); fin(a)
    dma(a, 6, 36, "s64", "s73")
    a("s_add_u32 s63, s73, 1024"); dma(a, 6, 36, "s65", "s63")
    a("s_add_u32 s63, s73, 2048"); dma(a, 6, 40, "s64", "s63")
    a("s_add_u32 s63, s73, 3072"); dma(a, 6, 40, "s65", "s63")
    a(f"""buffer_load_dwordx2 v[10:11], v18, s[44:47], 0 offen
    buffer_load_ushort v12, v19, s[36:39], 0 offen
    buffer_load_ushort v13, v19, s[36:39], 0 offen offset:1024
    buffer_load_ushort v15, v19, s[36:39], 0 offen offset:2048""")
    bulk(13, "h_bulk2")
    a("s_waitcnt vmcnt(4)")
    lds_add(a, 3, 8, 14)
    if OPT.get("abl") == 2:
        a("s_waitcnt vmcnt(0)"); lds_add(a, 3, 8, 14); fin(a)
    lds_add(a, 3, 40, 14)
    lds_wait(a, 3, 40, 4, 9)
    hst(a, 2, False)
    KR, VR, VF = 96, 104, 72
    for i in range(4): a(f"ds_read_b64_tr_b16 v[{KR+2*i}:{KR+2*i+1}], v16 offset:{i*512}")
    for i in range(4): a(f"ds_read_b64_tr_b16 v[{VR+2*i}:{VR+2*i+1}], v16 offset:{2048 + i*512}")
    a(f"""v_alignbit_b32 v88, v11, v11, 16
    v_alignbit_b32 v89, v10, v10, 16
    v_and_b32 v90, 0xffff0000, v11
    v_bfi_b32 v91, v93, v11, v10
    v_and_b32 v92, 0xffff, v10
    v_lshlrev_b32 v{KR-2}, 16, v12
    v_lshl_or_b32 v{KR-1}, v15, 16, v13
    s_waitcnt lgkmcnt(0)""")
    KS = 52
    D2 = lambda d, x, w, c: a(f"v_dot2_f32_bf16 v{d}, v{x}, v{w}, {c}")
    for i in range(8):
        D2(KS + 2*i, KR + i - 2, 90, "0"); D2(KS + 2*i + 1, KR + i - 1, 88, "0")
    for i in range(8):
        D2(KS + 2*i, KR + i - 1, 91, f"v{KS+2*i}"); D2(KS + 2*i + 1, KR + i, 89, f"v{KS+2*i+1}")
    for i in range(8):
        D2(KS + 2*i, KR + i, 92, f"v{KS+2*i}")
        a(f"v_lshlrev_b32 v{VF+2*i}, 16, v{VR+i}\nv_and_b32 v{VF+1+2*i}, 0xffff0000, v{VR+i}")
    for i in range(8):
        a(f"v_pk_mul_f32 v[{VF+2*i}:{VF+2*i+1}], v[{VF+2*i}:{VF+2*i+1}], v[{KS+2*i}:{KS+2*i+1}]")
    for q in range(8):
        a(f"v_cvt_pk_bf16_f32 v{44+q}, v{VF+15-2*q}, v{VF+14-2*q}")
    for i in range(4):
        a(f"v_mov_b32 v{52+i}, v{44+i}")
    for i in range(4):
        a(f"v_mov_b32_dpp v{44+i}, v{48+i} row_ror:8 row_mask:0xf bank_mask:0xc")
        a(f"v_mov_b32_dpp v{48+i}, v{52+i} row_ror:8 row_mask:0xf bank_mask:0x3")
    a(f"""s_lshl_b32 s64, s56, 1
    s_sub_u32 s64, {WS_XREV + 4064 - 96}, s64
    s_add_u32 s63, s64, 32768
    buffer_store_dwordx4 v[44:47], v21, s[{WSR}:{WSR+3}], s64 offen sc1
    buffer_store_dwordx4 v[48:51], v21, s[{WSR}:{WSR+3}], s63 offen sc1
    s_lshl_b32 s72, s61, 11
    s_lshl_b32 s65, s60, 6
    s_add_u32 s65, s65, s72
    s_add_u32 s64, s72, {WS_FX}
    s_add_u32 s73, s65, {WS_FX}""")
    bulk(9, "h_bulk3b")
    for i in range(4):
        a(f"buffer_load_dwordx4 v[{H+4*i}:{H+4*i+3}], v2, s[48:51], 0 offen offset:{1024*i}")
    a("buffer_load_ushort v25, v20, s[52:55], 0 offen\ns_waitcnt vmcnt(14)")
    publish(a, 3, 16, 14, 16, 73, 4)
    a("s_waitcnt vmcnt(5)")
    lds_add(a, 3, 60, 14)
    a("s_waitcnt vmcnt(0)")
    for i in range(4): a(f"ds_write_b128 v26, v[{H+4*i}:{H+4*i+3}] offset:{2304*(3-i)}")
    hst(a, 3, False)
    a(f"s_add_u32 s63, s70, {WS_XREV}")
    srd_off(a, 40, PWS, "s63", 4096)
    a(f"s_add_u32 s63, s70, {WS_Y}")
    srd_off(a, 44, PWS, "s63", 4096)
    poll32(a, 64, 16, 52)
    hst(a, 4, False)
    if OPT.get("abl") == 3: fin(a)
    X = 52
    for i in range(4):
        a(f"buffer_load_dwordx4 v[{X+6*i}:{X+6*i+3}], v2, s[40:43], 0 offen offset:{1024*i} sc1")
        a(f"buffer_load_dword v{X+6*i+4}, v2, s[40:43], 0 offen offset:{1024*i+16} sc1")
    srd(a, 36, PWO, 0x80000)
    a("s_lshr_b32 s63, s2, 3\ns_lshl_b32 s63, s63, 14\ns_lshl_b32 s74, s66, 12\ns_add_u32 s63, s63, s74")
    for i in range(4):
        a(f"buffer_load_dwordx4 v[160:163], v2, s[36:39], s63 offen offset:{1024*i}")
    a("s_mov_b64 exec, 0xff\nds_write_b128 v32, v[28:31]\ns_mov_b64 exec, -1")
    for i in range(4):
        x = X + 6*i
        a(f"s_waitcnt vmcnt({10-2*i})")
        a(f"ds_write_b128 v27, v[{x}:{x+3}] offset:{1024*i}")
        for j in range(4): a(f"v_alignbit_b32 v{36+4*(i&1)+j}, v{x+j+1}, v{x+j}, 16")
        a(f"ds_write_b128 v27, v[{36+4*(i&1)}:{39+4*(i&1)}] offset:{XOOFF+1024*i}")
    a("s_waitcnt lgkmcnt(0)")
    a_ref = [a]
    def creads(t, dual):
        a = a_ref[0]
        b = t % 4; b2 = t % 2
        if OPT.get("noreads"): return
        if t == 0:
            a(f"v_add_u32 v{vA}, 512, v{vA}\nv_subrev_u32 v{vB0}, 1152, v{vB0}")
            if dual: a(f"v_subrev_u32 v{vB1}, 1152, v{vB1}")
        for u in range(2):
            o = (2*t + u) * 8
            r = AF + 8*b + 4*u
            a(f"ds_read2_b32 v[{r}:{r+1}], v{vA} offset0:{o} offset1:{o+1}")
            a(f"ds_read2_b32 v[{r+2}:{r+3}], v{vA} offset0:{o+2} offset1:{o+3}")
        for u in range(2):
            r = BF + 8*b + 4*u
            a(f"ds_read_b128 v[{r}:{r+3}], v{vB0} offset:{144*(7-t) + 32*u}")
        if dual:
            for u in range(2):
                r = B2F + 8*b2 + 4*u
                a(f"ds_read_b128 v[{r}:{r+3}], v{vB1} offset:{144*(7-t) + 32*u}")
    if OPT.get("abl") == 4: fin(a)
    a("s_cmp_eq_u32 s68, 0\ns_cselect_b32 s72, 2, 6")
    a(f"s_setprio {OPT.get('cprio', 3)}")
    PF = OPT.get("cpf", 2)
    for t in range(PF): creads(t, False)
    a.label("h_conv1")
    for t in range(8):
        b = t % 4
        if PF == 0: creads(t, False)
        a(f"s_waitcnt lgkmcnt({6 if PF == 2 else 0})")
        if OPT.get("cspace"):
            sub = Asm(); save = a_ref[0]; a_ref[0] = sub
            creads((t + PF) % 8, False); a_ref[0] = save
            L = sub.lines; h = len(L) - 3
            MF(a, ACC0, AF + 8*b, BF + 8*b, ACC0)
            for x in L[:h]: a(x)
            MF(a, ACC0, AF + 8*b + 4, BF + 8*b + 4, ACC0)
            for x in L[h:]: a(x)
            continue
        for u in range(0 if OPT.get("nomfma") else 2): MF(a, ACC0, AF + 8*b + 4*u, BF + 8*b + 4*u, ACC0)
        if PF: creads((t + PF) % 8, False)
    a("s_sub_u32 s72, s72, 1\ns_cmp_lg_u32 s72, 0\ns_cbranch_scc1 h_conv1")
    a("s_cmp_lg_u32 s68, 0\ns_cbranch_scc1 h_convb")
    if PF: a(f"v_subrev_u32 v{vA}, 512, v{vA}\nv_add_u32 v{vB0}, 1152, v{vB0}")
    a(f"""s_waitcnt lgkmcnt(0)
    v_subrev_u32 v{vB1}, {144*32}, v{vB0}
    s_mov_b32 s72, 2""")
    for i in range(16): a(f"v_mov_b32 v{ACC1+i}, 0")
    if PF == 2: creads(0, True)
    a.label("h_conv2")
    for t in range(8):
        b = t % 4; b2 = t % 2
        if OPT.get("dsplit"):
            sub = Asm(); save = a_ref[0]; a_ref[0] = sub
            creads(t, True); a_ref[0] = save
            L = sub.lines; pre = L[:len(L)-8]; R = L[len(L)-8:]
            for x in pre: a(x)
            for u in range(2):
                for x in (R[2*u], R[2*u+1], R[4+u], R[6+u]): a(x)
                a("s_waitcnt lgkmcnt(0)")
                MF(a, ACC0, AF + 8*b + 4*u, BF + 8*b + 4*u, ACC0)
                MF(a, ACC1, AF + 8*b + 4*u, B2F + 8*b2 + 4*u, ACC1)
            continue
        if PF < 2: creads(t, True)
        a("s_waitcnt lgkmcnt(0)")
        if PF == 2: creads((t + 1) % 8, True)
        for u in range(0 if OPT.get("nomfma") else 2):
            MF(a, ACC0, AF + 8*b + 4*u, BF + 8*b + 4*u, ACC0)
            MF(a, ACC1, AF + 8*b + 4*u, B2F + 8*b2 + 4*u, ACC1)
    a("s_sub_u32 s72, s72, 1\ns_cmp_lg_u32 s72, 0\ns_cbranch_scc1 h_conv2")
    a(f"s_lshl_b32 s63, s67, 2\nv_add_u32 v9, s63, v3\ns_waitcnt lgkmcnt(0)")
    lds_wait(a, 9, 32, 1, 16)
    for i in range(4): a(f"ds_write_b128 v27, v[{ACC1+4*i}:{ACC1+4*i+3}] offset:{XOOFF + 1024*i}")
    a("s_waitcnt lgkmcnt(0)")
    lds_add(a, 9, 24, 14)
    a("s_branch h_cepi")
    a.label("h_convb")
    a(f"s_lshl_b32 s63, s67, 2\nv_add_u32 v9, s63, v3\ns_waitcnt lgkmcnt(0)")
    lds_add(a, 9, 32, 14)
    lds_wait(a, 9, 24, 1, 16)
    for i in range(4): a(f"ds_read_b128 v[{ACC1+4*i}:{ACC1+4*i+3}], v27 offset:{XOOFF + 1024*i}")
    a("s_waitcnt lgkmcnt(0)")
    for i in range(8): a(f"v_pk_add_f32 v[{ACC0+2*i}:{ACC0+2*i+1}], v[{ACC0+2*i}:{ACC0+2*i+1}], v[{ACC1+2*i}:{ACC1+2*i+1}]")
    a.label("h_cepi")
    if OPT.get("abl") == 5: fin(a)
    a("s_setprio 3")
    hst(a, 1, True)
    hst(a, 5, False)
    for aa in range(4):
        a(f"ds_read_b64 v[{48+2*aa}:{49+2*aa}], v22 offset:{48 - 16*aa}")
    a("v_lshlrev_b32 v24, 16, v25\ns_waitcnt lgkmcnt(0)")
    for aa in range(4):
        d0, d1 = 48 + 2*aa, 49 + 2*aa
        a(f"""v_and_b32 v36, 0xffff0000, v{d1}
        v_lshlrev_b32 v37, 16, v{d1}
        v_and_b32 v38, 0xffff0000, v{d0}
        v_lshlrev_b32 v39, 16, v{d0}
        v_pk_fma_f32 v[{ACC0+4*aa}:{ACC0+4*aa+1}], v[36:37], v[24:25], v[{ACC0+4*aa}:{ACC0+4*aa+1}] op_sel_hi:[1,0,1]
        v_pk_fma_f32 v[{ACC0+4*aa+2}:{ACC0+4*aa+3}], v[38:39], v[24:25], v[{ACC0+4*aa+2}:{ACC0+4*aa+3}] op_sel_hi:[1,0,1]
        v_cvt_pk_bf16_f32 v{40+2*aa}, v{ACC0+4*aa}, v{ACC0+4*aa+1}
        v_cvt_pk_bf16_f32 v{41+2*aa}, v{ACC0+4*aa+2}, v{ACC0+4*aa+3}""")
    for p in range(2):
        r = 40 + 4*p
        a(f"v_permlane32_swap_b32 v{r}, v{r+2}\nv_permlane32_swap_b32 v{r+1}, v{r+3}")
    for i in range(4): a(f"v_mov_b32 v{56+i}, v{40+i}")
    for i in range(4):
        a(f"v_mov_b32_dpp v{40+i}, v{44+i} row_shr:4 row_mask:0xf bank_mask:0xa")
        a(f"v_mov_b32_dpp v{44+i}, v{56+i} row_shl:4 row_mask:0xf bank_mask:0x5")
    for p in range(2):
        a(f"buffer_store_dwordx4 v[{40+4*p}:{43+4*p}], v23, s[44:47], 0 offen offset:{256*p} sc1")
    a(f"s_add_u32 s73, s65, {WS_FY}")
    lds_wait(a, 3, 44, 8, 16)
    a("s_waitcnt vmcnt(0)")
    publish(a, 3, 20, 14, 16, 73, 4, True)
    hst(a, 2, True)
    lds_wait(a, 3, 12, 8, 16, 4)
    hst(a, 3, True)
    a(f"""s_mul_i32 s72, s58, {8*ST}
    s_add_u32 s63, s58, 4
    s_and_b32 s63, s63, 7
    s_mul_i32 s73, s63, {8*ST}
    s_lshl_b32 s63, s66, 12
    s_add_u32 s72, s72, s63
    s_add_u32 s73, s73, s63
    s_lshl_b32 s67, s66, 15""")
    for sl in range(4):
        for q in range(4):
            a(f"s_add_u32 s63, s{72 + (sl>>1)}, {(sl&1)*16384 + q*1024}")
            dma(a, 8, 36, "s67", "s63")
            a(f"s_add_u32 s67, s67, {8192 if q < 3 else 131072 - 3*8192}")
    hst(a, 6, False)
    a("s_waitcnt vmcnt(0)")
    fin(a)

    QA, QB, NMA, NMB, SA, SB, PA, PB, OA, OB, KB, VB = 4, 8, 12, 28, 44, 60, 76, 84, 92, 108, 124, 132
    vK, vV, vKn, vVn, vKl, vVl, vC, T = 148, 149, 150, 151, 2, 152, 153, 154
    K2, NA, NB_ = T + 2, T + 6, T + 10
    def early_setup():
        srd(a, 36, PX, 0x200000)
        srd(a, 40, POUT, 0x200000)
        a(f"""s_and_b32 s64, s3, 4
        s_add_u32 s71, s58, s64
        s_and_b32 s71, s71, 7
        s_mul_i32 s59, s71, 65
        s_lshr_b32 s59, s59, 2
        s_and_b32 s64, s3, 3
        s_add_u32 s59, s59, s64
        s_mov_b32 s65, {WS_KMAX}
        v_and_b32 v{T+3}, 31, v1
        v_lshrrev_b32 v3, 5, v1
        v_and_b32 v{T+4}, 15, v1
        v_lshlrev_b32 v{T+4}, 4, v{T+4}
        v_lshl_add_u32 v{T+4}, v3, 8, v{T+4}
        v_add_u32 v{T+4}, 1024, v{T+4}
        v_mov_b32 v{vVl}, 0x100000
        v_and_b32 v{T+5}, 27, v{T+3}
        v_cmp_eq_u32 vcc, 16, v{T+5}
        v_mov_b32 v{T+5}, 1536
        v_cndmask_b32 v{vVl}, v{vVl}, v{T+5}, vcc
        v_cmp_gt_u32 vcc, 16, v{T+3}
        s_mul_i32 s70, s71, {8*ST}
        v_cndmask_b32 v{vVl}, v{vVl}, v{T+4}, vcc
        v_add_u32 v{vK}, s70, v{vKl}
        v_add_u32 v{vV}, s70, v{vVl}
        s_add_u32 s71, s71, 1
        s_and_b32 s71, s71, 7
        s_mul_i32 s70, s71, {8*ST}
        v_add_u32 v{vKn}, s70, v{vKl}
        v_add_u32 v{vVn}, s70, v{vVl}
        s_lshl_b32 s63, s64, 11
        s_add_u32 s63, s63, {QX}
        v_add_u32 v{T+4}, s63, v2
        v_lshlrev_b32 v{T+1}, 3, v1""")
        for r in list(range(PB, PB + 8, 2)) + list(range(OA, OA + 32, 2)) + list(range(VB + 8, VB + 16, 2)):
            a(f"v_pk_mov_b32 v[{r}:{r+1}], 0, 0")
    def att_init():
        a(f"""s_lshr_b32 s63, s3, 2
        s_lshl_b32 s62, s60, 1
        s_add_u32 s62, s62, s63
        s_lshl_b32 s62, s62, 5
        s_lshl_b32 s63, s61, 2
        s_add_u32 s62, s62, s63
        s_and_b32 s63, s3, 3
        s_add_u32 s62, s62, s63
        s_lshl_b32 s62, s62, 10
        s_add_u32 s62, s62, {WS_O}
        v_mov_b32 v{vC}, {CNT}""")
        early_setup()
    main = a
    a = Asm()
    a.label("e_att")
    a("""s_cmp_eq_u32 s3, 4
    s_cbranch_scc1 a_job
    """)
    a("""s_and_b32 s68, s61, 1
    s_lshl_b32 s63, s68, 4
    s_or_b32 s63, s63, s3
    s_cmp_eq_u32 s63, 5
    s_cbranch_scc1 a_gate
    s_barrier
    s_waitcnt vmcnt(0) lgkmcnt(0)
    s_mov_b32 s17, 0""")
    ws_srd(a)
    a("s_branch a_late")
    a.label("a_job")
    a("s_setprio 3")
    GW = 64
    a(f"""s_and_b32 s68, s61, 1
    v_lshrrev_b32 v8, 4, v1
    v_lshlrev_b32 v8, 4, v8
    s_lshr_b32 s64, s76, 1
    s_lshl_b32 s65, s60, 1
    s_add_u32 s64, s64, s65
    s_mul_i32 s64, s64, {ST}
    s_and_b32 s65, s76, 1
    v_and_b32 v17, 15, v1
    v_lshrrev_b32 v18, 4, v1
    v_xor_b32 v19, v17, v18
    v_lshlrev_b32 v19, 4, v19
    v_lshl_add_u32 v19, v17, 8, v19
    s_lshl_b32 s63, s76, 12
    v_add_u32 v20, s63, v19
    v_xor_b32 v21, 64, v20
    v_xor_b32 v22, 128, v20
    v_xor_b32 v23, 192, v20
    v_bfe_u32 v19, v1, 2, 2
    v_lshl_add_u32 v19, v18, 3, v19
    v_lshlrev_b32 v19, 5, v19
    v_and_b32 v24, 3, v1
    v_lshl_add_u32 v24, v24, 3, v19
    v_add_u32 v24, {WKV}, v24
    v_lshlrev_b32 v17, 4, v17
    v_lshrrev_b32 v18, 5, v1
    v_lshl_add_u32 v17, v18, 3, v17
    v_bfe_u32 v18, v1, 4, 1
    v_mov_b32 v9, 0
    v_mov_b32 v26, {CNT}
    s_mov_b32 s67, {WS_FY}
    s_lshr_b32 s69, s2, 2
    s_lshl_b32 s69, s69, {OPT.get("fsh", 6)}
    s_and_b32 s63, s2, 3
    s_lshl_b32 s63, s63, 2
    s_add_u32 s69, s69, s63
    s_add_u32 s69, s69, {WS_FKV}
    s_waitcnt lgkmcnt(0)""")
    ws_srd(a)
    a(f"""buffer_load_dword v10, v9, s[{WSR}:{WSR+3}], s67 offen sc1
    s_cmp_lg_u32 s68, 0
    s_cbranch_scc1 a_vjob""")
    JD, JG, JX, JW = 28, 4, 32, 48
    def job(ktype):
        def reads(n):
            kc, e = n >> 2, n & 3
            a(f"ds_read_b128 v[{JX+4*e}:{JX+4*e+3}], v{20+e} offset:{kc*16384}")
            a(f"ds_read_b64_tr_b16 v[{JW+4*e}:{JW+4*e+1}], v24 offset:{kc*4096 + e*1024}")
            a(f"ds_read_b64_tr_b16 v[{JW+4*e+2}:{JW+4*e+3}], v24 offset:{kc*4096 + e*1024 + 128}")
        for n in range(4): reads(n)
        for n in range(16):
            e = n & 3
            a(f"s_waitcnt lgkmcnt({3*min(3, 15-n)})")
            x, w = f"v[{JX+4*e}:{JX+4*e+3}]", f"v[{JW+4*e}:{JW+4*e+3}]"
            c = "0" if n == 0 else f"v[{JD}:{JD+3}]"
            if ktype:
                a(f"v_mfma_f32_16x16x32_bf16 v[{JD}:{JD+3}], {w}, {x}, {c}")
            else:
                a(f"v_mfma_f32_16x16x32_bf16 v[{JD}:{JD+3}], {x}, {w}, {c}")
            if n + 4 < 16: reads(n + 4)
    a(f"""s_lshl_b32 s65, s65, 8
    s_add_u32 s64, s64, s65
    v_lshl_add_u32 v17, v18, 9, v17
    s_lshl_b32 s65, s60, 2
    s_add_u32 s65, s65, s76
    s_lshl_b32 s65, s65, 2
    s_add_u32 s65, s65, {WS_KMAX}
    s_mov_b32 s17, {0 if OPT.get("dry", 0) else 1}
    s_branch a_kbody{"" if OPT.get("dry", 0) else "0"}""")
    a.label("a_kbody0")
    a("s_barrier")
    a.label("a_kbody")
    job(True)
    a("s_xor_b32 s17, s17, 1\ns_cbranch_scc1 a_kbody0")
    a(f"s_mov_b32 s63, {f32(CSCALE)}")
    for e in range(4): a(f"v_mul_f32 v{JD+e}, s63, v{JD+e}")
    a(f"""v_cvt_pk_bf16_f32 v36, v{JD}, v{JD+1}
    v_cvt_pk_bf16_f32 v37, v{JD+2}, v{JD+3}
    buffer_store_dwordx2 v[36:37], v17, s[{WSR}:{WSR+3}], s64 offen sc1
    v_mul_f32 v38, v{JD}, v{JD}
    v_fmac_f32 v38, v{JD+1}, v{JD+1}
    v_fmac_f32 v38, v{JD+2}, v{JD+2}
    v_fmac_f32 v38, v{JD+3}, v{JD+3}
    v_mov_b32 v39, v38
    v_permlane32_swap_b32 v38, v39
    v_add_f32 v38, v38, v39
    v_mov_b32 v39, v38
    v_permlane16_swap_b32 v38, v39
    v_add_f32 v38, v38, v39
    v_max_f32_dpp v38, v38, v38 row_ror:8 row_mask:0xf bank_mask:0xf
    v_max_f32_dpp v38, v38, v38 row_ror:4 row_mask:0xf bank_mask:0xf
    v_max_f32_dpp v38, v38, v38 row_ror:2 row_mask:0xf bank_mask:0xf
    v_max_f32_dpp v38, v38, v38 row_ror:1 row_mask:0xf bank_mask:0xf
    s_mov_b64 exec, 1
    buffer_store_dword v38, v9, s[{WSR}:{WSR+3}], s65 offen sc1
    s_branch a_jobdone""")
    a.label("a_vjob")
    a(f"""s_mul_i32 s65, s65, 528
    s_add_u32 s64, s64, s65
    v_mov_b32 v12, 0x3f803f80
    v_mov_b32 v13, 0x3f803f80
    v_mov_b32 v14, 0x3f803f80
    v_mov_b32 v15, 0x3f803f80
    s_mov_b64 exec, 1
    buffer_store_dwordx4 v[12:15], v9, s[{WSR}:{WSR+3}], s64 offen offset:1536 sc1
    s_mov_b64 exec, -1
    v_lshl_add_u32 v17, v18, 8, v17
    s_mov_b32 s17, {0 if OPT.get("dry", 0) else 1}
    s_branch a_vbody{"" if OPT.get("dry", 0) else "0"}""")
    a.label("a_vbody0")
    a("s_barrier")
    a.label("a_vbody")
    job(False)
    a("s_xor_b32 s17, s17, 1\ns_cbranch_scc1 a_vbody0")
    a(f"""v_cvt_pk_bf16_f32 v36, v{JD}, v{JD+1}
    v_cvt_pk_bf16_f32 v37, v{JD+2}, v{JD+3}
    buffer_store_dwordx2 v[36:37], v17, s[{WSR}:{WSR+3}], s64 offen offset:1024 sc1
    s_mov_b64 exec, 1""")
    a.label("a_jobdone")
    ast(a, 1, False)
    a(f"""s_mov_b32 s63, 0x9e3779b1
    s_waitcnt vmcnt(1)
    v_mul_lo_u32 v10, v10, s63
    v_add_u32 v10, 0x7f4a7c15, v10
    s_waitcnt vmcnt(0)
    buffer_store_dword v10, v9, s[{WSR}:{WSR+3}], s69 offen sc1
    ds_write_b32 v26, v10 offset:56
    s_mov_b64 exec, -1
    s_setprio 0
    s_branch a_late2""")
    ATT_HEAD = a
    a = main
    a.lines[ENTRY_ATT:ENTRY_ATT] = ATT_HEAD.lines
    a.label("a_gate")
    a("v_lshrrev_b32 v8, 4, v1\nv_lshlrev_b32 v8, 4, v8\ns_waitcnt lgkmcnt(0)")
    ws_srd(a)
    srd(a, 52, PGW, 1024)
    for p in range(4):
        a(f"s_add_u32 s63, s59, {p}\ns_and_b32 s63, s63, 3\ns_lshl_b32 s63, s63, 8")
        for e in range(4):
            r = GW + 16*p + 4*e
            a(f"buffer_load_dwordx4 v[{r}:{r+3}], v8, s[52:55], s63 offen offset:{64*e}")
    a(f"""v_and_b32 v17, 15, v1
    v_lshrrev_b32 v18, 4, v1
    v_xor_b32 v19, v17, v18
    v_lshlrev_b32 v19, 4, v19
    v_lshl_add_u32 v19, v17, 8, v19
    s_lshl_b32 s63, s76, 12
    v_add_u32 v20, s63, v19
    v_xor_b32 v21, 64, v20
    v_xor_b32 v22, 128, v20
    v_xor_b32 v23, 192, v20
    s_lshl_b32 s65, s60, 2
    s_add_u32 s65, s65, s76
    s_lshl_b32 s67, s65, 6
    s_add_u32 s67, s67, {WS_G}
    v_lshlrev_b32 v25, 2, v1
    s_barrier""")
    for n in range(8): a(f"ds_read_b128 v[{32+4*n}:{35+4*n}], v{20+(n&3)} offset:{(n>>2)*16384}")
    a("s_waitcnt vmcnt(0)")
    for n in range(16):
        a(f"s_waitcnt lgkmcnt({min(7, 15-n)})")
        r = 32 + 4*(n & 7)
        a(f"v_mfma_f32_16x16x32_bf16 v[{JG}:{JG+3}], v[{GW+4*n}:{GW+4*n+3}], v[{r}:{r+3}], " + ("0" if n == 0 else f"v[{JG}:{JG+3}]"))
        if n + 8 < 16: a(f"ds_read_b128 v[{r}:{r+3}], v{20+(n&3)} offset:{((n+8)>>2)*16384}")
    a(f"""s_mov_b32 s63, {f32(-math.log2(math.e))}
    v_mul_f32 v10, s63, v{JG}
    v_exp_f32 v10, v10
    v_add_f32 v10, 1.0, v10
    v_rcp_f32 v10, v10
    s_mov_b64 exec, 0xffff
    buffer_store_dword v10, v25, s[{WSR}:{WSR+3}], s67 offen sc1
    s_mov_b64 exec, -1""")
    a.label("a_late2")
    ast(a, 2, False)
    a("s_mov_b32 s17, 1\ns_waitcnt lgkmcnt(0)\ns_barrier")
    a.label("a_late")
    a("s_waitcnt vmcnt(0)" if False else "s_nop 0")
    att_init()
    a("""s_cmp_lt_u32 s3, 4
    s_cbranch_scc1 a_gemm
    s_cmp_eq_u32 s17, 1
    s_cbranch_scc1 a_late3
    s_barrier""")
    a.label("a_late3")
    a("""s_waitcnt vmcnt(0)
    s_barrier
    s_barrier
    s_branch a_common""")
    a.label("a_gemm")
    vB, vAg, ACC, FA, FB = 124, 132, 68, 4, 36
    a(f"""s_lshr_b32 s63, s3, 1
    s_lshl_b32 s63, s63, 13
    v_and_b32 v8, 31, v1
    v_lshrrev_b32 v9, 5, v1
    v_and_b32 v10, 15, v1
    v_xor_b32 v10, v10, v9
    v_lshlrev_b32 v10, 4, v10
    v_lshl_add_u32 v10, v8, 8, v10
    v_add_u32 v{vB}, s63, v10""")
    for e in range(1, 8): a(f"v_xor_b32 v{vB+e}, {e*32}, v{vB}")
    a(f"""s_and_b32 s63, s3, 1
    v_bfe_u32 v8, v1, 2, 2
    v_lshrrev_b32 v10, 1, v8
    v_xor_b32 v10, s63, v10
    v_lshlrev_b32 v10, 6, v10
    v_lshl_add_u32 v8, v9, 3, v8
    v_lshl_add_u32 v10, v8, 7, v10
    v_bfe_u32 v8, v1, 4, 1
    v_lshl_add_u32 v10, v8, 5, v10
    v_and_b32 v8, 3, v1
    v_lshl_add_u32 v10, v8, 3, v10
    v_add_u32 v{vAg}, {WT}, v10
    s_lshl_b32 s63, s63, 12
    s_lshr_b32 s64, s3, 1
    s_lshl_b32 s64, s64, 10
    s_add_u32 s63, s63, s64
    s_add_u32 s63, s63, {QX}
    v_add_u32 v133, s63, v2""")
    def gemm_half(h):
        def reads(n):
            kc, e = n >> 3, n & 7
            a(f"ds_read_b128 v[{FB+4*e}:{FB+4*e+3}], v{vB+e} offset:{kc*16384}")
            a(f"ds_read_b64_tr_b16 v[{FA+4*e}:{FA+4*e+1}], v{vAg} offset:{kc*16384 + e*2048}")
            a(f"ds_read_b64_tr_b16 v[{FA+4*e+2}:{FA+4*e+3}], v{vAg} offset:{kc*16384 + e*2048 + 512}")
        n0 = 16*h
        for n in range(5): reads(n0 + n)
        for n in range(16):
            e = n & 7
            a(f"s_waitcnt lgkmcnt({3*min(4, 15-n)})")
            MF(a, ACC, FA + 4*e, FB + 4*e, None if (h == 0 and n == 0) else ACC)
            if n + 5 < 16: reads(n0 + n + 5)
    if OPT.get("qcnt"):
        lds_wait(a, vC, 48, 4, 8); ast(a, 1, False); gemm_half(0)
        lds_wait(a, vC, 60, 4, 8); gemm_half(1)
    else:
        a("s_barrier"); ast(a, 1, False); gemm_half(0)
        a("s_barrier"); gemm_half(1)
    for i in range(8): a(f"v_cvt_pk_bf16_f32 v{FA+i}, v{ACC+2*i}, v{ACC+2*i+1}")
    a(f"""ds_write_b128 v133, v[{FA}:{FA+3}]
    ds_write_b128 v133, v[{FA+4}:{FA+7}] offset:2048""")
    ast(a, 2, False)
    a("s_waitcnt lgkmcnt(0)\ns_barrier")
    a.label("a_common")
    a(f"""ds_read_b128 v[{QA}:{QA+3}], v{T+4}
    ds_read_b128 v[{QB}:{QB+3}], v{T+4} offset:1024""")
    lds_wait(a, vC, 0, 1, T)
    if DIAG:
        a("s_cmp_lt_u32 s3, 5\ns_cbranch_scc1 a_nost")
        ast(a, 1, False)
        a.label("a_nost")
    a(f"buffer_load_dwordx2 v[{K2}:{K2+1}], v{T+1}, s[{WSR}:{WSR+3}], s65 offen sc1")
    first_batch(3)
    for i in range(4): a(f"v_dot2_f32_bf16 v{NA+i}, v{QA+i}, v{QA+i}, 0")
    for i in range(4): a(f"v_dot2_f32_bf16 v{NB_+i}, v{QB+i}, v{QB+i}, 0")
    a(f"""v_mov_b32 v{SB+14}, 0
    v_mov_b32 v{SB+15}, 0
    v_add_f32 v{NA}, v{NA}, v{NA+1}
    v_add_f32 v{NA+2}, v{NA+2}, v{NA+3}
    v_add_f32 v{NB_}, v{NB_}, v{NB_+1}
    v_add_f32 v{NB_+2}, v{NB_+2}, v{NB_+3}
    v_add_f32 v{NA}, v{NA}, v{NA+2}
    v_add_f32 v{NB_}, v{NB_}, v{NB_+2}
    v_mov_b32 v{NA+1}, v{NA}
    v_mov_b32 v{NB_+1}, v{NB_}
    v_permlane32_swap_b32 v{NA}, v{NA+1}
    v_permlane32_swap_b32 v{NB_}, v{NB_+1}
    v_add_f32 v{NA}, v{NA}, v{NA+1}
    v_add_f32 v{NB_}, v{NB_}, v{NB_+1}""")
    a(f"""s_waitcnt vmcnt(3)
    v_max_f32 v{K2}, v{K2}, v{K2+1}
    v_max_f32_dpp v{K2}, v{K2}, v{K2} row_ror:8 row_mask:0xf bank_mask:0xf
    v_max_f32_dpp v{K2}, v{K2}, v{K2} row_ror:4 row_mask:0xf bank_mask:0xf
    v_max_f32_dpp v{K2}, v{K2}, v{K2} row_ror:2 row_mask:0xf bank_mask:0xf
    v_max_f32_dpp v{K2}, v{K2}, v{K2} row_ror:1 row_mask:0xf bank_mask:0xf
    v_mov_b32 v{K2+1}, v{K2}
    v_permlane32_swap_b32 v{K2}, v{K2+1}
    v_max_f32 v{K2}, v{K2}, v{K2+1}
    v_mov_b32 v{K2+1}, v{K2}
    v_permlane16_swap_b32 v{K2}, v{K2+1}
    v_max_f32 v{K2}, v{K2}, v{K2+1}
    v_mul_f32 v{NA}, v{NA}, v{K2}
    v_mul_f32 v{NB_}, v{NB_}, v{K2}
    s_mov_b32 s72, {f32(1600.0)}
    v_cmp_nle_f32 vcc, v{NA}, s72
    v_cmp_nle_f32 s[74:75], v{NB_}, s72
    v_sqrt_f32 v{NA}, v{NA}
    v_sqrt_f32 v{NB_}, v{NB_}
    s_or_b64 vcc, vcc, s[74:75]
    v_mov_b32 v{T+1}, 1
    s_waitcnt vmcnt(0)
    s_barrier""")
    a("s_cbranch_vccz a_fast")
    lds_wait(a, vC, 60, 4, T)
    a(f"""v_mov_b32 v{NA}, 0xff800000
    v_mov_b32 v{NB_}, 0xff800000
    v_mov_b32 v{T}, v{vKl}
    s_mov_b32 s74, 64""")
    a.label("a_maxloop")
    a(f"ds_read_b128 v[{KB}:{KB+3}], v{T}\nv_add_u32 v{T}, {ST}, v{T}\ns_waitcnt lgkmcnt(0)")
    MF(a, SA, KB, QA, None); MF(a, NMA, KB, QB, None)
    for i in range(8): a(f"v_max3_f32 v{NA}, v{NA}, v{SA+2*i}, v{SA+2*i+1}")
    for i in range(8): a(f"v_max3_f32 v{NB_}, v{NB_}, v{NMA+2*i}, v{NMA+2*i+1}")
    a(f"""s_sub_u32 s74, s74, 1
    s_cmp_lg_u32 s74, 0
    s_cbranch_scc1 a_maxloop
    v_mov_b32 v{NA+1}, v{NA}
    v_mov_b32 v{NB_+1}, v{NB_}
    v_permlane32_swap_b32 v{NA}, v{NA+1}
    v_permlane32_swap_b32 v{NB_}, v{NB_+1}
    v_max_f32 v{NA}, v{NA}, v{NA+1}
    v_max_f32 v{NB_}, v{NB_}, v{NB_+1}""")
    a.label("a_fast")
    ast(a, 3, False)
    a(f"""ds_read_b128 v[{KB}:{KB+3}], v{vK}
    ds_read_b128 v[{KB+4}:{KB+7}], v{vK} offset:{ST}
    ds_read_b128 v[{VB}:{VB+3}], v{vV}
    ds_read_b128 v[{VB+4}:{VB+7}], v{vV} offset:528""")
    for i in range(4): a(f"v_mov_b32 v{PA+i}, -1")
    a(f"buffer_store_dwordx4 v[{PA}:{PA+3}], v2, s[{WSR}:{WSR+3}], s62 offen sc1")
    a(f"v_sub_f32 v{NA}, 0, v{NA}\nv_sub_f32 v{NB_}, 0, v{NB_}")
    for i in range(8): a(f"v_pk_mov_b32 v[{NMA+2*i}:{NMA+2*i+1}], v[{NA}:{NA+1}], v[{NA}:{NA+1}] op_sel:[0,0]")
    for i in range(8): a(f"v_pk_mov_b32 v[{NMB+2*i}:{NMB+2*i+1}], v[{NB_}:{NB_+1}], v[{NB_}:{NB_+1}] op_sel:[0,0]")
    a("s_waitcnt lgkmcnt(0)")
    MF(a, SA, KB, QA, NMA)
    a("s_mov_b32 s73, 4\ns_setprio 2\ns_nop 9")
    a(".p2align 6")
    a.label("a_loop")
    for tt in range(8):
        cur = tt & 1; nxt = cur ^ 1
        Kc, Kn = KB + 4*cur, KB + 4*nxt
        Vc, Vn = VB + 8*cur, VB + 8*nxt
        kreg, koff = (vK, (tt + 2) * ST) if tt < 6 else (vKn, (tt - 6) * ST)
        vreg, voff = (vV, (tt + 1) * ST) if tt < 7 else (vVn, 0)
        for ph in range(2):
            S, P, Po, So, O = (SA, PA, PB, SB, OA) if ph == 0 else (SB, PB, PA, SA, OB)
            ex = lambda i: a(f"v_exp_f32 v{S+i}, v{S+i}")
            cv = lambda j: a(f"v_cvt_pk_bf16_f32 v{P+j}, v{S+2*j}, v{S+2*j+1}")
            ex(0)
            a(f"v_cvt_pk_bf16_f32 v{Po+7}, v{So+14}, v{So+15}")
            ex(1)
            if ph == 0:
                MF(a, SB, Kc, QB, NMB)
                a(f"ds_read_b128 v[{Kc}:{Kc+3}], v{kreg} offset:{koff}")
            else:
                MF(a, SA, Kn, QA, NMA)
                if tt == 7: a("s_add_u32 s71, s71, 1")
                if tt == 6: a("s_sub_u32 s73, s73, 1")
                if tt == 2: a("s_cmp_eq_u32 s73, 4")
            ex(2); ex(3); cv(0); ex(4); ex(5); cv(1)
            if ph == 0:
                MF(a, OB, Vn + 4, PB + 4, OB)
                a(f"ds_read_b128 v[{Vn}:{Vn+3}], v{vreg} offset:{voff}")
            else:
                MF(a, OA, Vc + 4, PA + 4, OA)
                a("s_waitcnt lgkmcnt(0)")
            ex(6); ex(7); cv(2); ex(8); ex(9); cv(3); ex(10); ex(11)
            MF(a, O, Vc, P, O)
            if ph == 0:
                a(f"ds_read_b128 v[{Vn+4}:{Vn+7}], v{vreg} offset:{voff+528}")
            elif tt == 7:
                a("s_and_b32 s71, s71, 7")
            cv(4); ex(12); ex(13); cv(5); ex(14); ex(15)
            if ph == 1 and tt == 7:
                a(f"""s_mul_i32 s70, s71, {8*ST}
                v_mov_b32 v{vK}, v{vKn}
                v_mov_b32 v{vV}, v{vVn}
                v_add_u32 v{vKn}, s70, v{vKl}
                v_add_u32 v{vVn}, s70, v{vVl}""")
            cv(6)
        if tt == 2:
            a("s_cbranch_scc1 a_chk1")
            a.label("a_ret1")
    a("s_cmp_eq_u32 s73, 1\ns_cbranch_scc1 a_it2\ns_cmp_eq_u32 s73, 0\ns_cbranch_scc1 a_done")
    a("s_cmp_eq_u32 s73, 3\ns_cbranch_scc0 a_it1")
    ast(a, 4, False)
    a("s_waitcnt vmcnt(0)")
    lds_add(a, vC, 44, T + 1)
    lds_wait(a, vC, 8, 4, T)
    a("s_branch a_loop")
    a.label("a_chk1")
    lds_wait(a, vC, 4, 4, T)
    a("s_branch a_ret1")
    a.label("a_it1")
    lds_add(a, vC, 12, T + 1)
    lds_wait(a, vC, 60, 4, T)
    a("s_setprio 1\ns_branch a_loop")
    a.label("a_it2")
    OF, WF, C0, C1, AX, YR, GR = 12, 44, 108, 124, 140, 148, 152
    vWr, vRd, vRow, vG, XR, vWo, vY, vWr4, vRd4 = 156, 157, 158, 159, 160, 164, 165, 166, 167
    a(f"""s_and_b32 s66, s3, 1
    s_lshr_b32 s67, s3, 1
    s_lshl_b32 s63, s66, 5
    s_add_u32 s63, s63, s56
    v_and_b32 v{vG}, 31, v1
    v_add_u32 v{vG}, s63, v{vG}
    v_lshlrev_b32 v{vRow}, 3, v3
    v_lshl_add_u32 v{vRow}, v{vG}, 10, v{vRow}
    v_lshlrev_b32 v{vG}, 2, v{vG}
    s_lshl_b32 s69, s67, 5
    s_lshl_b32 s63, s57, 1
    s_add_u32 s69, s69, s63
    buffer_load_dwordx2 v[{XR}:{XR+1}], v{vRow}, s[36:39], s69 offen
    buffer_load_dwordx2 v[{XR+2}:{XR+3}], v{vRow}, s[36:39], s69 offen offset:16
    v_lshl_add_u32 v{vRow}, v3, 3, v{vRow}
    {"buffer_load_dword v%d, v%d, s[40:43], s69 offen" % (T + 1, vRow) if OPT.get("touch") else ""}
    s_cmp_lt_u32 s3, 3
    s_cselect_b32 s63, 0, {OX1 - 3*2304 - OX0}
    s_mul_i32 s64, s3, 2304
    s_add_u32 s63, s63, s64
    s_add_u32 s63, s63, {OX0}
    v_add_u32 v{vWr}, s63, v2
    v_lshl_add_u32 v{vWr4}, v1, 2, s63
    s_xor_b32 s65, s3, 4
    s_cmp_lt_u32 s65, 3
    s_cselect_b32 s63, 0, {OX1 - 3*2304 - OX0}
    s_mul_i32 s64, s65, 2304
    s_add_u32 s63, s63, s64
    s_add_u32 s63, s63, {OX0}
    v_add_u32 v{vRd}, s63, v2
    v_lshl_add_u32 v{vRd4}, v1, 2, s63
    s_lshl_b32 s68, s60, 1
    s_add_u32 s68, s68, s66
    s_lshl_b32 s68, s68, 5
    s_lshl_b32 s63, s67, 3
    s_add_u32 s68, s68, s63
    s_lshl_b32 s68, s68, 10
    s_add_u32 s68, s68, {WS_O}
    s_add_u32 s59, s68, 4096
    s_lshl_b32 s63, s67, 1
    s_and_b32 s63, s63, 4
    s_add_u32 s63, s63, s58
    s_and_b32 s63, s63, 7
    s_mul_i32 s63, s63, {8*ST}
    s_and_b32 s64, s67, 1
    s_lshl_b32 s64, s64, 14
    s_add_u32 s63, s63, s64
    v_bfe_u32 v{vY}, v1, 2, 2
    v_lshrrev_b32 v{vWo}, 1, v{vY}
    v_lshl_add_u32 v{vY}, v3, 2, v{vY}
    v_lshlrev_b32 v{vY}, 7, v{vY}
    v_bfe_u32 v{T}, v1, 4, 1
    v_lshl_add_u32 v{vY}, v{T}, 5, v{vY}
    v_and_b32 v{T}, 3, v1
    v_lshl_add_u32 v{vY}, v{T}, 3, v{vY}
    v_lshl_add_u32 v{vWo}, v{vWo}, 6, v{vY}
    v_add_u32 v{vWo}, s63, v{vWo}
    s_lshl_b32 s63, s67, 11
    s_lshl_b32 s64, s66, 6
    s_add_u32 s63, s63, s64
    s_add_u32 s63, s63, {YT}
    v_add_u32 v{vY}, s63, v{vY}
    s_lshl_b32 s63, s66, 2
    s_add_u32 s63, s63, s58
    s_add_u32 s63, s63, 2
    s_and_b32 s63, s63, 7
    s_mul_i32 s72, s63, {8*ST}
    s_mov_b32 s76, {WS_G}
    ds_read_b32 v{T}, v{vC} offset:56
    s_waitcnt lgkmcnt(0)
    v_readfirstlane_b32 s{TAG}, v{T}
    s_setprio 0
    s_cmp_lt_u32 s3, 4
    s_cbranch_scc1 a_loop""")
    if not OPT.get("abl"): lds_wait(a, vC, 20, 4, T, 2)
    a("s_branch a_loop")
    a.label("a_done")
    stamp(a, 5)
    a(f"v_cvt_pk_bf16_f32 v{PB+7}, v{SB+14}, v{SB+15}\ns_cmp_ge_u32 s3, 4")
    MF(a, OB, VB + 12, PB + 4, OB)
    a(f"""s_cbranch_scc1 a_red1
    v_lshlrev_b32 v10, 6, v1
    s_lshl_b32 s63, s61, 11
    v_add_u32 v10, s63, v10
    s_lshl_b32 s63, s60, 6
    s_mov_b32 exec_lo, 0
    v_and_b32 v10, 7, v1
    v_lshlrev_b32 v10, 11, v10
    v_add_u32 v10, s63, v10
    s_mov_b32 exec_lo, -1
    s_mov_b32 s73, {WS_FY}
    s_mov_b32 s75, {1 if OPT.get("abl") else 0x40000}
    v_lshrrev_b32 v7, 3, v1
    v_and_b32 v8, 7, v1
    v_lshlrev_b32 v8, 4, v8
    v_lshl_add_u32 v8, v7, 12, v8
    s_lshl_b32 s64, s3, 4
    s_add_u32 s64, s64, s57
    s_lshl_b32 s64, s64, 12
    s_lshl_b32 s63, s56, 1
    s_add_u32 s64, s64, s63
    s_add_u32 s64, s64, {WS_Y}
    s_add_u32 s65, s64, 32768
    s_lshl_b32 s63, s3, 11
    s_add_u32 s63, s63, {YT}
    v_add_u32 v7, s63, v2""")
    a.label("a_ypoll")
    a(f"""buffer_load_dwordx2 v[20:21], v10, s[{WSR}:{WSR+3}], s73 offen sc1
    s_sub_u32 s75, s75, 1
    s_waitcnt vmcnt(0)
    v_cmp_ne_u32 vcc, s{TAG}, v20
    s_cbranch_vccz a_yready
    s_sleep 4
    s_cmp_lg_u32 s75, 0
    s_cbranch_scc1 a_ypoll""")
    a.label("a_yready")
    a(f"""buffer_load_dwordx4 v[12:15], v8, s[{WSR}:{WSR+3}], s64 offen sc1
    buffer_load_dwordx4 v[16:19], v8, s[{WSR}:{WSR+3}], s65 offen sc1
    s_getreg_b32 s63, hwreg(HW_REG_XCC_ID)
    v_cmp_ne_u32 vcc, s63, v21
    s_cmp_eq_u32 vcc_hi, 0
    s_cselect_b32 s63, 1, 0
    v_mov_b32 v11, s63
    ds_write_b32 v{vC}, v11 offset:48
    s_waitcnt vmcnt(1)
    ds_write_b128 v7, v[12:15]
    s_waitcnt vmcnt(0)
    ds_write_b128 v7, v[16:19] offset:1024""")
    for (lbl, W, Kp) in (("", OB, OA), ("a_red1", OA, OB)):
        if lbl: a.label(lbl)
        a(f"""ds_write_b128 v{vWr}, v[{W}:{W+3}]
        ds_write_b128 v{vWr}, v[{W+4}:{W+7}] offset:1024
        ds_write_b32 v{vWr4}, v{W+8} offset:2048
        v_xor_b32 v9, 64, v{vWo}
        s_mov_b32 s75, 0x40000
        s_waitcnt lgkmcnt(0)
        s_barrier
        ds_read_b32 v10, v{vC} offset:48
        ds_read_b32 v{SA+8}, v{vRd4} offset:2048
        ds_read_b128 v[{SA}:{SA+3}], v{vRd}
        ds_read_b128 v[{SA+4}:{SA+7}], v{vRd} offset:1024
        ds_read_b64_tr_b16 v[{YR}:{YR+1}], v{vY}
        ds_read_b64_tr_b16 v[{YR+2}:{YR+3}], v{vY} offset:1024
        s_waitcnt lgkmcnt(4)
        buffer_load_dword v{GR}, v{vG}, s[{WSR}:{WSR+3}], s76 offen sc1
        v_readfirstlane_b32 s63, v10
        v_add_f32 v{Kp+8}, v{Kp+8}, v{SA+8}
        v_rcp_f32 v{T}, v{Kp+8}
        s_waitcnt lgkmcnt(2)""")
        for i in range(8): a(f"v_add_f32 v{Kp+i}, v{Kp+i}, v{SA+i}")
        for i in range(8): a(f"v_mul_f32 v{Kp+i}, v{Kp+i}, v{T}")
        for i in range(4): a(f"v_cvt_pk_bf16_f32 v{4+i}, v{Kp+2*i}, v{Kp+2*i+1}")
        if not lbl: a("s_branch a_p3")
    a.label("a_p3")
    a(f"""s_cmp_eq_u32 s63, {1 if OPT.get("oloc", 1) else 5}
    s_cbranch_scc1 a_olocal
    buffer_store_dwordx4 v[4:7], v2, s[{WSR}:{WSR+3}], s62 offen sc1
    s_branch a_ostored""")
    a.label("a_olocal")
    a(f"buffer_store_dwordx4 v[4:7], v2, s[{WSR}:{WSR+3}], s62 offen {('', 'nt', 'sc0')[OPT.get('oflag', 0)]}")
    a.label("a_ostored")
    ast(a, 2, True)
    for e in range(8):
        for mt in range(2):
            r = WF + 8*e + 4*mt
            if e in (3, 5, 7) and mt == 0: a("s_waitcnt lgkmcnt(6)")
            a(f"ds_read_b64_tr_b16 v[{r}:{r+1}], v{(vWo, 9)[mt]} offset:{e*2048}")
            a(f"ds_read_b64_tr_b16 v[{r+2}:{r+3}], v{(vWo, 9)[mt]} offset:{e*2048+1024}")
    if OPT.get("oack"): a("s_waitcnt vmcnt(0)")
    ast(a, 3, True)
    for i in range(8):
        a(f"buffer_load_dwordx4 v[{OF+4*i}:{OF+4*i+3}], v2, s[{WSR}:{WSR+3}], s{68 if i < 4 else 59} offen offset:{1024*(i&3)} sc1")
    a(f"s_waitcnt vmcnt({8 if OPT.get('oack') else 9})\nv_sub_f32 v{GR+1}, 1.0, v{GR}")
    for aa in range(2):
        x0, x1, y0, y1, t = XR + 2*aa, XR + 2*aa + 1, YR + 2*aa, YR + 2*aa + 1, AX + 4*aa
        a(f"""v_lshlrev_b32 v{t}, 16, v{x0}
        v_and_b32 v{t+1}, 0xffff0000, v{x0}
        v_lshlrev_b32 v{t+2}, 16, v{x1}
        v_and_b32 v{t+3}, 0xffff0000, v{x1}
        v_lshlrev_b32 v154, 16, v{y0}
        v_and_b32 v155, 0xffff0000, v{y0}
        v_lshlrev_b32 v156, 16, v{y1}
        v_and_b32 v157, 0xffff0000, v{y1}""")
        for e in range(4): a(f"v_mul_f32 v{t+e}, v{t+e}, v{154+e}")
        for e in range(4): a(f"v_mul_f32 v{t+e}, v{t+e}, v{GR}")
    a(f"""s_lshl_b32 s63, s67, 11
    s_add_u32 s63, s63, s72
    v_add_u32 v8, s63, v2
    s_lshl_b32 s63, s67, 13
    s_add_u32 s63, s63, s72
    v_add_u32 v11, s63, v2
    s_waitcnt lgkmcnt(0)""")
    for e in range(8):
        r = OF + 4*e
        a(f"s_waitcnt vmcnt({7-e})")
        a.label(f"a_ochk{e}")
        a(f"""v_max3_u32 v10, v{r}, v{r+1}, v{r+2}
        v_max_u32 v10, v10, v{r+3}
        v_cmp_eq_u32 vcc, -1, v10
        s_cbranch_vccnz a_oretry{e}""")
        a.label(f"a_ogo{e}")
        MF(a, C0, WF + 8*e, r, None if e == 0 else C0)
        MF(a, C1, WF + 8*e + 4, r, None if e == 0 else C1)
    stamp(a, 6)
    for ow in range(4):
        a(f"ds_write_b128 v8, v[{C0+8*ow}:{C0+8*ow+3}] offset:{8192*ow}")
        a(f"ds_write_b128 v8, v[{C0+8*ow+4}:{C0+8*ow+7}] offset:{8192*ow+1024}")
    a("s_waitcnt lgkmcnt(0)\ns_barrier")
    for sr in range(4):
        a(f"ds_read_b128 v[{OF+8*sr}:{OF+8*sr+3}], v11 offset:{2048*sr}")
        a(f"ds_read_b128 v[{OF+8*sr+4}:{OF+8*sr+7}], v11 offset:{2048*sr+1024}")
    a("s_waitcnt lgkmcnt(4)")
    for i in range(8): a(f"v_add_f32 v{OF+i}, v{OF+i}, v{OF+8+i}")
    a("s_waitcnt lgkmcnt(0)")
    for i in range(8): a(f"v_add_f32 v{OF+16+i}, v{OF+16+i}, v{OF+24+i}")
    for i in range(8): a(f"v_add_f32 v{OF+i}, v{OF+i}, v{OF+16+i}")
    for i in range(8): a(f"v_fmac_f32 v{AX+i}, v{OF+i}, v{GR+1}")
    for i in range(4): a(f"v_cvt_pk_bf16_f32 v{OF+i}, v{AX+2*i}, v{AX+2*i+1}")
    a(f"""v_permlane32_swap_b32 v{OF}, v{OF+2}
    v_permlane32_swap_b32 v{OF+1}, v{OF+3}
    buffer_store_dwordx4 v[{OF}:{OF+3}], v{vRow}, s[40:43], s69 offen {('', 'nt', 'sc1', 'sc0 sc1')[OPT.get('outflag', 0)]}""")
    if OPT.get("delay1"):
        a(f"s_mov_b32 s60, {OPT['delay1']}")
        a.label("dly1")
        a("s_nop 15\ns_nop 15\ns_nop 15\ns_nop 15\ns_sub_u32 s60, s60, 1\ns_cmp_lg_u32 s60, 0\ns_cbranch_scc1 dly1")
    fin(a)
    for e in range(8):
        a.label(f"a_oretry{e}")
        a("s_waitcnt vmcnt(0)")
        for i in range(e, 8):
            a(f"buffer_load_dwordx4 v[{OF+4*i}:{OF+4*i+3}], v2, s[{WSR}:{WSR+3}], s{68 if i < 4 else 59} offen offset:{1024*(i&3)} sc1")
        a(f"""s_sub_u32 s75, s75, 1
        s_waitcnt vmcnt({7-e})
        s_cmp_lg_u32 s75, 0
        s_cbranch_scc1 a_ochk{e}
        s_branch a_ogo{e}""")
    a.label("k_end")
    a("s_endpgm")
    return a.finish()

def build():
    hdr = open("cdna_kernels/" + NAME + ".s.ref").read().split("; Override launch")[0]
    out = hdr + f"; @launch grid=(256,1,1) block=(768,1,1) lds={LEND}\n"
    out += f'.amdgcn_target "amdgcn-amd-amdhsa--gfx950"\n.text\n.globl {KN}\n.p2align 8\n.type {KN},@function\n' + kernel() + "code_end:\n"
    out += f""".section .rodata,"a"
.p2align 6
.amdhsa_kernel {KN}
  .amdhsa_next_free_vgpr 168
  .amdhsa_next_free_sgpr {100 if DIAG else 80}
  .amdhsa_accum_offset 168
  .amdhsa_group_segment_fixed_size 0
  .amdhsa_kernarg_size 120
  .amdhsa_user_sgpr_count 2
  .amdhsa_user_sgpr_kernarg_segment_ptr 1
  .amdhsa_system_sgpr_workgroup_id_x 1
.end_amdhsa_kernel
"""
    return out

if __name__ == "__main__":
    for x in list(sys.argv):
        if "=" in x:
            kk, vv = x.split("="); OPT[kk] = int(vv); sys.argv.remove(x)
    if "-l" in sys.argv:
        DIAG = True; LIGHT = True; sys.argv.remove("-l")
    if "-d" in sys.argv:
        DIAG = True; sys.argv.remove("-d")
    dst = sys.argv[1] if len(sys.argv) > 1 else "cdna_kernels/" + NAME + ".s"
    open(dst, "w").write(build())
    print("wrote", dst)
```
